```python
import torch

def _softmax(x, axis=-1):
    return torch.softmax(x, dim=axis)

def _gelu(x):
    return torch.nn.functional.gelu(x, approximate='tanh')

def _silu(x):
    return torch.nn.functional.silu(x)

def _sigmoid(x):
    return torch.sigmoid(x)

def _layernorm(x, axis=-1, eps=1e-05):
    m = x.mean(dim=axis, keepdim=True)
    v = x.var(dim=axis, keepdim=True, unbiased=False)
    return (x - m) / torch.sqrt(v + eps)

def _scatter_add(tgt, idx, src, axis=0):
    return tgt.clone().index_add_(axis, idx, src)

def _segment_sum(src, seg, n):
    out = torch.zeros((n,) + src.shape[1:], dtype=src.dtype)
    return out.index_add_(0, seg, src)

def _pad(x, pw):
    flat = tuple((v for pair in reversed(pw) for v in pair))
    return torch.nn.functional.pad(x, flat)
kernel_name = 'adaLN_cond__sliding_local_dilated__dense_activation_silu__prompt'

def setup_inputs():

    _w = lambda a: (lambda t: t.to(torch.bfloat16) if t.is_floating_point() else t)(torch.as_tensor(a))

    def _A_setup():
        B, S, D = (1, 2048, 640)
        return {'x': _w((lambda *s: torch.randn(*s, dtype=torch.bfloat16) * 0.05)(B, S, D)), 'wqkv': _w((lambda *s: torch.randn(*s, dtype=torch.bfloat16) * 0.05)(D, 3 * D)), 'wo': _w((lambda *s: torch.randn(*s, dtype=torch.bfloat16) * 0.05)(D, D))}
    _A_in = _A_setup()

    def _B_setup():
        B, S, D, F = (1, 2048, 640, 1536)
        return {'x': _w((lambda *s: torch.randn(*s, dtype=torch.bfloat16) * 0.05)(B, S, D)), 'w1': _w((lambda *s: torch.randn(*s, dtype=torch.bfloat16) * 3.2)(D, F) * D ** (-0.5)), 'w2': _w((lambda *s: torch.randn(*s, dtype=torch.bfloat16) * 0.4)(F, D) * F ** (-0.5))}
    _B_in = _B_setup()
    return {'A_x': _A_in['x'], 'A_wqkv': _A_in['wqkv'], 'A_wo': _A_in['wo'], 'B_x': _B_in['x'], 'B_w1': _B_in['w1'], 'B_w2': _B_in['w2'], 'c': _w((lambda *s: torch.randn(*s, dtype=torch.bfloat16) * 0.1)(1, 640) * 8.0), 'w_mod': _w((lambda *s: torch.randn(*s, dtype=torch.bfloat16) * 0.1)(640, 6 * 640) * 640 ** (-0.5) * 8.0)}

def reference(A_x, A_wqkv, A_wo, B_x, B_w1, B_w2, c, w_mod):

    def _A_ref(x, wqkv, wo):
        B, S, D = x.shape
        H = 32
        Dh = D // H
        W, dil = (8, 2)
        qkv = (lambda x, *d: x.permute(*d))((x @ wqkv).reshape(B, S, 3, H, Dh), 2, 0, 3, 1, 4)
        q, k, v = (qkv[0], qkv[1], qkv[2])
        scale = Dh ** (-0.5)
        pos = torch.arange(S)
        off = torch.arange(W) * dil
        idx = pos[:, None] - off[None, :]
        mask = idx >= 0
        idx_c = torch.where(mask, idx, 0).reshape(-1)
        kg = k[:, :, idx_c, :].reshape(B, H, S, W, Dh)
        vg = v[:, :, idx_c, :].reshape(B, H, S, W, Dh)
        logits = torch.einsum('bhsd,bhswd->bhsw', q, kg) * scale
        logits = torch.where(mask[None, None, :, :], logits, -1000000000.0)
        attn = _softmax(logits, axis=-1)
        o = torch.einsum('bhsw,bhswd->bhsd', attn, vg)
        return (lambda x, *d: x.permute(*d))(o, 0, 2, 1, 3).reshape(B, S, D) @ wo

    def _B_ref(x, w1, w2):
        h = torch.einsum('bsd,df->bsf', x, w1)
        h = _silu(h)
        out = torch.einsum('bsf,fd->bsd', h, w2)
        return out
    x = A_x
    mod = (_silu(c) @ w_mod).reshape(c.shape[0], 6, 1, -1)
    sa, ca, ga, sb, cb, gb = (mod[:, 0].clone(), mod[:, 1].clone(), mod[:, 2].clone(), mod[:, 3].clone(), mod[:, 4].clone(), mod[:, 5].clone())
    h = _layernorm(x, axis=-1) * (1 + ca) + sa
    x = x + ga * _A_ref(h, A_wqkv, A_wo)
    h = _layernorm(x, axis=-1) * (1 + cb) + sb
    x = x + gb * _B_ref(h, B_w1, B_w2)
    return x
```

```python
import re
REG_RE = re.compile(r'(?<![\w.])([vas])(?:(\d+)|\[(\d+):(\d+)\])(?![\w])')
def regs_of(op):
    out = []
    op = op.strip()
    for m in REG_RE.finditer(op):
        k = m.group(1)
        if m.group(2) is not None:
            out.append((k, int(m.group(2))))
        else:
            out += [(k, i) for i in range(int(m.group(3)), int(m.group(4)) + 1)]
    if re.search(r'\bvcc\b', op): out += [('s', 106), ('s', 107)]
    if re.search(r'\bvcc_lo\b', op): out.append(('s', 106))
    if re.search(r'\bvcc_hi\b', op): out.append(('s', 107))
    if re.search(r'\bexec\b', op): out += [('s', 126), ('s', 127)]
    if re.search(r'\bexec_lo\b', op): out.append(('s', 126))
    if re.search(r'\bexec_hi\b', op): out.append(('s', 127))
    if re.search(r'\bm0\b', op): out.append(('s', 124))
    return out
def split_ops(s):
    ops, depth, cur = [], 0, ''
    for ch in s:
        if ch in '[(': depth += 1
        if ch in '])': depth -= 1
        if ch == ',' and depth == 0:
            ops.append(cur.strip()); cur = ''
        else:
            cur += ch
    if cur.strip(): ops.append(cur.strip())
    return ops
TRANS = ('v_exp_f32', 'v_log_f32', 'v_rcp_f32', 'v_rsq_f32', 'v_sqrt_f32', 'v_sin_f32', 'v_cos_f32')
class Ins:
    def __init__(self, text):
        self.text = text
        t = text.split(';')[0].strip()
        p = t.split(None, 1)
        self.op = p[0]
        rest = p[1] if len(p) > 1 else ''
        ops = split_ops(rest)
        mods = ''
        if ops:
            q = ops[-1].split(None, 1)
            if len(q) > 1 and not self.op.startswith('s_waitcnt'):
                ops[-1] = q[0]; mods = q[1]
        self.ops, self.mods = ops, mods
        op = self.op
        self.mfma = op.startswith('v_mfma')
        self.valu = op.startswith('v_') and not self.mfma
        self.salu = op.startswith('s_') and not op.startswith('s_load') and not op.startswith('s_buffer_load') and not op.startswith('s_memtime') and not op.startswith('s_memrealtime')
        self.smem = op.startswith('s_load') or op.startswith('s_buffer_load') or op.startswith('s_memtime') or op.startswith('s_memrealtime')
        self.vmem = op.startswith('buffer_') or op.startswith('global_')
        self.ds = op.startswith('ds_')
        self.ldsdma = self.vmem and (re.search(r'\blds\b', mods) is not None or '_lds_' in op)
        self.store = (self.vmem and ('_store' in op or ('atomic' in op and not re.search(r'\bsc0\b', mods)))) or (self.ds and 'write' in op)
        self.trans = op.replace('_e32', '').replace('_e64', '') in TRANS
        self.dpp = '_dpp' in op or 'quad_perm' in mods or 'row_' in mods
        self.perml = op.startswith('v_permlane')
        self.rdl = op.startswith('v_readfirstlane') or op.startswith('v_readlane')
        self.dot = op.startswith('v_dot')
        R = [regs_of(o) for o in ops]
        d, s = [], []
        if self.mfma:
            d = R[0]; self.A, self.B, self.C = R[1], R[2], R[3]; s = R[1] + R[2] + R[3]
        elif self.perml:
            d = R[0] + R[1]; s = R[0] + R[1]
        elif self.valu:
            d = list(R[0]); s = sum(R[1:], [])
            if op.startswith(('v_add_co', 'v_sub_co', 'v_addc_co', 'v_subb_co', 'v_div_scale', 'v_mad_u64')):
                d += R[1]; s = sum(R[2:], [])
            if op.startswith(('v_fmac', 'v_mac', 'v_dot2c', 'v_pk_fmac', 'v_writelane')) or self.dpp or 'UNUSED_PRESERVE' in mods:
                s += R[0]
            if op.startswith('v_cmpx'): d += [('s', 126), ('s', 127)]
            if op.startswith('v_cndmask') and len(ops) == 3: s += [('s', 106), ('s', 107)]
        elif self.vmem:
            if self.store or self.ldsdma: s = sum(R, [])
            else: d = R[0]; s = sum(R[1:], [])
            if 'atomic' in op: s = sum(R, [])
            if self.ldsdma: s.append(('s', 124))
        elif self.ds:
            if self.store: s = sum(R, [])
            else: d = R[0]; s = sum(R[1:], [])
        elif self.smem:
            d = R[0]; s = sum(R[1:], [])
        elif self.salu:
            if op.startswith(('s_cmp', 's_waitcnt', 's_branch', 's_cbranch', 's_barrier', 's_nop', 's_setprio', 's_sleep', 's_endpgm', 's_bitcmp', 's_setreg')):
                s = sum(R, [])
            else:
                d = R[0]; s = sum(R[1:], [])
                if 'saveexec' in op: d += [('s', 126), ('s', 127)]; s += [('s', 126), ('s', 127)]
                if op.startswith(('s_addk', 's_mulk', 's_cmovk', 's_cmov', 's_bitset')): s += R[0]
        else:
            raise ValueError('unknown op ' + text)
        self.d, self.s = set(d), set(s)
        self.wide = self.store and bool(re.search(r'x3|x4|b96|b128|write2_b64|write2st64_b64', op))
        if self.store:
            self.data = set(R[0]) if op.startswith('buffer') else set(sum(R[1:], []))
        self.states = 1
        if op == 's_nop': self.states = int(ops[0], 0) + 1
        self.sdwa_mv = 'dst_sel' in mods and 'dst_sel:DWORD' not in mods
def need(p, c):
    n = 0
    vd = {r for r in p.d if r[0] in 'va'}
    sd = {r for r in p.d if r[0] == 's'}
    if p.valu:
        if vd & c.s:
            if c.mfma: n = max(n, 2)
            if c.dpp or c.perml: n = max(n, 2)
            if c.rdl: n = max(n, 1)
            if p.trans: n = max(n, 1)
            if p.sdwa_mv: n = max(n, 1)
        if p.dot and (vd & (c.s | c.d)): n = max(n, 3)
        if sd & c.s:
            if c.vmem: n = max(n, 5)
            if c.valu: n = max(n, 4 if c.rdl or c.op.startswith('v_writelane') else 2)
        if ('s', 126) in sd:
            if c.dpp: n = max(n, 5)
            if c.mfma or c.perml or c.rdl: n = max(n, 4)
    if p.mfma:
        if c.mfma:
            if vd & (set(c.A) | set(c.B)): n = max(n, 8)
            if vd & set(c.C) and set(c.C) != vd: n = max(n, 6)
        elif (c.valu or c.vmem or c.ds) and (vd & (c.s | c.d)): n = max(n, 8)
        if c.valu and (set(p.C) & c.d): n = max(n, 3)
    if p.salu and ('s', 124) in sd and c.ldsdma: n = max(n, 1)
    if p.wide and (p.data & c.d): n = max(n, 2)
    return n
class Asm:
    def __init__(self):
        self.out = []
        self.hist = []
        self.vm = []
        self.lg = []
        self.n = 0
        self.nops = 0
        self.auto = True
    def raw(self, s): self.out.append(s)
    def comment(self, s): self.out.append('; ' + s)
    def _push(self, ins):
        self.out.append('  ' + ins.text)
        self.hist.append(ins)
        if len(self.hist) > 16: self.hist.pop(0)
    def label(self, name, reset=True):
        self.out.append(name + ':')
    def wait(self, vm=None, lg=None):
        parts = []
        if vm is not None:
            vm = min(vm, 63)
            if len(self.vm) > vm: self.vm = self.vm[len(self.vm) - vm:] if vm else []; parts.append(f'vmcnt({vm})')
        if lg is not None:
            lg = min(lg, 15)
            if len(self.lg) > lg: self.lg = self.lg[len(self.lg) - lg:] if lg else []; parts.append(f'lgkmcnt({lg})')
        if parts: self._push(Ins('s_waitcnt ' + ' '.join(parts)))
    def fwait(self, s):
        m = re.search(r'vmcnt\((\d+)\)', s)
        if m:
            k = int(m.group(1)); self.vm = self.vm[len(self.vm) - k:] if k and len(self.vm) > k else ([] if not k else self.vm)
        m = re.search(r'lgkmcnt\((\d+)\)', s)
        if m:
            k = int(m.group(1)); self.lg = self.lg[len(self.lg) - k:] if k and len(self.lg) > k else ([] if not k else self.lg)
        self._push(Ins('s_waitcnt ' + s))
    def wait_id(self, h):
        for i, e in enumerate(self.vm):
            if e[0] == h: self.wait(vm=len(self.vm) - 1 - i); return
        for i, e in enumerate(self.lg):
            if e[0] == h:
                self.wait(lg=0 if any(x[2] for x in self.lg) else len(self.lg) - 1 - i); return
    def __call__(self, text):
        if '\n' in text:
            h = None
            for t in text.split('\n'):
                if t.strip(): h = self(t.strip())
            return h
        ins = Ins(text)
        touch = ins.s | ins.d
        if ins.vmem and len(self.vm) >= 63: self.wait(vm=62)
        if self.auto:
            vmw = None
            for i, e in enumerate(self.vm):
                if e[1] & touch: vmw = len(self.vm) - 1 - i
            lgw = None
            for i, e in enumerate(self.lg):
                if e[1] & touch: lgw = 0 if any(x[2] for x in self.lg) else len(self.lg) - 1 - i
            self.wait(vm=vmw, lg=lgw)
        dist, req = 0, 0
        for p in reversed(self.hist):
            k = need(p, ins) - dist
            req = max(req, k)
            dist += p.states
            if dist >= 10: break
        if req > 0:
            self._push(Ins(f's_nop {req - 1}')); self.nops += req
        self._push(ins)
        self.n += 1
        if ins.vmem: self.vm.append((self.n, set(ins.d)))
        if ins.ds: self.lg.append((self.n, set(ins.d), False))
        if ins.smem: self.lg.append((self.n, set(ins.d), True))
        return self.n
    def barrier(self):
        self('s_barrier')
    def text(self): return '\n'.join(self.out) + '\n'
def vr(b, n=1, k='v'):
    return f'{k}{b}' if n == 1 else f'{k}[{b}:{b + n - 1}]'
def ar(b, n=1): return vr(b, n, 'a')
def sr(b, n=1): return vr(b, n, 's')

def interleave(a, main, fill, every=1, per=1, start=0):
    fi = 0
    for i, m in enumerate(main):
        a(m)
        if i >= start and (i - start) % every == every - 1:
            for _ in range(per):
                if fi < len(fill): a(fill[fi]); fi += 1
    while fi < len(fill): a(fill[fi]); fi += 1
```

```python
from gen1 import *
WSR = f's[{S_WS}:{S_WS+3}]'
def p1(a):
    prologue(a, 'p1', [f's_load_dwordx2 s[{S_X}:{S_X+1}], s[0:1], 0'])
    srd(a, S_X, 2048 * 1280)
    XN = 40
    DUMP = 102400; MODL = DUMP + 40960
    a(f's_lshl_b32 s24, s{S_RB}, 6'); a(f's_mul_i32 s25, s{S_W}, 20'); a('s_add_u32 s24, s24, s25'); a('s_sub_u32 s24, s24, 16')
    a('s_movk_i32 s26, 1280')
    for i in range(5):
        a(f'v_add_u32 v3, s24, v2')
        if i: a(f'v_add_u32 v3, {4*i}, v3')
        a('v_max_i32 v3, 0, v3'); a('v_mul_lo_u32 v3, v3, s26'); a(f'v_lshl_add_u32 v{240+i}, v1, 4, v3')
        for u in range(5):
            b = XN + (i * 5 + u) * 8
            a(f'buffer_load_dwordx4 v[{b+4}:{b+7}], v{240+i}, s[{S_X}:{S_X+3}], 0 offen offset:{256*u}')
    a(f's_mul_i32 s27, s{S_W}, 1280')
    a('v_lshlrev_b32 v4, 4, v0'); a('v_add_u32 v245, s27, v4')
    a('v_lshlrev_b32 v5, 4, v1'); a('v_add_u32 v246, s27, v5'); a('v_add_u32 v246, 1024, v246')
    a(f's_mov_b32 s28, {WS_MODP}')
    for kq in range(4):
        a(f'buffer_load_dwordx4 v[{8+8*kq}:{11+8*kq}], v245, {WSR}, s28 offen')
        a(f'buffer_load_dwordx4 v[{12+8*kq}:{15+8*kq}], v246, {WSR}, s28 offen')
        if kq < 3: a('s_add_u32 s28, s28, 15360')
    a(f's_mul_i32 s29, s{S_J}, 5'); a(f's_add_u32 s30, s29, s{S_W}')
    a('s_add_u32 s32, s30, 40'); a('s_add_u32 s33, s30, 80'); a('s_mov_b32 s35, s30')
    a(f's_lshl_b32 s31, s{S_W}, 3'); a('s_lshr_b32 s34, 0x04542c, s31'); a('s_and_b32 s34, s34, 0xff'); a('s_add_u32 s34, s34, s29')
    for q in range(4):
        a(f's_mul_i32 s{32+q}, s{32+q}, 20480'); a(f's_add_u32 s{32+q}, s{32+q}, {WS_WQ}')
    a(f's_mov_b64 s[12:13], s[{S_WS}:{S_WS+1}]'); a(f's_cmp_eq_u32 s{S_W}, 3'); a(f's_cselect_b32 s14, 0, s{S_WS+2}'); a('s_mov_b32 s15, 0x20000')
    VW = 247
    a(f'v_mov_b32 v{VW}, v4')
    for q in range(1, 5): a(f'v_add_u32 v{VW+q}, {4096*q}, v4')
    def wload(s, sl):
        r = 16 * (s % 16) + 4 * sl
        return f'buffer_load_dwordx4 a[{r}:{r+3}], v{VW + s//4}, {"s[12:15]" if sl == 2 else WSR}, s{32+sl} offen offset:{1024*(s%4)}'
    NPRE = 7
    for s in range(NPRE):
        for sl in range(4): a(wload(s, sl))
    for r0 in (8, 12):
        for e in (0, 2):
            a(f'v_pk_add_f32 v[{r0+e}:{r0+e+1}], v[{r0+e}:{r0+e+1}], v[{r0+8+e}:{r0+9+e}]')
            a(f'v_pk_add_f32 v[{r0+16+e}:{r0+17+e}], v[{r0+16+e}:{r0+17+e}], v[{r0+24+e}:{r0+25+e}]')
            a(f'v_pk_add_f32 v[{r0+e}:{r0+e+1}], v[{r0+e}:{r0+e+1}], v[{r0+16+e}:{r0+17+e}]')
    a(f's_cmp_ge_u32 s{S_W}, 2'); a('s_cselect_b32 s36, 1.0, 0')
    for e in range(8, 16, 2):
        a(f'v_cvt_pk_bf16_f32 v3, v{e}, v{e+1}')
        for t in unpack(e, e + 1, 3): a(t)
        a(f'v_add_f32 v{e}, s36, v{e}'); a(f'v_add_f32 v{e+1}, s36, v{e+1}')
        a(f'v_cvt_pk_bf16_f32 v3, v{e}, v{e+1}')
        for t in unpack(e, e + 1, 3): a(t)
    a(f'v_add_u32 v245, {MODL}, v245'); a(f'v_add_u32 v246, {MODL}, v246')
    a('ds_write_b128 v245, v[8:11]'); a('ds_write_b128 v246, v[12:15]')
    for i in range(5):
        S, Q = 16 + 4 * i, 18 + 4 * i
        for u in range(5):
            b = XN + (i * 5 + u) * 8
            for e in range(4):
                for t in unpack(b + 2 * e, b + 2 * e + 1, b + 4 + e): a(t)
            for e in range(4):
                p = f'v[{b+2*e}:{b+2*e+1}]'
                if u == 0 and e == 0:
                    a(f'v_pk_mul_f32 v[{Q}:{Q+1}], {p}, {p}')
                else:
                    a(f'v_pk_fma_f32 v[{Q}:{Q+1}], {p}, {p}, v[{Q}:{Q+1}]')
                if u == 0 and e == 1: a(f'v_pk_add_f32 v[{S}:{S+1}], v[{b}:{b+1}], {p}')
                elif not (u == 0 and e == 0): a(f'v_pk_add_f32 v[{S}:{S+1}], v[{S}:{S+1}], {p}')
        for s in range(NPRE + 2 * i, min(16, NPRE + 2 * i + 2)):
            for sl in range(4): a(wload(s, sl))
    for i in range(5):
        a(f'v_add_f32 v{16+4*i}, v{16+4*i}, v{17+4*i}'); a(f'v_add_f32 v{18+4*i}, v{18+4*i}, v{19+4*i}')
    for ror in (8, 4, 2, 1):
        for i in range(5):
            for c in (16, 18):
                a(f'v_add_f32_dpp v{c+4*i}, v{c+4*i}, v{c+4*i} row_ror:{ror} row_mask:0xf bank_mask:0xf')
    for i in range(5): a(f'v_mul_f32 v{16+4*i}, {fl(1/640)}, v{16+4*i}')
    a(f's_mov_b32 s37, {fl(1/640)}')
    a(f'v_mov_b32 v3, {fl(1e-5)}')
    for i in range(5): a(f'v_fma_f32 v{18+4*i}, v{18+4*i}, s37, v3')
    for i in range(5): a(f'v_fma_f32 v{18+4*i}, -v{16+4*i}, v{16+4*i}, v{18+4*i}')
    for i in range(5): a(f'v_max_f32 v{18+4*i}, v{18+4*i}, v3')
    for i in range(5): a(f'v_rsq_f32 v{18+4*i}, v{18+4*i}')
    for i in range(5): a(f'v_mul_f32 v{19+4*i}, -v{16+4*i}, v{18+4*i}')
    for i in range(5):
        P = 18 + 4 * i
        for u in range(5):
            b = XN + (i * 5 + u) * 8
            for e in range(4):
                p = f'v[{b+2*e}:{b+2*e+1}]'
                a(f'v_pk_fma_f32 {p}, {p}, v[{P}:{P+1}], v[{P}:{P+1}] op_sel:[0,0,1] op_sel_hi:[1,0,1]')
    a('v_lshrrev_b32 v3, 2, v1'); a('v_lshlrev_b32 v3, 10, v3'); a('v_and_b32 v5, 3, v1'); a('v_lshl_add_u32 v3, v5, 8, v3')
    a('v_and_b32 v5, 7, v1'); a('s_movk_i32 s26, 20480')
    for i in range(5):
        a(f'v_add_u32 v6, s25, v2')
        if i: a(f'v_add_u32 v6, {4*i}, v6')
        a('v_and_b32 v7, 15, v6'); a('v_xor_b32 v7, v7, v5'); a('v_lshrrev_b32 v6, 4, v6')
        a('v_mad_u32_u24 v6, v6, s26, v3'); a(f'v_lshl_add_u32 v{240+i}, v7, 4, v6')
    a('v_lshlrev_b32 v5, 5, v1'); a(f'v_add_u32 v5, {MODL}, v5')
    a.wait(lg=0); a.barrier()
    def gs_read(u):
        b = 8 + 16 * (u % 2)
        for q in range(2):
            a(f'ds_read_b128 v[{b+4*q}:{b+4*q+3}], v5 offset:{512*u + 16*q}')
            a(f'ds_read_b128 v[{b+8+4*q}:{b+8+4*q+3}], v5 offset:{2560 + 512*u + 16*q}')
    gs_read(0)
    for u in range(5):
        if u < 4: gs_read(u + 1)
        gb = 8 + 16 * (u % 2)
        for i in range(5):
            b = XN + (i * 5 + u) * 8
            for e in range(4):
                p = f'v[{b+2*e}:{b+2*e+1}]'
                a(f'v_pk_fma_f32 {p}, {p}, v[{gb+8+2*e}:{gb+9+2*e}], v[{gb+2*e}:{gb+2*e+1}]')
            for e in range(4): a(f'v_cvt_pk_bf16_f32 v{b+e}, v{b+2*e}, v{b+2*e+1}')
            a(f'ds_write_b128 v{240+i}, v[{b}:{b+3}] offset:{4096*u}')
    a('v_xor_b32 v3, v1, v2'); a('v_lshlrev_b32 v5, 8, v2'); a('v_lshl_add_u32 v8, v3, 4, v5')
    a('v_xor_b32 v9, 64, v8'); a('v_add_u32 v10, 61440, v8'); a('v_add_u32 v11, 61440, v9')
    a('v_lshrrev_b32 v3, 2, v1'); a('v_xor_b32 v3, v3, v2'); a('v_lshlrev_b32 v3, 3, v3'); a('v_lshl_add_u32 v3, v1, 5, v3')
    a(f's_add_u32 s40, s{S_W}, 5'); a(f's_add_u32 s41, s{S_W}, 10'); a(f's_mov_b32 s43, s{S_W}')
    a('s_lshr_b32 s42, 0x0f040e09, s31'); a('s_and_b32 s42, s42, 0xff')
    for q in range(4):
        a(f's_mul_i32 s{40+q}, s{40+q}, 2560'); a(f's_add_u32 s{40+q}, s{40+q}, {DUMP}'); a(f'v_add_u32 v{12+q}, s{40+q}, v3')
    a(f's_lshl_b32 s44, s{S_W}, 9'); a(f's_add_u32 s44, s44, {DUMP}')
    a('v_add_u32 v16, s44, v3')
    a('v_and_b32 v3, 3, v1'); a('v_xor_b32 v3, v3, v2'); a('v_lshlrev_b32 v3, 3, v3')
    a('v_and_b32 v5, 60, v0'); a('v_lshl_add_u32 v3, v5, 3, v3'); a('v_add_u32 v17, s44, v3')
    a('v_and_b32 v3, 1, v1'); a('v_cmp_eq_u32 s[46:47], 1, v3')
    a('v_lshl_add_u32 v5, v2, 2, v3'); a('v_cmp_le_u32 s[48:49], v5, v1')
    a('v_add_u32 v5, 2, v5'); a('v_cmp_le_u32 s[50:51], v5, v1')
    a('v_mov_b32 v5, 0x0c0c0100'); a('v_mov_b32 v6, 0x01000c0c'); a('v_cndmask_b32 v5, v5, v6, s[46:47]')
    a('v_mov_b32 v6, 0x0c0c0302'); a('v_mov_b32 v7, 0x03020c0c'); a('v_cndmask_b32 v6, v6, v7, s[46:47]')
    a('v_mov_b32 v7, 0x0c0c0c0c')
    a('v_cndmask_b32 v18, v5, v7, s[48:49]'); a('v_cndmask_b32 v19, v6, v7, s[50:51]')
    a('v_cndmask_b32 v20, v7, v5, s[48:49]'); a('v_cndmask_b32 v21, v7, v6, s[50:51]')
    a(f's_or_b32 s45, s{S_RB}, s{S_W}'); a('s_cmp_eq_u32 s45, 0'); a(f's_cselect_b32 s45, {fl(-1e30)}, 0')
    for q in range(4): a(f'v_mov_b32 v{22+q}, s45')
    a.wait(lg=0); a.barrier()
    QR = 160
    for q in range(16): a(f'v_mov_b32 v{QR+q}, 0')
    ACC = 40; XF = 116
    def xread(s):
        l = []
        for mt in range(5):
            r = XF + 20 * (s % 2) + 4 * mt
            off = (mt * 20 + s) * 1024
            ad = 8 + (s & 1)
            if off >= 61440: off -= 61440; ad += 2
            l.append(f'ds_read_b128 v[{r}:{r+3}], v{ad} offset:{off}')
        return l
    for t in xread(0): a(t)
    for s in range(20):
        main = []
        for mt in range(5):
            for sl in range(4):
                if sl == 3 and mt == 0: continue
                ac = ACC + 4 * (sl * 5 + mt - (1 if sl == 3 else 0))
                w = 16 * (s % 16) + 4 * sl; x = XF + 20 * (s % 2) + 4 * mt
                c = '0' if s == 0 else f'v[{ac}:{ac+3}]'
                main.append(f'{MF} v[{ac}:{ac+3}], a[{w}:{w+3}], v[{x}:{x+3}], {c}')
        fill = xread(s + 1) if s < 19 else []
        if 1 <= s <= 4: fill += [wload(s + 15, sl) for sl in range(4)]
        interleave(a, main, fill, every=2, per=1)
    for sl in range(4):
        for mt in range(5):
            if sl == 3 and mt == 0: continue
            ac = ACC + 4 * (sl * 5 + mt - (1 if sl == 3 else 0))
            a(f'v_cvt_pk_bf16_f32 v{ac}, v{ac}, v{ac+1}'); a(f'v_cvt_pk_bf16_f32 v{ac+1}, v{ac+2}, v{ac+3}')
            a(f'ds_write_b64 v{12+sl}, v[{ac}:{ac+1}] offset:{512*mt}')
    a.wait(lg=0); a.barrier()
    K0, K1, VR, SR = 120, 130, 140, 176
    for t in range(5):
        a(f'ds_read_b64 v[{K0+2*t}:{K0+2*t+1}], v16 offset:{(5+t)*2560}')
        a(f'ds_read_b64 v[{K1+2*t}:{K1+2*t+1}], v16 offset:{(5+t)*2560+512}')
    def setexec(m):
        a(f's_mov_b32 exec_lo, {hex(m & 0xffffffff)}'); a(f's_mov_b32 exec_hi, {hex(m >> 32)}')
    FULL = (1 << 64) - 1
    for h in range(4):
        setexec((FULL << (16 * h)) & FULL)
        a(f'ds_read_b64 v[{QR+4*h}:{QR+4*h+1}], v16 offset:{h*2560+512}')
        setexec((1 << (16 * (h + 1))) - 1)
        a(f'ds_read_b64 v[{QR+4*h+2}:{QR+4*h+3}], v16 offset:{(h+1)*2560+512}')
    for t in range(5):
        a(f'ds_read_b64_tr_b16 v[{VR+4*t}:{VR+4*t+1}], v17 offset:{(10+t)*2560}')
        a(f'ds_read_b64_tr_b16 v[{VR+4*t+2}:{VR+4*t+3}], v17 offset:{(10+t)*2560+512}')
    for h in range(4):
        a(f'{MF} v[{SR+8*h}:{SR+8*h+3}], v[{K0+2*h}:{K0+2*h+3}], v[{QR+4*h}:{QR+4*h+3}], v[22:25]')
        a(f'{MF} v[{SR+8*h+4}:{SR+8*h+7}], v[{K1+2*h}:{K1+2*h+3}], v[{QR+4*h}:{QR+4*h+3}], 0')
    H = range(4)
    for h in H:
        b = SR + 8 * h
        for e in (0, 2, 4, 6): a(f'v_cndmask_b32 v{b+e}, v{b+e}, v{b+e+1}, s[46:47]')
        a(f'v_cndmask_b32 v{b}, v{b}, v{b+4}, s[48:49]'); a(f'v_cndmask_b32 v{b+1}, v{b+2}, v{b+6}, s[50:51]')
    def bfly(op, r):
        for sw in ('v_permlane16_swap_b32', 'v_permlane32_swap_b32'):
            for h in H: a(f'v_mov_b32 v{SR+8*h+r+1}, v{SR+8*h+r}')
            for h in H: a(f'{sw} v{SR+8*h+r}, v{SR+8*h+r+1}')
            for h in H: a(f'{op} v{SR+8*h+r}, v{SR+8*h+r}, v{SR+8*h+r+1}')
    for h in H: a(f'v_max_f32 v{SR+8*h+2}, v{SR+8*h}, v{SR+8*h+1}')
    bfly('v_max_f32', 2)
    CS = LOG2E * 20 ** -0.5
    for h in H:
        b = SR + 8 * h
        a(f'v_sub_f32 v{b}, v{b}, v{b+2}'); a(f'v_sub_f32 v{b+1}, v{b+1}, v{b+2}')
    for h in H:
        b = SR + 8 * h
        a(f'v_mul_f32 v{b}, {fl(CS)}, v{b}'); a(f'v_mul_f32 v{b+1}, {fl(CS)}, v{b+1}')
    for h in H:
        b = SR + 8 * h
        a(f'v_exp_f32 v{b}, v{b}'); a(f'v_exp_f32 v{b+1}, v{b+1}')
    for h in H: a(f'v_add_f32 v{SR+8*h+2}, v{SR+8*h}, v{SR+8*h+1}')
    bfly('v_add_f32', 2)
    for h in H: a(f'v_rcp_f32 v{SR+8*h+2}, v{SR+8*h+2}')
    for h in H:
        b = SR + 8 * h
        a(f'v_mul_f32 v{b}, v{b}, v{b+2}'); a(f'v_mul_f32 v{b+1}, v{b+1}, v{b+2}')
    for h in H: a(f'v_cvt_pk_bf16_f32 v{SR+8*h}, v{SR+8*h}, v{SR+8*h+1}')
    for h in H:
        b = SR + 8 * h
        for q in range(4): a(f'v_perm_b32 v{b+4+q}, v{b}, v{b}, v{18+q}')
    OR = 40
    for h in H:
        b = SR + 8 * h + 4
        a(f'{MF} v[{OR+8*h}:{OR+8*h+3}], v[{VR+4*h}:{VR+4*h+3}], v[{b}:{b+3}], 0')
        a(f'{MF} v[{OR+8*h+4}:{OR+8*h+7}], v[{VR+4*h+4}:{VR+4*h+7}], v[{b}:{b+3}], 0')
    a(f's_lshl2_add_u32 s52, s{S_RB}, s{S_W}'); a('s_mul_i32 s52, s52, 20480'); a(f's_add_u32 s52, s52, {WS_OF}')
    frag_offsets(a, 52, 53, 54)
    F = 80
    a(f'v_cvt_pk_bf16_f32 v{F}, v{OR}, v{OR+1}'); a(f'v_cvt_pk_bf16_f32 v{F+1}, v{OR+2}, v{OR+3}')
    for t in (1, 2, 3, 4):
        s_ = OR + 8 * (t - 1) + 4
        a(f'v_cvt_pk_bf16_f32 v{F+2*t}, v{s_}, v{s_+1}'); a(f'v_cvt_pk_bf16_f32 v{F+2*t+1}, v{s_+2}, v{s_+3}')
    for t in (1, 2, 3):
        setexec((FULL << (16 * t)) & FULL)
        s_ = OR + 8 * t
        a(f'v_cvt_pk_bf16_f32 v{F+2*t}, v{s_}, v{s_+1}'); a(f'v_cvt_pk_bf16_f32 v{F+2*t+1}, v{s_+2}, v{s_+3}')
    setexec(FULL)
    frag_store80(a, F, 4, 52, 53)
    epilogue(a, 'p1')
    return MODL + 5120
def frag_offsets(a, sb, s2, st):
    a(f's_lshr_b32 s{st}, s{S_J}, 1'); a(f's_mul_i32 s{st}, s{st}, 5120'); a(f's_add_u32 s{sb}, s{sb}, s{st}')
    a(f's_and_b32 s{st}, s{S_J}, 1')
    a(f's_lshl3_add_u32 s{s2}, s{st}, s{sb}'); a(f's_add_u32 s{s2}, s{s2}, 4096')
    a(f's_lshl_b32 s{st}, s{st}, 11'); a(f's_add_u32 s{sb}, s{sb}, s{st}')
def frag_store80(a, F, va, sb, s2):
    a(f'buffer_store_dwordx4 v[{F}:{F+3}], v{va}, {WSR}, s{sb} offen')
    a(f'buffer_store_dwordx4 v[{F+4}:{F+7}], v{va}, {WSR}, s{sb} offen offset:1024')
    a(f'buffer_store_dwordx2 v[{F+8}:{F+9}], v{va}, {WSR}, s{s2} offen')

def modfin_load(a, vec0, R, vt):
    a(f'v_mul_u32_u24 v{vt}, 3277, v0'); a(f'v_lshrrev_b32 v{vt}, 16, v{vt}')
    a(f'v_cmp_eq_u32 s[56:57], {2 - vec0}, v{vt}')
    a(f'v_mul_u32_u24 v{vt+1}, {2560 - 320}, v{vt}'); a(f'v_lshl_add_u32 v{vt+1}, v0, 4, v{vt+1}')
    a(f's_mul_i32 s58, s{S_J}, 320'); a(f's_add_u32 s58, s58, {WS_MODP + (1280 + 640 * vec0) * 4}')
    for kq in range(4):
        a(f'buffer_load_dwordx4 v[{R+4*kq}:{R+4*kq+3}], v{vt+1}, {WSR}, s58 offen')
        if kq < 3: a('s_add_u32 s58, s58, 15360')
def modfin_fin(a, R, vt, va):
    for e in (0, 2):
        a(f'v_pk_add_f32 v[{R+e}:{R+e+1}], v[{R+e}:{R+e+1}], v[{R+4+e}:{R+5+e}]')
        a(f'v_pk_add_f32 v[{R+8+e}:{R+9+e}], v[{R+8+e}:{R+9+e}], v[{R+12+e}:{R+13+e}]')
        a(f'v_pk_add_f32 v[{R+e}:{R+e+1}], v[{R+e}:{R+e+1}], v[{R+8+e}:{R+9+e}]')
    a(f'v_cndmask_b32 v{vt+1}, 0, 1.0, s[56:57]')
    for e in (0, 2):
        a(f'v_cvt_pk_bf16_f32 v{vt}, v{R+e}, v{R+e+1}')
        for t in unpack(R + e, R + e + 1, vt): a(t)
        a(f'v_add_f32 v{R+e}, v{vt+1}, v{R+e}'); a(f'v_add_f32 v{R+e+1}, v{vt+1}, v{R+e+1}')
        a(f'v_cvt_pk_bf16_f32 v{vt}, v{R+e}, v{R+e+1}')
        for t in unpack(R + e, R + e + 1, vt): a(t)
    a(f'ds_write_b128 v{va}, v[{R}:{R+3}]')

def ksplit_gemm(a, ns, nst, wbase, xbase, xmt, XR, ACC, mid=None):
    nv = (ns + 3) // 4
    for k in range(1, nv): a(f'v_add_u32 v{4+k}, {4096*k}, v4')
    a(f's_mul_i32 s30, s{S_W}, {ns*1024}')
    a(f's_mul_i32 s31, s{S_J}, {5*nst*1024}'); a('s_add_u32 s31, s31, s30'); a(f's_add_u32 s32, s31, {wbase}')
    for t in range(1, 5): a(f's_add_u32 s{32+t}, s{31+t}, {nst*1024}')
    a(f's_mul_i32 s31, s{S_RB}, {xmt*nst*1024}'); a('s_add_u32 s31, s31, s30'); a(f's_add_u32 s31, s31, {xbase}')
    for q in range(4):
        a(f's_add_u32 s38, s{S_W}, {q+1}'); a('s_and_b32 s38, s38, 3')
        a(f's_mul_i32 s39, s38, {nst*1024}'); a(f's_add_u32 s{40+q}, s39, s31')
        if q < 3:
            a('s_mul_i32 s39, s38, 15360'); a(f's_add_u32 s39, s39, {q*5120}'); a(f'v_add_u32 v{8+q}, s39, v4')
    def xl(q, i):
        r = XR + (q * ns + i) * 4
        return f'buffer_load_dwordx4 v[{r}:{r+3}], v{4+i//4}, {WSR}, s{40+q} offen offset:{1024*(i%4)}'
    def wl(t, i):
        r = (t * ns + i) * 4
        return f'buffer_load_dwordx4 a[{r}:{r+3}], v{4+i//4}, {WSR}, s{32+t} offen offset:{1024*(i%4)}'
    loads = []
    for i in range(ns):
        loads.append(xl(0, i))
        loads += [wl(t, i) for t in range(5)]
    for q in range(1, 4): loads += [xl(q, i) for i in range(ns)]
    npre = min(len(loads), 56)
    for l in loads[:npre]: a(l)
    rest = loads[npre:]
    if mid: mid()
    prev = []
    for q in range(4):
        ac = ACC + 20 * (q & 1)
        main = []
        for i in range(ns):
            for t in range(5):
                w = (t * ns + i) * 4; x = XR + (q * ns + i) * 4
                c = '0' if i == 0 else f'v[{ac+4*t}:{ac+4*t+3}]'
                main.append(f'{MF} v[{ac+4*t}:{ac+4*t+3}], a[{w}:{w+3}], v[{x}:{x+3}], {c}')
        if q == 0:
            interleave(a, main, rest, every=1, per=1)
        else:
            interleave(a, main, prev, every=2, per=1, start=4)
        prev = [f'ds_write_b128 v{8+q}, v[{ac+4*t}:{ac+4*t+3}] offset:{1024*t}' for t in range(5)] if q < 3 else []
    a(f's_mul_i32 s39, s{S_W}, 15360'); a('v_add_u32 v8, s39, v4')
    a.wait(lg=0); a.barrier()
    R = ACC + 20
    for q in range(3):
        for t in range(5):
            r = XR + (q * 5 + t) * 4
            a(f'ds_read_b128 v[{r}:{r+3}], v8 offset:{q*5120+t*1024}')
    for q in range(3):
        for t in range(5):
            r = XR + (q * 5 + t) * 4
            for e in (0, 2): a(f'v_pk_add_f32 v[{R+4*t+e}:{R+4*t+e+1}], v[{R+4*t+e}:{R+4*t+e+1}], v[{r+e}:{r+e+1}]')
    return R

def p2(a):
    prologue(a, 'p2', [f's_load_dwordx2 s[{S_X}:{S_X+1}], s[0:1], 0'])
    srd(a, S_X, 2048 * 1280)
    MODL = 61440
    XR, ACC = 64, 24
    a('v_lshlrev_b32 v4, 4, v0')
    XI = 150; MR = 160; GA, SB, GG = 176, 196, 216
    def mid():
        modfin_load(a, 0, MR, 12)
        a(f's_lshl2_add_u32 s44, s{S_RB}, s{S_W}'); a('s_lshl_b32 s45, s44, 4'); a('v_add_u32 v14, s45, v1')
        a('s_movk_i32 s46, 1280'); a('v_mul_lo_u32 v15, v14, s46'); a('v_lshl_add_u32 v15, v2, 3, v15')
        a(f's_mul_i32 s46, s{S_J}, 160')
        for t in range(5): a(f'buffer_load_dwordx2 v[{XI+2*t}:{XI+2*t+1}], v15, s[{S_X}:{S_X+3}], s46 offen offset:{32*t}')
    R = ksplit_gemm(a, 5, 20, WS_WO, WS_OF, 4, XR, ACC, mid)
    a(f's_lshl_b32 s47, s{S_W}, 10'); a(f's_add_u32 s47, s47, {MODL}'); a('v_add_u32 v16, s47, v4')
    modfin_fin(a, MR, 12, 16)
    a('v_lshlrev_b32 v16, 4, v2'); a('v_add_u32 v16, s47, v16')
    a.wait(lg=0)
    for v, b in enumerate((GA, SB, GG)):
        for t in range(5): a(f'ds_read_b128 v[{b+4*t}:{b+4*t+3}], v16 offset:{(20*v+4*t)*16}')
    X1 = 64
    for e in range(10):
        for t in unpack(X1 + 2 * e, X1 + 2 * e + 1, XI + e): a(t)
    for e in range(10): a(f'v_pk_fma_f32 v[{X1+2*e}:{X1+2*e+1}], v[{R+2*e}:{R+2*e+1}], v[{GA+2*e}:{GA+2*e+1}], v[{X1+2*e}:{X1+2*e+1}]')
    for e in range(10): a(f'v_cvt_pk_bf16_f32 v{XI+e}, v{X1+2*e}, v{X1+2*e+1}')
    a(f's_lshl2_add_u32 s48, s2, s{S_W}'); a('s_mul_i32 s48, s48, 2560'); a(f's_add_u32 s48, s48, {WS_X1}')
    a('v_lshlrev_b32 v17, 3, v0')
    for t in range(5): a(f'buffer_store_dwordx2 v[{XI+2*t}:{XI+2*t+1}], v17, {WSR}, s48 offen offset:{512*t}')
    for e in range(10):
        for t in unpack(X1 + 2 * e, X1 + 2 * e + 1, XI + e): a(t)
    a(f'v_pk_add_f32 v[18:19], v[{X1}:{X1+1}], v[{X1+2}:{X1+3}]'); a(f'v_pk_mul_f32 v[20:21], v[{X1}:{X1+1}], v[{X1}:{X1+1}]')
    for e in range(1, 10):
        p = f'v[{X1+2*e}:{X1+2*e+1}]'
        if e > 1: a(f'v_pk_add_f32 v[18:19], v[18:19], {p}')
        a(f'v_pk_fma_f32 v[20:21], {p}, {p}, v[20:21]')
    for e in range(10): a(f'v_pk_mul_f32 v[{X1+2*e}:{X1+2*e+1}], v[{X1+2*e}:{X1+2*e+1}], v[{GG+2*e}:{GG+2*e+1}]')
    F = 90
    for e in range(10): a(f'v_cvt_pk_bf16_f32 v{F+e}, v{X1+2*e}, v{X1+2*e+1}')
    a(f's_mul_i32 s52, s{S_RB}, 5'); a(f's_add_u32 s50, s52, 4'); a(f's_add_u32 s52, s52, s{S_W}')
    a('s_mul_i32 s52, s52, 20480'); a(f's_add_u32 s52, s52, {WS_X1G}')
    a('s_mul_i32 s50, s50, 20480'); a(f's_add_u32 s50, s50, {WS_X1G}')
    frag_offsets(a, 52, 53, 54); frag_offsets(a, 50, 51, 54)
    frag_store80(a, F, 4, 52, 53)
    a('v_add_f32 v18, v18, v19'); a('v_add_f32 v19, v20, v21')
    for sw in ('v_permlane16_swap_b32', 'v_permlane32_swap_b32'):
        a('v_mov_b32 v20, v18'); a('v_mov_b32 v21, v19')
        a(f'{sw} v18, v20'); a(f'{sw} v19, v21')
        a('v_add_f32 v18, v18, v20'); a('v_add_f32 v19, v19, v21')
    a('v_lshlrev_b32 v14, 6, v14'); a(f's_lshl_b32 s46, s{S_J}, 3'); a(f's_add_u32 s46, s46, {WS_STATS}')
    a('s_mov_b32 exec_lo, 0xffff'); a('s_mov_b32 exec_hi, 0')
    a(f'buffer_store_dwordx2 v[18:19], v14, {WSR}, s46 offen')
    a('s_mov_b64 exec, -1')
    a('v_and_b32 v12, 1, v1'); a('v_cmp_eq_u32 vcc, 1, v12')
    G = 100
    for e in range(20): a(f'v_cndmask_b32 v{GG+e}, v{GG+e}, v{SB+e}, vcc')
    for e in range(10): a(f'v_cvt_pk_bf16_f32 v{G+e}, v{GG+2*e}, v{GG+2*e+1}')
    a(f's_cmp_lg_u32 s{S_W}, 0'); a('s_cselect_b32 s46, 0x80000000, 0'); a('v_or_b32 v12, s46, v4')
    frag_store80(a, G, 12, 50, 51)
    epilogue(a, 'p2')
    return MODL + 4096

def p3(a):
    prologue(a, 'p3', [])
    a('v_lshlrev_b32 v4, 4, v0')
    for k in range(1, 5): a(f'v_add_u32 v{4+k}, {4096*k}, v4')
    a(f's_mul_i32 s30, s{S_J}, 12'); a(f's_mul_i32 s31, s{S_W}, 3'); a('s_add_u32 s30, s30, s31')
    a('s_mul_i32 s30, s30, 20480'); a(f's_add_u32 s32, s30, {WS_W1}'); a('s_add_u32 s33, s32, 20480'); a('s_add_u32 s34, s33, 20480')
    a(f's_mul_i32 s36, s{S_W}, 5120')
    a(f's_mul_i32 s37, s{S_RB}, {5*20480}'); a('s_add_u32 s37, s37, s36'); a(f's_add_u32 s37, s37, {WS_X1G}')
    def xdma(mt):
        a(f's_add_u32 s38, s37, {mt*20480}'); a(f's_add_u32 m0, s36, {mt*20480}')
        for i in range(4): a(f'buffer_load_dwordx4 v4, {WSR}, s38 offen offset:{1024*i} lds')
        a(f's_add_u32 m0, s36, {mt*20480 + 4096}')
        return a(f'buffer_load_dwordx4 v5, {WSR}, s38 offen lds')
    def wl(t, s):
        r = (s * 3 + t) * 4
        return f'buffer_load_dwordx4 a[{r}:{r+3}], v{4+s//4}, {WSR}, s{32+t} offen offset:{1024*(s%4)}'
    xdma(4); h0 = xdma(0)
    a(f's_lshl_b32 s39, s{S_RB}, 12'); a(f's_add_u32 s39, s39, {WS_STATS}')
    a('v_lshlrev_b32 v12, 6, v1'); a('v_lshl_add_u32 v12, v2, 4, v12')
    for mt in range(4): a(f'buffer_load_dwordx4 v[{24+4*mt}:{27+4*mt}], v12, {WSR}, s39 offen offset:{1024*mt}')
    wls = [wl(t, s) for s in range(20) for t in range(3)]
    for l in wls[:45]: a(l)
    M = range(4)
    for m in M: a(f'v_pk_add_f32 v[{24+4*m}:{25+4*m}], v[{24+4*m}:{25+4*m}], v[{26+4*m}:{27+4*m}]')
    for sw in ('v_permlane16_swap_b32', 'v_permlane32_swap_b32'):
        for m in M: a(f'v_mov_b32 v{26+4*m}, v{24+4*m}'); a(f'v_mov_b32 v{27+4*m}, v{25+4*m}')
        for m in M: a(f'{sw} v{24+4*m}, v{26+4*m}'); a(f'{sw} v{25+4*m}, v{27+4*m}')
        for m in M: a(f'v_pk_add_f32 v[{24+4*m}:{25+4*m}], v[{24+4*m}:{25+4*m}], v[{26+4*m}:{27+4*m}]')
    a(f's_mov_b32 s40, {fl(1/640)}'); a(f'v_mov_b32 v13, {fl(1e-5)}')
    for m in M: a(f'v_mul_f32 v{26+4*m}, s40, v{24+4*m}')
    for m in M: a(f'v_fma_f32 v{25+4*m}, v{25+4*m}, s40, v13')
    for m in M: a(f'v_fma_f32 v{25+4*m}, -v{26+4*m}, v{26+4*m}, v{25+4*m}')
    for m in M: a(f'v_max_f32 v{25+4*m}, v{25+4*m}, v13')
    for m in M: a(f'v_rsq_f32 v{24+4*m}, v{25+4*m}')
    for m in M: a(f'v_mul_f32 v{25+4*m}, -v{26+4*m}, v{24+4*m}')
    a('v_add_u32 v9, 61440, v4')
    a(f's_mul_i32 s44, s{S_RB}, {4*48*1024}'); a(f's_mul_i32 s45, s{S_J}, 6144'); a('s_add_u32 s44, s44, s45'); a(f's_add_u32 s44, s44, {WS_H1}')
    a(f's_lshr_b32 s45, s{S_W}, 1'); a('s_lshl_b32 s45, s45, 10'); a('s_add_u32 s45, s45, s44'); a('s_add_u32 s45, s45, 4096')
    a(f's_and_b32 s46, s{S_W}, 1'); a('s_lshl3_add_u32 s45, s46, s45')
    a(f's_lshl_b32 s46, s{S_W}, 10'); a('s_add_u32 s44, s44, s46')
    a(f's_mov_b32 s48, {fl(-LOG2E)}'); a(f's_mov_b32 s49, {fl(-LOG2E)}')
    a.wait_id(h0); a.barrier()
    XF = 48; NB = 6
    ACC = 100
    U1, T1 = 160, 172
    def xr(mt, s, slot):
        off = (mt * 20 + s) * 1024; ad = 4
        if off >= 61440: off -= 61440; ad = 9
        r = XF + 4 * slot
        return f'ds_read_b128 v[{r}:{r+3}], v{ad} offset:{off}'
    def epi(mt):
        ac = ACC + 12 * mt; P = 24 + 4 * mt; T = 184; F = 200
        l = []
        for e in range(6): l.append(f'v_pk_fma_f32 v[{T+2*e}:{T+2*e+1}], v[{U1+2*e}:{U1+2*e+1}], v[{P}:{P+1}], v[{T1+2*e}:{T1+2*e+1}] op_sel:[0,1,0] op_sel_hi:[1,1,1]')
        for e in range(6): l.append(f'v_pk_fma_f32 v[{ac+2*e}:{ac+2*e+1}], v[{ac+2*e}:{ac+2*e+1}], v[{P}:{P+1}], v[{T+2*e}:{T+2*e+1}] op_sel_hi:[1,0,1]')
        for e in range(6): l.append(f'v_pk_mul_f32 v[{T+2*e}:{T+2*e+1}], v[{ac+2*e}:{ac+2*e+1}], s[48:49]')
        for e in range(12): l.append(f'v_exp_f32 v{T+e}, v{T+e}')
        for e in range(12): l.append(f'v_add_f32 v{T+e}, 1.0, v{T+e}')
        for e in range(12): l.append(f'v_rcp_f32 v{T+e}, v{T+e}')
        for e in range(6): l.append(f'v_pk_mul_f32 v[{ac+2*e}:{ac+2*e+1}], v[{ac+2*e}:{ac+2*e+1}], v[{T+2*e}:{T+2*e+1}]')
        F2 = F + 6 * (mt & 1)
        for e in range(6): l.append(f'v_cvt_pk_bf16_f32 v{F2+e}, v{ac+2*e}, v{ac+2*e+1}')
        l.append(f'buffer_store_dwordx4 v[{F2}:{F2+3}], v4, {WSR}, s44 offen')
        l.append(f'buffer_store_dwordx2 v[{F2+4}:{F2+5}], v4, {WSR}, s45 offen')
        l.append(f's_add_u32 s44, s44, {48*1024}'); l.append(f's_add_u32 s45, s45, {48*1024}')
        return l
    seq = [(mt, s) for s in range(20) for mt in (4, 0)] + [(mt, s) for mt in (1, 2, 3) for s in range(20)]
    PF = NB - 1
    def run(lo, hi, fill, extra=None):
        fi = 0
        n = (hi - lo) * 3
        k = 0
        for p in range(lo, hi):
            mt, s = seq[p]
            if p + PF < hi: a(xr(*seq[p + PF], (p + PF) % NB))
            for t in range(3):
                ac = ACC + 12 * mt + 4 * t; w = (s * 3 + t) * 4; x = XF + 4 * (p % NB)
                c = '0' if s == 0 else f'v[{ac}:{ac+3}]'
                a(f'{MF} v[{ac}:{ac+3}], a[{w}:{w+3}], v[{x}:{x+3}], {c}')
                k += 1
                if k > 6:
                    tgt = min(len(fill), (len(fill) * (k - 6) + (n - 10) - 1) // (n - 10))
                    while fi < tgt: a(fill[fi]); fi += 1
            if extra: extra(p)
        while fi < len(fill): a(fill[fi]); fi += 1
    hx = {}
    def extra0(p):
        if p < 15: a(wls[45 + p])
        if p in (16, 20, 24): hx[p] = xdma((p - 12) // 4)
    for p in range(PF): a(xr(*seq[p], p % NB))
    run(0, 40, [], extra0)
    uv = []
    for e in range(12):
        uv.append(f'v_mov_b32_dpp v{U1+e}, v{ACC+48+e} quad_perm:[0,0,2,2] row_mask:0xf bank_mask:0xf')
        uv.append(f'v_mov_b32_dpp v{T1+e}, v{ACC+48+e} quad_perm:[1,1,3,3] row_mask:0xf bank_mask:0xf')
    a.wait_id(hx[24]); a.barrier()
    seq2 = seq[40:]
    for p in range(40, 40 + PF): a(xr(*seq[p], p % NB))
    fills = {40: uv + epi(0), 60: epi(1), 80: epi(2)}
    def run2(lo, hi):
        fill = fills[lo]; fi = 0; n = 60; k = 0
        for p in range(lo, hi):
            mt, s = seq[p]
            if p + PF < 100: a(xr(*seq[p + PF], (p + PF) % NB))
            for t in range(3):
                ac = ACC + 12 * mt + 4 * t; w = (s * 3 + t) * 4; x = XF + 4 * (p % NB)
                c = '0' if s == 0 else f'v[{ac}:{ac+3}]'
                a(f'{MF} v[{ac}:{ac+3}], a[{w}:{w+3}], v[{x}:{x+3}], {c}')
                k += 1
                if k > 6:
                    tgt = min(len(fill), (len(fill) * (k - 6) + 49) // 50)
                    while fi < tgt: a(fill[fi]); fi += 1
        while fi < len(fill): a(fill[fi]); fi += 1
    run2(40, 60); run2(60, 80); run2(80, 100)
    for t in epi(3): a(t)
    epilogue(a, 'p3')
    return 102400

def p4(a):
    prologue(a, 'p4', [f's_load_dwordx2 s[{S_O}:{S_O+1}], s[0:1], 64'])
    srd(a, S_O, 2048 * 1280)
    MODL = 61440
    XR, ACC = 64, 24
    a('v_lshlrev_b32 v4, 4, v0')
    R = ksplit_gemm(a, 12, 48, WS_W2, WS_H1, 4, XR, ACC)
    XI = 150; MR = 160; GB = 176
    modfin_load(a, 1, MR, 12)
    a(f's_lshl2_add_u32 s48, s2, s{S_W}'); a('s_mul_i32 s48, s48, 2560'); a(f's_add_u32 s48, s48, {WS_X1}')
    a('v_lshlrev_b32 v17, 3, v0')
    for t in range(5): a(f'buffer_load_dwordx2 v[{XI+2*t}:{XI+2*t+1}], v17, {WSR}, s48 offen offset:{512*t}')
    a(f's_lshl_b32 s47, s{S_W}, 10'); a(f's_add_u32 s47, s47, {MODL}'); a('v_add_u32 v16, s47, v4')
    modfin_fin(a, MR, 12, 16)
    a('v_lshlrev_b32 v16, 4, v2'); a('v_add_u32 v16, s47, v16')
    a.wait(lg=0)
    for t in range(5): a(f'ds_read_b128 v[{GB+4*t}:{GB+4*t+3}], v16 offset:{(40+4*t)*16}')
    X1 = 64
    for e in range(10):
        for t in unpack(X1 + 2 * e, X1 + 2 * e + 1, XI + e): a(t)
    for e in range(10): a(f'v_pk_fma_f32 v[{X1+2*e}:{X1+2*e+1}], v[{R+2*e}:{R+2*e+1}], v[{GB+2*e}:{GB+2*e+1}], v[{X1+2*e}:{X1+2*e+1}]')
    for e in range(10): a(f'v_cvt_pk_bf16_f32 v{XI+e}, v{X1+2*e}, v{X1+2*e+1}')
    a(f's_lshl2_add_u32 s44, s{S_RB}, s{S_W}'); a('s_lshl_b32 s45, s44, 4'); a('v_add_u32 v14, s45, v1')
    a('s_movk_i32 s46, 1280'); a('v_mul_lo_u32 v15, v14, s46'); a('v_lshl_add_u32 v15, v2, 3, v15')
    a(f's_mul_i32 s46, s{S_J}, 160')
    for t in range(5): a(f'buffer_store_dwordx2 v[{XI+2*t}:{XI+2*t+1}], v15, s[{S_O}:{S_O+3}], s46 offen offset:{32*t}')
    epilogue(a, 'p4')
    return MODL + 4096
KERNELS = [('p1_kernel', p1), ('p2_kernel', p2), ('p3_kernel', p3), ('p4_kernel', p4)]
```

```python
import sys
from asmfw import *
NAME = "adaLN_cond__sliding_local_dilated__dense_activation_silu__prompt"
WS_MODP = 0x4000; WS_STATS = 0x20000; WS_WQ = 0x100000; WS_WO = 0x400000; WS_W1 = 0x500000; WS_W2 = 0x700000
WS_OF = 0x900000; WS_X1G = 0xC00000; WS_X1 = 0x1000000; WS_H1 = 0x1400000
MF = 'v_mfma_f32_16x16x32_bf16'
LOG2E = 1.4426950408889634
import struct
def f2u(x): return struct.unpack('<I', struct.pack('<f', x))[0]
def fl(x): return hex(f2u(x))
S_WS = 4
S_X = 8
S_M = 12
S_O = 16
S_RB, S_J, S_W = 20, 21, 22
def prologue(a, tag, loads):
    a('s_cmp_ge_u32 s2, 256')
    a(f's_cbranch_scc1 EXIT_{tag}')
    a(f's_load_dwordx2 s[{S_WS}:{S_WS+1}], s[0:1], 80')
    for l in loads: a(l)
    a('v_lshrrev_b32 v2, 6, v0')
    a('v_and_b32 v0, 63, v0')
    a(f'v_readfirstlane_b32 s{S_W}, v2')
    a('v_and_b32 v1, 15, v0')
    a('v_lshrrev_b32 v2, 4, v0')
    a('s_and_b32 s3, s2, 7')
    a(f's_lshr_b32 s{S_J}, s2, 3')
    a(f's_lshr_b32 s{S_RB}, s{S_J}, 3')
    a(f's_and_b32 s{S_J}, s{S_J}, 7')
    a(f's_lshl2_add_u32 s{S_RB}, s3, s{S_RB}')
    a(f's_mov_b32 s{S_WS+2}, 0x10000000')
    a(f's_mov_b32 s{S_WS+3}, 0x20000')
    a.wait(lg=0)
    a(f's_and_b32 s{S_WS+1}, s{S_WS+1}, 0xffff')
def epilogue(a, tag):
    a.label(f'EXIT_{tag}')
    a('s_endpgm')
def srd(a, b, size):
    a(f's_and_b32 s{b+1}, s{b+1}, 0xffff')
    a(f's_mov_b32 s{b+2}, {size}')
    a(f's_mov_b32 s{b+3}, 0x20000')
def unpack(dlo, dhi, src):
    return [f'v_lshlrev_b32 v{dlo}, 16, v{src}', f'v_and_b32 v{dhi}, 0xffff0000, v{src}']

def k0_decode(a, su, o, lab):
    sS, sC, sA, sB, sT = 60, 61, 62, 63, 64
    def div(d, x, m): a(f's_mul_i32 s{d}, s{x}, {m}'); a(f's_lshr_b32 s{d}, s{d}, 16')
    def case(lo, hi, ptr, N, K, ncg, magic, dst, nst, kind, last):
        if not last:
            a(f's_cmp_ge_u32 s{su}, {hi}'); a(f's_cbranch_scc1 {lab}_{hi}')
        a(f's_mov_b64 s[{o}:{o+1}], s[{ptr}:{ptr+1}]')
        a(f's_mov_b32 s{o+2}, {N*K*2}')
        a(f's_mov_b32 s{o+10}, {N*2}')
        a(f's_sub_u32 s{sT}, s{su}, {lo}')
        div(sS, sT, magic)
        a(f's_mul_i32 s{sC}, s{sS}, {ncg}'); a(f's_sub_u32 s{sC}, s{sT}, s{sC}')
        a(f's_mov_b32 s{o+8}, {dst}'); a(f's_mov_b32 s{o+9}, {nst*1024}')
        a(f's_mov_b32 s{o+11}, {1 if kind == 0 else 0}')
        if kind == 0:
            a(f's_lshl_b32 s{sA}, s{sS}, 1'); a(f's_add_u32 s{sB}, s{sA}, 1')
        else:
            n, mg, ta, tb = (5, 13108, 0x47520, 0x98631) if kind == 1 else (6, 10923, 0x829630, 0xb5a741)
            div(sA, sS, mg)
            a(f's_mul_i32 s{sB}, s{sA}, {n}'); a(f's_sub_u32 s{sT}, s{sS}, s{sB}')
            a(f's_lshl_b32 s{sT}, s{sT}, 2')
            a(f's_lshl_b32 s{sB}, s{sB}, 1')
            a(f's_lshr_b32 s{sA}, {hex(ta)}, s{sT}'); a(f's_and_b32 s{sA}, s{sA}, 15'); a(f's_add_u32 s{sA}, s{sA}, s{sB}')
            a(f's_lshr_b32 s{sT}, {hex(tb)}, s{sT}'); a(f's_and_b32 s{sT}, s{sT}, 15'); a(f's_add_u32 s{sB}, s{sT}, s{sB}')
        if not last:
            a(f's_branch {lab}_done'); a.label(f'{lab}_{hi}')
    case(0, 600, 24, 1920, 640, 30, 2185, WS_WQ, 20, 0, False)
    case(600, 800, 26, 640, 640, 10, 6554, WS_WO, 20, 1, False)
    case(800, 1280, 28, 1536, 640, 24, 2731, WS_W1, 20, 1, False)
    case(1280, 1760, 30, 640, 1536, 10, 6554, WS_W2, 48, 2, True)
    a.label(f'{lab}_done')
    a(f's_and_b32 s{o+1}, s{o+1}, 0xffff'); a(f's_mov_b32 s{o+3}, 0x20000')
    a(f's_lshl_b32 s{sT}, s{o+10}, 4')
    a(f's_mul_i32 s{o+4}, s{sA}, s{sT}'); a(f's_mul_i32 s{o+6}, s{sB}, s{sT}')
    a(f's_lshl_b32 s{sA}, s{sC}, 7')
    a(f's_add_u32 s{o+4}, s{o+4}, s{sA}'); a(f's_add_u32 s{o+6}, s{o+6}, s{sA}')
    a(f's_lshr_b32 s{sT}, s{sT}, 1')
    a(f's_add_u32 s{o+5}, s{o+4}, s{sT}'); a(f's_add_u32 s{o+7}, s{o+6}, s{sT}')
    a(f's_lshl_b32 s{sC}, s{sC}, 2'); a(f's_mul_i32 s{sC}, s{sC}, s{o+9}')
    a(f's_lshl_b32 s{sS}, s{sS}, 10')
    a(f's_add_u32 s{o+8}, s{o+8}, s{sC}'); a(f's_add_u32 s{o+8}, s{o+8}, s{sS}')

def k0(a):
    prologue(a, 'k0', ['s_load_dwordx4 s[24:27], s[0:1], 8', 's_load_dwordx4 s[28:31], s[0:1], 32',
                       's_load_dwordx2 s[8:9], s[0:1], 48', 's_load_dwordx2 s[12:13], s[0:1], 56'])
    srd(a, 8, 1280)
    srd(a, 12, 640 * 3840 * 2)
    a('s_lshr_b32 s32, s2, 2'); a('s_min_u32 s32, s32, 59'); a('s_and_b32 s33, s2, 3')
    a('s_mul_i32 s34, s33, 160'); a(f's_lshl3_add_u32 s34, s{S_W}, s34')
    a('v_lshrrev_b32 v3, 3, v0'); a('v_and_b32 v4, 7, v0')
    a('v_add_u32 v5, s34, v3')
    a('v_lshlrev_b32 v6, 1, v5')
    a('s_movk_i32 s35, 7680'); a('v_mul_lo_u32 v5, v5, s35')
    a('v_lshl_add_u32 v5, v4, 4, v5')
    a('s_lshl_b32 s35, s32, 7')
    for i in range(5):
        a(f'buffer_load_ushort v{10+i}, v6, s[8:11], 0 offen offset:{64*i}')
    for i in range(5):
        a(f'buffer_load_dwordx4 v[{16+4*i}:{19+4*i}], v5, s[12:15], s35 offen')
        if i < 4: a(f's_add_u32 s35, s35, {32*7680}')
    a(f's_lshl2_add_u32 s36, s2, s{S_W}')
    a('s_add_u32 s37, s36, 1024')
    a('s_cmp_ge_u32 s37, 1760'); a('s_cselect_b32 s38, 0x80000000, 0'); a('s_min_u32 s37, s37, 1759')
    U = (68, 80)
    k0_decode(a, 36, U[0], 'K0A'); k0_decode(a, 37, U[1], 'K0B')
    LB = 1024
    a(f's_lshl_b32 s39, s{S_W}, 13'); a(f's_add_u32 s39, s39, {LB}')
    hs = []
    for un in range(2):
        o = U[un]
        a(f'v_mul_lo_u32 v7, v3, s{o+10}'); a('v_lshl_add_u32 v7, v4, 4, v7')
        for i in range(4):
            a(f's_add_u32 m0, s39, {un*4096 + i*1024}')
            h = a(f'buffer_load_dwordx4 v7, s[{o}:{o+3}], s{o+4+i} offen lds')
        hs.append(h)
    for i in range(5): a(f'v_lshlrev_b32 v{10+i}, 16, v{10+i}')
    for i in range(5): a(f'v_mul_f32 v{40+i}, {fl(-LOG2E)}, v{10+i}')
    for i in range(5): a(f'v_exp_f32 v{40+i}, v{40+i}')
    for i in range(5): a(f'v_add_f32 v{40+i}, 1.0, v{40+i}')
    for i in range(5): a(f'v_rcp_f32 v{40+i}, v{40+i}')
    for i in range(5): a(f'v_mul_f32 v{10+i}, v{10+i}, v{40+i}')
    for i in range(5): a(f'v_cvt_pk_bf16_f32 v{10+i}, v{10+i}, v{10+i}')
    for i in range(5): a(f'v_lshlrev_b32 v{10+i}, 16, v{10+i}')
    for i in range(5):
        for q in range(4):
            for t in unpack(48, 49, 16 + 4*i + q): a(t)
            if i == 0:
                a(f'v_mul_f32 v{40+2*q}, v48, v10'); a(f'v_mul_f32 v{41+2*q}, v49, v10')
            else:
                a(f'v_fmac_f32 v{40+2*q}, v48, v{10+i}'); a(f'v_fmac_f32 v{41+2*q}, v49, v{10+i}')
    for q in range(4): a(f'v_permlane16_swap_b32 v{40+q}, v{44+q}')
    for q in range(4): a(f'v_add_f32 v{40+q}, v{40+q}, v{44+q}')
    for q in range(2): a(f'v_permlane32_swap_b32 v{40+q}, v{42+q}')
    for q in range(2): a(f'v_add_f32 v{40+q}, v{40+q}, v{42+q}')
    for q in range(2): a(f'v_add_f32_dpp v{42+q}, v{40+q}, v{40+q} row_ror:8 row_mask:0xf bank_mask:0xf')
    a('v_and_b32 v8, 1, v2'); a('v_lshlrev_b32 v8, 4, v8'); a('v_lshl_add_u32 v8, v4, 5, v8')
    a('v_lshrrev_b32 v9, 1, v2'); a('v_lshl_add_u32 v8, v9, 3, v8')
    a(f's_lshl_b32 s40, s{S_W}, 8'); a('v_add_u32 v8, s40, v8')
    a('ds_write_b64 v8, v[42:43]')
    a.wait(lg=0); a.barrier()
    a('v_lshlrev_b32 v8, 2, v0')
    for q in range(4): a(f'ds_read_b32 v{40+q}, v8 offset:{256*q}')
    a('v_add_f32 v40, v40, v41'); a('v_add_f32 v42, v42, v43'); a('v_add_f32 v40, v40, v42')
    a(f's_cmp_lg_u32 s{S_W}, 0'); a('s_cselect_b32 s40, 0x80000000, 0')
    a('s_cmp_ge_u32 s2, 240'); a('s_cselect_b32 s40, 0x80000000, s40')
    a('v_or_b32 v8, s40, v8')
    a('s_mul_i32 s41, s33, 15360'); a('s_lshl_b32 s42, s32, 8'); a('s_add_u32 s41, s41, s42'); a(f's_add_u32 s41, s41, {WS_MODP}')
    a(f'buffer_store_dword v40, v8, s[{S_WS}:{S_WS+3}], s41 offen')
    a('v_lshrrev_b32 v50, 2, v1'); a('v_lshlrev_b32 v50, 7, v50'); a('v_and_b32 v51, 3, v1'); a('v_lshl_add_u32 v50, v51, 3, v50')
    a('v_add_u32 v50, s39, v50')
    a('v_lshlrev_b32 v54, 4, v0')
    a('v_or_b32 v55, s38, v54')
    for un in range(2):
        o = U[un]
        a(f's_add_u32 s43, s{o+11}, 9'); a('v_lshlrev_b32 v51, s43, v2'); a('v_add_u32 v51, v51, v50')
        a(f's_lshl_b32 s43, s{o+11}, 1'); a('s_lshr_b32 s43, 2048, s43'); a('v_add_u32 v52, s43, v51')
        a.wait_id(hs[un])
        R = 64 + 16 * un
        for t in range(4):
            a(f'ds_read_b64_tr_b16 v[{R+4*t}:{R+4*t+1}], v51 offset:{un*4096 + 32*t}')
            a(f'ds_read_b64_tr_b16 v[{R+4*t+2}:{R+4*t+3}], v52 offset:{un*4096 + 32*t}')
        for t in range(4):
            a(f'buffer_store_dwordx4 v[{R+4*t}:{R+4*t+3}], v{54+un}, s[{S_WS}:{S_WS+3}], s{o+8} offen')
            if t < 3: a(f's_add_u32 s{o+8}, s{o+8}, s{o+9}')
    epilogue(a, 'k0')
    return 1024 + 32768

def kernel_text(name, fn):
    a = Asm()
    lds = fn(a)
    t = f'.globl {name}\n.p2align 8\n.type {name},@function\n{name}:\n' + a.text()
    d = f'''.amdhsa_kernel {name}
  .amdhsa_next_free_vgpr 512
  .amdhsa_next_free_sgpr 102
  .amdhsa_accum_offset 256
  .amdhsa_group_segment_fixed_size 0
  .amdhsa_kernarg_size 88
  .amdhsa_user_sgpr_count 2
  .amdhsa_user_sgpr_kernarg_segment_ptr 1
  .amdhsa_system_sgpr_workgroup_id_x 1
.end_amdhsa_kernel
'''
    print(name, 'instrs', a.n, 'nops', a.nops, file=sys.stderr)
    return t, d, lds
def build(kernels, path):
    head, code, desc = '', '', ''
    for name, fn in kernels:
        t, d, lds = kernel_text(name, fn)
        head += f'; @launch kernel={name} grid=(256,1,1) block=(256,1,1) lds={lds}\n'
        code += t; desc += '.p2align 6\n' + d
    open(path, 'w').write(head + '.amdgcn_target "amdgcn-amd-amdhsa--gfx950"\n.text\n' + code + '.section .rodata,"a"\n' + desc)
if __name__ == '__main__':
    import phases
    ks = [('k0_kernel', k0)] + phases.KERNELS
    build(ks, sys.argv[1])
```

```python
from gen1 import *
WSR = f's[{S_WS}:{S_WS+3}]'
def p1(a):
    prologue(a, 'p1', [f's_load_dwordx2 s[{S_X}:{S_X+1}], s[0:1], 0'])
    srd(a, S_X, 2048 * 1280)
    XN = 40
    DUMP = 102400; MODL = DUMP + 40960
    a(f's_lshl_b32 s24, s{S_RB}, 6'); a(f's_mul_i32 s25, s{S_W}, 20'); a('s_add_u32 s24, s24, s25'); a('s_sub_u32 s24, s24, 16')
    a('s_movk_i32 s26, 1280')
    for i in range(5):
        a(f'v_add_u32 v3, s24, v2')
        if i: a(f'v_add_u32 v3, {4*i}, v3')
        a('v_max_i32 v3, 0, v3'); a('v_mul_lo_u32 v3, v3, s26'); a(f'v_lshl_add_u32 v{240+i}, v1, 4, v3')
        for u in range(5):
            b = XN + (i * 5 + u) * 8
            a(f'buffer_load_dwordx4 v[{b+4}:{b+7}], v{240+i}, s[{S_X}:{S_X+3}], 0 offen offset:{256*u}')
    a(f's_mul_i32 s27, s{S_W}, 1280')
    a('v_lshlrev_b32 v4, 4, v0'); a('v_add_u32 v245, s27, v4')
    a('v_lshlrev_b32 v5, 4, v1'); a('v_add_u32 v246, s27, v5'); a('v_add_u32 v246, 1024, v246')
    a(f's_mov_b32 s28, {WS_MODP}')
    for kq in range(4):
        a(f'buffer_load_dwordx4 v[{8+8*kq}:{11+8*kq}], v245, {WSR}, s28 offen')
        a(f'buffer_load_dwordx4 v[{12+8*kq}:{15+8*kq}], v246, {WSR}, s28 offen')
        if kq < 3: a('s_add_u32 s28, s28, 15360')
    a(f's_mul_i32 s29, s{S_J}, 5'); a(f's_add_u32 s30, s29, s{S_W}')
    a('s_add_u32 s32, s30, 40'); a('s_add_u32 s33, s30, 80'); a('s_mov_b32 s35, s30')
    a(f's_lshl_b32 s31, s{S_W}, 3'); a('s_lshr_b32 s34, 0x04542c, s31'); a('s_and_b32 s34, s34, 0xff'); a('s_add_u32 s34, s34, s29')
    for q in range(4):
        a(f's_mul_i32 s{32+q}, s{32+q}, 20480'); a(f's_add_u32 s{32+q}, s{32+q}, {WS_WQ}')
    a(f's_mov_b64 s[12:13], s[{S_WS}:{S_WS+1}]'); a(f's_cmp_eq_u32 s{S_W}, 3'); a(f's_cselect_b32 s14, 0, s{S_WS+2}'); a('s_mov_b32 s15, 0x20000')
    VW = 247
    a(f'v_mov_b32 v{VW}, v4')
    for q in range(1, 5): a(f'v_add_u32 v{VW+q}, {4096*q}, v4')
    def wload(s, sl):
        r = 16 * (s % 16) + 4 * sl
        return f'buffer_load_dwordx4 a[{r}:{r+3}], v{VW + s//4}, {"s[12:15]" if sl == 2 else WSR}, s{32+sl} offen offset:{1024*(s%4)}'
    NPRE = 7
    for s in range(NPRE):
        for sl in range(4): a(wload(s, sl))
    for r0 in (8, 12):
        for e in (0, 2):
            a(f'v_pk_add_f32 v[{r0+e}:{r0+e+1}], v[{r0+e}:{r0+e+1}], v[{r0+8+e}:{r0+9+e}]')
            a(f'v_pk_add_f32 v[{r0+16+e}:{r0+17+e}], v[{r0+16+e}:{r0+17+e}], v[{r0+24+e}:{r0+25+e}]')
            a(f'v_pk_add_f32 v[{r0+e}:{r0+e+1}], v[{r0+e}:{r0+e+1}], v[{r0+16+e}:{r0+17+e}]')
    a(f's_cmp_ge_u32 s{S_W}, 2'); a('s_cselect_b32 s36, 1.0, 0')
    for e in range(8, 16, 2):
        a(f'v_cvt_pk_bf16_f32 v3, v{e}, v{e+1}')
        for t in unpack(e, e + 1, 3): a(t)
        a(f'v_add_f32 v{e}, s36, v{e}'); a(f'v_add_f32 v{e+1}, s36, v{e+1}')
        a(f'v_cvt_pk_bf16_f32 v3, v{e}, v{e+1}')
        for t in unpack(e, e + 1, 3): a(t)
    a(f'v_add_u32 v245, {MODL}, v245'); a(f'v_add_u32 v246, {MODL}, v246')
    a('ds_write_b128 v245, v[8:11]'); a('ds_write_b128 v246, v[12:15]')
    for i in range(5):
        S, Q = 16 + 4 * i, 18 + 4 * i
        for u in range(5):
            b = XN + (i * 5 + u) * 8
            for e in range(4):
                for t in unpack(b + 2 * e, b + 2 * e + 1, b + 4 + e): a(t)
            for e in range(4):
                p = f'v[{b+2*e}:{b+2*e+1}]'
                if u == 0 and e == 0:
                    a(f'v_pk_mul_f32 v[{Q}:{Q+1}], {p}, {p}')
                else:
                    a(f'v_pk_fma_f32 v[{Q}:{Q+1}], {p}, {p}, v[{Q}:{Q+1}]')
                if u == 0 and e == 1: a(f'v_pk_add_f32 v[{S}:{S+1}], v[{b}:{b+1}], {p}')
                elif not (u == 0 and e == 0): a(f'v_pk_add_f32 v[{S}:{S+1}], v[{S}:{S+1}], {p}')
        for s in range(NPRE + 2 * i, min(16, NPRE + 2 * i + 2)):
            for sl in range(4): a(wload(s, sl))
    for i in range(5):
        a(f'v_add_f32 v{16+4*i}, v{16+4*i}, v{17+4*i}'); a(f'v_add_f32 v{18+4*i}, v{18+4*i}, v{19+4*i}')
    for ror in (8, 4, 2, 1):
        for i in range(5):
            for c in (16, 18):
                a(f'v_add_f32_dpp v{c+4*i}, v{c+4*i}, v{c+4*i} row_ror:{ror} row_mask:0xf bank_mask:0xf')
    for i in range(5): a(f'v_mul_f32 v{16+4*i}, {fl(1/640)}, v{16+4*i}')
    a(f's_mov_b32 s37, {fl(1/640)}')
    a(f'v_mov_b32 v3, {fl(1e-5)}')
    for i in range(5): a(f'v_fma_f32 v{18+4*i}, v{18+4*i}, s37, v3')
    for i in range(5): a(f'v_fma_f32 v{18+4*i}, -v{16+4*i}, v{16+4*i}, v{18+4*i}')
    for i in range(5): a(f'v_max_f32 v{18+4*i}, v{18+4*i}, v3')
    for i in range(5): a(f'v_rsq_f32 v{18+4*i}, v{18+4*i}')
    for i in range(5): a(f'v_mul_f32 v{19+4*i}, -v{16+4*i}, v{18+4*i}')
    for i in range(5):
        P = 18 + 4 * i
        for u in range(5):
            b = XN + (i * 5 + u) * 8
            for e in range(4):
                p = f'v[{b+2*e}:{b+2*e+1}]'
                a(f'v_pk_fma_f32 {p}, {p}, v[{P}:{P+1}], v[{P}:{P+1}] op_sel:[0,0,1] op_sel_hi:[1,0,1]')
    a('v_lshrrev_b32 v3, 2, v1'); a('v_lshlrev_b32 v3, 10, v3'); a('v_and_b32 v5, 3, v1'); a('v_lshl_add_u32 v3, v5, 8, v3')
    a('v_and_b32 v5, 7, v1'); a('s_movk_i32 s26, 20480')
    for i in range(5):
        a(f'v_add_u32 v6, s25, v2')
        if i: a(f'v_add_u32 v6, {4*i}, v6')
        a('v_and_b32 v7, 15, v6'); a('v_xor_b32 v7, v7, v5'); a('v_lshrrev_b32 v6, 4, v6')
        a('v_mad_u32_u24 v6, v6, s26, v3'); a(f'v_lshl_add_u32 v{240+i}, v7, 4, v6')
    a('v_lshlrev_b32 v5, 5, v1'); a(f'v_add_u32 v5, {MODL}, v5')
    ts(a, 1)
    a.wait(lg=0); a.barrier()
    def gs_read(u):
        b = 8 + 16 * (u % 2)
        for q in range(2):
            a(f'ds_read_b128 v[{b+4*q}:{b+4*q+3}], v5 offset:{512*u + 16*q}')
            a(f'ds_read_b128 v[{b+8+4*q}:{b+8+4*q+3}], v5 offset:{2560 + 512*u + 16*q}')
    gs_read(0)
    for u in range(5):
        if u < 4: gs_read(u + 1)
        gb = 8 + 16 * (u % 2)
        for i in range(5):
            b = XN + (i * 5 + u) * 8
            for e in range(4):
                p = f'v[{b+2*e}:{b+2*e+1}]'
                a(f'v_pk_fma_f32 {p}, {p}, v[{gb+8+2*e}:{gb+9+2*e}], v[{gb+2*e}:{gb+2*e+1}]')
            for e in range(4): a(f'v_cvt_pk_bf16_f32 v{b+e}, v{b+2*e}, v{b+2*e+1}')
            a(f'ds_write_b128 v{240+i}, v[{b}:{b+3}] offset:{4096*u}')
    a('v_xor_b32 v3, v1, v2'); a('v_lshlrev_b32 v5, 8, v2'); a('v_lshl_add_u32 v8, v3, 4, v5')
    a('v_xor_b32 v9, 64, v8'); a('v_add_u32 v10, 61440, v8'); a('v_add_u32 v11, 61440, v9')
    a('v_lshrrev_b32 v3, 2, v1'); a('v_xor_b32 v3, v3, v2'); a('v_lshlrev_b32 v3, 3, v3'); a('v_lshl_add_u32 v3, v1, 5, v3')
    a(f's_add_u32 s40, s{S_W}, 5'); a(f's_add_u32 s41, s{S_W}, 10'); a(f's_mov_b32 s43, s{S_W}')
    a('s_lshr_b32 s42, 0x0f040e09, s31'); a('s_and_b32 s42, s42, 0xff')
    for q in range(4):
        a(f's_mul_i32 s{40+q}, s{40+q}, 2560'); a(f's_add_u32 s{40+q}, s{40+q}, {DUMP}'); a(f'v_add_u32 v{12+q}, s{40+q}, v3')
    a(f's_lshl_b32 s44, s{S_W}, 9'); a(f's_add_u32 s44, s44, {DUMP}')
    a('v_add_u32 v16, s44, v3')
    a('v_and_b32 v3, 3, v1'); a('v_xor_b32 v3, v3, v2'); a('v_lshlrev_b32 v3, 3, v3')
    a('v_and_b32 v5, 60, v0'); a('v_lshl_add_u32 v3, v5, 3, v3'); a('v_add_u32 v17, s44, v3')
    a('v_and_b32 v3, 1, v1'); a('v_cmp_eq_u32 s[46:47], 1, v3')
    a('v_lshl_add_u32 v5, v2, 2, v3'); a('v_cmp_le_u32 s[48:49], v5, v1')
    a('v_add_u32 v5, 2, v5'); a('v_cmp_le_u32 s[50:51], v5, v1')
    a('v_mov_b32 v5, 0x0c0c0100'); a('v_mov_b32 v6, 0x01000c0c'); a('v_cndmask_b32 v5, v5, v6, s[46:47]')
    a('v_mov_b32 v6, 0x0c0c0302'); a('v_mov_b32 v7, 0x03020c0c'); a('v_cndmask_b32 v6, v6, v7, s[46:47]')
    a('v_mov_b32 v7, 0x0c0c0c0c')
    a('v_cndmask_b32 v18, v5, v7, s[48:49]'); a('v_cndmask_b32 v19, v6, v7, s[50:51]')
    a('v_cndmask_b32 v20, v7, v5, s[48:49]'); a('v_cndmask_b32 v21, v7, v6, s[50:51]')
    a(f's_or_b32 s45, s{S_RB}, s{S_W}'); a('s_cmp_eq_u32 s45, 0'); a(f's_cselect_b32 s45, {fl(-1e30)}, 0')
    for q in range(4): a(f'v_mov_b32 v{22+q}, s45')
    a.wait(lg=0); a.barrier()
    ts(a, 2); tsc(a, 0)
    QR = 160
    for q in range(16): a(f'v_mov_b32 v{QR+q}, 0')
    ACC = 40; XF = 116
    def xread(s):
        l = []
        for mt in range(5):
            r = XF + 20 * (s % 2) + 4 * mt
            off = (mt * 20 + s) * 1024
            ad = 8 + (s & 1)
            if off >= 61440: off -= 61440; ad += 2
            l.append(f'ds_read_b128 v[{r}:{r+3}], v{ad} offset:{off}')
        return l
    for t in xread(0): a(t)
    for s in range(20):
        main = []
        for mt in range(5):
            for sl in range(4):
                if sl == 3 and mt == 0: continue
                ac = ACC + 4 * (sl * 5 + mt - (1 if sl == 3 else 0))
                w = 16 * (s % 16) + 4 * sl; x = XF + 20 * (s % 2) + 4 * mt
                c = '0' if s == 0 else f'v[{ac}:{ac+3}]'
                main.append(f'{MF} v[{ac}:{ac+3}], a[{w}:{w+3}], v[{x}:{x+3}], {c}')
        fill = xread(s + 1) if s < 19 else []
        if 1 <= s <= 4: fill += [wload(s + 15, sl) for sl in range(4)]
        interleave(a, main, fill, every=2, per=1)
    ts(a, 3); tsc(a, 1)
    for sl in range(4):
        for mt in range(5):
            if sl == 3 and mt == 0: continue
            ac = ACC + 4 * (sl * 5 + mt - (1 if sl == 3 else 0))
            a(f'v_cvt_pk_bf16_f32 v{ac}, v{ac}, v{ac+1}'); a(f'v_cvt_pk_bf16_f32 v{ac+1}, v{ac+2}, v{ac+3}')
            a(f'ds_write_b64 v{12+sl}, v[{ac}:{ac+1}] offset:{512*mt}')
    a.wait(lg=0); a.barrier()
    ts(a, 4)
    K0, K1, VR, SR = 120, 130, 140, 176
    for t in range(5):
        a(f'ds_read_b64 v[{K0+2*t}:{K0+2*t+1}], v16 offset:{(5+t)*2560}')
        a(f'ds_read_b64 v[{K1+2*t}:{K1+2*t+1}], v16 offset:{(5+t)*2560+512}')
    def setexec(m):
        a(f's_mov_b32 exec_lo, {hex(m & 0xffffffff)}'); a(f's_mov_b32 exec_hi, {hex(m >> 32)}')
    FULL = (1 << 64) - 1
    for h in range(4):
        setexec((FULL << (16 * h)) & FULL)
        a(f'ds_read_b64 v[{QR+4*h}:{QR+4*h+1}], v16 offset:{h*2560+512}')
        setexec((1 << (16 * (h + 1))) - 1)
        a(f'ds_read_b64 v[{QR+4*h+2}:{QR+4*h+3}], v16 offset:{(h+1)*2560+512}')
    for t in range(5):
        a(f'ds_read_b64_tr_b16 v[{VR+4*t}:{VR+4*t+1}], v17 offset:{(10+t)*2560}')
        a(f'ds_read_b64_tr_b16 v[{VR+4*t+2}:{VR+4*t+3}], v17 offset:{(10+t)*2560+512}')
    for h in range(4):
        a(f'{MF} v[{SR+8*h}:{SR+8*h+3}], v[{K0+2*h}:{K0+2*h+3}], v[{QR+4*h}:{QR+4*h+3}], v[22:25]')
        a(f'{MF} v[{SR+8*h+4}:{SR+8*h+7}], v[{K1+2*h}:{K1+2*h+3}], v[{QR+4*h}:{QR+4*h+3}], 0')
    H = range(4)
    for h in H:
        b = SR + 8 * h
        for e in (0, 2, 4, 6): a(f'v_cndmask_b32 v{b+e}, v{b+e}, v{b+e+1}, s[46:47]')
        a(f'v_cndmask_b32 v{b}, v{b}, v{b+4}, s[48:49]'); a(f'v_cndmask_b32 v{b+1}, v{b+2}, v{b+6}, s[50:51]')
    def bfly(op, r):
        for sw in ('v_permlane16_swap_b32', 'v_permlane32_swap_b32'):
            for h in H: a(f'v_mov_b32 v{SR+8*h+r+1}, v{SR+8*h+r}')
            for h in H: a(f'{sw} v{SR+8*h+r}, v{SR+8*h+r+1}')
            for h in H: a(f'{op} v{SR+8*h+r}, v{SR+8*h+r}, v{SR+8*h+r+1}')
    for h in H: a(f'v_max_f32 v{SR+8*h+2}, v{SR+8*h}, v{SR+8*h+1}')
    bfly('v_max_f32', 2)
    CS = LOG2E * 20 ** -0.5
    for h in H:
        b = SR + 8 * h
        a(f'v_sub_f32 v{b}, v{b}, v{b+2}'); a(f'v_sub_f32 v{b+1}, v{b+1}, v{b+2}')
    for h in H:
        b = SR + 8 * h
        a(f'v_mul_f32 v{b}, {fl(CS)}, v{b}'); a(f'v_mul_f32 v{b+1}, {fl(CS)}, v{b+1}')
    for h in H:
        b = SR + 8 * h
        a(f'v_exp_f32 v{b}, v{b}'); a(f'v_exp_f32 v{b+1}, v{b+1}')
    for h in H: a(f'v_add_f32 v{SR+8*h+2}, v{SR+8*h}, v{SR+8*h+1}')
    bfly('v_add_f32', 2)
    for h in H: a(f'v_rcp_f32 v{SR+8*h+2}, v{SR+8*h+2}')
    for h in H:
        b = SR + 8 * h
        a(f'v_mul_f32 v{b}, v{b}, v{b+2}'); a(f'v_mul_f32 v{b+1}, v{b+1}, v{b+2}')
    for h in H: a(f'v_cvt_pk_bf16_f32 v{SR+8*h}, v{SR+8*h}, v{SR+8*h+1}')
    for h in H:
        b = SR + 8 * h
        for q in range(4): a(f'v_perm_b32 v{b+4+q}, v{b}, v{b}, v{18+q}')
    OR = 40
    for h in H:
        b = SR + 8 * h + 4
        a(f'{MF} v[{OR+8*h}:{OR+8*h+3}], v[{VR+4*h}:{VR+4*h+3}], v[{b}:{b+3}], 0')
        a(f'{MF} v[{OR+8*h+4}:{OR+8*h+7}], v[{VR+4*h+4}:{VR+4*h+7}], v[{b}:{b+3}], 0')
    a(f's_lshl2_add_u32 s52, s{S_RB}, s{S_W}'); a('s_mul_i32 s52, s52, 20480'); a(f's_add_u32 s52, s52, {WS_OF}')
    frag_offsets(a, 52, 53, 54)
    F = 80
    a(f'v_cvt_pk_bf16_f32 v{F}, v{OR}, v{OR+1}'); a(f'v_cvt_pk_bf16_f32 v{F+1}, v{OR+2}, v{OR+3}')
    for t in (1, 2, 3, 4):
        s_ = OR + 8 * (t - 1) + 4
        a(f'v_cvt_pk_bf16_f32 v{F+2*t}, v{s_}, v{s_+1}'); a(f'v_cvt_pk_bf16_f32 v{F+2*t+1}, v{s_+2}, v{s_+3}')
    for t in (1, 2, 3):
        setexec((FULL << (16 * t)) & FULL)
        s_ = OR + 8 * t
        a(f'v_cvt_pk_bf16_f32 v{F+2*t}, v{s_}, v{s_+1}'); a(f'v_cvt_pk_bf16_f32 v{F+2*t+1}, v{s_+2}, v{s_+3}')
    setexec(FULL)
    ts(a, 5)
    frag_store80(a, F, 4, 52, 53)
    epilogue(a, 'p1')
    return MODL + 5120
def frag_offsets(a, sb, s2, st):
    a(f's_lshr_b32 s{st}, s{S_J}, 1'); a(f's_mul_i32 s{st}, s{st}, 5120'); a(f's_add_u32 s{sb}, s{sb}, s{st}')
    a(f's_and_b32 s{st}, s{S_J}, 1')
    a(f's_lshl3_add_u32 s{s2}, s{st}, s{sb}'); a(f's_add_u32 s{s2}, s{s2}, 4096')
    a(f's_lshl_b32 s{st}, s{st}, 11'); a(f's_add_u32 s{sb}, s{sb}, s{st}')
def frag_store80(a, F, va, sb, s2):
    a(f'buffer_store_dwordx4 v[{F}:{F+3}], v{va}, {WSR}, s{sb} offen')
    a(f'buffer_store_dwordx4 v[{F+4}:{F+7}], v{va}, {WSR}, s{sb} offen offset:1024')
    a(f'buffer_store_dwordx2 v[{F+8}:{F+9}], v{va}, {WSR}, s{s2} offen')

def modfin_load(a, vec0, R, vt):
    a(f'v_mul_u32_u24 v{vt}, 3277, v0'); a(f'v_lshrrev_b32 v{vt}, 16, v{vt}')
    a(f'v_cmp_eq_u32 s[56:57], {2 - vec0}, v{vt}')
    a(f'v_mul_u32_u24 v{vt+1}, {2560 - 320}, v{vt}'); a(f'v_lshl_add_u32 v{vt+1}, v0, 4, v{vt+1}')
    a(f's_mul_i32 s58, s{S_J}, 320'); a(f's_add_u32 s58, s58, {WS_MODP + (1280 + 640 * vec0) * 4}')
    for kq in range(4):
        a(f'buffer_load_dwordx4 v[{R+4*kq}:{R+4*kq+3}], v{vt+1}, {WSR}, s58 offen')
        if kq < 3: a('s_add_u32 s58, s58, 15360')
def modfin_fin(a, R, vt, va):
    for e in (0, 2):
        a(f'v_pk_add_f32 v[{R+e}:{R+e+1}], v[{R+e}:{R+e+1}], v[{R+4+e}:{R+5+e}]')
        a(f'v_pk_add_f32 v[{R+8+e}:{R+9+e}], v[{R+8+e}:{R+9+e}], v[{R+12+e}:{R+13+e}]')
        a(f'v_pk_add_f32 v[{R+e}:{R+e+1}], v[{R+e}:{R+e+1}], v[{R+8+e}:{R+9+e}]')
    a(f'v_cndmask_b32 v{vt+1}, 0, 1.0, s[56:57]')
    for e in (0, 2):
        a(f'v_cvt_pk_bf16_f32 v{vt}, v{R+e}, v{R+e+1}')
        for t in unpack(R + e, R + e + 1, vt): a(t)
        a(f'v_add_f32 v{R+e}, v{vt+1}, v{R+e}'); a(f'v_add_f32 v{R+e+1}, v{vt+1}, v{R+e+1}')
        a(f'v_cvt_pk_bf16_f32 v{vt}, v{R+e}, v{R+e+1}')
        for t in unpack(R + e, R + e + 1, vt): a(t)
    a(f'ds_write_b128 v{va}, v[{R}:{R+3}]')

def ksplit_gemm(a, ns, nst, wbase, xbase, xmt, XR, ACC, mid=None):
    nv = (ns + 3) // 4
    for k in range(1, nv): a(f'v_add_u32 v{4+k}, {4096*k}, v4')
    a(f's_mul_i32 s30, s{S_W}, {ns*1024}')
    a(f's_mul_i32 s31, s{S_J}, {5*nst*1024}'); a('s_add_u32 s31, s31, s30'); a(f's_add_u32 s32, s31, {wbase}')
    for t in range(1, 5): a(f's_add_u32 s{32+t}, s{31+t}, {nst*1024}')
    a(f's_mul_i32 s31, s{S_RB}, {xmt*nst*1024}'); a('s_add_u32 s31, s31, s30'); a(f's_add_u32 s31, s31, {xbase}')
    for q in range(4):
        a(f's_add_u32 s38, s{S_W}, {q+1}'); a('s_and_b32 s38, s38, 3')
        a(f's_mul_i32 s39, s38, {nst*1024}'); a(f's_add_u32 s{40+q}, s39, s31')
        if q < 3:
            a('s_mul_i32 s39, s38, 15360'); a(f's_add_u32 s39, s39, {q*5120}'); a(f'v_add_u32 v{8+q}, s39, v4')
    def xl(q, i):
        r = XR + (q * ns + i) * 4
        return f'buffer_load_dwordx4 v[{r}:{r+3}], v{4+i//4}, {WSR}, s{40+q} offen offset:{1024*(i%4)}'
    def wl(t, i):
        r = (t * ns + i) * 4
        return f'buffer_load_dwordx4 a[{r}:{r+3}], v{4+i//4}, {WSR}, s{32+t} offen offset:{1024*(i%4)}'
    loads = []
    for i in range(ns):
        loads.append(xl(0, i))
        loads += [wl(t, i) for t in range(5)]
    for q in range(1, 4): loads += [xl(q, i) for i in range(ns)]
    npre = min(len(loads), 56)
    for l in loads[:npre]: a(l)
    rest = loads[npre:]
    if mid: mid()
    ts(a, 1)
    prev = []
    for q in range(4):
        ac = ACC + 20 * (q & 1)
        main = []
        for i in range(ns):
            for t in range(5):
                w = (t * ns + i) * 4; x = XR + (q * ns + i) * 4
                c = '0' if i == 0 else f'v[{ac+4*t}:{ac+4*t+3}]'
                main.append(f'{MF} v[{ac+4*t}:{ac+4*t+3}], a[{w}:{w+3}], v[{x}:{x+3}], {c}')
        if q == 0:
            interleave(a, main, rest, every=1, per=1)
            ts(a, 2); tsc(a, 0)
        else:
            interleave(a, main, prev, every=2, per=1, start=4)
        prev = [f'ds_write_b128 v{8+q}, v[{ac+4*t}:{ac+4*t+3}] offset:{1024*t}' for t in range(5)] if q < 3 else []
    a(f's_mul_i32 s39, s{S_W}, 15360'); a('v_add_u32 v8, s39, v4')
    ts(a, 3); tsc(a, 1)
    a.wait(lg=0); a.barrier()
    ts(a, 4)
    R = ACC + 20
    for q in range(3):
        for t in range(5):
            r = XR + (q * 5 + t) * 4
            a(f'ds_read_b128 v[{r}:{r+3}], v8 offset:{q*5120+t*1024}')
    for q in range(3):
        for t in range(5):
            r = XR + (q * 5 + t) * 4
            for e in (0, 2): a(f'v_pk_add_f32 v[{R+4*t+e}:{R+4*t+e+1}], v[{R+4*t+e}:{R+4*t+e+1}], v[{r+e}:{r+e+1}]')
    return R

def p2(a):
    prologue(a, 'p2', [f's_load_dwordx2 s[{S_X}:{S_X+1}], s[0:1], 0'])
    srd(a, S_X, 2048 * 1280)
    MODL = 61440
    XR, ACC = 64, 24
    a('v_lshlrev_b32 v4, 4, v0')
    XI = 150; MR = 160; GA, SB, GG = 176, 196, 216
    def mid():
        modfin_load(a, 0, MR, 12)
        a(f's_lshl2_add_u32 s44, s{S_RB}, s{S_W}'); a('s_lshl_b32 s45, s44, 4'); a('v_add_u32 v14, s45, v1')
        a('s_movk_i32 s46, 1280'); a('v_mul_lo_u32 v15, v14, s46'); a('v_lshl_add_u32 v15, v2, 3, v15')
        a(f's_mul_i32 s46, s{S_J}, 160')
        for t in range(5): a(f'buffer_load_dwordx2 v[{XI+2*t}:{XI+2*t+1}], v15, s[{S_X}:{S_X+3}], s46 offen offset:{32*t}')
    R = ksplit_gemm(a, 5, 20, WS_WO, WS_OF, 4, XR, ACC, mid)
    a(f's_lshl_b32 s47, s{S_W}, 10'); a(f's_add_u32 s47, s47, {MODL}'); a('v_add_u32 v16, s47, v4')
    modfin_fin(a, MR, 12, 16)
    a('v_lshlrev_b32 v16, 4, v2'); a('v_add_u32 v16, s47, v16')
    a.wait(lg=0)
    for v, b in enumerate((GA, SB, GG)):
        for t in range(5): a(f'ds_read_b128 v[{b+4*t}:{b+4*t+3}], v16 offset:{(20*v+4*t)*16}')
    X1 = 64
    for e in range(10):
        for t in unpack(X1 + 2 * e, X1 + 2 * e + 1, XI + e): a(t)
    for e in range(10): a(f'v_pk_fma_f32 v[{X1+2*e}:{X1+2*e+1}], v[{R+2*e}:{R+2*e+1}], v[{GA+2*e}:{GA+2*e+1}], v[{X1+2*e}:{X1+2*e+1}]')
    for e in range(10): a(f'v_cvt_pk_bf16_f32 v{XI+e}, v{X1+2*e}, v{X1+2*e+1}')
    a(f's_lshl2_add_u32 s48, s2, s{S_W}'); a('s_mul_i32 s48, s48, 2560'); a(f's_add_u32 s48, s48, {WS_X1}')
    a('v_lshlrev_b32 v17, 3, v0')
    for t in range(5): a(f'buffer_store_dwordx2 v[{XI+2*t}:{XI+2*t+1}], v17, {WSR}, s48 offen offset:{512*t}')
    for e in range(10):
        for t in unpack(X1 + 2 * e, X1 + 2 * e + 1, XI + e): a(t)
    a(f'v_pk_add_f32 v[18:19], v[{X1}:{X1+1}], v[{X1+2}:{X1+3}]'); a(f'v_pk_mul_f32 v[20:21], v[{X1}:{X1+1}], v[{X1}:{X1+1}]')
    for e in range(1, 10):
        p = f'v[{X1+2*e}:{X1+2*e+1}]'
        if e > 1: a(f'v_pk_add_f32 v[18:19], v[18:19], {p}')
        a(f'v_pk_fma_f32 v[20:21], {p}, {p}, v[20:21]')
    for e in range(10): a(f'v_pk_mul_f32 v[{X1+2*e}:{X1+2*e+1}], v[{X1+2*e}:{X1+2*e+1}], v[{GG+2*e}:{GG+2*e+1}]')
    F = 90
    for e in range(10): a(f'v_cvt_pk_bf16_f32 v{F+e}, v{X1+2*e}, v{X1+2*e+1}')
    a(f's_mul_i32 s52, s{S_RB}, 5'); a(f's_add_u32 s50, s52, 4'); a(f's_add_u32 s52, s52, s{S_W}')
    a('s_mul_i32 s52, s52, 20480'); a(f's_add_u32 s52, s52, {WS_X1G}')
    a('s_mul_i32 s50, s50, 20480'); a(f's_add_u32 s50, s50, {WS_X1G}')
    frag_offsets(a, 52, 53, 54); frag_offsets(a, 50, 51, 54)
    frag_store80(a, F, 4, 52, 53)
    a('v_add_f32 v18, v18, v19'); a('v_add_f32 v19, v20, v21')
    for sw in ('v_permlane16_swap_b32', 'v_permlane32_swap_b32'):
        a('v_mov_b32 v20, v18'); a('v_mov_b32 v21, v19')
        a(f'{sw} v18, v20'); a(f'{sw} v19, v21')
        a('v_add_f32 v18, v18, v20'); a('v_add_f32 v19, v19, v21')
    a('v_lshlrev_b32 v14, 6, v14'); a(f's_lshl_b32 s46, s{S_J}, 3'); a(f's_add_u32 s46, s46, {WS_STATS}')
    a('s_mov_b32 exec_lo, 0xffff'); a('s_mov_b32 exec_hi, 0')
    a(f'buffer_store_dwordx2 v[18:19], v14, {WSR}, s46 offen')
    a('s_mov_b64 exec, -1')
    a('v_and_b32 v12, 1, v1'); a('v_cmp_eq_u32 vcc, 1, v12')
    G = 100
    for e in range(20): a(f'v_cndmask_b32 v{GG+e}, v{GG+e}, v{SB+e}, vcc')
    for e in range(10): a(f'v_cvt_pk_bf16_f32 v{G+e}, v{GG+2*e}, v{GG+2*e+1}')
    a(f's_cmp_lg_u32 s{S_W}, 0'); a('s_cselect_b32 s46, 0x80000000, 0'); a('v_or_b32 v12, s46, v4')
    frag_store80(a, G, 12, 50, 51)
    epilogue(a, 'p2')
    return MODL + 4096

def p3(a):
    prologue(a, 'p3', [])
    a('v_lshlrev_b32 v4, 4, v0')
    for k in range(1, 5): a(f'v_add_u32 v{4+k}, {4096*k}, v4')
    a(f's_mul_i32 s30, s{S_J}, 12'); a(f's_mul_i32 s31, s{S_W}, 3'); a('s_add_u32 s30, s30, s31')
    a('s_mul_i32 s30, s30, 20480'); a(f's_add_u32 s32, s30, {WS_W1}'); a('s_add_u32 s33, s32, 20480'); a('s_add_u32 s34, s33, 20480')
    a(f's_mul_i32 s36, s{S_W}, 5120')
    a(f's_mul_i32 s37, s{S_RB}, {5*20480}'); a('s_add_u32 s37, s37, s36'); a(f's_add_u32 s37, s37, {WS_X1G}')
    def xdma(mt):
        a(f's_add_u32 s38, s37, {mt*20480}'); a(f's_add_u32 m0, s36, {mt*20480}')
        for i in range(4): a(f'buffer_load_dwordx4 v4, {WSR}, s38 offen offset:{1024*i} lds')
        a(f's_add_u32 m0, s36, {mt*20480 + 4096}')
        return a(f'buffer_load_dwordx4 v5, {WSR}, s38 offen lds')
    def wl(t, s):
        r = (s * 3 + t) * 4
        return f'buffer_load_dwordx4 a[{r}:{r+3}], v{4+s//4}, {WSR}, s{32+t} offen offset:{1024*(s%4)}'
    xdma(4); h0 = xdma(0)
    a(f's_lshl_b32 s39, s{S_RB}, 12'); a(f's_add_u32 s39, s39, {WS_STATS}')
    a('v_lshlrev_b32 v12, 6, v1'); a('v_lshl_add_u32 v12, v2, 4, v12')
    for mt in range(4): a(f'buffer_load_dwordx4 v[{24+4*mt}:{27+4*mt}], v12, {WSR}, s39 offen offset:{1024*mt}')
    wls = [wl(t, s) for s in range(20) for t in range(3)]
    for l in wls[:45]: a(l)
    M = range(4)
    for m in M: a(f'v_pk_add_f32 v[{24+4*m}:{25+4*m}], v[{24+4*m}:{25+4*m}], v[{26+4*m}:{27+4*m}]')
    for sw in ('v_permlane16_swap_b32', 'v_permlane32_swap_b32'):
        for m in M: a(f'v_mov_b32 v{26+4*m}, v{24+4*m}'); a(f'v_mov_b32 v{27+4*m}, v{25+4*m}')
        for m in M: a(f'{sw} v{24+4*m}, v{26+4*m}'); a(f'{sw} v{25+4*m}, v{27+4*m}')
        for m in M: a(f'v_pk_add_f32 v[{24+4*m}:{25+4*m}], v[{24+4*m}:{25+4*m}], v[{26+4*m}:{27+4*m}]')
    a(f's_mov_b32 s40, {fl(1/640)}'); a(f'v_mov_b32 v13, {fl(1e-5)}')
    for m in M: a(f'v_mul_f32 v{26+4*m}, s40, v{24+4*m}')
    for m in M: a(f'v_fma_f32 v{25+4*m}, v{25+4*m}, s40, v13')
    for m in M: a(f'v_fma_f32 v{25+4*m}, -v{26+4*m}, v{26+4*m}, v{25+4*m}')
    for m in M: a(f'v_max_f32 v{25+4*m}, v{25+4*m}, v13')
    for m in M: a(f'v_rsq_f32 v{24+4*m}, v{25+4*m}')
    for m in M: a(f'v_mul_f32 v{25+4*m}, -v{26+4*m}, v{24+4*m}')
    a('v_add_u32 v9, 61440, v4')
    a(f's_mul_i32 s44, s{S_RB}, {4*48*1024}'); a(f's_mul_i32 s45, s{S_J}, 6144'); a('s_add_u32 s44, s44, s45'); a(f's_add_u32 s44, s44, {WS_H1}')
    a(f's_lshr_b32 s45, s{S_W}, 1'); a('s_lshl_b32 s45, s45, 10'); a('s_add_u32 s45, s45, s44'); a('s_add_u32 s45, s45, 4096')
    a(f's_and_b32 s46, s{S_W}, 1'); a('s_lshl3_add_u32 s45, s46, s45')
    a(f's_lshl_b32 s46, s{S_W}, 10'); a('s_add_u32 s44, s44, s46')
    a(f's_mov_b32 s48, {fl(-LOG2E)}'); a(f's_mov_b32 s49, {fl(-LOG2E)}')
    a.wait_id(h0); a.barrier()
    ts(a, 1)
    XF = 48; NB = 6
    ACC = 100
    U1, T1 = 160, 172
    def xr(mt, s, slot):
        off = (mt * 20 + s) * 1024; ad = 4
        if off >= 61440: off -= 61440; ad = 9
        r = XF + 4 * slot
        return f'ds_read_b128 v[{r}:{r+3}], v{ad} offset:{off}'
    def epi(mt):
        ac = ACC + 12 * mt; P = 24 + 4 * mt; T = 184; F = 200
        l = []
        for e in range(6): l.append(f'v_pk_fma_f32 v[{T+2*e}:{T+2*e+1}], v[{U1+2*e}:{U1+2*e+1}], v[{P}:{P+1}], v[{T1+2*e}:{T1+2*e+1}] op_sel:[0,1,0] op_sel_hi:[1,1,1]')
        for e in range(6): l.append(f'v_pk_fma_f32 v[{ac+2*e}:{ac+2*e+1}], v[{ac+2*e}:{ac+2*e+1}], v[{P}:{P+1}], v[{T+2*e}:{T+2*e+1}] op_sel_hi:[1,0,1]')
        for e in range(6): l.append(f'v_pk_mul_f32 v[{T+2*e}:{T+2*e+1}], v[{ac+2*e}:{ac+2*e+1}], s[48:49]')
        for e in range(12): l.append(f'v_exp_f32 v{T+e}, v{T+e}')
        for e in range(12): l.append(f'v_add_f32 v{T+e}, 1.0, v{T+e}')
        for e in range(12): l.append(f'v_rcp_f32 v{T+e}, v{T+e}')
        for e in range(6): l.append(f'v_pk_mul_f32 v[{ac+2*e}:{ac+2*e+1}], v[{ac+2*e}:{ac+2*e+1}], v[{T+2*e}:{T+2*e+1}]')
        F2 = F + 6 * (mt & 1)
        for e in range(6): l.append(f'v_cvt_pk_bf16_f32 v{F2+e}, v{ac+2*e}, v{ac+2*e+1}')
        l.append(f'buffer_store_dwordx4 v[{F2}:{F2+3}], v4, {WSR}, s44 offen')
        l.append(f'buffer_store_dwordx2 v[{F2+4}:{F2+5}], v4, {WSR}, s45 offen')
        l.append(f's_add_u32 s44, s44, {48*1024}'); l.append(f's_add_u32 s45, s45, {48*1024}')
        return l
    seq = [(mt, s) for s in range(20) for mt in (4, 0)] + [(mt, s) for mt in (1, 2, 3) for s in range(20)]
    PF = NB - 1
    def run(lo, hi, fill, extra=None):
        fi = 0
        n = (hi - lo) * 3
        k = 0
        for p in range(lo, hi):
            mt, s = seq[p]
            if p + PF < hi: a(xr(*seq[p + PF], (p + PF) % NB))
            for t in range(3):
                ac = ACC + 12 * mt + 4 * t; w = (s * 3 + t) * 4; x = XF + 4 * (p % NB)
                c = '0' if s == 0 else f'v[{ac}:{ac+3}]'
                a(f'{MF} v[{ac}:{ac+3}], a[{w}:{w+3}], v[{x}:{x+3}], {c}')
                k += 1
                if k > 6:
                    tgt = min(len(fill), (len(fill) * (k - 6) + (n - 10) - 1) // (n - 10))
                    while fi < tgt: a(fill[fi]); fi += 1
            if extra: extra(p)
        while fi < len(fill): a(fill[fi]); fi += 1
    hx = {}
    def extra0(p):
        if p < 15: a(wls[45 + p])
        if p in (16, 20, 24): hx[p] = xdma((p - 12) // 4)
    for p in range(PF): a(xr(*seq[p], p % NB))
    run(0, 40, [], extra0)
    uv = []
    for e in range(12):
        uv.append(f'v_mov_b32_dpp v{U1+e}, v{ACC+48+e} quad_perm:[0,0,2,2] row_mask:0xf bank_mask:0xf')
        uv.append(f'v_mov_b32_dpp v{T1+e}, v{ACC+48+e} quad_perm:[1,1,3,3] row_mask:0xf bank_mask:0xf')
    ts(a, 2)
    a.wait_id(hx[24]); a.barrier()
    ts(a, 3); tsc(a, 0)
    seq2 = seq[40:]
    for p in range(40, 40 + PF): a(xr(*seq[p], p % NB))
    fills = {40: uv + epi(0), 60: epi(1), 80: epi(2)}
    def run2(lo, hi):
        fill = fills[lo]; fi = 0; n = 60; k = 0
        for p in range(lo, hi):
            mt, s = seq[p]
            if p + PF < 100: a(xr(*seq[p + PF], (p + PF) % NB))
            for t in range(3):
                ac = ACC + 12 * mt + 4 * t; w = (s * 3 + t) * 4; x = XF + 4 * (p % NB)
                c = '0' if s == 0 else f'v[{ac}:{ac+3}]'
                a(f'{MF} v[{ac}:{ac+3}], a[{w}:{w+3}], v[{x}:{x+3}], {c}')
                k += 1
                if k > 6:
                    tgt = min(len(fill), (len(fill) * (k - 6) + 49) // 50)
                    while fi < tgt: a(fill[fi]); fi += 1
        while fi < len(fill): a(fill[fi]); fi += 1
    run2(40, 60); run2(60, 80); run2(80, 100)
    ts(a, 4); tsc(a, 1)
    for t in epi(3): a(t)
    ts(a, 5)
    epilogue(a, 'p3')
    return 102400

def p4(a):
    prologue(a, 'p4', [f's_load_dwordx2 s[{S_O}:{S_O+1}], s[0:1], 64'])
    srd(a, S_O, 2048 * 1280)
    MODL = 61440
    XR, ACC = 64, 24
    a('v_lshlrev_b32 v4, 4, v0')
    R = ksplit_gemm(a, 12, 48, WS_W2, WS_H1, 4, XR, ACC)
    XI = 150; MR = 160; GB = 176
    modfin_load(a, 1, MR, 12)
    a(f's_lshl2_add_u32 s48, s2, s{S_W}'); a('s_mul_i32 s48, s48, 2560'); a(f's_add_u32 s48, s48, {WS_X1}')
    a('v_lshlrev_b32 v17, 3, v0')
    for t in range(5): a(f'buffer_load_dwordx2 v[{XI+2*t}:{XI+2*t+1}], v17, {WSR}, s48 offen offset:{512*t}')
    a(f's_lshl_b32 s47, s{S_W}, 10'); a(f's_add_u32 s47, s47, {MODL}'); a('v_add_u32 v16, s47, v4')
    modfin_fin(a, MR, 12, 16)
    a('v_lshlrev_b32 v16, 4, v2'); a('v_add_u32 v16, s47, v16')
    a.wait(lg=0)
    for t in range(5): a(f'ds_read_b128 v[{GB+4*t}:{GB+4*t+3}], v16 offset:{(40+4*t)*16}')
    X1 = 64
    for e in range(10):
        for t in unpack(X1 + 2 * e, X1 + 2 * e + 1, XI + e): a(t)
    for e in range(10): a(f'v_pk_fma_f32 v[{X1+2*e}:{X1+2*e+1}], v[{R+2*e}:{R+2*e+1}], v[{GB+2*e}:{GB+2*e+1}], v[{X1+2*e}:{X1+2*e+1}]')
    for e in range(10): a(f'v_cvt_pk_bf16_f32 v{XI+e}, v{X1+2*e}, v{X1+2*e+1}')
    a(f's_lshl2_add_u32 s44, s{S_RB}, s{S_W}'); a('s_lshl_b32 s45, s44, 4'); a('v_add_u32 v14, s45, v1')
    a('s_movk_i32 s46, 1280'); a('v_mul_lo_u32 v15, v14, s46'); a('v_lshl_add_u32 v15, v2, 3, v15')
    a(f's_mul_i32 s46, s{S_J}, 160')
    for t in range(5): a(f'buffer_store_dwordx2 v[{XI+2*t}:{XI+2*t+1}], v15, s[{S_O}:{S_O+3}], s46 offen offset:{32*t}')
    epilogue(a, 'p4')
    return MODL + 4096
KERNELS = [('p1_kernel', p1), ('p2_kernel', p2), ('p3_kernel', p3), ('p4_kernel', p4)]
```

```python
import sys
from asmfw import *
NAME = "adaLN_cond__sliding_local_dilated__dense_activation_silu__prompt"
WS_MODP = 0x4000; WS_STATS = 0x20000; WS_WQ = 0x100000; WS_WO = 0x400000; WS_W1 = 0x500000; WS_W2 = 0x700000
WS_OF = 0x900000; WS_X1G = 0xC00000; WS_X1 = 0x1000000; WS_H1 = 0x1400000
MF = 'v_mfma_f32_16x16x32_bf16'
LOG2E = 1.4426950408889634
import struct
def f2u(x): return struct.unpack('<I', struct.pack('<f', x))[0]
def fl(x): return hex(f2u(x))
S_WS = 4
S_X = 8
S_M = 12
S_O = 16
S_RB, S_J, S_W = 20, 21, 22
TRACE = len(sys.argv) > 2 and 'trace' in sys.argv[2]
WS_TRACE = 0x1C00000
def ts(a, slot):
    if TRACE: a(f's_memrealtime s[{84+2*slot}:{85+2*slot}]')
def tsc(a, w):
    if TRACE: a(f's_memtime s[{80+2*w}:{81+2*w}]')
def ts_flush(a, kid):
    if not TRACE: return
    a.fwait('vmcnt(0) lgkmcnt(0)')
    ts(a, 7)
    a.wait(lg=0)
    a('s_sub_u32 s96, s82, s80')
    for q in range(8): a(f'v_mov_b32 v{8+q}, s{84+2*q}')
    a(f's_lshl2_add_u32 s3, s2, s{S_W}'); a('s_lshl_b32 s3, s3, 5'); a(f's_add_u32 s3, s3, {WS_TRACE + kid * 32768}')
    a('v_mov_b32 v3, 0'); a('s_mov_b64 exec, 1')
    a(f'buffer_store_dwordx4 v[8:11], v3, s[{S_WS}:{S_WS+3}], s3 offen')
    a(f'buffer_store_dwordx4 v[12:15], v3, s[{S_WS}:{S_WS+3}], s3 offen offset:16')
def prologue(a, tag, loads):
    ts(a, 0)
    a('s_cmp_ge_u32 s2, 256')
    a(f's_cbranch_scc1 EXIT_{tag}')
    a(f's_load_dwordx2 s[{S_WS}:{S_WS+1}], s[0:1], 80')
    for l in loads: a(l)
    a('v_lshrrev_b32 v2, 6, v0')
    a('v_and_b32 v0, 63, v0')
    a(f'v_readfirstlane_b32 s{S_W}, v2')
    a('v_and_b32 v1, 15, v0')
    a('v_lshrrev_b32 v2, 4, v0')
    a('s_and_b32 s3, s2, 7')
    a(f's_lshr_b32 s{S_J}, s2, 3')
    a(f's_lshr_b32 s{S_RB}, s{S_J}, 3')
    a(f's_and_b32 s{S_J}, s{S_J}, 7')
    a(f's_lshl2_add_u32 s{S_RB}, s3, s{S_RB}')
    a(f's_mov_b32 s{S_WS+2}, 0x10000000')
    a(f's_mov_b32 s{S_WS+3}, 0x20000')
    a.wait(lg=0)
    a(f's_and_b32 s{S_WS+1}, s{S_WS+1}, 0xffff')
def epilogue(a, tag):
    ts_flush(a, int(tag[1]))
    a.label(f'EXIT_{tag}')
    a('s_endpgm')
def srd(a, b, size):
    a(f's_and_b32 s{b+1}, s{b+1}, 0xffff')
    a(f's_mov_b32 s{b+2}, {size}')
    a(f's_mov_b32 s{b+3}, 0x20000')
def unpack(dlo, dhi, src):
    return [f'v_lshlrev_b32 v{dlo}, 16, v{src}', f'v_and_b32 v{dhi}, 0xffff0000, v{src}']

def k0_decode(a, su, o, lab):
    sS, sC, sA, sB, sT = 60, 61, 62, 63, 64
    def div(d, x, m): a(f's_mul_i32 s{d}, s{x}, {m}'); a(f's_lshr_b32 s{d}, s{d}, 16')
    def case(lo, hi, ptr, N, K, ncg, magic, dst, nst, kind, last):
        if not last:
            a(f's_cmp_ge_u32 s{su}, {hi}'); a(f's_cbranch_scc1 {lab}_{hi}')
        a(f's_mov_b64 s[{o}:{o+1}], s[{ptr}:{ptr+1}]')
        a(f's_mov_b32 s{o+2}, {N*K*2}')
        a(f's_mov_b32 s{o+10}, {N*2}')
        a(f's_sub_u32 s{sT}, s{su}, {lo}')
        div(sS, sT, magic)
        a(f's_mul_i32 s{sC}, s{sS}, {ncg}'); a(f's_sub_u32 s{sC}, s{sT}, s{sC}')
        a(f's_mov_b32 s{o+8}, {dst}'); a(f's_mov_b32 s{o+9}, {nst*1024}')
        a(f's_mov_b32 s{o+11}, {1 if kind == 0 else 0}')
        if kind == 0:
            a(f's_lshl_b32 s{sA}, s{sS}, 1'); a(f's_add_u32 s{sB}, s{sA}, 1')
        else:
            n, mg, ta, tb = (5, 13108, 0x47520, 0x98631) if kind == 1 else (6, 10923, 0x829630, 0xb5a741)
            div(sA, sS, mg)
            a(f's_mul_i32 s{sB}, s{sA}, {n}'); a(f's_sub_u32 s{sT}, s{sS}, s{sB}')
            a(f's_lshl_b32 s{sT}, s{sT}, 2')
            a(f's_lshl_b32 s{sB}, s{sB}, 1')
            a(f's_lshr_b32 s{sA}, {hex(ta)}, s{sT}'); a(f's_and_b32 s{sA}, s{sA}, 15'); a(f's_add_u32 s{sA}, s{sA}, s{sB}')
            a(f's_lshr_b32 s{sT}, {hex(tb)}, s{sT}'); a(f's_and_b32 s{sT}, s{sT}, 15'); a(f's_add_u32 s{sB}, s{sT}, s{sB}')
        if not last:
            a(f's_branch {lab}_done'); a.label(f'{lab}_{hi}')
    case(0, 600, 24, 1920, 640, 30, 2185, WS_WQ, 20, 0, False)
    case(600, 800, 26, 640, 640, 10, 6554, WS_WO, 20, 1, False)
    case(800, 1280, 28, 1536, 640, 24, 2731, WS_W1, 20, 1, False)
    case(1280, 1760, 30, 640, 1536, 10, 6554, WS_W2, 48, 2, True)
    a.label(f'{lab}_done')
    a(f's_and_b32 s{o+1}, s{o+1}, 0xffff'); a(f's_mov_b32 s{o+3}, 0x20000')
    a(f's_lshl_b32 s{sT}, s{o+10}, 4')
    a(f's_mul_i32 s{o+4}, s{sA}, s{sT}'); a(f's_mul_i32 s{o+6}, s{sB}, s{sT}')
    a(f's_lshl_b32 s{sA}, s{sC}, 7')
    a(f's_add_u32 s{o+4}, s{o+4}, s{sA}'); a(f's_add_u32 s{o+6}, s{o+6}, s{sA}')
    a(f's_lshr_b32 s{sT}, s{sT}, 1')
    a(f's_add_u32 s{o+5}, s{o+4}, s{sT}'); a(f's_add_u32 s{o+7}, s{o+6}, s{sT}')
    a(f's_lshl_b32 s{sC}, s{sC}, 2'); a(f's_mul_i32 s{sC}, s{sC}, s{o+9}')
    a(f's_lshl_b32 s{sS}, s{sS}, 10')
    a(f's_add_u32 s{o+8}, s{o+8}, s{sC}'); a(f's_add_u32 s{o+8}, s{o+8}, s{sS}')

def k0(a):
    prologue(a, 'k0', ['s_load_dwordx4 s[24:27], s[0:1], 8', 's_load_dwordx4 s[28:31], s[0:1], 32',
                       's_load_dwordx2 s[8:9], s[0:1], 48', 's_load_dwordx2 s[12:13], s[0:1], 56'])
    srd(a, 8, 1280)
    srd(a, 12, 640 * 3840 * 2)
    a('s_lshr_b32 s32, s2, 2'); a('s_min_u32 s32, s32, 59'); a('s_and_b32 s33, s2, 3')
    a('s_mul_i32 s34, s33, 160'); a(f's_lshl3_add_u32 s34, s{S_W}, s34')
    a('v_lshrrev_b32 v3, 3, v0'); a('v_and_b32 v4, 7, v0')
    a('v_add_u32 v5, s34, v3')
    a('v_lshlrev_b32 v6, 1, v5')
    a('s_movk_i32 s35, 7680'); a('v_mul_lo_u32 v5, v5, s35')
    a('v_lshl_add_u32 v5, v4, 4, v5')
    a('s_lshl_b32 s35, s32, 7')
    for i in range(5):
        a(f'buffer_load_ushort v{10+i}, v6, s[8:11], 0 offen offset:{64*i}')
    for i in range(5):
        a(f'buffer_load_dwordx4 v[{16+4*i}:{19+4*i}], v5, s[12:15], s35 offen')
        if i < 4: a(f's_add_u32 s35, s35, {32*7680}')
    a(f's_lshl2_add_u32 s36, s2, s{S_W}')
    a('s_add_u32 s37, s36, 1024')
    a('s_cmp_ge_u32 s37, 1760'); a('s_cselect_b32 s38, 0x80000000, 0'); a('s_min_u32 s37, s37, 1759')
    U = (44, 68)
    k0_decode(a, 36, U[0], 'K0A'); k0_decode(a, 37, U[1], 'K0B')
    LB = 1024
    a(f's_lshl_b32 s39, s{S_W}, 13'); a(f's_add_u32 s39, s39, {LB}')
    hs = []
    for un in range(2):
        o = U[un]
        a(f'v_mul_lo_u32 v7, v3, s{o+10}'); a('v_lshl_add_u32 v7, v4, 4, v7')
        for i in range(4):
            a(f's_add_u32 m0, s39, {un*4096 + i*1024}')
            h = a(f'buffer_load_dwordx4 v7, s[{o}:{o+3}], s{o+4+i} offen lds')
        hs.append(h)
    ts(a, 1)
    for i in range(5): a(f'v_lshlrev_b32 v{10+i}, 16, v{10+i}')
    for i in range(5): a(f'v_mul_f32 v{40+i}, {fl(-LOG2E)}, v{10+i}')
    for i in range(5): a(f'v_exp_f32 v{40+i}, v{40+i}')
    for i in range(5): a(f'v_add_f32 v{40+i}, 1.0, v{40+i}')
    for i in range(5): a(f'v_rcp_f32 v{40+i}, v{40+i}')
    for i in range(5): a(f'v_mul_f32 v{10+i}, v{10+i}, v{40+i}')
    for i in range(5): a(f'v_cvt_pk_bf16_f32 v{10+i}, v{10+i}, v{10+i}')
    for i in range(5): a(f'v_lshlrev_b32 v{10+i}, 16, v{10+i}')
    for i in range(5):
        for q in range(4):
            for t in unpack(48, 49, 16 + 4*i + q): a(t)
            if i == 0:
                a(f'v_mul_f32 v{40+2*q}, v48, v10'); a(f'v_mul_f32 v{41+2*q}, v49, v10')
            else:
                a(f'v_fmac_f32 v{40+2*q}, v48, v{10+i}'); a(f'v_fmac_f32 v{41+2*q}, v49, v{10+i}')
    ts(a, 2)
    for q in range(4): a(f'v_permlane16_swap_b32 v{40+q}, v{44+q}')
    for q in range(4): a(f'v_add_f32 v{40+q}, v{40+q}, v{44+q}')
    for q in range(2): a(f'v_permlane32_swap_b32 v{40+q}, v{42+q}')
    for q in range(2): a(f'v_add_f32 v{40+q}, v{40+q}, v{42+q}')
    for q in range(2): a(f'v_add_f32_dpp v{42+q}, v{40+q}, v{40+q} row_ror:8 row_mask:0xf bank_mask:0xf')
    a('v_and_b32 v8, 1, v2'); a('v_lshlrev_b32 v8, 4, v8'); a('v_lshl_add_u32 v8, v4, 5, v8')
    a('v_lshrrev_b32 v9, 1, v2'); a('v_lshl_add_u32 v8, v9, 3, v8')
    a(f's_lshl_b32 s40, s{S_W}, 8'); a('v_add_u32 v8, s40, v8')
    a('ds_write_b64 v8, v[42:43]')
    a.wait(lg=0); a.barrier()
    a('v_lshlrev_b32 v8, 2, v0')
    for q in range(4): a(f'ds_read_b32 v{40+q}, v8 offset:{256*q}')
    a('v_add_f32 v40, v40, v41'); a('v_add_f32 v42, v42, v43'); a('v_add_f32 v40, v40, v42')
    a(f's_cmp_lg_u32 s{S_W}, 0'); a('s_cselect_b32 s40, 0x80000000, 0')
    a('s_cmp_ge_u32 s2, 240'); a('s_cselect_b32 s40, 0x80000000, s40')
    a('v_or_b32 v8, s40, v8')
    a('s_mul_i32 s41, s33, 15360'); a('s_lshl_b32 s42, s32, 8'); a('s_add_u32 s41, s41, s42'); a(f's_add_u32 s41, s41, {WS_MODP}')
    a(f'buffer_store_dword v40, v8, s[{S_WS}:{S_WS+3}], s41 offen')
    a('v_lshrrev_b32 v50, 2, v1'); a('v_lshlrev_b32 v50, 7, v50'); a('v_and_b32 v51, 3, v1'); a('v_lshl_add_u32 v50, v51, 3, v50')
    a('v_add_u32 v50, s39, v50')
    a('v_lshlrev_b32 v54, 4, v0')
    a('v_or_b32 v55, s38, v54')
    for un in range(2):
        o = U[un]
        a(f's_add_u32 s43, s{o+11}, 9'); a('v_lshlrev_b32 v51, s43, v2'); a('v_add_u32 v51, v51, v50')
        a(f's_lshl_b32 s43, s{o+11}, 1'); a('s_lshr_b32 s43, 2048, s43'); a('v_add_u32 v52, s43, v51')
        a.wait_id(hs[un])
        ts(a, 3 + un)
        R = 64 + 16 * un
        for t in range(4):
            a(f'ds_read_b64_tr_b16 v[{R+4*t}:{R+4*t+1}], v51 offset:{un*4096 + 32*t}')
            a(f'ds_read_b64_tr_b16 v[{R+4*t+2}:{R+4*t+3}], v52 offset:{un*4096 + 32*t}')
        for t in range(4):
            a(f'buffer_store_dwordx4 v[{R+4*t}:{R+4*t+3}], v{54+un}, s[{S_WS}:{S_WS+3}], s{o+8} offen')
            if t < 3: a(f's_add_u32 s{o+8}, s{o+8}, s{o+9}')
    epilogue(a, 'k0')
    return 1024 + 32768

def kernel_text(name, fn):
    a = Asm()
    lds = fn(a)
    t = f'.globl {name}\n.p2align 8\n.type {name},@function\n{name}:\n' + a.text()
    d = f'''.amdhsa_kernel {name}
  .amdhsa_next_free_vgpr 512
  .amdhsa_next_free_sgpr 102
  .amdhsa_accum_offset 256
  .amdhsa_group_segment_fixed_size 0
  .amdhsa_kernarg_size 88
  .amdhsa_user_sgpr_count 2
  .amdhsa_user_sgpr_kernarg_segment_ptr 1
  .amdhsa_system_sgpr_workgroup_id_x 1
.end_amdhsa_kernel
'''
    print(name, 'instrs', a.n, 'nops', a.nops, file=sys.stderr)
    return t, d, lds
def build(kernels, path):
    head, code, desc = '', '', ''
    for name, fn in kernels:
        t, d, lds = kernel_text(name, fn)
        head += f'; @launch kernel={name} grid=(256,1,1) block=(256,1,1) lds={lds}\n'
        code += t; desc += '.p2align 6\n' + d
    open(path, 'w').write(head + '.amdgcn_target "amdgcn-amd-amdhsa--gfx950"\n.text\n' + code + '.section .rodata,"a"\n' + desc)
if __name__ == '__main__':
    import phases
    ks = [('k0_kernel', k0)] + phases.KERNELS
    build(ks, sys.argv[1])
```

```python
import sys
from asmfw import *
NAME = "adaLN_cond__sliding_local_dilated__dense_activation_silu__prompt"
WS_MODP = 0x4000; WS_STATS = 0x20000; WS_WQ = 0x100000; WS_WO = 0x400000; WS_W1 = 0x500000; WS_W2 = 0x700000
WS_OF = 0x900000; WS_X1G = 0xC00000; WS_X1 = 0x1000000; WS_H1 = 0x1400000
MF = 'v_mfma_f32_16x16x32_bf16'
LOG2E = 1.4426950408889634
import struct
def f2u(x): return struct.unpack('<I', struct.pack('<f', x))[0]
def fl(x): return hex(f2u(x))
S_WS = 4
S_X = 8
S_M = 12
S_O = 16
S_RB, S_J, S_W = 20, 21, 22
TRACE = len(sys.argv) > 2 and 'trace' in sys.argv[2]
WS_TRACE = 0x1C00000
def ts(a, slot):
    if TRACE: a(f's_memrealtime s[{80+2*slot}:{81+2*slot}]')
def tsc(a, w): pass
def ts_flush(a, kid):
    if not TRACE: return
    a.fwait('vmcnt(0) lgkmcnt(0)')
    ts(a, 10)
    a.wait(lg=0)
    for q in range(11): a(f'v_mov_b32 v{8+q}, s{80+2*q}')
    a(f's_lshl2_add_u32 s3, s2, s{S_W}'); a('s_lshl_b32 s3, s3, 6'); a(f's_add_u32 s3, s3, {WS_TRACE + kid * 65536}')
    a('v_mov_b32 v3, 0'); a('s_mov_b64 exec, 1')
    for q in range(3): a(f'buffer_store_dwordx4 v[{8+4*q}:{11+4*q}], v3, s[{S_WS}:{S_WS+3}], s3 offen offset:{16*q}')
def prologue(a, tag, loads):
    ts(a, 0)
    a('s_cmp_ge_u32 s2, 256')
    a(f's_cbranch_scc1 EXIT_{tag}')
    a(f's_load_dwordx2 s[{S_WS}:{S_WS+1}], s[0:1], 80')
    for l in loads: a(l)
    a('v_lshrrev_b32 v2, 6, v0')
    a('v_and_b32 v0, 63, v0')
    a(f'v_readfirstlane_b32 s{S_W}, v2')
    a('v_and_b32 v1, 15, v0')
    a('v_lshrrev_b32 v2, 4, v0')
    a('s_and_b32 s3, s2, 7')
    a(f's_lshr_b32 s{S_J}, s2, 3')
    a(f's_lshr_b32 s{S_RB}, s{S_J}, 3')
    a(f's_and_b32 s{S_J}, s{S_J}, 7')
    a(f's_lshl2_add_u32 s{S_RB}, s3, s{S_RB}')
    a(f's_mov_b32 s{S_WS+2}, 0x10000000')
    a(f's_mov_b32 s{S_WS+3}, 0x20000')
    a.wait(lg=0)
    a(f's_and_b32 s{S_WS+1}, s{S_WS+1}, 0xffff')
def epilogue(a, tag):
    ts_flush(a, int(tag[1]))
    a.label(f'EXIT_{tag}')
    a('s_endpgm')
def srd(a, b, size):
    a(f's_and_b32 s{b+1}, s{b+1}, 0xffff')
    a(f's_mov_b32 s{b+2}, {size}')
    a(f's_mov_b32 s{b+3}, 0x20000')
def unpack(dlo, dhi, src):
    return [f'v_lshlrev_b32 v{dlo}, 16, v{src}', f'v_and_b32 v{dhi}, 0xffff0000, v{src}']

def k0_decode(a, su, o, lab):
    sS, sC, sA, sB, sT = 60, 61, 62, 63, 64
    def div(d, x, m): a(f's_mul_i32 s{d}, s{x}, {m}'); a(f's_lshr_b32 s{d}, s{d}, 16')
    def case(lo, hi, ptr, N, K, ncg, magic, dst, nst, kind, last):
        if not last:
            a(f's_cmp_ge_u32 s{su}, {hi}'); a(f's_cbranch_scc1 {lab}_{hi}')
        a(f's_mov_b64 s[{o}:{o+1}], s[{ptr}:{ptr+1}]')
        a(f's_mov_b32 s{o+2}, {N*K*2}')
        a(f's_mov_b32 s{o+10}, {N*2}')
        a(f's_sub_u32 s{sT}, s{su}, {lo}')
        div(sS, sT, magic)
        a(f's_mul_i32 s{sC}, s{sS}, {ncg}'); a(f's_sub_u32 s{sC}, s{sT}, s{sC}')
        a(f's_mov_b32 s{o+8}, {dst}'); a(f's_mov_b32 s{o+9}, {nst*1024}')
        a(f's_mov_b32 s{o+11}, {1 if kind == 0 else 0}')
        if kind == 0:
            a(f's_lshl_b32 s{sA}, s{sS}, 1'); a(f's_add_u32 s{sB}, s{sA}, 1')
        else:
            n, mg, ta, tb = (5, 13108, 0x47520, 0x98631) if kind == 1 else (6, 10923, 0x829630, 0xb5a741)
            div(sA, sS, mg)
            a(f's_mul_i32 s{sB}, s{sA}, {n}'); a(f's_sub_u32 s{sT}, s{sS}, s{sB}')
            a(f's_lshl_b32 s{sT}, s{sT}, 2')
            a(f's_lshl_b32 s{sB}, s{sB}, 1')
            a(f's_lshr_b32 s{sA}, {hex(ta)}, s{sT}'); a(f's_and_b32 s{sA}, s{sA}, 15'); a(f's_add_u32 s{sA}, s{sA}, s{sB}')
            a(f's_lshr_b32 s{sT}, {hex(tb)}, s{sT}'); a(f's_and_b32 s{sT}, s{sT}, 15'); a(f's_add_u32 s{sB}, s{sT}, s{sB}')
        if not last:
            a(f's_branch {lab}_done'); a.label(f'{lab}_{hi}')
    case(0, 600, 24, 1920, 640, 30, 2185, WS_WQ, 20, 0, False)
    case(600, 800, 26, 640, 640, 10, 6554, WS_WO, 20, 1, False)
    case(800, 1280, 28, 1536, 640, 24, 2731, WS_W1, 20, 1, False)
    case(1280, 1760, 30, 640, 1536, 10, 6554, WS_W2, 48, 2, True)
    a.label(f'{lab}_done')
    a(f's_and_b32 s{o+1}, s{o+1}, 0xffff'); a(f's_mov_b32 s{o+3}, 0x20000')
    a(f's_lshl_b32 s{sT}, s{o+10}, 4')
    a(f's_mul_i32 s{o+4}, s{sA}, s{sT}'); a(f's_mul_i32 s{o+6}, s{sB}, s{sT}')
    a(f's_lshl_b32 s{sA}, s{sC}, 7')
    a(f's_add_u32 s{o+4}, s{o+4}, s{sA}'); a(f's_add_u32 s{o+6}, s{o+6}, s{sA}')
    a(f's_lshr_b32 s{sT}, s{sT}, 1')
    a(f's_add_u32 s{o+5}, s{o+4}, s{sT}'); a(f's_add_u32 s{o+7}, s{o+6}, s{sT}')
    a(f's_lshl_b32 s{sC}, s{sC}, 2'); a(f's_mul_i32 s{sC}, s{sC}, s{o+9}')
    a(f's_lshl_b32 s{sS}, s{sS}, 10')
    a(f's_add_u32 s{o+8}, s{o+8}, s{sC}'); a(f's_add_u32 s{o+8}, s{o+8}, s{sS}')

K0_EXTRA = False
def k0(a):
    prologue(a, 'k0', ['s_load_dwordx4 s[24:27], s[0:1], 8', 's_load_dwordx4 s[28:31], s[0:1], 32',
                       's_load_dwordx2 s[8:9], s[0:1], 48', 's_load_dwordx2 s[12:13], s[0:1], 56'])
    srd(a, 8, 1280)
    srd(a, 12, 640 * 3840 * 2)
    a('s_lshr_b32 s32, s2, 2'); a('s_min_u32 s32, s32, 59'); a('s_and_b32 s33, s2, 3')
    a('s_mul_i32 s34, s33, 160'); a(f's_lshl3_add_u32 s34, s{S_W}, s34')
    a('v_lshrrev_b32 v3, 3, v0'); a('v_and_b32 v4, 7, v0')
    a('v_add_u32 v5, s34, v3')
    a('v_lshlrev_b32 v6, 1, v5')
    a('s_movk_i32 s35, 7680'); a('v_mul_lo_u32 v5, v5, s35')
    a('v_lshl_add_u32 v5, v4, 4, v5')
    a('s_lshl_b32 s35, s32, 7')
    for i in range(5):
        a(f'buffer_load_ushort v{10+i}, v6, s[8:11], 0 offen offset:{64*i}')
    for i in range(5):
        a(f'buffer_load_dwordx4 v[{16+4*i}:{19+4*i}], v5, s[12:15], s35 offen')
        if i < 4: a(f's_add_u32 s35, s35, {32*7680}')
    a(f's_lshl2_add_u32 s36, s2, s{S_W}')
    a('s_add_u32 s37, s36, 1024')
    a('s_cmp_ge_u32 s37, 1760'); a('s_cselect_b32 s38, 0x80000000, 0'); a('s_min_u32 s37, s37, 1759')
    U = (44, 68)
    k0_decode(a, 36, U[0], 'K0A'); k0_decode(a, 37, U[1], 'K0B')
    LB = 1024
    a(f's_lshl_b32 s39, s{S_W}, 13'); a(f's_add_u32 s39, s39, {LB}')
    hs = []
    for un in range(2):
        o = U[un]
        a(f'v_mul_lo_u32 v7, v3, s{o+10}'); a('v_lshl_add_u32 v7, v4, 4, v7')
        for i in range(4):
            a(f's_add_u32 m0, s39, {un*4096 + i*1024}')
            h = a(f'buffer_load_dwordx4 v7, s[{o}:{o+3}], s{o+4+i} offen lds')
        hs.append(h)
    ts(a, 1)
    for i in range(5): a(f'v_lshlrev_b32 v{10+i}, 16, v{10+i}')
    for i in range(5): a(f'v_mul_f32 v{40+i}, {fl(-LOG2E)}, v{10+i}')
    for i in range(5): a(f'v_exp_f32 v{40+i}, v{40+i}')
    for i in range(5): a(f'v_add_f32 v{40+i}, 1.0, v{40+i}')
    for i in range(5): a(f'v_rcp_f32 v{40+i}, v{40+i}')
    for i in range(5): a(f'v_mul_f32 v{10+i}, v{10+i}, v{40+i}')
    for i in range(5): a(f'v_cvt_pk_bf16_f32 v{10+i}, v{10+i}, v{10+i}')
    for i in range(5): a(f'v_lshlrev_b32 v{10+i}, 16, v{10+i}')
    for i in range(5):
        for q in range(4):
            for t in unpack(48, 49, 16 + 4*i + q): a(t)
            if i == 0:
                a(f'v_mul_f32 v{40+2*q}, v48, v10'); a(f'v_mul_f32 v{41+2*q}, v49, v10')
            else:
                a(f'v_fmac_f32 v{40+2*q}, v48, v{10+i}'); a(f'v_fmac_f32 v{41+2*q}, v49, v{10+i}')
    ts(a, 2)
    for q in range(4): a(f'v_permlane16_swap_b32 v{40+q}, v{44+q}')
    for q in range(4): a(f'v_add_f32 v{40+q}, v{40+q}, v{44+q}')
    for q in range(2): a(f'v_permlane32_swap_b32 v{40+q}, v{42+q}')
    for q in range(2): a(f'v_add_f32 v{40+q}, v{40+q}, v{42+q}')
    for q in range(2): a(f'v_add_f32_dpp v{42+q}, v{40+q}, v{40+q} row_ror:8 row_mask:0xf bank_mask:0xf')
    a('v_and_b32 v8, 1, v2'); a('v_lshlrev_b32 v8, 4, v8'); a('v_lshl_add_u32 v8, v4, 5, v8')
    a('v_lshrrev_b32 v9, 1, v2'); a('v_lshl_add_u32 v8, v9, 3, v8')
    a(f's_lshl_b32 s40, s{S_W}, 8'); a('v_add_u32 v8, s40, v8')
    a('ds_write_b64 v8, v[42:43]')
    a.wait(lg=0); a.barrier()
    a('v_lshlrev_b32 v8, 2, v0')
    for q in range(4): a(f'ds_read_b32 v{40+q}, v8 offset:{256*q}')
    a('v_add_f32 v40, v40, v41'); a('v_add_f32 v42, v42, v43'); a('v_add_f32 v40, v40, v42')
    a(f's_cmp_lg_u32 s{S_W}, 0'); a('s_cselect_b32 s40, 0x80000000, 0')
    a('s_cmp_ge_u32 s2, 240'); a('s_cselect_b32 s40, 0x80000000, s40')
    a('v_or_b32 v8, s40, v8')
    a('s_mul_i32 s41, s33, 15360'); a('s_lshl_b32 s42, s32, 8'); a('s_add_u32 s41, s41, s42'); a(f's_add_u32 s41, s41, {WS_MODP}')
    a(f'buffer_store_dword v40, v8, s[{S_WS}:{S_WS+3}], s41 offen')
    if K0_EXTRA:
        a('v_mov_b32 v41, 0'); a('v_cmp_gt_u32 vcc, 20, v0'); a('v_lshlrev_b32 v9, 2, v0'); a('v_mov_b32 v42, 0x80000000')
        a('v_cndmask_b32 v9, v42, v9, vcc'); a('s_mul_i32 s41, s2, 80'); a('s_add_u32 s41, s41, 0x40000')
        a(f'buffer_store_dword v41, v9, s[{S_WS}:{S_WS+3}], s41 offen')
    a('v_lshrrev_b32 v50, 2, v1'); a('v_lshlrev_b32 v50, 7, v50'); a('v_and_b32 v51, 3, v1'); a('v_lshl_add_u32 v50, v51, 3, v50')
    a('v_add_u32 v50, s39, v50')
    a('v_lshlrev_b32 v54, 4, v0')
    a('v_or_b32 v55, s38, v54')
    for un in range(2):
        o = U[un]
        a(f's_add_u32 s43, s{o+11}, 9'); a('v_lshlrev_b32 v51, s43, v2'); a('v_add_u32 v51, v51, v50')
        a(f's_lshl_b32 s43, s{o+11}, 1'); a('s_lshr_b32 s43, 2048, s43'); a('v_add_u32 v52, s43, v51')
        a.wait_id(hs[un])
        ts(a, 3 + un)
        R = 64 + 16 * un
        for t in range(4):
            a(f'ds_read_b64_tr_b16 v[{R+4*t}:{R+4*t+1}], v51 offset:{un*4096 + 32*t}')
            a(f'ds_read_b64_tr_b16 v[{R+4*t+2}:{R+4*t+3}], v52 offset:{un*4096 + 32*t}')
        for t in range(4):
            a(f'buffer_store_dwordx4 v[{R+4*t}:{R+4*t+3}], v{54+un}, s[{S_WS}:{S_WS+3}], s{o+8} offen')
            if t < 3: a(f's_add_u32 s{o+8}, s{o+8}, s{o+9}')
    epilogue(a, 'k0')
    return 1024 + 32768

def kernel_text(name, fn):
    a = Asm()
    lds = fn(a)
    t = f'.globl {name}\n.p2align 8\n.type {name},@function\n{name}:\n' + a.text()
    d = f'''.amdhsa_kernel {name}
  .amdhsa_next_free_vgpr 512
  .amdhsa_next_free_sgpr 102
  .amdhsa_accum_offset 256
  .amdhsa_group_segment_fixed_size 0
  .amdhsa_kernarg_size 88
  .amdhsa_user_sgpr_count 2
  .amdhsa_user_sgpr_kernarg_segment_ptr 1
  .amdhsa_system_sgpr_workgroup_id_x 1
.end_amdhsa_kernel
'''
    print(name, 'instrs', a.n, 'nops', a.nops, file=sys.stderr)
    return t, d, lds
def build(kernels, path):
    head, code, desc = '', '', ''
    for name, fn in kernels:
        t, d, lds = kernel_text(name, fn)
        head += f'; @launch kernel={name} grid=(256,1,1) block=(256,1,1) lds={lds}\n'
        code += t; desc += '.p2align 6\n' + d
    open(path, 'w').write(head + '.amdgcn_target "amdgcn-amd-amdhsa--gfx950"\n.text\n' + code + '.section .rodata,"a"\n' + desc)
if __name__ == '__main__':
    import phases
    ks = [('k0_kernel', k0)] + phases.KERNELS
    build(ks, sys.argv[1])
```

```python
import sys, struct
from asmfw import *
import gen1
from gen1 import WS_MODP, WS_STATS, WS_WQ, WS_WO, WS_W1, WS_W2, WS_OF, WS_X1G, WS_H1, MF, LOG2E, fl, unpack, srd, S_WS, S_X, S_O, S_RB, S_J, S_W, ts, tsc, ts_flush
WSR = f's[{S_WS}:{S_WS+3}]'
WS_FL = 0x40000
WS_XID = 0x44000
S_FAST = 23
FULL = (1 << 64) - 1
OPT = sys.argv[2] if len(sys.argv) > 2 else ''
L_DUMP = 102400; L_PERM = 147456
L_MODL = L_PERM; L_GS = L_PERM + 5120; L_OWN = L_GS + 2560
L_X3 = 65536
LDS_SIZE = 163840
class K:
    def __init__(s, a): s.a = a; s.tail = []; s.nl = 0
    def setexec(s, m):
        s.a(f's_mov_b32 exec_lo, {hex(m & 0xffffffff)}'); s.a(f's_mov_b32 exec_hi, {hex(m >> 32)}')
    def stores(s, lst):
        a = s.a; s.nl += 1; n = s.nl
        a(f's_cmp_eq_u32 s{S_FAST}, 0'); a(f's_cbranch_scc1 SLOW{n}')
        h = None; n0 = len(a.out)
        for t in lst: h = a(t)
        assert len(a.out) - n0 == len(lst), a.out[n0:]
        a.label(f'RET{n}')
        s.tail.append(f'SLOW{n}:\n' + ''.join(f'  {t}{" sc1" if t.startswith("buffer") else ""}\n' for t in lst) + f'  s_branch RET{n}')
        return h
    def publish(s, h, val, vt):
        s.a(f'v_mov_b32 v{vt}, {val}')
        s.a.wait_id(h)
        s.stores([f'buffer_store_dword v{vt}, off, {WSR}, s26'])
    def spin_tail(s, n, val, vt):
        s.tail.append(f'''SPIN{n}:
  s_mov_b32 s72, 0x8000
SPINL{n}:
  buffer_load_dword v{vt}, v9, {WSR}, s27 offen sc1
  s_waitcnt vmcnt(0)
  v_cmp_le_u32 vcc, {val}, v{vt}
  s_sub_u32 s72, s72, 1
  s_cbranch_scc1 PDONE{n}
  s_cmp_eq_u64 vcc, -1
  s_cbranch_scc0 SPINL{n}
  s_branch PDONE{n}''')
    def poll(s, val, vt):
        a = s.a; s.nl += 1; n = s.nl
        a.wait(lg=0)
        if 'vpoll' in OPT:
            a(f's_branch SPIN{n}')
        else:
            a(f's_cmp_eq_u32 s{S_FAST}, 0'); a(f's_cbranch_scc1 SPIN{n}')
            a('s_mov_b32 s72, 0x8000')
            a.label(f'POLL{n}')
            a('s_load_dwordx8 s[64:71], s[24:25], 0 glc')
            a('s_sub_u32 s72, s72, 1'); a(f's_cbranch_scc1 PDONE{n}')
            a.wait(lg=0)
            a('s_min_u32 s64, s64, s65'); a('s_min_u32 s66, s66, s67'); a('s_min_u32 s68, s68, s69'); a('s_min_u32 s70, s70, s71')
            a('s_min_u32 s64, s64, s66'); a('s_min_u32 s68, s68, s70'); a('s_min_u32 s64, s64, s68')
            a(f's_cmp_ge_u32 s64, {val}'); a(f's_cbranch_scc0 POLL{n}')
        a.label(f'PDONE{n}')
        a.fwait('lgkmcnt(0)')
        s.spin_tail(n, val, vt)
    def poll_issue(s, vt): return f'buffer_load_dword v{vt}, v9, {WSR}, s27 offen sc1'
    def poll_check(s, val, vt):
        a = s.a; s.nl += 1; n = s.nl
        a(f'v_cmp_le_u32 vcc, {val}, v{vt}'); a('s_nop 3')
        a('s_cmp_eq_u64 vcc, -1'); a(f's_cbranch_scc0 SPIN{n}')
        a.label(f'PDONE{n}')
        s.spin_tail(n, val, vt)
def spread(a, main, fill, lo=0, hi=None):
    n = len(main); hi = n if hi is None else hi
    fi = 0; m = len(fill)
    def em(x):
        if callable(x): x()
        else: a(x)
    for i, t in enumerate(main):
        em(t)
        if i >= lo:
            tgt = min(m, -(-m * (i - lo + 1) // max(1, hi - lo)))
            while fi < tgt: em(fill[fi]); fi += 1
    while fi < m: em(fill[fi]); fi += 1
def frag_offsets(a, sb, s2, st):
    a(f's_lshr_b32 s{st}, s{S_J}, 1'); a(f's_mul_i32 s{st}, s{st}, 5120'); a(f's_add_u32 s{sb}, s{sb}, s{st}')
    a(f's_and_b32 s{st}, s{S_J}, 1')
    a(f's_lshl3_add_u32 s{s2}, s{st}, s{sb}'); a(f's_add_u32 s{s2}, s{s2}, 4096')
    a(f's_lshl_b32 s{st}, s{st}, 11'); a(f's_add_u32 s{sb}, s{sb}, s{st}')
def frag_store80(F, sb, s2):
    return [f'buffer_store_dwordx4 v[{F}:{F+3}], v4, {WSR}, s{sb} offen',
            f'buffer_store_dwordx4 v[{F+4}:{F+7}], v4, {WSR}, s{sb} offen offset:1024',
            f'buffer_store_dwordx2 v[{F+8}:{F+9}], v4, {WSR}, s{s2} offen']
def ld(reg, s, soff, srd_=WSR, sc1=False):
    return f'buffer_load_dwordx4 {reg}, v{4 + s // 4}, {srd_}, s{soff} offen offset:{1024 * (s % 4)}' + (' sc1' if sc1 else '')
def q4(k, b): return f'{k}[{b}:{b+3}]'
RING = 9
def wq_reg(s, sl): return q4('a', 16 * (s % RING) + 4 * sl)
def wo_reg(t, i): return q4('a', 156 + 4 * (i * 5 + t))
def w1_reg(f): return q4('a', 4 * f) if f < 39 else q4('v', 172 + 4 * (f - 39))
def w2_reg(f): return q4('a', 156 + 4 * f) if f < 25 else q4('a', 4 * (f - 25))
def wq_ld(s, sl): return ld(wq_reg(s, sl), s, 32 + sl, 's[12:15]' if sl == 2 else WSR)
def wo_ld(t, i): return ld(wo_reg(t, i), i, 36 + t)
def w1_ld(f): return ld(w1_reg(f), f // 3, 41 + f % 3)
def w2_ld(f): return ld(w2_reg(f), f // 5, 44 + f % 5)

def main_kernel(a):
    k = K(a)
    gen1.prologue(a, 'p1', [f's_load_dwordx2 s[{S_X}:{S_X+1}], s[0:1], 0', f's_load_dwordx2 s[{S_O}:{S_O+1}], s[0:1], 64'])
    srd(a, S_X, 2048 * 1280); srd(a, S_O, 2048 * 1280)
    XN = 40
    a(f's_lshl_b32 s28, s{S_RB}, 6'); a(f's_mul_i32 s29, s{S_W}, 20'); a('s_add_u32 s28, s28, s29'); a('s_sub_u32 s28, s28, 16')
    a('s_movk_i32 s30, 1280')
    for i in range(5):
        a(f'v_add_u32 v3, s28, v2')
        if i: a(f'v_add_u32 v3, {4*i}, v3')
        a('v_max_i32 v3, 0, v3'); a('v_mul_lo_u32 v3, v3, s30'); a(f'v_lshl_add_u32 v{240+i}, v1, 4, v3')
        for u in range(5):
            b = XN + (i * 5 + u) * 8
            a(f'buffer_load_dwordx4 v[{b+4}:{b+7}], v{240+i}, s[{S_X}:{S_X+3}], 0 offen offset:{256*u}')
    a('v_lshlrev_b32 v4, 4, v0')
    for q in range(1, 5): a(f'v_add_u32 v{4+q}, {4096*q}, v4')
    a(f's_mul_i32 s31, s{S_W}, 1280')
    a('v_add_u32 v245, s31, v4')
    a('v_lshlrev_b32 v3, 4, v1'); a('v_add_u32 v246, s31, v3'); a('v_add_u32 v246, 1024, v246')
    def modloads(R, colbase):
        a(f's_mov_b32 s49, {WS_MODP + colbase * 4}')
        for kq in range(4):
            a(f'buffer_load_dwordx4 v[{R+8*kq}:{R+3+8*kq}], v245, {WSR}, s49 offen')
            a(f'buffer_load_dwordx4 v[{R+4+8*kq}:{R+7+8*kq}], v246, {WSR}, s49 offen')
            if kq < 3: a('s_add_u32 s49, s49, 15360')
    def modsum(R, n, addone):
        for e in range(0, n, 2):
            a(f'v_pk_add_f32 v[{R+e}:{R+e+1}], v[{R+e}:{R+e+1}], v[{R+n+e}:{R+n+1+e}]')
            a(f'v_pk_add_f32 v[{R+2*n+e}:{R+2*n+1+e}], v[{R+2*n+e}:{R+2*n+1+e}], v[{R+3*n+e}:{R+3*n+1+e}]')
            a(f'v_pk_add_f32 v[{R+e}:{R+e+1}], v[{R+e}:{R+e+1}], v[{R+2*n+e}:{R+2*n+1+e}]')
        for e in range(0, n, 2):
            a(f'v_cvt_pk_bf16_f32 v3, v{R+e}, v{R+e+1}')
            for t in unpack(R + e, R + e + 1, 3): a(t)
            a(f'v_add_f32 v{R+e}, {addone}, v{R+e}'); a(f'v_add_f32 v{R+e+1}, {addone}, v{R+e+1}')
            a(f'v_cvt_pk_bf16_f32 v{R+n+e//2}, v{R+e}, v{R+e+1}')
            for t in unpack(R + e, R + e + 1, R + n + e // 2): a(t)
    MR = 8
    modloads(MR, 0)
    a('s_getreg_b32 s3, hwreg(HW_REG_XCC_ID)'); a('s_and_b32 s3, s3, 15'); a('s_add_u32 s3, s3, 1'); a('v_mov_b32 v3, s3')
    a(f's_lshl_b32 s50, s{S_RB}, 7'); a(f's_add_u32 s50, s50, {WS_XID}'); a(f's_lshl2_add_u32 s51, s{S_J}, s50')
    a(f'buffer_store_dword v3, off, {WSR}, s51 sc1')
    a(f's_mul_i32 s52, s{S_J}, 5'); a(f's_add_u32 s53, s52, s{S_W}')
    a('s_add_u32 s32, s53, 40'); a('s_add_u32 s33, s53, 80'); a('s_mov_b32 s35, s53')
    a(f's_lshl_b32 s54, s{S_W}, 3'); a('s_lshr_b32 s34, 0x04542c, s54'); a('s_and_b32 s34, s34, 0xff'); a('s_add_u32 s34, s34, s52')
    for q in range(4):
        a(f's_mul_i32 s{32+q}, s{32+q}, 20480'); a(f's_add_u32 s{32+q}, s{32+q}, {WS_WQ}')
    a(f's_mov_b64 s[12:13], s[{S_WS}:{S_WS+1}]'); a(f's_cmp_eq_u32 s{S_W}, 3'); a(f's_cselect_b32 s14, 0, s{S_WS+2}'); a('s_mov_b32 s15, 0x20000')
    a(f's_mul_i32 s36, s{S_J}, {5*20480}'); a(f's_mul_i32 s3, s{S_W}, 5120'); a('s_add_u32 s36, s36, s3'); a(f's_add_u32 s36, s36, {WS_WO}')
    for t in range(1, 5): a(f's_add_u32 s{36+t}, s{35+t}, 20480')
    a(f's_lshl2_add_u32 s41, s{S_J}, s{S_W}'); a(f's_mul_i32 s41, s41, {3*20480}'); a(f's_add_u32 s41, s41, {WS_W1}')
    a('s_add_u32 s42, s41, 20480'); a('s_add_u32 s43, s42, 20480')
    a(f's_mul_i32 s44, s{S_J}, {5*49152}'); a(f's_mul_i32 s3, s{S_W}, 12288'); a('s_add_u32 s44, s44, s3'); a(f's_add_u32 s44, s44, {WS_W2}')
    for t in range(1, 5): a(f's_add_u32 s{44+t}, s{43+t}, 49152')
    a(f's_lshl_b32 s27, s{S_RB}, 9'); a(f's_add_u32 s27, s27, {WS_FL}')
    a(f's_lshr_b32 s3, s{S_J}, 1'); a('s_lshl_b32 s3, s3, 7'); a('s_add_u32 s26, s27, s3')
    a(f's_and_b32 s3, s{S_J}, 1'); a(f's_lshl2_add_u32 s3, s3, s{S_W}'); a('s_lshl2_add_u32 s26, s3, s26')
    a(f's_lshl_b32 s3, s{S_W}, 7'); a('s_add_u32 s27, s27, s3')
    a(f's_add_u32 s24, s{S_WS}, s27'); a(f's_addc_u32 s25, s{S_WS+1}, 0')
    wqs = [wq_ld(s, sl) for s in range(20) for sl in range(4)]
    for t in wqs[:4]: a(t)
    st = []
    SB = 247
    for i in range(5):
        S, Q = 248, 250
        for u in range(5):
            b = XN + (i * 5 + u) * 8
            for e in range(4): st += unpack(b + 2 * e, b + 2 * e + 1, b + 4 + e)
            for e in range(4):
                p = f'v[{b+2*e}:{b+2*e+1}]'
                st.append(f'v_pk_mul_f32 v[{Q}:{Q+1}], {p}, {p}' if u == 0 and e == 0 else f'v_pk_fma_f32 v[{Q}:{Q+1}], {p}, {p}, v[{Q}:{Q+1}]')
                if u == 0 and e == 1: st.append(f'v_pk_add_f32 v[{S}:{S+1}], v[{b}:{b+1}], {p}')
                elif not (u == 0 and e == 0): st.append(f'v_pk_add_f32 v[{S}:{S+1}], v[{S}:{S+1}], {p}')
        st.append(f'v_add_f32 v{240+i}, v{S}, v{S+1}')
        st.append(f'v_add_f32 v{251+i if i else 247}, v{Q}, v{Q+1}')
    spread(a, st, wqs[4:24], lo=80)
    a(f's_cmp_ge_u32 s{S_W}, 2'); a('s_cselect_b32 s55, 1.0, 0')
    modsum(MR, 8, 's55')
    a(f'v_add_u32 v24, {L_MODL}, v245'); a(f'v_add_u32 v25, {L_MODL}, v246')
    a(f'ds_write_b128 v24, v[{MR}:{MR+3}]'); a(f'ds_write_b128 v25, v[{MR+4}:{MR+7}]')
    SQ = [247, 252, 253, 254, 255]
    st = []
    for ror in (8, 4, 2, 1):
        for i in range(5):
            for c in (240 + i, SQ[i]): st.append(f'v_add_f32_dpp v{c}, v{c}, v{c} row_ror:{ror} row_mask:0xf bank_mask:0xf')
    st.append(f's_mov_b32 s56, {fl(1/640)}'); st.append(f'v_mov_b32 v3, {fl(1e-5)}')
    for i in range(5): st.append(f'v_mul_f32 v{240+i}, s56, v{240+i}')
    for i in range(5): st.append(f'v_fma_f32 v{SQ[i]}, v{SQ[i]}, s56, v3')
    for i in range(5): st.append(f'v_fma_f32 v{SQ[i]}, -v{240+i}, v{240+i}, v{SQ[i]}')
    for i in range(5): st.append(f'v_max_f32 v{SQ[i]}, v{SQ[i]}, v3')
    for i in range(5): st.append(f'v_rsq_f32 v{26+2*i}, v{SQ[i]}')
    for i in range(5): st.append(f'v_mul_f32 v{27+2*i}, -v{240+i}, v{26+2*i}')
    for i in range(5):
        P = 26 + 2 * i
        for u in range(5):
            b = XN + (i * 5 + u) * 8
            for e in range(4):
                p = f'v[{b+2*e}:{b+2*e+1}]'
                st.append(f'v_pk_fma_f32 {p}, {p}, v[{P}:{P+1}], v[{P}:{P+1}] op_sel:[0,0,1] op_sel_hi:[1,0,1]')
    spread(a, st, wqs[24:32])
    a('v_lshrrev_b32 v3, 2, v1'); a('v_lshlrev_b32 v3, 10, v3'); a('v_and_b32 v247, 3, v1'); a('v_lshl_add_u32 v3, v247, 8, v3')
    a('v_and_b32 v247, 7, v1'); a('s_movk_i32 s30, 20480')
    for i in range(5):
        a(f'v_add_u32 v248, s29, v2')
        if i: a(f'v_add_u32 v248, {4*i}, v248')
        a('v_and_b32 v249, 15, v248'); a('v_xor_b32 v249, v249, v247'); a('v_lshrrev_b32 v248, 4, v248')
        a('v_mad_u32_u24 v248, v248, s30, v3'); a(f'v_lshl_add_u32 v{240+i}, v249, 4, v248')
    a('v_lshlrev_b32 v247, 5, v1'); a(f'v_add_u32 v247, {L_MODL}, v247')
    ts(a, 1)
    a.wait(lg=0); a.barrier()
    def gs_read(u):
        b = 8 + 16 * (u % 2); l = []
        for q in range(2):
            l.append(f'ds_read_b128 v[{b+4*q}:{b+4*q+3}], v247 offset:{512*u + 16*q}')
            l.append(f'ds_read_b128 v[{b+8+4*q}:{b+8+4*q+3}], v247 offset:{2560 + 512*u + 16*q}')
        return l
    st = gs_read(0)
    for u in range(5):
        if u < 4: st += gs_read(u + 1)
        gb = 8 + 16 * (u % 2)
        for i in range(5):
            b = XN + (i * 5 + u) * 8
            for e in range(4):
                p = f'v[{b+2*e}:{b+2*e+1}]'
                st.append(f'v_pk_fma_f32 {p}, {p}, v[{gb+8+2*e}:{gb+9+2*e}], v[{gb+2*e}:{gb+2*e+1}]')
            for e in range(4): st.append(f'v_cvt_pk_bf16_f32 v{b+e}, v{b+2*e}, v{b+2*e+1}')
            st.append(f'ds_write_b128 v{240+i}, v[{b}:{b+3}] offset:{4096*u}')
    spread(a, st, wqs[32:4*RING])
    a('v_add_u32 v8, 16384, v4')
    a('v_and_b32 v9, 7, v0'); a('v_lshlrev_b32 v9, 2, v9')
    a('v_xor_b32 v3, v1, v2'); a('v_lshlrev_b32 v20, 8, v2'); a('v_lshl_add_u32 v20, v3, 4, v20')
    a('v_xor_b32 v21, 64, v20'); a('v_add_u32 v22, 61440, v20'); a('v_add_u32 v23, 61440, v21')
    a.wait(lg=0); a.barrier()
    ts(a, 2)
    ACC = 40; XF = 116; QR = 160
    def xread(s):
        l = []
        for mt in range(5):
            r = XF + 20 * (s % 2) + 4 * mt
            off = (mt * 20 + s) * 1024; ad = 20 + (s & 1)
            if off >= 61440: off -= 61440; ad += 2
            l.append(f'ds_read_b128 v[{r}:{r+3}], v{ad} offset:{off}')
        return l
    for t in xread(0): a(t)
    side = []
    A = side.append
    A('v_lshrrev_b32 v3, 2, v1'); A('v_xor_b32 v3, v3, v2'); A('v_lshlrev_b32 v3, 3, v3'); A('v_lshl_add_u32 v3, v1, 5, v3')
    A(f's_add_u32 s57, s{S_W}, 5'); A(f's_add_u32 s58, s{S_W}, 10'); A(f's_mov_b32 s60, s{S_W}')
    A('s_lshr_b32 s59, 0x0f040e09, s54'); A('s_and_b32 s59, s59, 0xff')
    for q in range(4):
        A(f's_mul_i32 s{57+q}, s{57+q}, 2560'); A(f's_add_u32 s{57+q}, s{57+q}, {L_DUMP}'); A(f'v_add_u32 v{24+q}, s{57+q}, v3')
    A(f's_lshl_b32 s57, s{S_W}, 9'); A(f's_add_u32 s57, s57, {L_DUMP}')
    A('v_add_u32 v28, s57, v3')
    A('v_and_b32 v3, 3, v1'); A('v_xor_b32 v3, v3, v2'); A('v_lshlrev_b32 v3, 3, v3')
    A('v_and_b32 v10, 60, v0'); A('v_lshl_add_u32 v3, v10, 3, v3'); A('v_add_u32 v29, s57, v3')
    A('v_and_b32 v3, 1, v1'); A('v_cmp_eq_u32 s[74:75], 1, v3')
    A('v_lshl_add_u32 v10, v2, 2, v3'); A('v_cmp_le_u32 s[76:77], v10, v1')
    A('v_add_u32 v10, 2, v10'); A('v_cmp_le_u32 s[78:79], v10, v1')
    A('v_mov_b32 v10, 0x0c0c0100'); A('v_mov_b32 v11, 0x01000c0c'); A('v_cndmask_b32 v10, v10, v11, s[74:75]')
    A('v_mov_b32 v11, 0x0c0c0302'); A('v_mov_b32 v12, 0x03020c0c'); A('v_cndmask_b32 v11, v11, v12, s[74:75]')
    A('v_mov_b32 v12, 0x0c0c0c0c')
    A('v_cndmask_b32 v30, v10, v12, s[76:77]'); A('v_cndmask_b32 v31, v11, v12, s[78:79]')
    A('v_cndmask_b32 v32, v12, v10, s[76:77]'); A('v_cndmask_b32 v33, v12, v11, s[78:79]')
    A(f's_or_b32 s57, s{S_RB}, s{S_W}'); A('s_cmp_eq_u32 s57, 0'); A(f's_cselect_b32 s57, {fl(-1e30)}, 0')
    for q in range(4): A(f'v_mov_b32 v{34+q}, s57')
    for q in range(16): A(f'v_mov_b32 v{QR+q}, 0')
    M2 = 176; M3 = 208
    def own_loads():
        a('v_mul_u32_u24 v10, 3277, v0'); a('v_lshrrev_b32 v10, 16, v10')
        a('v_cmp_eq_u32 s[62:63], 1, v10')
        a('v_mul_u32_u24 v11, 320, v10'); a('v_sub_u32 v11, v4, v11')
        a('v_lshlrev_b32 v10, 2, v10'); a('s_movk_i32 s3, 0x5542'); a('v_lshrrev_b32 v10, v10, s3'); a('v_and_b32 v10, 15, v10')
        a('v_mul_u32_u24 v10, 2560, v10'); a('v_add_u32 v11, v10, v11')
        a(f's_mul_i32 s49, s{S_J}, 320'); a(f's_add_u32 s49, s49, {WS_MODP}')
        for kq in range(4):
            a(f'buffer_load_dwordx4 v[{M3+4*kq}:{M3+4*kq+3}], v11, {WSR}, s49 offen')
            if kq < 3: a('s_add_u32 s49, s49, 15360')
        a(f's_lshl2_add_u32 s49, s{S_RB}, s{S_W}'); a('s_lshl_b32 s49, s49, 4'); a('v_add_u32 v38, s49, v1')
        a('s_movk_i32 s49, 1280'); a('v_mul_lo_u32 v39, v38, s49'); a('v_lshl_add_u32 v39, v2, 3, v39')
        a(f's_mul_i32 s61, s{S_J}, 160')
        for t in range(5): a(f'buffer_load_dwordx2 v[{10+2*t}:{11+2*t}], v39, s[{S_X}:{S_X+3}], s61 offen offset:{32*t}')
        a(f'buffer_load_dword v224, v9, {WSR}, s50 offen sc1')
    def mod2_fin():
        modsum(M2, 8, 's55')
        a(f's_and_b32 s3, s{S_W}, 1'); a('s_mul_i32 s3, s3, 80')
        a(f's_cmp_ge_u32 s{S_W}, 2'); a(f's_cselect_b32 s49, {L_GS}, {L_GS}+64' if False else 's_cselect_b32 s49, 0, 64'); a(f's_add_u32 s49, s49, {L_GS}')
        a('s_mov_b32 s58, 0x65483210'); a('s_mov_b32 s59, 0x97')
        for r, src in ((0, 'v0'), (1, None)):
            if r == 0: a('v_add_u32 v226, s3, v0')
            else: a('v_add_u32 v226, s3, v1'); a('v_add_u32 v226, 64, v226')
            a('v_lshrrev_b32 v227, 2, v226')
            a('v_mul_u32_u24 v228, 6554, v227'); a('v_lshrrev_b32 v228, 16, v228')
            a('v_mul_u32_u24 v229, 10, v228'); a('v_sub_u32 v227, v227, v229'); a('v_lshlrev_b32 v227, 2, v227')
            a('v_lshrrev_b64 v[230:231], v227, s[58:59]'); a('v_and_b32 v227, 15, v230')
            a('v_lshrrev_b32 v229, 1, v227'); a('v_mad_u32_u24 v228, v228, 5, v229')
            a('v_and_b32 v227, 1, v227'); a('v_lshlrev_b32 v227, 3, v227'); a('v_lshl_add_u32 v227, v228, 7, v227')
            a('v_and_b32 v226, 3, v226'); a('v_lshl_add_u32 v227, v226, 4, v227'); a('v_add_u32 v227, s49, v227')
            a(f'ds_write_b64 v227, v[{M2+8+2*r}:{M2+9+2*r}]')
        a('v_cndmask_b32 v225, 0, 1.0, s[62:63]')
        modsum(M3, 4, 'v225')
        a(f'v_add_u32 v226, {L_OWN}, v4')
        a(f'ds_write_b128 v226, v[{M3}:{M3+3}]')
    def xid_check():
        k.nl += 1; n = k.nl
        a('v_cmp_ne_u32 vcc, 0, v224'); a('v_readfirstlane_b32 s3, v224'); a('s_nop 3')
        a('s_cmp_eq_u64 vcc, -1'); a(f's_cbranch_scc0 XSPIN{n}')
        a.label(f'XDONE{n}')
        a('v_cmp_eq_u32 vcc, s3, v224'); a('s_nop 3'); a('s_cmp_eq_u64 vcc, -1'); a(f's_cselect_b32 s{S_FAST}, {0 if "slow" in OPT else 1}, 0')
        k.tail.append(f'''XSPIN{n}:
  s_mov_b32 s72, 0x8000
XSPINL{n}:
  buffer_load_dword v224, v9, {WSR}, s50 offen sc1
  s_waitcnt vmcnt(0)
  v_cmp_ne_u32 vcc, 0, v224
  v_readfirstlane_b32 s3, v224
  s_sub_u32 s72, s72, 1
  s_cbranch_scc1 XDONE{n}
  s_cmp_eq_u64 vcc, -1
  s_cbranch_scc0 XSPINL{n}
  s_nop 3
  s_branch XDONE{n}''')
    wos = [wo_ld(t, i) for i in range(5) for t in range(5)]
    w1_early = []
    for s in range(20):
        main = []
        for mt in range(5):
            for sl in range(4):
                if sl == 3 and mt == 0: continue
                ac = ACC + 4 * (sl * 5 + mt - (1 if sl == 3 else 0))
                c = '0' if s == 0 else q4('v', ac)
                main.append(f'{MF} {q4("v", ac)}, {wq_reg(s, sl)}, {q4("v", XF + 20 * (s % 2) + 4 * mt)}, {c}')
        fill = xread(s + 1) if s < 19 else []
        if 1 <= s <= 20 - RING: fill += wqs[4 * (s - 1 + RING): 4 * (s + RING)]
        elif s > 20 - RING:
            n0 = 4 * (s - 12)
            fill += wos[n0:n0 + 4] if s < 18 else (wos[24:] + [w1_ld(36), w1_ld(37), w1_ld(38)] if s == 18 else [w1_ld(8 + q) for q in range(4)])
        if s < 6: fill += side[s * 12:(s + 1) * 12] if s < 5 else side[60:]
        if s == 7: fill.append(lambda: modloads(M2, 1920))
        if s == 9: fill.append(own_loads)
        if s == 14: fill.append(mod2_fin)
        if s == 16: fill.append(xid_check)
        spread(a, main, fill, hi=17)
    ts(a, 3)
    w1rest = [w1_ld(f) for f in list(range(12, 36)) + list(range(0, 8))]
    st = []
    for sl in range(4):
        for mt in range(5):
            if sl == 3 and mt == 0: continue
            ac = ACC + 4 * (sl * 5 + mt - (1 if sl == 3 else 0))
            st += [f'v_cvt_pk_bf16_f32 v{ac}, v{ac}, v{ac+1}', f'v_cvt_pk_bf16_f32 v{ac+1}, v{ac+2}, v{ac+3}',
                   f'ds_write_b64 v{24+sl}, v[{ac}:{ac+1}] offset:{512*mt}']
    spread(a, st, w1rest[:6])
    a.wait(lg=0); a.barrier()
    K0, K1, VR, SR = 120, 130, 140, 176
    st = []; A = st.append
    def sx(m): A(f's_mov_b32 exec_lo, {hex(m & 0xffffffff)}'); A(f's_mov_b32 exec_hi, {hex(m >> 32)}')
    for t in range(5):
        a(f'ds_read_b64 v[{K0+2*t}:{K0+2*t+1}], v28 offset:{(5+t)*2560}')
        a(f'ds_read_b64 v[{K1+2*t}:{K1+2*t+1}], v28 offset:{(5+t)*2560+512}')
    for h in range(4):
        k.setexec((FULL << (16 * h)) & FULL)
        a(f'ds_read_b64 v[{QR+4*h}:{QR+4*h+1}], v28 offset:{h*2560+512}')
        k.setexec((1 << (16 * (h + 1))) - 1)
        a(f'ds_read_b64 v[{QR+4*h+2}:{QR+4*h+3}], v28 offset:{(h+1)*2560+512}')
    for t in range(5):
        a(f'ds_read_b64_tr_b16 v[{VR+4*t}:{VR+4*t+1}], v29 offset:{(10+t)*2560}')
        a(f'ds_read_b64_tr_b16 v[{VR+4*t+2}:{VR+4*t+3}], v29 offset:{(10+t)*2560+512}')
    H = range(4)
    for h in H:
        A(f'{MF} v[{SR+8*h}:{SR+8*h+3}], v[{K0+2*h}:{K0+2*h+3}], v[{QR+4*h}:{QR+4*h+3}], v[34:37]')
        A(f'{MF} v[{SR+8*h+4}:{SR+8*h+7}], v[{K1+2*h}:{K1+2*h+3}], v[{QR+4*h}:{QR+4*h+3}], 0')
    for h in H:
        b = SR + 8 * h
        for e in (0, 2, 4, 6): A(f'v_cndmask_b32 v{b+e}, v{b+e}, v{b+e+1}, s[74:75]')
        A(f'v_cndmask_b32 v{b}, v{b}, v{b+4}, s[76:77]'); A(f'v_cndmask_b32 v{b+1}, v{b+2}, v{b+6}, s[78:79]')
    def bfly(op, r):
        for sw in ('v_permlane16_swap_b32', 'v_permlane32_swap_b32'):
            for h in H: A(f'v_mov_b32 v{SR+8*h+r+1}, v{SR+8*h+r}')
            for h in H: A(f'{sw} v{SR+8*h+r}, v{SR+8*h+r+1}')
            for h in H: A(f'{op} v{SR+8*h+r}, v{SR+8*h+r}, v{SR+8*h+r+1}')
    for h in H: A(f'v_max_f32 v{SR+8*h+2}, v{SR+8*h}, v{SR+8*h+1}')
    bfly('v_max_f32', 2)
    CS = LOG2E * 20 ** -0.5
    A(f's_mov_b32 s57, {fl(CS)}')
    for h in H: A(f'v_mul_f32 v{SR+8*h+2}, {fl(-CS)}, v{SR+8*h+2}')
    for h in H:
        b = SR + 8 * h
        A(f'v_fma_f32 v{b}, v{b}, s57, v{b+2}'); A(f'v_fma_f32 v{b+1}, v{b+1}, s57, v{b+2}')
    for h in H:
        b = SR + 8 * h
        A(f'v_exp_f32 v{b}, v{b}'); A(f'v_exp_f32 v{b+1}, v{b+1}')
    for h in H: A(f'v_add_f32 v{SR+8*h+2}, v{SR+8*h}, v{SR+8*h+1}')
    bfly('v_add_f32', 2)
    for h in H: A(f'v_rcp_f32 v{SR+8*h+2}, v{SR+8*h+2}')
    for h in H:
        b = SR + 8 * h
        A(f'v_mul_f32 v{b}, v{b}, v{b+2}'); A(f'v_mul_f32 v{b+1}, v{b+1}, v{b+2}')
    for h in H: A(f'v_cvt_pk_bf16_f32 v{SR+8*h}, v{SR+8*h}, v{SR+8*h+1}')
    for h in H:
        b = SR + 8 * h
        for q in range(4): A(f'v_perm_b32 v{b+4+q}, v{b}, v{b}, v{30+q}')
    OR = 40
    for h in H:
        b = SR + 8 * h + 4
        A(f'{MF} v[{OR+8*h}:{OR+8*h+3}], v[{VR+4*h}:{VR+4*h+3}], v[{b}:{b+3}], 0')
        A(f'{MF} v[{OR+8*h+4}:{OR+8*h+7}], v[{VR+4*h+4}:{VR+4*h+7}], v[{b}:{b+3}], 0')
    spread(a, st, w1rest[6:16])
    a(f's_lshl2_add_u32 s57, s{S_RB}, s{S_W}'); a('s_mul_i32 s57, s57, 20480'); a(f's_add_u32 s57, s57, {WS_OF}')
    frag_offsets(a, 57, 58, 3)
    F = 80
    a(f'v_cvt_pk_bf16_f32 v{F}, v{OR}, v{OR+1}'); a(f'v_cvt_pk_bf16_f32 v{F+1}, v{OR+2}, v{OR+3}')
    for t in (1, 2, 3, 4):
        s_ = OR + 8 * (t - 1) + 4
        a(f'v_cvt_pk_bf16_f32 v{F+2*t}, v{s_}, v{s_+1}'); a(f'v_cvt_pk_bf16_f32 v{F+2*t+1}, v{s_+2}, v{s_+3}')
    for t in (1, 2, 3):
        k.setexec((FULL << (16 * t)) & FULL)
        s_ = OR + 8 * t
        a(f'v_cvt_pk_bf16_f32 v{F+2*t}, v{s_}, v{s_+1}'); a(f'v_cvt_pk_bf16_f32 v{F+2*t+1}, v{s_+2}, v{s_+3}')
    a('s_mov_b64 exec, -1')
    h = k.stores(frag_store80(F, 57, 58))
    ts(a, 4)
    XR, ACC = 64 + 28, 40
    GA, GG = 152, 40; X1 = 92
    a(f's_mul_i32 s3, s{S_W}, 5120')
    a(f's_mul_i32 s57, s{S_RB}, {4*20480}'); a('s_add_u32 s57, s57, s3'); a(f's_add_u32 s57, s57, {WS_OF}')
    for q in range(4):
        a(f's_add_u32 s3, s{S_W}, {q+1}'); a('s_and_b32 s3, s3, 3')
        a(f's_mul_i32 s58, s3, 20480'); a(f's_add_u32 s{32+q}, s58, s57')
        if q < 3:
            a('s_mul_i32 s58, s3, 15360'); a(f's_add_u32 s58, s58, {q*5120}'); a(f'v_add_u32 v{20+q}, s58, v4')
    a(f's_mul_i32 s58, s{S_W}, 15360'); a('v_add_u32 v23, s58, v4')
    a(f'v_lshlrev_b32 v24, 4, v2'); a(f'v_add_u32 v24, {L_OWN}, v24')
    w1rest += [w1_ld(f) for f in range(39, 60)]
    k.publish(h, 1, 3)
    for t in w1rest[16:24]: a(t)
    k.poll(1, 3)
    ts(a, 5)
    for q in range(4):
        for i in range(5): a(ld(q4('v', XR + (q * 5 + i) * 4), i, 32 + q, sc1=True))
    prev = []
    for q in range(4):
        ac = ACC + 20 * (q & 1)
        main = []
        for i in range(5):
            for t in range(5):
                c = '0' if i == 0 else q4('v', ac + 4 * t)
                main.append(f'{MF} {q4("v", ac + 4*t)}, {wo_reg(t, i)}, {q4("v", XR + (q*5+i)*4)}, {c}')
        spread(a, main, prev + (w1rest[24 + 6 * (q - 1):30 + 6 * (q - 1)] if q >= 1 else []), lo=4, hi=22)
        prev = [f'ds_write_b128 v{20+q}, {q4("v", ac+4*t)} offset:{1024*t}' for t in range(5)] if q < 3 else []
    a(f's_lshl2_add_u32 s57, s{S_RB}, s{S_W}'); a('s_mul_i32 s57, s57, 20480'); a(f's_add_u32 s57, s57, {WS_X1G}')
    frag_offsets(a, 57, 58, 3)
    a('v_lshlrev_b32 v38, 6, v38'); a(f's_lshl_b32 s59, s{S_J}, 3'); a(f's_add_u32 s59, s59, {WS_STATS}')
    a.wait(lg=0); a.barrier()
    R = ACC + 20
    for q in range(3):
        for t in range(5): a(f'ds_read_b128 {q4("v", XR + (q*5+t)*4)}, v23 offset:{q*5120+t*1024}')
    for v, b in enumerate((GA, GG)):
        for t in range(5): a(f'ds_read_b128 v[{b+4*t}:{b+4*t+3}], v24 offset:{(20*v+4*t)*16}')
    w2s = [w2_ld(f) for f in range(60)]
    st = []; A = st.append
    for q in range(3):
        for t in range(5):
            r = XR + (q * 5 + t) * 4
            for e in (0, 2): A(f'v_pk_add_f32 v[{R+4*t+e}:{R+4*t+e+1}], v[{R+4*t+e}:{R+4*t+e+1}], v[{r+e}:{r+e+1}]')
        if q == 0:
            for e in range(10): st += unpack(X1 + 2 * e, X1 + 2 * e + 1, 10 + e)
    for e in range(10): A(f'v_pk_fma_f32 v[{X1+2*e}:{X1+2*e+1}], v[{R+2*e}:{R+2*e+1}], v[{GA+2*e}:{GA+2*e+1}], v[{X1+2*e}:{X1+2*e+1}]')
    for e in range(10): A(f'v_cvt_pk_bf16_f32 v{10+e}, v{X1+2*e}, v{X1+2*e+1}')
    for e in range(10): st += unpack(X1 + 2 * e, X1 + 2 * e + 1, 10 + e)
    for e in range(10): A(f'v_pk_mul_f32 v[{R+2*e}:{R+2*e+1}], v[{X1+2*e}:{X1+2*e+1}], v[{GG+2*e}:{GG+2*e+1}]')
    F = 80
    for e in range(10): A(f'v_cvt_pk_bf16_f32 v{F+e}, v{R+2*e}, v{R+2*e+1}')
    spread(a, st, w1rest[42:47], hi=30)
    k.stores(frag_store80(F, 57, 58))
    a(f'v_pk_add_f32 v[24:25], v[{X1}:{X1+1}], v[{X1+2}:{X1+3}]'); a(f'v_pk_mul_f32 v[26:27], v[{X1}:{X1+1}], v[{X1}:{X1+1}]')
    for e in range(1, 10):
        p = f'v[{X1+2*e}:{X1+2*e+1}]'
        if e > 1: a(f'v_pk_add_f32 v[24:25], v[24:25], {p}')
        a(f'v_pk_fma_f32 v[26:27], {p}, {p}, v[26:27]')
    a('v_add_f32 v24, v24, v25'); a('v_add_f32 v25, v26, v27')
    for sw in ('v_permlane16_swap_b32', 'v_permlane32_swap_b32'):
        a('v_mov_b32 v26, v24'); a('v_mov_b32 v27, v25')
        a(f'{sw} v24, v26'); a(f'{sw} v25, v27')
        a('v_add_f32 v24, v24, v26'); a('v_add_f32 v25, v25, v27')
    h = k.stores(['s_mov_b64 exec, 0xffff', f'buffer_store_dwordx2 v[24:25], v38, {WSR}, s59 offen', 's_mov_b64 exec, -1'])
    hst = a.vm[-1][0]
    ts(a, 6)
    for t in w1rest[47:]: a(t)
    XF = 40; NB = 6; ACC = 64; U1, T1, T = 88, 100, 112
    a('v_and_b32 v3, 1, v1'); a('v_lshlrev_b32 v3, 6, v3'); a('v_lshl_add_u32 v20, v2, 4, v3'); a(f'v_add_u32 v20, {L_GS}, v20')
    a(f'v_add_u32 v21, {L_X3}, v4'); a(f'v_add_u32 v22, {L_X3 + 40960}, v4')
    def xr(mt, s, slot):
        if mt == 4: return f'ds_read_b128 {q4("v", XF + 4*slot)}, v20 offset:{128*s}'
        return f'ds_read_b128 {q4("v", XF + 4*slot)}, v{21 + mt//2} offset:{((mt%2)*20+s)*1024}'
    PF = NB - 1
    def p3pass(mt, acb, fill, nxt=None, pre=True, lo=6, hi=56, base=0):
        if pre:
            for p in range(PF): a(xr(mt, p, (base + p) % NB))
        main = []
        for s in range(20):
            if s + PF < 20: main.append(xr(mt, s + PF, (base + s + PF) % NB))
            elif nxt is not None: main.append(xr(nxt, s + PF - 20, (base + s + PF) % NB))
            for t in range(3):
                c = '0' if s == 0 else q4('v', acb + 4 * t)
                main.append(f'{MF} {q4("v", acb + 4*t)}, {w1_reg(s*3+t)}, {q4("v", XF + 4*((base + s) % NB))}, {c}')
        spread(a, main, fill, lo=lo * 4 // 3, hi=hi * 4 // 3)
    a(f's_mul_i32 s28, s{S_W}, 5120')
    a(f's_mul_i32 s29, s{S_RB}, {4*20480}'); a('s_add_u32 s29, s29, s28'); a(f's_add_u32 s29, s29, {WS_X1G}'); a(f's_add_u32 s28, s28, {L_X3}')
    def xdma(mt):
        a(f's_add_u32 s30, s29, {mt*20480}'); a(f's_add_u32 m0, s28, {mt*20480}')
        for i in range(4): a(f'buffer_load_dwordx4 v4, {WSR}, s30 offen offset:{1024*i} sc1 lds')
        a(f's_add_u32 m0, s28, {mt*20480 + 4096}')
        return a(f'buffer_load_dwordx4 v5, {WSR}, s30 offen sc1 lds')
    p3pass(4, ACC + 12, [lambda: k.publish(hst, 2, 3)], lo=18, hi=19)
    k.poll(2, 3)
    hx = [xdma(mt) for mt in range(4)]
    C = -LOG2E
    for e in range(12):
        a(f'v_mov_b32_dpp v{U1+e}, v{ACC+12+e} quad_perm:[0,0,2,2] row_mask:0xf bank_mask:0xf')
        a(f'v_mov_b32_dpp v{T1+e}, v{ACC+12+e} quad_perm:[1,1,3,3] row_mask:0xf bank_mask:0xf')
    for e in range(12): a(f'v_mul_f32 v{T1+e}, {fl(C)}, v{T1+e}')
    a(f's_mul_i32 s52, s{S_RB}, {4*49152}'); a(f's_mul_i32 s53, s{S_J}, 6144'); a('s_add_u32 s52, s52, s53'); a(f's_add_u32 s52, s52, {WS_H1}')
    a(f's_lshr_b32 s53, s{S_W}, 1'); a('s_lshl_b32 s53, s53, 10'); a('s_add_u32 s53, s53, s52'); a('s_add_u32 s53, s53, 4096')
    a(f's_and_b32 s3, s{S_W}, 1'); a('s_lshl3_add_u32 s53, s3, s53')
    a(f's_lshl_b32 s3, s{S_W}, 10'); a('s_add_u32 s52, s52, s3')
    a(f's_mov_b32 s54, {fl(C)}')
    a(f's_lshl_b32 s30, s{S_RB}, 12'); a(f's_add_u32 s30, s30, {WS_STATS}')
    a('v_lshlrev_b32 v3, 6, v1'); a('v_lshl_add_u32 v3, v2, 4, v3')
    a.wait_id(hx[0]); a.barrier()
    ts(a, 7)
    for mt in range(4): a(f'buffer_load_dwordx4 v[{24+4*mt}:{27+4*mt}], v3, {WSR}, s30 offen offset:{1024*mt} sc1')
    M = range(4); st = []; A = st.append
    for m in M: A(f'v_add_f32 v{24+4*m}, v{24+4*m}, v{26+4*m}'); A(f'v_add_f32 v{25+4*m}, v{25+4*m}, v{27+4*m}')
    for sw in ('v_permlane16_swap_b32', 'v_permlane32_swap_b32'):
        for m in M: A(f'v_mov_b32 v{26+4*m}, v{24+4*m}'); A(f'v_mov_b32 v{27+4*m}, v{25+4*m}')
        for m in M: A(f'{sw} v{24+4*m}, v{26+4*m}'); A(f'{sw} v{25+4*m}, v{27+4*m}')
        for m in M: A(f'v_add_f32 v{24+4*m}, v{24+4*m}, v{26+4*m}'); A(f'v_add_f32 v{25+4*m}, v{25+4*m}, v{27+4*m}')
    A(f'v_mov_b32 v3, {fl(1e-5)}')
    for m in M: A(f'v_mul_f32 v{26+4*m}, s56, v{24+4*m}')
    for m in M: A(f'v_fma_f32 v{25+4*m}, v{25+4*m}, s56, v3')
    for m in M: A(f'v_fma_f32 v{25+4*m}, -v{26+4*m}, v{26+4*m}, v{25+4*m}')
    for m in M: A(f'v_max_f32 v{25+4*m}, v{25+4*m}, v3')
    for m in M: A(f'v_rsq_f32 v{24+4*m}, v{25+4*m}')
    for m in M: A(f'v_mul_f32 v{24+4*m}, s54, v{24+4*m}')
    for m in M: A(f'v_mul_f32 v{25+4*m}, -v{26+4*m}, v{24+4*m}')
    hs = {}
    def epi(mt):
        ac = ACC + 12 * (mt & 1); P = 24 + 4 * mt; l = []
        for e in range(12): l.append(f'v_fma_f32 v{T+e}, v{U1+e}, v{P+1}, v{T1+e}')
        for e in range(12): l.append(f'v_fma_f32 v{ac+e}, v{ac+e}, v{P}, v{T+e}')
        for e in range(12): l.append(f'v_exp_f32 v{T+e}, v{ac+e}')
        for e in range(12): l.append(f'v_fma_f32 v{T+e}, v{T+e}, s54, s54')
        for e in range(12): l.append(f'v_rcp_f32 v{T+e}, v{T+e}')
        for e in range(12): l.append(f'v_mul_f32 v{ac+e}, v{ac+e}, v{T+e}')
        for e in range(6): l.append(f'v_cvt_pk_bf16_f32 v{T+e}, v{ac+2*e}, v{ac+2*e+1}')
        def sto():
            hs[mt] = k.stores([f'buffer_store_dwordx4 v[{T}:{T+3}], v4, {WSR}, s52 offen', f'buffer_store_dwordx2 v[{T+4}:{T+5}], v4, {WSR}, s53 offen'])
            a('s_add_u32 s52, s52, 49152'); a('s_add_u32 s53, s53, 49152')
        l.append(sto)
        return l
    def mix(x, y):
        out = []; j = 0
        for i, t in enumerate(x):
            out.append(t)
            while j < len(y) and j * len(x) < (i + 1) * len(y): out.append(y[j]); j += 1
        return out + y[j:]
    def x4reg(q, i):
        if q == 0: return q4('v', 124 + 4 * i)
        if q == 1: return q4('v', 172 + 4 * i)
        if q == 2: return q4('v', 80 + 4 * i) if i < 11 else q4('v', 220)
        return q4('v', 224 + 4 * i) if i < 8 else q4('a', 140 + 4 * (i - 8))
    def x4ld(q): return [ld(x4reg(q, i), i, 32 + q, sc1=True) for i in range(12)]
    p3pass(0, ACC, mix(w2s[:10], []) + st, lo=2, hi=58)
    a(f's_mul_i32 s32, s{S_RB}, {4*49152}'); a(f's_mul_i32 s3, s{S_W}, 12288'); a('s_add_u32 s32, s32, s3'); a(f's_add_u32 s32, s32, {WS_H1}')
    for q in range(1, 4): a(f's_add_u32 s{32+q}, s{31+q}, 49152')
    a.wait_id(hx[3]); a.barrier()
    p3pass(1, ACC + 12, mix(epi(0), w2s[10:20]), nxt=2, base=0)
    p3pass(2, ACC, mix(epi(1), w2s[20:25] + [lambda: k.publish(hs[0], 3, 23)]), nxt=3, pre=False, base=20)
    e2 = epi(2)
    w2late = w2s[25:]
    fill3 = [lambda: k.publish(hs[1], 4, 23), k.poll_issue(3)] + e2[:40] + [lambda: k.poll_check(3, 3)] + mix(e2[40:], x4ld(0))
    def p3last():
        main = []
        for s in range(20):
            if s + PF < 20: main.append(xr(3, s + PF, (40 + s + PF) % NB))
            for t in range(3):
                c = '0' if s == 0 else q4('v', ACC + 12 + 4 * t)
                main.append(f'{MF} {q4("v", ACC + 12 + 4*t)}, {w1_reg(s*3+t)}, {q4("v", XF + 4*((40 + s) % NB))}, {c}')
            if 1 <= s <= 8: main.append(w2late[s - 1])
        spread(a, main, fill3, lo=6, hi=80)
    p3last()
    ts(a, 8)
    e3 = epi(3)
    ACC4 = 24
    st = mix(e3[:-1], w2late[8:20]) + [e3[-1], lambda: k.publish(hs[2], 5, 23), k.poll_issue(3)]
    spread(a, st, [])
    a(f's_mul_i32 s3, s{S_W}, 5120'); a('v_add_u32 v20, s3, v4'); a('v_add_u32 v21, 61440, v20')
    a(f's_mul_i32 s3, s{S_W}, 20480'); a('v_add_u32 v22, s3, v4')
    prev = []
    for q in range(4):
        ac = ACC4 + 20 * (q & 1)
        main = []
        for i in range(12):
            for t in range(5):
                c = '0' if i == 0 else q4('v', ac + 4 * t)
                main.append(f'{MF} {q4("v", ac + 4*t)}, {w2_reg(i*5+t)}, {x4reg(q, i)}, {c}')
        fill = list(prev)
        if q == 0: fill = w2late[20:] + [lambda: k.poll_check(4, 3)] + x4ld(1) + [lambda: k.publish(hs[3], 6, 23), k.poll_issue(3)]
        if q == 1: fill += [lambda: k.poll_check(5, 3)] + x4ld(2) + [k.poll_issue(3)]
        if q == 2: fill += [lambda: k.poll_check(6, 3)] + x4ld(3)
        spread(a, main, fill, lo=1 if q == 0 else 4, hi=40)
        prev = [f'ds_write_b128 v{20 if q < 3 else 21}, {q4("v", ac+4*t)} offset:{(q%3)*20480 + 1024*t}' for t in range(5)]
    GB = 124; X1 = 144
    a(f'v_lshlrev_b32 v3, 4, v2'); a(f'v_add_u32 v3, {L_OWN}, v3')
    for t in range(5): a(f'ds_read_b128 {q4("v", GB + 4*t)}, v3 offset:{(40+4*t)*16}')
    for e in range(10):
        for t in unpack(X1 + 2 * e, X1 + 2 * e + 1, 10 + e): a(t)
    for t in prev: a(t)
    ts(a, 9)
    a.wait(lg=0); a.barrier()
    RR = 172
    for q in range(4):
        for t in range(5): a(f'ds_read_b128 {q4("v", RR + (q*5+t)*4)}, v22 offset:{q*5120+t*1024}')
    for q in range(1, 4):
        for e in range(10): a(f'v_pk_add_f32 v[{RR+2*e}:{RR+2*e+1}], v[{RR+2*e}:{RR+2*e+1}], v[{RR+20*q+2*e}:{RR+20*q+2*e+1}]')
    for e in range(10): a(f'v_pk_fma_f32 v[{X1+2*e}:{X1+2*e+1}], v[{RR+2*e}:{RR+2*e+1}], v[{GB+2*e}:{GB+2*e+1}], v[{X1+2*e}:{X1+2*e+1}]')
    a(f's_lshl2_add_u32 s49, s{S_RB}, s{S_W}'); a('s_lshl_b32 s49, s49, 4'); a('v_add_u32 v3, s49, v1')
    a('s_movk_i32 s49, 1280'); a('v_mul_lo_u32 v3, v3, s49'); a('v_lshl_add_u32 v3, v2, 3, v3')
    for t in range(5):
        for e in (2 * t, 2 * t + 1): a(f'v_cvt_pk_bf16_f32 v{10+e}, v{X1+2*e}, v{X1+2*e+1}')
        a(f'buffer_store_dwordx2 v[{10+2*t}:{11+2*t}], v3, s[{S_O}:{S_O+3}], s61 offen offset:{32*t}')
    gen1.epilogue(a, 'p1')
    for t in k.tail: a.raw(t)
    return LDS_SIZE
def k0z(a):
    gen1.K0_EXTRA = True
    return gen1.k0(a)
if __name__ == '__main__':
    gen1.build([('k0_kernel', k0z), ('m_kernel', main_kernel)], sys.argv[1])
```

```python
import sys, struct
from asmfw import *
import gen1
from gen1 import WS_MODP, WS_STATS, WS_WQ, WS_WO, WS_W1, WS_W2, WS_OF, WS_X1G, WS_H1, MF, LOG2E, fl, unpack, srd, S_WS, S_X, S_O, S_RB, S_J, S_W, ts, tsc, ts_flush
WSR = f's[{S_WS}:{S_WS+3}]'
WS_FL = 0x40000
WS_XID = 0x44000
S_FAST = 23
S_E = 24
FULL = (1 << 64) - 1
OPT = sys.argv[2] if len(sys.argv) > 2 else ''
L_DUMP = 102400; L_PERM = 147456
L_MODL = L_PERM; L_GS = L_PERM + 5120; L_OWN = L_GS + 2560
L_X3 = 65536
LDS_SIZE = 163840
class K:
    def __init__(s, a): s.a = a; s.tail = []; s.nl = 0
    def setexec(s, m):
        s.a(f's_mov_b32 exec_lo, {hex(m & 0xffffffff)}'); s.a(f's_mov_b32 exec_hi, {hex(m >> 32)}')
    def stores(s, lst):
        a = s.a; s.nl += 1; n = s.nl
        a(f's_cmp_eq_u32 s{S_FAST}, 0'); a(f's_cbranch_scc1 SLOW{n}')
        h = None; n0 = len(a.out)
        for t in lst: h = a(t)
        assert len(a.out) - n0 == len(lst), a.out[n0:]
        a.label(f'RET{n}')
        s.tail.append(f'SLOW{n}:\n' + ''.join(f'  {t}{" sc1" if t.startswith("buffer") else ""}\n' for t in lst) + f'  s_branch RET{n}')
        return h
    def publish(s, h, val, vt):
        s.a(f's_add_u32 s72, s{S_E}, {val}'); s.a(f'v_mov_b32 v{vt}, s72')
        s.a.wait_id(h)
        s.stores([f'buffer_store_dword v{vt}, off, {WSR}, s26'])
    def spin_tail(s, n, val, vt):
        s.tail.append(f'''SPIN{n}:
  s_mov_b32 s72, 0x8000
SPINL{n}:
  buffer_load_dword v{vt}, v9, {WSR}, s27 offen sc1
  s_waitcnt vmcnt(0)
  v_subrev_u32 v{vt}, s{S_E}, v{vt}
  v_add_u32 v{vt}, {-val}, v{vt}
  v_cmp_gt_u32 vcc, 8, v{vt}
  s_sub_u32 s72, s72, 1
  s_cbranch_scc1 PDONE{n}
  s_cmp_eq_u64 vcc, -1
  s_cbranch_scc0 SPINL{n}
  s_branch PDONE{n}''')
    def poll(s, val, vt):
        a = s.a; s.nl += 1; n = s.nl
        a.wait(lg=0)
        if True:
            a(f's_branch SPIN{n}')
        else:
            a(f's_cmp_eq_u32 s{S_FAST}, 0'); a(f's_cbranch_scc1 SPIN{n}')
            a('s_mov_b32 s72, 0x8000')
            a.label(f'POLL{n}')
            a('s_load_dwordx8 s[64:71], s[24:25], 0 glc')
            a('s_sub_u32 s72, s72, 1'); a(f's_cbranch_scc1 PDONE{n}')
            a.wait(lg=0)
            a('s_min_u32 s64, s64, s65'); a('s_min_u32 s66, s66, s67'); a('s_min_u32 s68, s68, s69'); a('s_min_u32 s70, s70, s71')
            a('s_min_u32 s64, s64, s66'); a('s_min_u32 s68, s68, s70'); a('s_min_u32 s64, s64, s68')
            a(f's_cmp_ge_u32 s64, {val}'); a(f's_cbranch_scc0 POLL{n}')
        a.label(f'PDONE{n}')
        a.fwait('lgkmcnt(0)')
        s.spin_tail(n, val, vt)
    def poll_issue(s, vt): return f'buffer_load_dword v{vt}, v9, {WSR}, s27 offen sc1'
    def poll_check(s, val, vt):
        a = s.a; s.nl += 1; n = s.nl
        a(f's_add_u32 s72, s{S_E}, {val}'); a(f'v_subrev_u32 v{vt}, s72, v{vt}'); a(f'v_cmp_gt_u32 vcc, 8, v{vt}'); a('s_nop 3')
        a('s_cmp_eq_u64 vcc, -1'); a(f's_cbranch_scc0 SPIN{n}')
        a.label(f'PDONE{n}')
        s.spin_tail(n, val, vt)
def spread(a, main, fill, lo=0, hi=None):
    n = len(main); hi = n if hi is None else hi
    fi = 0; m = len(fill)
    def em(x):
        if callable(x): x()
        else: a(x)
    for i, t in enumerate(main):
        em(t)
        if i >= lo:
            tgt = min(m, -(-m * (i - lo + 1) // max(1, hi - lo)))
            while fi < tgt: em(fill[fi]); fi += 1
    while fi < m: em(fill[fi]); fi += 1
def frag_offsets(a, sb, s2, st):
    a(f's_lshr_b32 s{st}, s{S_J}, 1'); a(f's_mul_i32 s{st}, s{st}, 5120'); a(f's_add_u32 s{sb}, s{sb}, s{st}')
    a(f's_and_b32 s{st}, s{S_J}, 1')
    a(f's_lshl3_add_u32 s{s2}, s{st}, s{sb}'); a(f's_add_u32 s{s2}, s{s2}, 4096')
    a(f's_lshl_b32 s{st}, s{st}, 11'); a(f's_add_u32 s{sb}, s{sb}, s{st}')
def frag_store80(F, sb, s2):
    return [f'buffer_store_dwordx4 v[{F}:{F+3}], v4, {WSR}, s{sb} offen',
            f'buffer_store_dwordx4 v[{F+4}:{F+7}], v4, {WSR}, s{sb} offen offset:1024',
            f'buffer_store_dwordx2 v[{F+8}:{F+9}], v4, {WSR}, s{s2} offen']
def ld(reg, s, soff, srd_=WSR, sc1=False):
    return f'buffer_load_dwordx4 {reg}, v{4 + s // 4}, {srd_}, s{soff} offen offset:{1024 * (s % 4)}' + (' sc1' if sc1 else '')
def q4(k, b): return f'{k}[{b}:{b+3}]'
RING = 9
def wq_reg(s, sl): return q4('a', 16 * (s % RING) + 4 * sl)
def wo_reg(t, i): return q4('a', 156 + 4 * (i * 5 + t))
def w1_reg(f): return q4('a', 4 * f) if f < 39 else q4('v', 172 + 4 * (f - 39))
def w2_reg(f): return q4('a', 156 + 4 * f) if f < 25 else q4('a', 4 * (f - 25))
def wq_ld(s, sl): return ld(wq_reg(s, sl), s, 32 + sl, 's[12:15]' if sl == 2 else WSR, True)
def wo_ld(t, i): return ld(wo_reg(t, i), i, 36 + t, WSR, True)
def w1_ld(f): return ld(w1_reg(f), f // 3, 41 + f % 3, WSR, True)
def w2_ld(f): return ld(w2_reg(f), f // 5, 44 + f % 5, WSR, True)


WS_EP = 0x48000; WS_FA = 0x49000; WS_FB = 0x4A000
S_E = 24
L_ST = L_DUMP; L_MR = L_DUMP + 28672
def opt(name, d):
    for o in OPT.split(','):
        if o.startswith(name + '='): return int(o.split('=')[1])
    return d
NXE = opt('nxe', 3); PUBE = opt('pube', 0)
TS = {n: i for i, n in enumerate(('s', 'dec', 'ka', 'b1', 'st', 'pub', 'xi', 'x0', 'x4', 'ln') if 'traceG' in OPT else ('s', 'ln', 'b2', 'pi', 'mf', 'vp', 'pw', 'fa', 'poll', 'bar') if 'traceH' in OPT else ('s', 'b1', 'pub', 'ln', 'b2', 'poll', 'bar', 'p1', 'p1e', 'att') if 'traceF' in OPT else ('s', 'bar', 'p1', 'p1e', 'att', 'p2', 'p2e', 'p3', 'p4', 'p4e'))}
def tn(a, n):
    if n in TS: ts(a, TS[n])
XN = 40
def pairs(a, st, n, dA, dB, t):
    mg, ta, tb = (13108, 0x47520, 0x98631) if n == 5 else (10923, 0x829630, 0xb5a741)
    a(f's_mul_i32 s{dA}, s{st}, {mg}'); a(f's_lshr_b32 s{dA}, s{dA}, 16'); a(f's_mul_i32 s{dB}, s{dA}, {n}')
    a(f's_sub_u32 s{t}, s{st}, s{dB}'); a(f's_lshl_b32 s{t}, s{t}, 2')
    a(f's_lshr_b32 s{dA}, {hex(ta)}, s{t}'); a(f's_and_b32 s{dA}, s{dA}, 15'); a(f's_lshl1_add_u32 s{dA}, s{dB}, s{dA}')
    a(f's_lshr_b32 s{t}, {hex(tb)}, s{t}'); a(f's_and_b32 s{t}, s{t}, 15'); a(f's_lshl1_add_u32 s{dB}, s{dB}, s{t}')
def front(a, k, var):
    TST = 20480 if var == 'A' else 49152
    def perm_src(x, st, n, stride, vd, so, colb):
        pairs(x, st, n, 30, 31, 3)
        x('s_sub_u32 s31, s31, s30'); x(f's_mul_i32 s31, s31, {16*stride}'); x(f's_lshl2_add_u32 s30, s30, s{S_W}')
        x(f's_mul_i32 s{so}, s30, {4*stride}'); x(f's_add_u32 s{so}, s{so}, s{colb}')
        x('v_bfe_u32 v3, v0, 3, 2'); x(f's_movk_i32 s3, {stride}'); x(f'v_mad_u32_u24 v{vd}, v3, s3, v5')
        x('v_lshrrev_b32 v3, 5, v0'); x(f'v_mad_u32_u24 v{vd}, v3, s31, v{vd}')
    def dec_u():
        a(f's_mul_i32 s47, s{S_W}, 7168'); a(f's_add_u32 s47, s47, {L_ST}'); a('s_mov_b32 s67, 0x20000')
        a('v_and_b32 v5, 7, v0'); a('v_lshlrev_b32 v5, 4, v5')
        if var == 'A':
            a('s_cmp_ge_u32 s2, 120'); a('s_cbranch_scc1 DEC_WO')
            a('s_mul_i32 s28, s2, 10923'); a('s_lshr_b32 s28, s28, 16'); a('s_mul_i32 s29, s28, 6'); a('s_sub_u32 s29, s2, s29')
            a(f's_lshl2_add_u32 s33, s28, s{S_W}')
            a(f's_mul_i32 s33, s33, {8*3840}'); a('s_mul_i32 s3, s29, 640'); a('s_add_u32 s33, s33, s3')
            a('v_lshrrev_b32 v3, 3, v0'); a('s_movk_i32 s3, 3840'); a('v_mad_u32_u24 v33, v3, s3, v5'); a(f's_mov_b32 s66, {640*3840}')
            a.label('DEC_WO_RET')
            x = Asm()
            x('s_sub_u32 s28, s2, 120'); x('s_and_b32 s29, s28, 1'); x('s_lshr_b32 s28, s28, 1')
            x('s_mul_i32 s48, s29, 640'); perm_src(x, 28, 5, 1280, 33, 33, 48); x(f's_mov_b32 s66, {640*1280}')
            k.tail.append('DEC_WO:\n' + x.text() + '  s_branch DEC_WO_RET')
        else:
            a('s_sub_u32 s28, s2, 160'); a('s_lshr_b32 s28, s28, 1'); a('s_and_b32 s29, s2, 1')
            a('s_mul_i32 s48, s29, 640'); perm_src(a, 28, 6, 1280, 33, 33, 48); a(f's_mov_b32 s66, {1536*1280}')
    def dec_u2():
        a('s_movk_i32 s3, 7168'); a('v_and_b32 v3, 3, v1'); a('v_lshlrev_b32 v3, 3, v3'); a('v_mad_u32_u24 v245, v2, s3, v3')
        a('v_lshrrev_b32 v3, 2, v1'); a('v_lshl_add_u32 v245, v3, 7, v245')
        a(f's_lshl_b32 s3, s{S_W}, 5'); a(f's_add_u32 s3, s3, {L_ST}'); a('v_add_u32 v245, s3, v245')
        if var == 'A':
            a('s_cmp_ge_u32 s2, 120')
            a(f's_mov_b32 s34, {WS_WQ}'); a(f's_cselect_b32 s34, {WS_WO}, s34')
            a(f's_mov_b32 s35, {WS_FA}'); a(f's_cselect_b32 s35, {WS_FA + 2048}, s35')
            a('s_and_b32 s3, s29, 1'); a('s_mul_i32 s3, s3, 3'); a('s_lshr_b32 s48, s29, 1'); a('s_add_u32 s3, s3, s48')
            a('s_mul_i32 s3, s3, 20'); a('s_add_u32 s3, s3, s28'); a(f's_lshl2_add_u32 s3, s3, s{S_W}'); a('s_lshl2_add_u32 s35, s3, s35')
        else: a(f's_mov_b32 s34, {WS_W2}')
        a('s_mul_i32 s3, s29, 20'); a(f's_add_u32 s3, s3, s{S_W}')
        a(f's_mul_i32 s3, s3, {TST}'); a('s_add_u32 s34, s34, s3'); a('s_lshl_b32 s3, s28, 10'); a('s_add_u32 s34, s34, s3')
    def dec_v():
        a('s_min_u32 s48, s2, 239'); a('s_mul_i32 s28, s48, 5462'); a('s_lshr_b32 s28, s28, 16'); a('s_mul_i32 s3, s28, 12'); a('s_sub_u32 s48, s48, s3')
        a(f's_lshl3_add_u32 s43, s48, s{S_W}')
        a('s_mul_i32 s43, s43, 20480'); a('s_lshl_b32 s3, s28, 10'); a('s_add_u32 s43, s43, s3'); a(f's_add_u32 s43, s43, {WS_W1}')
        a('s_lshl_b32 s48, s48, 8'); perm_src(a, 28, 5, 3072, 34, 42, 48)
        a(f's_mov_b32 s70, {640*3072}'); a('s_mov_b32 s71, 0x20000')
    def dec_m():
        a('v_lshrrev_b32 v36, 1, v0'); a('v_and_b32 v37, 1, v0'); a('v_lshlrev_b32 v37, 4, v37')
        a('s_and_b32 s44, s2, 7'); a(f's_lshl3_add_u32 s44, s{S_J}, s44')
        if var == 'A': a('s_add_u32 s44, s44, 24'); a('s_min_u32 s44, s44, 59')
        else: a('s_sub_u32 s44, s44, 40')
        a('s_bfe_u32 s62, s2, 0x20003'); a('s_lshl2_add_u32 s45, s44, s62'); a('s_lshl_b32 s63, s45, 5')
        a('s_lshl_b32 s62, s62, 3'); a('s_mov_b32 s60, 0x21043210'); a('s_movk_i32 s61, 0x043'); a('s_lshr_b64 s[60:61], s[60:61], s62')
        a(f's_mul_i32 s3, s{S_W}, 160'); a('v_add_u32 v36, s3, v36')
        a('s_movk_i32 s3, 7680'); a('v_mad_u32_u24 v35, v36, s3, v37'); a('v_add_u32 v35, s63, v35'); a('v_lshlrev_b32 v36, 1, v36')
        a('s_movk_i32 s54, 1280'); a('s_mov_b32 s55, 0x20000'); a(f's_mov_b32 s58, {640*7680}'); a('s_mov_b32 s59, 0x20000')
        for i in range(5): a(f's_bfe_u32 s{74+i}, s60, {hex(0x40000 + 4*i)}'); a(f's_lshl_b32 s{74+i}, s{74+i}, 6')
    def dec_m2():
        a(f's_sub_u32 s3, s44, {40 if var == "A" else 10}'); a('s_cmp_lt_u32 s3, 10'); a('s_cselect_b32 s46, 1.0, 0')
        a('s_lshl_b32 s45, s45, 6'); a(f's_add_u32 s45, s45, {WS_MODP}')
    def dec_x(rng):
        if 0 in rng:
            a(f's_lshl_b32 s3, s{S_J}, 2'); a('s_mov_b32 s50, 0x21043210'); a('s_movk_i32 s51, 0x1043'); a('s_lshr_b64 s[50:51], s[50:51], s3'); a('s_mov_b32 s73, s50')
            a(f's_lshl_b32 s3, s{S_RB}, 6'); a(f's_mul_i32 s79, s{S_W}, 20'); a('s_add_u32 s3, s3, s79'); a('s_sub_u32 s3, s3, 16')
            a('s_movk_i32 s51, 1280'); a('v_add_u32 v244, s3, v2'); a('v_lshlrev_b32 v39, 4, v1')
            a(f's_mov_b32 s{S_X+2}, {2048*1280}'); a(f's_mov_b32 s{S_X+3}, 0x20000')
        for i in rng:
            a(f's_bfe_u32 s3, s73, {hex(0x40000 + 4*i)}'); a('v_lshl_add_u32 v3, s3, 2, v244'); a('v_max_i32 v3, 0, v3'); a(f'v_mad_u32_u24 v{240+i}, v3, s51, v39')
    H = {}
    def uload():
        l = ['s_cmp_ge_u32 s2, 120', 's_cselect_b64 s[64:65], s[38:39], s[36:37]'] if var == 'A' else ['s_mov_b64 s[64:65], s[40:41]']
        l = ['\n'.join(l + ['s_and_b32 s65, s65, 0xffff'])]
        for t in range(5): l.append(f's_add_u32 m0, s47, {t*896}\nbuffer_load_dwordx4 v33, s[64:67], s33 offen offset:{128*t} lds')
        return l + [lambda: H.update(u=a.vm[-1][0])]
    def vload():
        l = ['s_and_b32 s69, s69, 0xffff']
        for t in range(2): l.append(f's_add_u32 m0, s47, {5120 + t*896}\nbuffer_load_dwordx4 v34, s[68:71], s42 offen offset:{128*t} lds')
        return l + [lambda: H.update(v=a.vm[-1][0])]
    def mload():
        l = ['s_and_b32 s53, s53, 0xffff\ns_and_b32 s57, s57, 0xffff']
        for i in range(5): l.append(f'buffer_load_ushort v{28+i}, v36, s[52:55], s{74+i} offen sc1')
        for i in range(5): l.append(f's_mul_i32 s{74+i}, s{74+i}, 3840\nbuffer_load_dwordx4 v[{8+4*i}:{11+4*i}], v35, s[56:59], s{74+i} offen')
        return l
    def xload(i):
        return [f'buffer_load_dwordx4 v[{XN+(i*5+u)*8+4}:{XN+(i*5+u)*8+7}], v{240+i}, s[{S_X}:{S_X+3}], 0 offen offset:{256*u}' for u in range(5)]
    def uproc(n, off, R, sd, tst, v1):
        v2, o2, tst = v1, 512, 4 * tst
        for t in range(n):
            a(f'ds_read_b64_tr_b16 a[{R+4*t}:{R+4*t+1}], v{v1} offset:{off + 1024*t}')
            a(f'ds_read_b64_tr_b16 a[{R+4*t+2}:{R+4*t+3}], v{v2} offset:{off + 1024*t + o2}')
        for t in range(n):
            h = a(f'buffer_store_dwordx4 a[{R+4*t}:{R+4*t+3}], v4, {WSR}, s{sd} offen sc1')
            if t < n - 1: a(f's_add_u32 s{sd}, s{sd}, {tst}')
        return h
    AC = 246
    def silu():
        for i in range(5): a(f'v_lshlrev_b32 v{28+i}, 16, v{28+i}')
        for i in range(5): a(f'v_mul_f32 v{AC+i}, {fl(-LOG2E)}, v{28+i}')
        for i in range(5): a(f'v_exp_f32 v{AC+i}, v{AC+i}')
        for i in range(5): a(f'v_add_f32 v{AC+i}, 1.0, v{AC+i}')
        for i in range(5): a(f'v_rcp_f32 v{AC+i}, v{AC+i}')
        for i in range(5): a(f'v_mul_f32 v{28+i}, v{28+i}, v{AC+i}')
        for i in range(5): a(f'v_cvt_pk_bf16_f32 v{28+i}, v{28+i}, 0')
    def mdot():
        for i in range(5):
            a(f'v_lshlrev_b32 v3, 16, v{28+i}')
            if i == 0: tn(a, 'b1' if var == 'B' else 'b2')
            for q in range(4):
                for e, sv in ((0, 28 + i), (1, 3)):
                    r = AC + 2 * q + e
                    a(f'v_dot2_f32_bf16 v{r}, v{8+4*i+q}, v{sv}, {"0" if i == 0 else f"v{r}"}')
    def mfin():
        for q in range(4): a(f'v_permlane32_swap_b32 v{AC+q}, v{AC+4+q}')
        for q in range(4): a(f'v_add_f32 v{AC+q}, v{AC+q}, v{AC+4+q}')
        for q in range(2): a(f'v_permlane16_swap_b32 v{AC+q}, v{AC+2+q}')
        for q in range(2): a(f'v_add_f32 v{AC+q}, v{AC+q}, v{AC+2+q}')
        a('v_and_b32 v3, 1, v0'); a('v_lshlrev_b32 v3, 5, v3'); a('v_lshl_add_u32 v3, v2, 3, v3')
        a(f's_lshl_b32 s3, s{S_W}, 6'); a(f's_add_u32 s3, s3, {L_MR}')
        for dp in ('row_ror:8', 'row_ror:4', 'row_ror:2'):
            for q in range(2): a(f'v_add_f32_dpp v{AC+q}, v{AC+q}, v{AC+q} {dp} row_mask:0xf bank_mask:0xf')
            if dp == 'row_ror:8': a('v_add_u32 v3, s3, v3')
            if dp == 'row_ror:4': a(f'v_lshlrev_b32 v{AC+7}, 2, v1'); a(f'v_add_u32 v{AC+6}, {L_MR}, v{AC+7}')
        a(f'ds_write_b64 v3, v[{AC}:{AC+1}]')
        a.wait(lg=0); a.barrier()
        k.nl += 1; n = k.nl
        a(f'ds_read2_b32 v[{AC}:{AC+1}], v{AC+6} offset0:0 offset1:16'); a(f'ds_read2_b32 v[{AC+2}:{AC+3}], v{AC+6} offset0:32 offset1:48')
        a(f's_and_b32 s3, s{S_E}, 0xffff')
        a(f's_cmp_eq_u32 s{S_W}, 0'); a('s_cselect_b32 s48, 16, 0')
        a(f'v_cmp_gt_u32 vcc, s48, v0'); a(f'v_mov_b32 v{AC+6}, 0x80000000'); a(f'v_cndmask_b32 v{AC+7}, v{AC+6}, v{AC+7}, vcc')
        a(f'v_add_f32 v{AC}, v{AC}, v{AC+1}'); a(f'v_add_f32 v{AC+2}, v{AC+2}, v{AC+3}'); a(f'v_add_f32 v{AC}, v{AC}, v{AC+2}')
        a(f'v_cvt_pk_bf16_f32 v{AC}, 0, v{AC}'); a(f'v_add_f32 v{AC}, s46, v{AC}'); a(f'v_cvt_pk_bf16_f32 v{AC}, 0, v{AC}'); a(f'v_or_b32 v{AC}, s3, v{AC}')
        return a(f'buffer_store_dword v{AC}, v{AC+7}, {WSR}, s45 offen sc1')
    def em(l): spread(a, l, [])
    def eload(): a(f's_and_b32 s{S_WS+1}, s{S_WS+1}, 0xffff'); a(f's_mov_b32 s3, {WS_EP}'); a(f'buffer_load_dword v38, off, {WSR}, s3 sc1')
    def getE(): a(f'v_readfirstlane_b32 s{S_E}, v38'); a(f's_add_u32 s{S_E}, s{S_E}, 0x9E3779B0')
    def pubA(): getE(); a(f'v_mov_b32 v3, s{S_E}'); a.wait_id(H['st']); a(f'buffer_store_dword v3, off, {WSR}, s35 sc1'); tn(a, 'pub')
    def misc():
        a(f's_mov_b32 s{S_O+2}, {2048*1280}'); a(f's_mov_b32 s{S_O+3}, 0x20000'); a(f's_and_b32 s{S_O+1}, s{S_O+1}, 0xffff')
        a('v_lshlrev_b32 v4, 4, v0')
        for q in range(1, 4): a(f'v_add_u32 v{4+q}, {4096*q}, v4')
    def stats(i):
        S, Q = 250, 252; l = []
        for u in range(5):
            b = XN + (i * 5 + u) * 8
            for e in range(4): l += unpack(b + 2 * e, b + 2 * e + 1, b + 4 + e)
            for e in range(4):
                p = f'v[{b+2*e}:{b+2*e+1}]'
                l.append(f'v_pk_mul_f32 v[{Q}:{Q+1}], {p}, {p}' if u == 0 and e == 0 else f'v_pk_fma_f32 v[{Q}:{Q+1}], {p}, {p}, v[{Q}:{Q+1}]')
                if u == 0 and e == 1: l.append(f'v_pk_add_f32 v[{S}:{S+1}], v[{b}:{b+1}], {p}')
                elif not (u == 0 and e == 0): l.append(f'v_pk_add_f32 v[{S}:{S+1}], v[{S}:{S+1}], {p}')
        return l + [f'v_add_f32 v{240+2*i}, v{S}, v{S+1}', f'v_add_f32 v{241+2*i}, v{Q}, v{Q+1}']
    if var == 'A':
        dec_u(); dec_x([0]); tn(a, 'dec'); a.wait(lg=0); tn(a, 'ka')
        em(uload()); eload(); a(f's_and_b32 s{S_X+1}, s{S_X+1}, 0xffff'); em(xload(0))
        a.raw('@SPLIT')
        dec_u2(); dec_x([1, 2, 3, 4]); dec_v(); misc(); dec_m(); dec_m2()
        a.wait_id(H['u']); tn(a, 'b1'); a.barrier()
        H['st'] = uproc(5, 0, 156, 34, TST, 245); tn(a, 'st')
        em(xload(1))
        b2 = mload() + vload()
    else:
        dec_m(); tn(a, 'dec'); a.wait(lg=0); tn(a, 'ka')
        em(mload()); eload()
        a.raw('@SPLIT')
        dec_m2(); dec_x([0, 1, 2, 3, 4]); a(f's_and_b32 s{S_X+1}, s{S_X+1}, 0xffff')
        dec_u(); dec_u2(); dec_v(); misc()
        silu(); em(xload(0) + xload(1))
        mdot(); tn(a, 'st'); getE(); mfin(); tn(a, 'pub')
        b2 = uload() + vload()
    a('v_mov_b32 v37, v245')
    spread(a, stats(0), xload(2), lo=40, hi=78)
    tn(a, 'x0')
    if var == 'A': pubA()
    spread(a, stats(1), xload(3) + xload(4), hi=78)
    tn(a, 'xi')
    em(stats(2))
    st = stats(3) + stats(4); A = st.append
    A(lambda: tn(a, 'x4'))
    for ror in (8, 4, 2, 1):
        for c in range(240, 250): A(f'v_add_f32_dpp v{c}, v{c}, v{c} row_ror:{ror} row_mask:0xf bank_mask:0xf')
    spread(a, st, b2, lo=opt('b2lo', 0), hi=opt('b2hi', 160))
    a(f's_mov_b32 s56, {fl(1/640)}'); a(f'v_mov_b32 v3, {fl(1e-5)}')
    for i in range(5): a(f'v_mul_f32 v{250+i}, s56, v{240+2*i}')
    for i in range(5): a(f'v_fma_f32 v{241+2*i}, v{241+2*i}, s56, v3')
    for i in range(5): a(f'v_fma_f32 v{241+2*i}, -v{250+i}, v{250+i}, v{241+2*i}')
    for i in range(5): a(f'v_max_f32 v{241+2*i}, v{241+2*i}, v3')
    for i in range(5): a(f'v_rsq_f32 v{240+2*i}, v{241+2*i}')
    for i in range(5): a(f'v_mul_f32 v{241+2*i}, -v{250+i}, v{240+2*i}')
    for i in range(5):
        P = 240 + 2 * i
        for u in range(5):
            b = XN + (i * 5 + u) * 8
            for e in range(4):
                p = f'v[{b+2*e}:{b+2*e+1}]'
                a(f'v_pk_fma_f32 {p}, {p}, v[{P}:{P+1}], v[{P}:{P+1}] op_sel:[0,0,1] op_sel_hi:[1,0,1]')
    hu, hv = H['u'], H['v']
    a(f's_mul_i32 s31, s{S_W}, 1280'); a('v_add_u32 v254, s31, v4'); a('v_add_u32 v255, s31, v39'); a('v_add_u32 v255, 1024, v255')
    a('v_min_u32 v36, 59, v0'); a('v_lshlrev_b32 v36, 4, v36')
    a(f's_lshr_b32 s50, s{S_J}, 2'); a('s_mul_i32 s50, s50, 960'); a(f's_add_u32 s50, s50, {WS_FA}'); a(f's_mov_b32 s49, {WS_MODP}')
    tn(a, 'ln')
    if var == 'A': silu(); mdot()
    for t in POLLS: hp = a(t)
    tn(a, 'pi')
    if var == 'A':
        a.wait_id(hv); mfin()
    else:
        a.wait_id(hv); tn(a, 'b2'); a.barrier()
        uproc(5, 0, 156, 34, TST, 37)
    tn(a, 'mf')
    h2 = uproc(2, 5120, 176, 43, 20480, 37)
    a('v_lshrrev_b32 v3, 2, v1'); a('v_lshlrev_b32 v3, 10, v3'); a('v_and_b32 v247, 3, v1'); a('v_lshl_add_u32 v3, v247, 8, v3')
    a('v_and_b32 v247, 7, v1'); a('s_movk_i32 s30, 20480'); a('v_add_u32 v250, s79, v2')
    for i in range(5):
        a(f's_bfe_u32 s3, s73, {hex(0x40000 + 4*i)}'); a('v_lshl_add_u32 v248, s3, 2, v250')
        a('v_and_b32 v249, 15, v248'); a('v_xor_b32 v249, v249, v247'); a('v_lshrrev_b32 v248, 4, v248')
        a('v_mad_u32_u24 v248, v248, s30, v3'); a(f'v_lshl_add_u32 v{240+i}, v249, 4, v248')
    a('v_lshlrev_b32 v247, 5, v1'); a(f'v_add_u32 v247, {L_MODL}, v247')
    a(f's_mul_i32 s52, s{S_J}, 5'); a(f's_add_u32 s53, s52, s{S_W}')
    a('s_add_u32 s32, s53, 40'); a('s_add_u32 s33, s53, 80'); a('s_mov_b32 s35, s53')
    a(f's_lshl_b32 s54, s{S_W}, 3'); a('s_lshr_b32 s34, 0x04542c, s54'); a('s_and_b32 s34, s34, 0xff'); a('s_add_u32 s34, s34, s52')
    for q in range(4):
        a(f's_mul_i32 s{32+q}, s{32+q}, 20480'); a(f's_add_u32 s{32+q}, s{32+q}, {WS_WQ}')
    a(f's_mov_b64 s[12:13], s[{S_WS}:{S_WS+1}]'); a(f's_cmp_eq_u32 s{S_W}, 3'); a(f's_cselect_b32 s14, 0, s{S_WS+2}'); a('s_mov_b32 s15, 0x20000')
    a(f'v_add_u32 v24, {L_MODL}, v254'); a(f'v_add_u32 v25, {L_MODL}, v255')
    tn(a, 'vp')
    a.wait_id(hp); tn(a, 'pw'); a.wait(lg=0)
    return h2
POLLS = [f'buffer_load_dwordx4 v[16:19], v36, {WSR}, s50 offen sc1', f'buffer_load_dwordx4 v[8:11], v254, {WSR}, s49 offen sc1', f'buffer_load_dwordx4 v[12:15], v255, {WSR}, s49 offen sc1']
def main_kernel(a):
    k = K(a)
    tn(a, 's')
    a('s_cmp_ge_u32 s2, 256'); a('s_cbranch_scc1 EXIT_p0')
    for r, o in ((64 - 28, None), (S_WS, 80), (52, 48), (56, 56), (S_X, 0), (40, 40), (68, 32), (S_O, 64)):
        a('s_load_dwordx4 s[36:39], s[0:1], 8' if o is None else f's_load_dwordx2 s[{r}:{r+1}], s[0:1], {o}')
    a('v_lshrrev_b32 v2, 6, v0'); a('v_and_b32 v0, 63, v0'); a(f'v_readfirstlane_b32 s{S_W}, v2')
    a('v_and_b32 v1, 15, v0'); a('v_lshrrev_b32 v2, 4, v0')
    a('s_and_b32 s3, s2, 7'); a(f's_lshr_b32 s{S_J}, s2, 5'); a(f's_bfe_u32 s{S_RB}, s2, 0x20003')
    a(f's_lshl2_add_u32 s{S_RB}, s3, s{S_RB}')
    a(f's_mov_b32 s{S_WS+2}, 0x10000000'); a(f's_mov_b32 s{S_WS+3}, 0x20000')
    a('s_cmp_ge_u32 s2, 160'); a('s_cbranch_scc1 FRONT_B')
    import copy
    b = Asm(); b.vm = copy.deepcopy(a.vm); b.lg = copy.deepcopy(a.lg); b.n = a.n; b.hist = list(a.hist)
    kb = K(b); kb.nl = 500
    front(b, kb, 'B'); b.wait(lg=0)
    h2 = front(a, k, 'A'); a.wait(lg=0)
    b1, b2 = b.text().split('@SPLIT\n')
    a.out[a.out.index('@SPLIT')] = '  s_branch FRONT_A2\nFRONT_B:\n' + b1 + '  s_branch FRONT_B2\nFRONT_A2:'
    k.tail.append('FRONT_B2:\n' + b2 + '  s_branch JOIN')
    a.label('JOIN')
    wqs = [wq_ld(s, sl) for s in range(20) for sl in range(4)]
    fac = [f'v_xor_b32 v16, s{S_E}, v16'] + [f'v_bitop3_b32 v16, v16, s{S_E}, v{16+e} bitop3:0xf6' for e in range(1, 4)] + ['v_cmp_eq_u32 vcc, 0, v16']
    for t in fac: a(t)
    a('s_nop 3'); a('s_cmp_eq_u64 vcc, -1'); a('s_cbranch_scc0 FASPIN')
    a.label('FADONE')
    tn(a, 'fa')
    k.tail.append(f"""FASPIN:
  s_mov_b32 s72, 0x8000
FASPINL:
  {POLLS[0]}
  {POLLS[1]}
  {POLLS[2]}
  s_waitcnt vmcnt(0)
  {chr(10).join(fac)}
  s_sub_u32 s72, s72, 1
  s_cbranch_scc1 FADONE
  s_cmp_eq_u64 vcc, -1
  s_cbranch_scc0 FASPINL
  s_branch FADONE""")
    NW0 = opt('nw0', 16)
    chk = [f'v_xor_b32 v17, s{S_E}, v8'] + [f'v_bitop3_b32 v17, v17, s{S_E}, v{8+e} bitop3:0xf6' for e in range(1, 8)] + ['v_lshlrev_b32 v17, 16, v17', 'v_cmp_eq_u32 vcc, 0, v17']
    for t in chk: a(t)
    for t in wqs[:NW0]: a(t)
    a('s_cmp_eq_u64 vcc, -1'); a('s_cbranch_scc0 MSPIN')
    a.label('MDONE')
    k.tail.append(f"""MSPIN:
  s_mov_b32 s72, 0x8000
MSPINL:
  {POLLS[1]}
  {POLLS[2]}
  s_waitcnt vmcnt(0)
""" + ''.join(f'  {t}\n' for t in chk) + """  s_sub_u32 s72, s72, 1
  s_cbranch_scc1 MDONE
  s_cmp_eq_u64 vcc, -1
  s_cbranch_scc0 MSPINL
  s_branch MDONE""")
    for e in range(8): a(f'v_and_b32 v{8+e}, 0xffff0000, v{8+e}')
    a('ds_write_b128 v24, v[8:11]'); a('ds_write_b128 v25, v[12:15]')
    tn(a, 'poll')
    a(f's_mul_i32 s36, s{S_J}, {5*20480}'); a(f's_mul_i32 s3, s{S_W}, 5120'); a('s_add_u32 s36, s36, s3'); a(f's_add_u32 s36, s36, {WS_WO}')
    a.wait(lg=0); a.barrier()
    tn(a, 'bar')
    def gs_read(u):
        b = 8 + 16 * (u % 2); l = []
        for q in range(2):
            l.append(f'ds_read_b128 v[{b+4*q}:{b+4*q+3}], v247 offset:{512*u + 16*q}')
            l.append(f'ds_read_b128 v[{b+8+4*q}:{b+8+4*q+3}], v247 offset:{2560 + 512*u + 16*q}')
        return l
    st = gs_read(0)
    for u in range(5):
        if u < 4: st += gs_read(u + 1)
        gb = 8 + 16 * (u % 2)
        for i in range(5):
            b = XN + (i * 5 + u) * 8
            for e in range(4):
                p = f'v[{b+2*e}:{b+2*e+1}]'
                st.append(f'v_pk_fma_f32 {p}, {p}, v[{gb+8+2*e}:{gb+9+2*e}], v[{gb+2*e}:{gb+2*e+1}]')
            for e in range(4): st.append(f'v_cvt_pk_bf16_f32 v{b+e}, v{b+2*e}, v{b+2*e+1}')
            st.append(f'ds_write_b128 v{240+i}, v[{b}:{b+3}] offset:{4096*u}')
    so = []; A = so.append
    for t in range(1, 5): A(f's_add_u32 s{36+t}, s{35+t}, 20480')
    A(f's_lshl2_add_u32 s41, s{S_J}, s{S_W}'); A(f's_mul_i32 s41, s41, {3*20480}'); A(f's_add_u32 s41, s41, {WS_W1}')
    A('s_add_u32 s42, s41, 20480'); A('s_add_u32 s43, s42, 20480')
    A(f's_mul_i32 s44, s{S_J}, {5*49152}'); A(f's_mul_i32 s3, s{S_W}, 12288'); A('s_add_u32 s44, s44, s3'); A(f's_add_u32 s44, s44, {WS_W2}')
    for t in range(1, 5): A(f's_add_u32 s{44+t}, s{43+t}, 49152')
    A(f's_lshl_b32 s27, s{S_RB}, 9'); A(f's_add_u32 s27, s27, {WS_FL}')
    A(f's_lshr_b32 s3, s{S_J}, 1'); A('s_lshl_b32 s3, s3, 7'); A('s_add_u32 s26, s27, s3')
    A(f's_and_b32 s3, s{S_J}, 1'); A(f's_lshl2_add_u32 s3, s3, s{S_W}'); A('s_lshl2_add_u32 s26, s3, s26')
    A(f's_lshl_b32 s3, s{S_W}, 7'); A('s_add_u32 s27, s27, s3')
    spread(a, st, wqs[NW0:4*RING])
    a('s_getreg_b32 s3, hwreg(HW_REG_XCC_ID)'); a('s_and_b32 s3, s3, 15'); a(f's_add_u32 s25, s{S_E}, s3')
    a(f's_lshl3_add_u32 s50, s{S_RB}, s{S_J}'); a(f's_lshl2_add_u32 s50, s50, {WS_FB}')
    a(f's_cmp_eq_u32 s{S_W}, 0'); a('s_cselect_b32 s3, 0, 0x80000000'); a('v_mov_b32 v250, s25'); a('v_mov_b32 v251, s3')
    a.wait_id(h2)
    a('v_add_u32 v8, 16384, v4')
    a('v_and_b32 v9, 7, v0'); a('v_lshlrev_b32 v9, 2, v9')
    a('v_xor_b32 v3, v1, v2'); a('v_lshlrev_b32 v20, 8, v2'); a('v_lshl_add_u32 v20, v3, 4, v20')
    a('v_xor_b32 v21, 64, v20'); a('v_add_u32 v22, 61440, v20'); a('v_add_u32 v23, 61440, v21')
    a.wait(lg=0); a.barrier()
    tn(a, 'p1')
    ACC = 40; XF = 116; QR = 160
    def xread(s):
        l = []
        for mt in range(5):
            r = XF + 20 * (s % 2) + 4 * mt
            off = (mt * 20 + s) * 1024; ad = 20 + (s & 1)
            if off >= 61440: off -= 61440; ad += 2
            l.append(f'ds_read_b128 v[{r}:{r+3}], v{ad} offset:{off}')
        return l
    for t in xread(0): a(t)
    a(f'buffer_store_dword v250, v251, {WSR}, s50 offen sc1')
    side = so
    A = side.append
    A('v_lshrrev_b32 v3, 2, v1'); A('v_xor_b32 v3, v3, v2'); A('v_lshlrev_b32 v3, 3, v3'); A('v_lshl_add_u32 v3, v1, 5, v3')
    A(f's_add_u32 s57, s{S_W}, 5'); A(f's_add_u32 s58, s{S_W}, 10'); A(f's_mov_b32 s60, s{S_W}')
    A('s_lshr_b32 s59, 0x0f040e09, s54'); A('s_and_b32 s59, s59, 0xff')
    for q in range(4):
        A(f's_mul_i32 s{57+q}, s{57+q}, 2560'); A(f's_add_u32 s{57+q}, s{57+q}, {L_DUMP}'); A(f'v_add_u32 v{24+q}, s{57+q}, v3')
    A(f's_lshl_b32 s57, s{S_W}, 9'); A(f's_add_u32 s57, s57, {L_DUMP}')
    A('v_add_u32 v28, s57, v3')
    A('v_and_b32 v3, 3, v1'); A('v_xor_b32 v3, v3, v2'); A('v_lshlrev_b32 v3, 3, v3')
    A('v_and_b32 v10, 60, v0'); A('v_lshl_add_u32 v3, v10, 3, v3'); A('v_add_u32 v29, s57, v3')
    A('v_and_b32 v3, 1, v1'); A('v_cmp_eq_u32 s[74:75], 1, v3')
    A('v_lshl_add_u32 v10, v2, 2, v3'); A('v_cmp_le_u32 s[76:77], v10, v1')
    A('v_add_u32 v10, 2, v10'); A('v_cmp_le_u32 s[78:79], v10, v1')
    A('v_mov_b32 v10, 0x0c0c0100'); A('v_mov_b32 v11, 0x01000c0c'); A('v_cndmask_b32 v10, v10, v11, s[74:75]')
    A('v_mov_b32 v11, 0x0c0c0302'); A('v_mov_b32 v12, 0x03020c0c'); A('v_cndmask_b32 v11, v11, v12, s[74:75]')
    A('v_mov_b32 v12, 0x0c0c0c0c')
    A('v_cndmask_b32 v30, v10, v12, s[76:77]'); A('v_cndmask_b32 v31, v11, v12, s[78:79]')
    A('v_cndmask_b32 v32, v12, v10, s[76:77]'); A('v_cndmask_b32 v33, v12, v11, s[78:79]')
    A(f's_or_b32 s57, s{S_RB}, s{S_W}'); A('s_cmp_eq_u32 s57, 0'); A(f's_cselect_b32 s57, {fl(-1e30)}, 0')
    for q in range(4): A(f'v_mov_b32 v{34+q}, s57')
    for q in range(16): A(f'v_mov_b32 v{QR+q}, 0')
    M2 = 176; M3 = 208
    def own_loads():
        a('v_mul_u32_u24 v10, 3277, v0'); a('v_lshrrev_b32 v10, 16, v10')
        a('v_mul_u32_u24 v11, 320, v10'); a('v_sub_u32 v11, v4, v11')
        a('v_lshlrev_b32 v10, 2, v10'); a('s_movk_i32 s3, 0x5542'); a('v_lshrrev_b32 v10, v10, s3'); a('v_and_b32 v10, 15, v10')
        a('v_mul_u32_u24 v10, 2560, v10'); a('v_add_u32 v11, v10, v11')
        a(f's_mul_i32 s49, s{S_J}, 320'); a(f's_add_u32 s49, s49, {WS_MODP}')
        a(f'buffer_load_dwordx4 v[{M3}:{M3+3}], v11, {WSR}, s49 offen sc1')
        a(f's_mov_b32 s49, {WS_MODP + 1920 * 4}')
        a(f'buffer_load_dwordx4 v[{M2}:{M2+3}], v254, {WSR}, s49 offen sc1'); a(f'buffer_load_dwordx4 v[{M2+4}:{M2+7}], v255, {WSR}, s49 offen sc1')
        a(f's_lshl2_add_u32 s49, s{S_RB}, s{S_W}'); a('s_lshl_b32 s49, s49, 4'); a('v_add_u32 v38, s49, v1')
        a('s_movk_i32 s49, 1280'); a('v_mul_lo_u32 v39, v38, s49'); a('v_lshl_add_u32 v39, v2, 3, v39')
        a(f's_mul_i32 s61, s{S_J}, 160')
        for t in range(5): a(f'buffer_load_dwordx2 v[{10+2*t}:{11+2*t}], v39, s[{S_X}:{S_X+3}], s61 offen offset:{32*t}')
        a(k.poll_issue(224))
    def mod2_fin():
        a('s_mov_b32 s3, 0x07060302')
        for e in range(4): a(f'v_perm_b32 v{M2+8+e}, v{M2+2*e+1}, v{M2+2*e}, s3')
        a(f's_and_b32 s3, s{S_W}, 1'); a('s_mul_i32 s3, s3, 80')
        a(f's_cmp_ge_u32 s{S_W}, 2'); a(f's_cselect_b32 s49, {L_GS}, {L_GS}+64' if False else 's_cselect_b32 s49, 0, 64'); a(f's_add_u32 s49, s49, {L_GS}')
        a('s_mov_b32 s58, 0x65483210'); a('s_mov_b32 s59, 0x97')
        for r, src in ((0, 'v0'), (1, None)):
            if r == 0: a('v_add_u32 v226, s3, v0')
            else: a('v_add_u32 v226, s3, v1'); a('v_add_u32 v226, 64, v226')
            a('v_lshrrev_b32 v227, 2, v226')
            a('v_mul_u32_u24 v228, 6554, v227'); a('v_lshrrev_b32 v228, 16, v228')
            a('v_mul_u32_u24 v229, 10, v228'); a('v_sub_u32 v227, v227, v229'); a('v_lshlrev_b32 v227, 2, v227')
            a('v_lshrrev_b64 v[230:231], v227, s[58:59]'); a('v_and_b32 v227, 15, v230')
            a('v_lshrrev_b32 v229, 1, v227'); a('v_mad_u32_u24 v228, v228, 5, v229')
            a('v_and_b32 v227, 1, v227'); a('v_lshlrev_b32 v227, 3, v227'); a('v_lshl_add_u32 v227, v228, 7, v227')
            a('v_and_b32 v226, 3, v226'); a('v_lshl_add_u32 v227, v226, 4, v227'); a('v_add_u32 v227, s49, v227')
            a(f'ds_write_b64 v227, v[{M2+8+2*r}:{M2+9+2*r}]')
        for e in range(4): a(f'v_and_b32 v{M3+e}, 0xffff0000, v{M3+e}')
        a(f'v_add_u32 v226, {L_OWN}, v4')
        a(f'ds_write_b128 v226, v[{M3}:{M3+3}]')
    FBL = f'buffer_load_dwordx4 v[232:235], v4, {WSR}, s51 offen sc1'
    fbc = [f'v_subrev_u32 v{236+e}, s{S_E}, v{232+e}' for e in range(4)] + ['v_max3_u32 v236, v236, v237, v238', 'v_max_u32 v236, v236, v239', 'v_cmp_gt_u32 vcc, 16, v236']
    def fb_issue(): a(f's_mov_b32 s51, {WS_FB}'); a(FBL)
    def fb_check():
        for t in fbc: a(t)
        a('s_nop 3'); a('s_cmp_eq_u64 vcc, -1'); a('s_cbranch_scc0 FBSPIN')
        a.label('FBDONE')
        a('v_xor_b32 v236, s25, v232')
        for e in range(1, 4): a(f'v_bitop3_b32 v236, v236, s25, v{232+e} bitop3:0xf6')
        a('v_cmp_eq_u32 vcc, 0, v236'); a(f's_lshl_b32 s3, s{S_RB}, 1'); a(f'v_mov_b32 v236, s{S_E}'); a(f's_or_b32 s49, s2, s{S_W}'); a('s_nop 1')
        a('s_lshr_b64 s[62:63], vcc, s3'); a('s_and_b32 s3, s62, 3'); a('s_cmp_eq_u32 s3, 3'); a(f's_cselect_b32 s{S_FAST}, {0 if "slow" in OPT else 1}, 0')
        a('s_cmp_eq_u32 s49, 0'); a('s_cselect_b32 s3, 0, 0x80000000'); a('v_mov_b32 v237, s3'); a(f's_mov_b32 s3, {WS_EP}')
        a(f'buffer_store_dword v236, v237, {WSR}, s3 offen sc1')
        k.tail.append('FBSPIN:\n  s_mov_b32 s72, 0x8000\nFBSPINL:\n  ' + FBL + '\n  s_waitcnt vmcnt(0)\n' + ''.join(f'  {t}\n' for t in fbc) +
                      '  s_sub_u32 s72, s72, 1\n  s_cbranch_scc1 FBDONE\n  s_cmp_eq_u64 vcc, -1\n  s_cbranch_scc0 FBSPINL\n  s_branch FBDONE')
    wos = [wo_ld(t, i) for i in range(5) for t in range(5)]
    FBI = opt('fbi', 4)
    w1_early = []
    for s in range(20):
        main = []
        for mt in range(5):
            for sl in range(4):
                if sl == 3 and mt == 0: continue
                ac = ACC + 4 * (sl * 5 + mt - (1 if sl == 3 else 0))
                c = '0' if s == 0 else q4('v', ac)
                main.append(f'{MF} {q4("v", ac)}, {wq_reg(s, sl)}, {q4("v", XF + 20 * (s % 2) + 4 * mt)}, {c}')
        fill = xread(s + 1) if s < 19 else []
        if 1 <= s <= 20 - RING: fill += wqs[4 * (s - 1 + RING): 4 * (s + RING)]
        elif s > 20 - RING:
            n0 = 4 * (s - 12)
            fill += wos[n0:n0 + 4] if s < 18 else (wos[24:] + [w1_ld(36), w1_ld(37), w1_ld(38)] if s == 18 else [w1_ld(8 + q) for q in range(4)])
        if s < 8: fill += side[s * 13:(s + 1) * 13] if s < 7 else side[91:]
        if s == FBI: fill.append(fb_issue)
        if s == 11: fill += [fb_check, own_loads]
        if s == 17: fill.append(mod2_fin)
        spread(a, main, fill, hi=17)
    tn(a, 'p1e')
    w1rest = [w1_ld(f) for f in list(range(12, 36)) + list(range(0, 8))]
    st = []
    for sl in range(4):
        for mt in range(5):
            if sl == 3 and mt == 0: continue
            ac = ACC + 4 * (sl * 5 + mt - (1 if sl == 3 else 0))
            st += [f'v_cvt_pk_bf16_f32 v{ac}, v{ac}, v{ac+1}', f'v_cvt_pk_bf16_f32 v{ac+1}, v{ac+2}, v{ac+3}',
                   f'ds_write_b64 v{24+sl}, v[{ac}:{ac+1}] offset:{512*mt}']
    spread(a, st, w1rest[:6])
    a.wait(lg=0); a.barrier()
    K0, K1, VR, SR = 120, 130, 140, 176
    st = []; A = st.append
    def sx(m): A(f's_mov_b32 exec_lo, {hex(m & 0xffffffff)}'); A(f's_mov_b32 exec_hi, {hex(m >> 32)}')
    for t in range(5):
        a(f'ds_read_b64 v[{K0+2*t}:{K0+2*t+1}], v28 offset:{(5+t)*2560}')
        a(f'ds_read_b64 v[{K1+2*t}:{K1+2*t+1}], v28 offset:{(5+t)*2560+512}')
    for h in range(4):
        k.setexec((FULL << (16 * h)) & FULL)
        a(f'ds_read_b64 v[{QR+4*h}:{QR+4*h+1}], v28 offset:{h*2560+512}')
        k.setexec((1 << (16 * (h + 1))) - 1)
        a(f'ds_read_b64 v[{QR+4*h+2}:{QR+4*h+3}], v28 offset:{(h+1)*2560+512}')
    for t in range(5):
        a(f'ds_read_b64_tr_b16 v[{VR+4*t}:{VR+4*t+1}], v29 offset:{(10+t)*2560}')
        a(f'ds_read_b64_tr_b16 v[{VR+4*t+2}:{VR+4*t+3}], v29 offset:{(10+t)*2560+512}')
    H = range(4)
    for h in H:
        A(f'{MF} v[{SR+8*h}:{SR+8*h+3}], v[{K0+2*h}:{K0+2*h+3}], v[{QR+4*h}:{QR+4*h+3}], v[34:37]')
        A(f'{MF} v[{SR+8*h+4}:{SR+8*h+7}], v[{K1+2*h}:{K1+2*h+3}], v[{QR+4*h}:{QR+4*h+3}], 0')
    for h in H:
        b = SR + 8 * h
        for e in (0, 2, 4, 6): A(f'v_cndmask_b32 v{b+e}, v{b+e}, v{b+e+1}, s[74:75]')
        A(f'v_cndmask_b32 v{b}, v{b}, v{b+4}, s[76:77]'); A(f'v_cndmask_b32 v{b+1}, v{b+2}, v{b+6}, s[78:79]')
    def bfly(op, r):
        for sw in ('v_permlane16_swap_b32', 'v_permlane32_swap_b32'):
            for h in H: A(f'v_mov_b32 v{SR+8*h+r+1}, v{SR+8*h+r}')
            for h in H: A(f'{sw} v{SR+8*h+r}, v{SR+8*h+r+1}')
            for h in H: A(f'{op} v{SR+8*h+r}, v{SR+8*h+r}, v{SR+8*h+r+1}')
    for h in H: A(f'v_max_f32 v{SR+8*h+2}, v{SR+8*h}, v{SR+8*h+1}')
    bfly('v_max_f32', 2)
    CS = LOG2E * 20 ** -0.5
    A(f's_mov_b32 s57, {fl(CS)}')
    for h in H: A(f'v_mul_f32 v{SR+8*h+2}, {fl(-CS)}, v{SR+8*h+2}')
    for h in H:
        b = SR + 8 * h
        A(f'v_fma_f32 v{b}, v{b}, s57, v{b+2}'); A(f'v_fma_f32 v{b+1}, v{b+1}, s57, v{b+2}')
    for h in H:
        b = SR + 8 * h
        A(f'v_exp_f32 v{b}, v{b}'); A(f'v_exp_f32 v{b+1}, v{b+1}')
    for h in H: A(f'v_add_f32 v{SR+8*h+2}, v{SR+8*h}, v{SR+8*h+1}')
    bfly('v_add_f32', 2)
    for h in H: A(f'v_rcp_f32 v{SR+8*h+2}, v{SR+8*h+2}')
    for h in H:
        b = SR + 8 * h
        A(f'v_mul_f32 v{b}, v{b}, v{b+2}'); A(f'v_mul_f32 v{b+1}, v{b+1}, v{b+2}')
    for h in H: A(f'v_cvt_pk_bf16_f32 v{SR+8*h}, v{SR+8*h}, v{SR+8*h+1}')
    for h in H:
        b = SR + 8 * h
        for q in range(4): A(f'v_perm_b32 v{b+4+q}, v{b}, v{b}, v{30+q}')
    OR = 40
    for h in H:
        b = SR + 8 * h + 4
        A(f'{MF} v[{OR+8*h}:{OR+8*h+3}], v[{VR+4*h}:{VR+4*h+3}], v[{b}:{b+3}], 0')
        A(f'{MF} v[{OR+8*h+4}:{OR+8*h+7}], v[{VR+4*h+4}:{VR+4*h+7}], v[{b}:{b+3}], 0')
    spread(a, st, w1rest[6:16])
    a(f's_lshl2_add_u32 s57, s{S_RB}, s{S_W}'); a('s_mul_i32 s57, s57, 20480'); a(f's_add_u32 s57, s57, {WS_OF}')
    frag_offsets(a, 57, 58, 3)
    F = 80
    a(f'v_cvt_pk_bf16_f32 v{F}, v{OR}, v{OR+1}'); a(f'v_cvt_pk_bf16_f32 v{F+1}, v{OR+2}, v{OR+3}')
    for t in (1, 2, 3, 4):
        s_ = OR + 8 * (t - 1) + 4
        a(f'v_cvt_pk_bf16_f32 v{F+2*t}, v{s_}, v{s_+1}'); a(f'v_cvt_pk_bf16_f32 v{F+2*t+1}, v{s_+2}, v{s_+3}')
    for t in (1, 2, 3):
        k.setexec((FULL << (16 * t)) & FULL)
        s_ = OR + 8 * t
        a(f'v_cvt_pk_bf16_f32 v{F+2*t}, v{s_}, v{s_+1}'); a(f'v_cvt_pk_bf16_f32 v{F+2*t+1}, v{s_+2}, v{s_+3}')
    a('s_mov_b64 exec, -1')
    h = k.stores(frag_store80(F, 57, 58))
    tn(a, 'att')
    XR, ACC = 64 + 28, 40
    GA, GG = 152, 40; X1 = 92
    a(f's_mul_i32 s3, s{S_W}, 5120')
    a(f's_mul_i32 s57, s{S_RB}, {4*20480}'); a('s_add_u32 s57, s57, s3'); a(f's_add_u32 s57, s57, {WS_OF}')
    for q in range(4):
        a(f's_add_u32 s3, s{S_W}, {q+1}'); a('s_and_b32 s3, s3, 3')
        a(f's_mul_i32 s58, s3, 20480'); a(f's_add_u32 s{32+q}, s58, s57')
        if q < 3:
            a('s_mul_i32 s58, s3, 15360'); a(f's_add_u32 s58, s58, {q*5120}'); a(f'v_add_u32 v{20+q}, s58, v4')
    a(f's_mul_i32 s58, s{S_W}, 15360'); a('v_add_u32 v23, s58, v4')
    a(f'v_lshlrev_b32 v24, 4, v2'); a(f'v_add_u32 v24, {L_OWN}, v24')
    w1rest += [w1_ld(f) for f in range(39, 60)]
    k.publish(h, 1, 3)
    for t in w1rest[16:24]: a(t)
    k.poll(1, 3)
    tn(a, 'p2')
    for q in range(4):
        for i in range(5): a(ld(q4('v', XR + (q * 5 + i) * 4), i, 32 + q, sc1=True))
    prev = []
    for q in range(4):
        ac = ACC + 20 * (q & 1)
        main = []
        for i in range(5):
            for t in range(5):
                c = '0' if i == 0 else q4('v', ac + 4 * t)
                main.append(f'{MF} {q4("v", ac + 4*t)}, {wo_reg(t, i)}, {q4("v", XR + (q*5+i)*4)}, {c}')
        spread(a, main, prev + (w1rest[24 + 6 * (q - 1):30 + 6 * (q - 1)] if q >= 1 else []), lo=4, hi=22)
        prev = [f'ds_write_b128 v{20+q}, {q4("v", ac+4*t)} offset:{1024*t}' for t in range(5)] if q < 3 else []
    a(f's_lshl2_add_u32 s57, s{S_RB}, s{S_W}'); a('s_mul_i32 s57, s57, 20480'); a(f's_add_u32 s57, s57, {WS_X1G}')
    frag_offsets(a, 57, 58, 3)
    a('v_lshlrev_b32 v38, 6, v38'); a(f's_lshl_b32 s59, s{S_J}, 3'); a(f's_add_u32 s59, s59, {WS_STATS}')
    a.wait(lg=0); a.barrier()
    R = ACC + 20
    for q in range(3):
        for t in range(5): a(f'ds_read_b128 {q4("v", XR + (q*5+t)*4)}, v23 offset:{q*5120+t*1024}')
    for v, b in enumerate((GA, GG)):
        for t in range(5): a(f'ds_read_b128 v[{b+4*t}:{b+4*t+3}], v24 offset:{(20*v+4*t)*16}')
    w2s = [w2_ld(f) for f in range(60)]
    st = []; A = st.append
    for q in range(3):
        for t in range(5):
            r = XR + (q * 5 + t) * 4
            for e in (0, 2): A(f'v_pk_add_f32 v[{R+4*t+e}:{R+4*t+e+1}], v[{R+4*t+e}:{R+4*t+e+1}], v[{r+e}:{r+e+1}]')
        if q == 0:
            for e in range(10): st += unpack(X1 + 2 * e, X1 + 2 * e + 1, 10 + e)
    for e in range(10): A(f'v_pk_fma_f32 v[{X1+2*e}:{X1+2*e+1}], v[{R+2*e}:{R+2*e+1}], v[{GA+2*e}:{GA+2*e+1}], v[{X1+2*e}:{X1+2*e+1}]')
    for e in range(10): A(f'v_cvt_pk_bf16_f32 v{10+e}, v{X1+2*e}, v{X1+2*e+1}')
    for e in range(10): st += unpack(X1 + 2 * e, X1 + 2 * e + 1, 10 + e)
    for e in range(10): A(f'v_pk_mul_f32 v[{R+2*e}:{R+2*e+1}], v[{X1+2*e}:{X1+2*e+1}], v[{GG+2*e}:{GG+2*e+1}]')
    F = 80
    for e in range(10): A(f'v_cvt_pk_bf16_f32 v{F+e}, v{R+2*e}, v{R+2*e+1}')
    spread(a, st, w1rest[42:47], hi=30)
    k.stores(frag_store80(F, 57, 58))
    a(f'v_pk_add_f32 v[24:25], v[{X1}:{X1+1}], v[{X1+2}:{X1+3}]'); a(f'v_pk_mul_f32 v[26:27], v[{X1}:{X1+1}], v[{X1}:{X1+1}]')
    for e in range(1, 10):
        p = f'v[{X1+2*e}:{X1+2*e+1}]'
        if e > 1: a(f'v_pk_add_f32 v[24:25], v[24:25], {p}')
        a(f'v_pk_fma_f32 v[26:27], {p}, {p}, v[26:27]')
    a('v_add_f32 v24, v24, v25'); a('v_add_f32 v25, v26, v27')
    for sw in ('v_permlane16_swap_b32', 'v_permlane32_swap_b32'):
        a('v_mov_b32 v26, v24'); a('v_mov_b32 v27, v25')
        a(f'{sw} v24, v26'); a(f'{sw} v25, v27')
        a('v_add_f32 v24, v24, v26'); a('v_add_f32 v25, v25, v27')
    h = k.stores(['s_mov_b64 exec, 0xffff', f'buffer_store_dwordx2 v[24:25], v38, {WSR}, s59 offen', 's_mov_b64 exec, -1'])
    hst = a.vm[-1][0]
    tn(a, 'p2e')
    for t in w1rest[47:]: a(t)
    XF = 40; NB = 6; ACC = 64; U1, T1, T = 88, 100, 112
    a('v_and_b32 v3, 1, v1'); a('v_lshlrev_b32 v3, 6, v3'); a('v_lshl_add_u32 v20, v2, 4, v3'); a(f'v_add_u32 v20, {L_GS}, v20')
    a(f'v_add_u32 v21, {L_X3}, v4'); a(f'v_add_u32 v22, {L_X3 + 40960}, v4')
    def xr(mt, s, slot):
        if mt == 4: return f'ds_read_b128 {q4("v", XF + 4*slot)}, v20 offset:{128*s}'
        return f'ds_read_b128 {q4("v", XF + 4*slot)}, v{21 + mt//2} offset:{((mt%2)*20+s)*1024}'
    PF = NB - 1
    def p3pass(mt, acb, fill, nxt=None, pre=True, lo=6, hi=56, base=0):
        if pre:
            for p in range(PF): a(xr(mt, p, (base + p) % NB))
        main = []
        for s in range(20):
            if s + PF < 20: main.append(xr(mt, s + PF, (base + s + PF) % NB))
            elif nxt is not None: main.append(xr(nxt, s + PF - 20, (base + s + PF) % NB))
            for t in range(3):
                c = '0' if s == 0 else q4('v', acb + 4 * t)
                main.append(f'{MF} {q4("v", acb + 4*t)}, {w1_reg(s*3+t)}, {q4("v", XF + 4*((base + s) % NB))}, {c}')
        spread(a, main, fill, lo=lo * 4 // 3, hi=hi * 4 // 3)
    a(f's_mul_i32 s28, s{S_W}, 5120')
    a(f's_mul_i32 s29, s{S_RB}, {4*20480}'); a('s_add_u32 s29, s29, s28'); a(f's_add_u32 s29, s29, {WS_X1G}'); a(f's_add_u32 s28, s28, {L_X3}')
    def xdma(mt):
        a(f's_add_u32 s30, s29, {mt*20480}'); a(f's_add_u32 m0, s28, {mt*20480}')
        for i in range(4): a(f'buffer_load_dwordx4 v4, {WSR}, s30 offen offset:{1024*i} sc1 lds')
        a(f's_add_u32 m0, s28, {mt*20480 + 4096}')
        return a(f'buffer_load_dwordx4 v5, {WSR}, s30 offen sc1 lds')
    p3pass(4, ACC + 12, [lambda: k.publish(hst, 2, 3)], lo=18, hi=19)
    k.poll(2, 3)
    hx = [xdma(mt) for mt in range(4)]
    C = -LOG2E
    for e in range(12):
        a(f'v_mov_b32_dpp v{U1+e}, v{ACC+12+e} quad_perm:[0,0,2,2] row_mask:0xf bank_mask:0xf')
        a(f'v_mov_b32_dpp v{T1+e}, v{ACC+12+e} quad_perm:[1,1,3,3] row_mask:0xf bank_mask:0xf')
    for e in range(12): a(f'v_mul_f32 v{T1+e}, {fl(C)}, v{T1+e}')
    a(f's_mul_i32 s52, s{S_RB}, {4*49152}'); a(f's_mul_i32 s53, s{S_J}, 6144'); a('s_add_u32 s52, s52, s53'); a(f's_add_u32 s52, s52, {WS_H1}')
    a(f's_lshr_b32 s53, s{S_W}, 1'); a('s_lshl_b32 s53, s53, 10'); a('s_add_u32 s53, s53, s52'); a('s_add_u32 s53, s53, 4096')
    a(f's_and_b32 s3, s{S_W}, 1'); a('s_lshl3_add_u32 s53, s3, s53')
    a(f's_lshl_b32 s3, s{S_W}, 10'); a('s_add_u32 s52, s52, s3')
    a(f's_mov_b32 s54, {fl(C)}')
    a(f's_lshl_b32 s30, s{S_RB}, 12'); a(f's_add_u32 s30, s30, {WS_STATS}')
    a('v_lshlrev_b32 v3, 6, v1'); a('v_lshl_add_u32 v3, v2, 4, v3')
    a.wait_id(hx[0]); a.barrier()
    tn(a, 'p3')
    for mt in range(4): a(f'buffer_load_dwordx4 v[{24+4*mt}:{27+4*mt}], v3, {WSR}, s30 offen offset:{1024*mt} sc1')
    M = range(4); st = []; A = st.append
    for m in M: A(f'v_add_f32 v{24+4*m}, v{24+4*m}, v{26+4*m}'); A(f'v_add_f32 v{25+4*m}, v{25+4*m}, v{27+4*m}')
    for sw in ('v_permlane16_swap_b32', 'v_permlane32_swap_b32'):
        for m in M: A(f'v_mov_b32 v{26+4*m}, v{24+4*m}'); A(f'v_mov_b32 v{27+4*m}, v{25+4*m}')
        for m in M: A(f'{sw} v{24+4*m}, v{26+4*m}'); A(f'{sw} v{25+4*m}, v{27+4*m}')
        for m in M: A(f'v_add_f32 v{24+4*m}, v{24+4*m}, v{26+4*m}'); A(f'v_add_f32 v{25+4*m}, v{25+4*m}, v{27+4*m}')
    A(f'v_mov_b32 v3, {fl(1e-5)}')
    for m in M: A(f'v_mul_f32 v{26+4*m}, s56, v{24+4*m}')
    for m in M: A(f'v_fma_f32 v{25+4*m}, v{25+4*m}, s56, v3')
    for m in M: A(f'v_fma_f32 v{25+4*m}, -v{26+4*m}, v{26+4*m}, v{25+4*m}')
    for m in M: A(f'v_max_f32 v{25+4*m}, v{25+4*m}, v3')
    for m in M: A(f'v_rsq_f32 v{24+4*m}, v{25+4*m}')
    for m in M: A(f'v_mul_f32 v{24+4*m}, s54, v{24+4*m}')
    for m in M: A(f'v_mul_f32 v{25+4*m}, -v{26+4*m}, v{24+4*m}')
    hs = {}
    def epi(mt):
        ac = ACC + 12 * (mt & 1); P = 24 + 4 * mt; l = []
        for e in range(12): l.append(f'v_fma_f32 v{T+e}, v{U1+e}, v{P+1}, v{T1+e}')
        for e in range(12): l.append(f'v_fma_f32 v{ac+e}, v{ac+e}, v{P}, v{T+e}')
        for e in range(12): l.append(f'v_exp_f32 v{T+e}, v{ac+e}')
        for e in range(12): l.append(f'v_fma_f32 v{T+e}, v{T+e}, s54, s54')
        for e in range(12): l.append(f'v_rcp_f32 v{T+e}, v{T+e}')
        for e in range(12): l.append(f'v_mul_f32 v{ac+e}, v{ac+e}, v{T+e}')
        for e in range(6): l.append(f'v_cvt_pk_bf16_f32 v{T+e}, v{ac+2*e}, v{ac+2*e+1}')
        def sto():
            hs[mt] = k.stores([f'buffer_store_dwordx4 v[{T}:{T+3}], v4, {WSR}, s52 offen', f'buffer_store_dwordx2 v[{T+4}:{T+5}], v4, {WSR}, s53 offen'])
            a('s_add_u32 s52, s52, 49152'); a('s_add_u32 s53, s53, 49152')
        l.append(sto)
        return l
    def mix(x, y):
        out = []; j = 0
        for i, t in enumerate(x):
            out.append(t)
            while j < len(y) and j * len(x) < (i + 1) * len(y): out.append(y[j]); j += 1
        return out + y[j:]
    def x4reg(q, i):
        if q == 0: return q4('v', 124 + 4 * i)
        if q == 1: return q4('v', 172 + 4 * i)
        if q == 2: return q4('v', 80 + 4 * i) if i < 11 else q4('v', 220)
        return q4('v', 224 + 4 * i) if i < 8 else q4('a', 140 + 4 * (i - 8))
    def x4ld(q): return [ld(x4reg(q, i), i, 32 + q, sc1=True) for i in range(12)]
    p3pass(0, ACC, mix(w2s[:10], []) + st, lo=2, hi=58)
    a(f's_mul_i32 s32, s{S_RB}, {4*49152}'); a(f's_mul_i32 s3, s{S_W}, 12288'); a('s_add_u32 s32, s32, s3'); a(f's_add_u32 s32, s32, {WS_H1}')
    for q in range(1, 4): a(f's_add_u32 s{32+q}, s{31+q}, 49152')
    a.wait_id(hx[3]); a.barrier()
    p3pass(1, ACC + 12, mix(epi(0), w2s[10:20]), nxt=2, base=0)
    p3pass(2, ACC, mix(epi(1), w2s[20:25] + [lambda: k.publish(hs[0], 3, 23)]), nxt=3, pre=False, base=20)
    e2 = epi(2)
    w2late = w2s[25:]
    fill3 = [lambda: k.publish(hs[1], 4, 23), k.poll_issue(3)] + e2[:40] + [lambda: k.poll_check(3, 3)] + mix(e2[40:], x4ld(0))
    def p3last():
        main = []
        for s in range(20):
            if s + PF < 20: main.append(xr(3, s + PF, (40 + s + PF) % NB))
            for t in range(3):
                c = '0' if s == 0 else q4('v', ACC + 12 + 4 * t)
                main.append(f'{MF} {q4("v", ACC + 12 + 4*t)}, {w1_reg(s*3+t)}, {q4("v", XF + 4*((40 + s) % NB))}, {c}')
            if 1 <= s <= 8: main.append(w2late[s - 1])
        spread(a, main, fill3, lo=6, hi=80)
    p3last()
    tn(a, 'p4')
    e3 = epi(3)
    ACC4 = 24
    st = mix(e3[:-1], w2late[8:20]) + [e3[-1], lambda: k.publish(hs[2], 5, 23), k.poll_issue(3)]
    spread(a, st, [])
    a(f's_mul_i32 s3, s{S_W}, 5120'); a('v_add_u32 v20, s3, v4'); a('v_add_u32 v21, 61440, v20')
    a(f's_mul_i32 s3, s{S_W}, 20480'); a('v_add_u32 v22, s3, v4')
    prev = []
    for q in range(4):
        ac = ACC4 + 20 * (q & 1)
        main = []
        for i in range(12):
            for t in range(5):
                c = '0' if i == 0 else q4('v', ac + 4 * t)
                main.append(f'{MF} {q4("v", ac + 4*t)}, {w2_reg(i*5+t)}, {x4reg(q, i)}, {c}')
        fill = list(prev)
        if q == 0: fill = w2late[20:] + [lambda: k.poll_check(4, 3)] + x4ld(1) + [lambda: k.publish(hs[3], 6, 23), k.poll_issue(3)]
        if q == 1: fill += [lambda: k.poll_check(5, 3)] + x4ld(2) + [k.poll_issue(3)]
        if q == 2: fill += [lambda: k.poll_check(6, 3)] + x4ld(3)
        spread(a, main, fill, lo=1 if q == 0 else 4, hi=40)
        prev = [f'ds_write_b128 v{20 if q < 3 else 21}, {q4("v", ac+4*t)} offset:{(q%3)*20480 + 1024*t}' for t in range(5)]
    GB = 124; X1 = 144
    a(f'v_lshlrev_b32 v3, 4, v2'); a(f'v_add_u32 v3, {L_OWN}, v3')
    for t in range(5): a(f'ds_read_b128 {q4("v", GB + 4*t)}, v3 offset:{(40+4*t)*16}')
    for e in range(10):
        for t in unpack(X1 + 2 * e, X1 + 2 * e + 1, 10 + e): a(t)
    for t in prev: a(t)
    tn(a, 'p4e')
    a.wait(lg=0); a.barrier()
    RR = 172
    for q in range(4):
        for t in range(5): a(f'ds_read_b128 {q4("v", RR + (q*5+t)*4)}, v22 offset:{q*5120+t*1024}')
    for q in range(1, 4):
        for e in range(10): a(f'v_pk_add_f32 v[{RR+2*e}:{RR+2*e+1}], v[{RR+2*e}:{RR+2*e+1}], v[{RR+20*q+2*e}:{RR+20*q+2*e+1}]')
    for e in range(10): a(f'v_pk_fma_f32 v[{X1+2*e}:{X1+2*e+1}], v[{RR+2*e}:{RR+2*e+1}], v[{GB+2*e}:{GB+2*e+1}], v[{X1+2*e}:{X1+2*e+1}]')
    a(f's_lshl2_add_u32 s49, s{S_RB}, s{S_W}'); a('s_lshl_b32 s49, s49, 4'); a('v_add_u32 v3, s49, v1')
    a('s_movk_i32 s49, 1280'); a('v_mul_lo_u32 v3, v3, s49'); a('v_lshl_add_u32 v3, v2, 3, v3')
    for t in range(5):
        for e in (2 * t, 2 * t + 1): a(f'v_cvt_pk_bf16_f32 v{10+e}, v{X1+2*e}, v{X1+2*e+1}')
        a(f'buffer_store_dwordx2 v[{10+2*t}:{11+2*t}], v3, s[{S_O}:{S_O+3}], s61 offen offset:{32*t}')
    gen1.epilogue(a, 'p0')
    for t in k.tail: a.raw(t)
    return LDS_SIZE
if __name__ == '__main__':
    t, d, lds = gen1.kernel_text(gen1.NAME + '_kernel', main_kernel)
    open(sys.argv[1], 'w').write(f'; @launch grid=(256,1,1) block=(256,1,1) lds={lds}\n.amdgcn_target "amdgcn-amd-amdhsa--gfx950"\n.text\n' + t + '.section .rodata,"a"\n.p2align 6\n' + d)
```

```python
import sys, struct
from asmfw import *
import gen1
from gen1 import WS_MODP, WS_STATS, WS_WQ, WS_WO, WS_W1, WS_W2, WS_OF, WS_X1G, WS_H1, MF, LOG2E, fl, unpack, srd, S_WS, S_X, S_O, S_RB, S_J, S_W, ts, tsc, ts_flush
WSR = f's[{S_WS}:{S_WS+3}]'
WS_FL = 0x40000
WS_XID = 0x44000
S_FAST = 23
S_E = 24
FULL = (1 << 64) - 1
OPT = sys.argv[2] if len(sys.argv) > 2 else ''
L_DUMP = 102400; L_PERM = 147456
L_MODL = L_PERM; L_XR = L_PERM; L_GS = 159744; L_OWN = L_GS + 2560
L_X3 = 65536
LDS_SIZE = 163840
class K:
    def __init__(s, a): s.a = a; s.tail = []; s.nl = 0
    def setexec(s, m):
        s.a(f's_mov_b32 exec_lo, {hex(m & 0xffffffff)}'); s.a(f's_mov_b32 exec_hi, {hex(m >> 32)}')
    def stores(s, lst):
        a = s.a; s.nl += 1; n = s.nl
        a(f's_cmp_eq_u32 s{S_FAST}, 0'); a(f's_cbranch_scc1 SLOW{n}')
        h = None; n0 = len(a.out)
        for t in lst: h = a(t)
        assert len(a.out) - n0 == len(lst), a.out[n0:]
        a.label(f'RET{n}')
        s.tail.append(f'SLOW{n}:\n' + ''.join(f'  {t}{" sc1" if t.startswith("buffer") else ""}\n' for t in lst) + f'  s_branch RET{n}')
        return h
    def publish(s, h, val, vt):
        s.a(f's_add_u32 s72, s{S_E}, {val}'); s.a(f'v_mov_b32 v{vt}, s72')
        s.a.wait_id(h)
        s.stores([f'buffer_store_dword v{vt}, off, {WSR}, s26'])
    def spin_tail(s, n, val, vt, va=9, so=27):
        s.tail.append(f'''SPIN{n}:
  s_mov_b32 s72, 0x8000
SPINL{n}:
  buffer_load_dword v{vt}, v{va}, {WSR}, s{so} offen sc1
  s_waitcnt vmcnt(0)
  v_subrev_u32 v{vt}, s{S_E}, v{vt}
  v_add_u32 v{vt}, {-val}, v{vt}
  v_cmp_gt_u32 vcc, 8, v{vt}
  s_sub_u32 s72, s72, 1
  s_cbranch_scc1 PDONE{n}
  s_cmp_eq_u64 vcc, -1
  s_cbranch_scc0 SPINL{n}
  s_branch PDONE{n}''')
    def poll(s, val, vt):
        a = s.a; s.nl += 1; n = s.nl
        a.wait(lg=0)
        if True:
            a(f's_branch SPIN{n}')
        else:
            a(f's_cmp_eq_u32 s{S_FAST}, 0'); a(f's_cbranch_scc1 SPIN{n}')
            a('s_mov_b32 s72, 0x8000')
            a.label(f'POLL{n}')
            a('s_load_dwordx8 s[64:71], s[24:25], 0 glc')
            a('s_sub_u32 s72, s72, 1'); a(f's_cbranch_scc1 PDONE{n}')
            a.wait(lg=0)
            a('s_min_u32 s64, s64, s65'); a('s_min_u32 s66, s66, s67'); a('s_min_u32 s68, s68, s69'); a('s_min_u32 s70, s70, s71')
            a('s_min_u32 s64, s64, s66'); a('s_min_u32 s68, s68, s70'); a('s_min_u32 s64, s64, s68')
            a(f's_cmp_ge_u32 s64, {val}'); a(f's_cbranch_scc0 POLL{n}')
        a.label(f'PDONE{n}')
        a.fwait('lgkmcnt(0)')
        s.spin_tail(n, val, vt)
    def poll_issue(s, vt, va=9, so=27): return f'buffer_load_dword v{vt}, v{va}, {WSR}, s{so} offen sc1'
    def poll_check(s, val, vt, va=9, so=27):
        a = s.a; s.nl += 1; n = s.nl
        a(f's_add_u32 s72, s{S_E}, {val}'); a(f'v_subrev_u32 v{vt}, s72, v{vt}'); a(f'v_cmp_gt_u32 vcc, 8, v{vt}'); a('s_nop 3')
        a('s_cmp_eq_u64 vcc, -1'); a(f's_cbranch_scc0 SPIN{n}')
        a.label(f'PDONE{n}')
        s.spin_tail(n, val, vt, va, so)
def spread(a, main, fill, lo=0, hi=None):
    n = len(main); hi = n if hi is None else hi
    fi = 0; m = len(fill)
    def em(x):
        if callable(x): x()
        else: a(x)
    for i, t in enumerate(main):
        em(t)
        if i >= lo:
            tgt = min(m, -(-m * (i - lo + 1) // max(1, hi - lo)))
            while fi < tgt: em(fill[fi]); fi += 1
    while fi < m: em(fill[fi]); fi += 1
def mix(x, y):
    out = []; j = 0
    for i, t in enumerate(x):
        out.append(t)
        while j < len(y) and j * len(x) < (i + 1) * len(y): out.append(y[j]); j += 1
    return out + y[j:]
def frag_offsets(a, sb, s2, st):
    a(f's_lshr_b32 s{st}, s{S_J}, 1'); a(f's_mul_i32 s{st}, s{st}, 5120'); a(f's_add_u32 s{sb}, s{sb}, s{st}')
    a(f's_and_b32 s{st}, s{S_J}, 1')
    a(f's_lshl3_add_u32 s{s2}, s{st}, s{sb}'); a(f's_add_u32 s{s2}, s{s2}, 4096')
    a(f's_lshl_b32 s{st}, s{st}, 11'); a(f's_add_u32 s{sb}, s{sb}, s{st}')
def frag_store80(F, sb, s2):
    return [f'buffer_store_dwordx4 v[{F}:{F+3}], v4, {WSR}, s{sb} offen',
            f'buffer_store_dwordx4 v[{F+4}:{F+7}], v4, {WSR}, s{sb} offen offset:1024',
            f'buffer_store_dwordx2 v[{F+8}:{F+9}], v4, {WSR}, s{s2} offen']
def ld(reg, s, soff, srd_=WSR, sc1=False):
    return f'buffer_load_dwordx4 {reg}, v{4 + s // 4}, {srd_}, s{soff} offen offset:{1024 * (s % 4)}' + (' sc1' if sc1 else '')
def q4(k, b): return f'{k}[{b}:{b+3}]'
RING = 9
def wq_reg(s, sl): return q4('a', 16 * (s % RING) + 4 * sl)
def wo_reg(t, i): return q4('a', 156 + 4 * (i * 5 + t))
def w1_reg(f): return q4('a', 4 * f) if f < 39 else q4('v', 172 + 4 * (f - 39))
def w2_reg(f): return q4('a', 156 + 4 * f) if f < 25 else q4('a', 4 * (f - 25))
def wq_ld(s, sl): return ld(wq_reg(s, sl), s, 32 + sl, 's[12:15]' if sl == 2 else WSR, True)
def wo_ld(t, i): return ld(wo_reg(t, i), i, 36 + t, WSR, True)
def w1_ld(f): return ld(w1_reg(f), f // 3, 41 + f % 3, WSR, True)
def w2_ld(f): return ld(w2_reg(f), f // 5, 44 + f % 5, WSR, True)


WS_EP = 0x48000; WS_FA = 0x49000; WS_FB = 0x4A000
S_E = 24
L_ST = L_DUMP; L_MR = L_OWN + 1280; RSZ = 98304
def opt(name, d):
    for o in OPT.split(','):
        if o.startswith(name + '='): return int(o.split('=')[1])
    return d
NT = ' nt' if opt('nt', 1) else ''; NTM = ' nt' if opt('ntm', 1) else ''; NTX = ' nt' if opt('ntx', 0) else ''; NTT = ' nt' if opt('ntt', 0) else ''
NXE = opt('nxe', 3); PUBE = opt('pube', 0)
TS = {n: i for i, n in enumerate(('p1', 's2', 's5', 's8', 's10', 'mid', 's12', 's14', 's17', 'p1e') if 'traceP' in OPT else ('s', 'dec', 'ka', 'b1', 'st', 'pub', 'xi', 'x0', 'x4', 'ln') if 'traceG' in OPT else ('s', 'ln', 'b2', 'pi', 'mf', 'vp', 'pw', 'fa', 'poll', 'bar') if 'traceH' in OPT else ('s', 'b1', 'pub', 'ln', 'b2', 'poll', 'bar', 'p1', 'p1e', 'att') if 'traceF' in OPT else ('s', 'bar', 'p1', 'p1e', 'att', 'p2', 'p2e', 'p3', 'p4', 'p4e'))}
def tn(a, n):
    if n in TS: ts(a, TS[n])
XN = 40
def pairs(a, st, n, dA, dB, t):
    mg, ta, tb = (13108, 0x47520, 0x98631) if n == 5 else (10923, 0x829630, 0xb5a741)
    a(f's_mul_i32 s{dA}, s{st}, {mg}'); a(f's_lshr_b32 s{dA}, s{dA}, 16'); a(f's_mul_i32 s{dB}, s{dA}, {n}')
    a(f's_sub_u32 s{t}, s{st}, s{dB}'); a(f's_lshl_b32 s{t}, s{t}, 2')
    a(f's_lshr_b32 s{dA}, {hex(ta)}, s{t}'); a(f's_and_b32 s{dA}, s{dA}, 15'); a(f's_lshl1_add_u32 s{dA}, s{dB}, s{dA}')
    a(f's_lshr_b32 s{t}, {hex(tb)}, s{t}'); a(f's_and_b32 s{t}, s{t}, 15'); a(f's_lshl1_add_u32 s{dB}, s{dB}, s{t}')
def perm_src(x, st, n, stride, vd, so, colb, A=30, B=31, T=3, v7=5, vt=3):
    pairs(x, st, n, A, B, T)
    x(f's_sub_u32 s{B}, s{B}, s{A}'); x(f's_mul_i32 s{B}, s{B}, {16*stride}'); x(f's_lshl2_add_u32 s{A}, s{A}, s{S_W}')
    x(f's_mul_i32 s{A}, s{A}, {4*stride}'); x(f's_add_u32 s{so}, s{A}, s{colb}')
    x(f'v_bfe_u32 v{vt}, v0, 3, 2'); x(f's_movk_i32 s{T}, {stride}'); x(f'v_mad_u32_u24 v{vd}, v{vt}, s{T}, v{v7}')
    x(f'v_lshrrev_b32 v{vt}, 5, v0'); x(f'v_mad_u32_u24 v{vd}, v{vt}, s{B}, v{vd}')
def tr_addr(x, vd, blk, base, vt=3, T=3):
    x(f's_movk_i32 s{T}, {blk}'); x(f'v_and_b32 v{vt}, 3, v1'); x(f'v_lshlrev_b32 v{vt}, 3, v{vt}'); x(f'v_mad_u32_u24 v{vd}, v2, s{T}, v{vt}')
    x(f'v_lshrrev_b32 v{vt}, 2, v1'); x(f'v_lshl_add_u32 v{vd}, v{vt}, 7, v{vd}')
    x(f's_lshl_b32 s{T}, s{S_W}, 5'); x(f's_add_u32 s{T}, s{T}, {base}'); x(f'v_add_u32 v{vd}, s{T}, v{vd}')
def uproc(n, R, sd, tst, va, vo, k='a'):
    l = []
    for t in range(n):
        l += [f'ds_read_b64_tr_b16 {k}[{R+4*t}:{R+4*t+1}], v{va} offset:{1024*t}', f'ds_read_b64_tr_b16 {k}[{R+4*t+2}:{R+4*t+3}], v{va} offset:{1024*t + 512}']
    for t in range(n):
        l.append((f's_add_u32 s{sd}, s{sd}, {4*tst}\n' if t else '') + f'buffer_store_dwordx4 {k}[{R+4*t}:{R+4*t+3}], v{vo}, {WSR}, s{sd} offen sc1')
    return l
LM = dict(W=176, C=196, AC=208, T=201)
class Mod:
    def __init__(m, late, W, C, AC, VW, VC, T, SC, SW, SR, SG): m.__dict__.update(locals())
    def dec(m):
        G, D, R = m.SG, m.SG + 1, m.SR
        l = [f'v_lshrrev_b32 v{m.VC}, 1, v0', f'v_and_b32 v{m.T}, 1, v0', f'v_lshlrev_b32 v{m.T}, 4, v{m.T}',
             f's_and_b32 s{G}, s2, 7', f's_lshl3_add_u32 s{G}, s{S_J}, s{G}']
        l += [f's_add_u32 s{G}, s{G}, 24', f's_min_u32 s{G}, s{G}, 59'] if m.late else [f's_sub_u32 s{G}, s{G}, 40']
        l += [f's_bfe_u32 s{R+2}, s2, 0x20003', f's_lshl2_add_u32 s{D}, s{G}, s{R+2}', f's_lshl_b32 s{R+3}, s{D}, 5',
              f's_lshl_b32 s{R+2}, s{R+2}, 3', f's_mov_b32 s{R}, 0x21043210', f's_movk_i32 s{R+1}, 0x043', f's_lshr_b64 s[{R}:{R+1}], s[{R}:{R+1}], s{R+2}',
              f's_mul_i32 s{R+4}, s{S_W}, 160', f'v_add_u32 v{m.VC}, s{R+4}, v{m.VC}', f's_movk_i32 s{R+4}, 7680',
              f'v_mad_u32_u24 v{m.VW}, v{m.VC}, s{R+4}, v{m.T}', f'v_add_u32 v{m.VW}, s{R+3}, v{m.VW}', f'v_lshlrev_b32 v{m.VC}, 1, v{m.VC}',
              f's_movk_i32 s{m.SC+2}, 1280', f's_mov_b32 s{m.SC+3}, 0x20000', f's_mov_b32 s{m.SW+3}, 0x20000']
        l += [f's_mov_b32 s{m.SW+2}, {640*7680}']
        for i in (4, 3, 2, 1, 0): l += [f's_bfe_u32 s{R+i}, s{R}, {hex(0x40000 + 4*i)}', f's_lshl_b32 s{R+i}, s{R+i}, 6']
        return l
    def dec2(m):
        G, D = m.SG, m.SG + 1
        return [f's_sub_u32 s{G}, s{G}, {40 if m.late else 10}', f's_cmp_lt_u32 s{G}, 10\ns_cselect_b32 s{G+2}, 1.0, 0', f's_lshl_b32 s{D}, s{D}, 6', f's_add_u32 s{D}, s{D}, {WS_MODP}']
    def load(m, k='v'):
        l = [f's_and_b32 s{m.SC+1}, s{m.SC+1}, 0xffff\ns_and_b32 s{m.SW+1}, s{m.SW+1}, 0xffff']
        for i in range(5): l.append(f'buffer_load_ushort {k}{m.C+i}, v{m.VC}, s[{m.SC}:{m.SC+3}], s{m.SR+i} offen sc1')
        for i in range(5): l.append(f's_mul_i32 s{m.SR+i}, s{m.SR+i}, 3840\nbuffer_load_dwordx4 {k}[{m.W+4*i}:{m.W+3+4*i}], v{m.VW}, s[{m.SW}:{m.SW+3}], s{m.SR+i} offen{NTM}')
        return l
    def silu(m):
        C, AC = m.C, m.AC; l = []
        for f in ('v_lshlrev_b32 v{c}, 16, v{c}', 'v_mul_f32 v{t}, ' + fl(-LOG2E) + ', v{c}', 'v_exp_f32 v{t}, v{t}', 'v_add_f32 v{t}, 1.0, v{t}', 'v_rcp_f32 v{t}, v{t}',
                  'v_mul_f32 v{c}, v{c}, v{t}', 'v_cvt_pk_bf16_f32 v{c}, v{c}, 0'):
            l += [f.format(c=C + i, t=AC + i) for i in range(5)]
        return l
    def dot(m):
        AC, T = m.AC, m.T; l = []
        for i in range(5):
            l.append(f'v_lshlrev_b32 v{T}, 16, v{m.C+i}')
            if m.late and opt('sdot', 1):
                op = 'v_mul_f32' if i == 0 else 'v_fmac_f32'
                for q in range(4):
                    w = m.W + 4 * i + q
                    l += [f'v_lshlrev_b32 v{T+1}, 16, v{w}', f'v_and_b32 v{w}, 0xffff0000, v{w}', f'{op} v{AC+2*q}, v{T+1}, v{T}', f'{op} v{AC+2*q+1}, v{w}, v{T}']
                continue
            for q in range(4):
                for e, sv in ((0, m.C + i), (1, T)):
                    r = AC + 2 * q + e
                    l.append(f'v_dot2_f32_bf16 v{r}, v{m.W+4*i+q}, v{sv}, {"0" if i == 0 else f"v{r}"}')
        G = m.SG
        l += [f'v_and_b32 v{T}, 1, v0', f'v_lshlrev_b32 v{T}, 5, v{T}', f'v_lshl_add_u32 v{T}, v2, 3, v{T}']
        l += [f'v_permlane32_swap_b32 v{AC+q}, v{AC+4+q}' for q in range(4)] + [f'v_add_f32 v{AC+q}, v{AC+q}, v{AC+4+q}' for q in range(4)]
        l += [f'v_permlane16_swap_b32 v{AC+q}, v{AC+2+q}' for q in range(2)] + [f'v_add_f32 v{AC+q}, v{AC+q}, v{AC+2+q}' for q in range(2)]
        l += [f's_lshl_b32 s{G}, s{S_W}, 6', f's_add_u32 s{G}, s{G}, {L_MR}']
        for dp in ('row_ror:8', 'row_ror:4', 'row_ror:2'):
            l += [f'v_add_f32_dpp v{AC+q}, v{AC+q}, v{AC+q} {dp} row_mask:0xf bank_mask:0xf' for q in range(2)]
            if dp == 'row_ror:8': l.append(f'v_add_u32 v{T}, s{G}, v{T}')
            if dp == 'row_ror:4': l += [f'v_lshlrev_b32 v{AC+7}, 2, v1', f'v_add_u32 v{AC+6}, {L_MR}, v{AC+7}']
        return l + [f'ds_write_b64 v{T}, v[{AC}:{AC+1}]']
    def fin(m):
        AC, G = m.AC, m.SG
        l = [f'ds_read2_b32 v[{AC}:{AC+1}], v{AC+6} offset0:0 offset1:16', f'ds_read2_b32 v[{AC+2}:{AC+3}], v{AC+6} offset0:32 offset1:48',
             f's_cmp_eq_u32 s{S_W}, 0\ns_cselect_b32 s{G}, 16, 0' + (f'\ns_cmp_lt_u32 s2, 160\ns_cselect_b32 s{G}, s{G}, 0' if m.late else ''),
             f'v_cmp_gt_u32 vcc, s{G}, v0\nv_mov_b32 v{AC+5}, 0x80000000\nv_cndmask_b32 v{AC+7}, v{AC+5}, v{AC+7}, vcc', f's_and_b32 s{G}, s{S_E}, 0xffff',
             f'v_add_f32 v{AC}, v{AC}, v{AC+1}', f'v_add_f32 v{AC+2}, v{AC+2}, v{AC+3}', f'v_add_f32 v{AC}, v{AC}, v{AC+2}',
             f'v_cvt_pk_bf16_f32 v{AC}, 0, v{AC}', f'v_add_f32 v{AC}, s{G+2}, v{AC}', f'v_cvt_pk_bf16_f32 v{AC}, 0, v{AC}', f'v_or_b32 v{AC}, s{G}, v{AC}',
             f'buffer_store_dword v{AC}, v{AC+7}, {WSR}, s{G+1} offen sc1']
        return l
def front(a, k, var):
    TST = 20480 if var == 'A' else 49152
    def dec_u():
        a(f's_lshl_b32 s47, s{S_W}, 13'); a(f's_add_u32 s47, s47, {L_ST}'); a('s_mov_b32 s71, 0x20000')
        a('v_and_b32 v5, 7, v0'); a('v_lshlrev_b32 v5, 4, v5')
        if var == 'A':
            a('s_cmp_ge_u32 s2, 120'); a('s_cbranch_scc1 DEC_WO')
            a('s_mul_i32 s28, s2, 10923'); a('s_lshr_b32 s28, s28, 16'); a('s_mul_i32 s29, s28, 6'); a('s_sub_u32 s29, s2, s29')
            a(f's_lshl2_add_u32 s33, s28, s{S_W}')
            a(f's_mul_i32 s33, s33, {8*3840}'); a('s_mul_i32 s3, s29, 640'); a('s_add_u32 s33, s33, s3')
            a('v_lshrrev_b32 v3, 3, v0'); a('s_movk_i32 s3, 3840'); a('v_mad_u32_u24 v33, v3, s3, v5'); a(f's_mov_b32 s70, {640*3840}')
            a.label('DEC_WO_RET')
            x = Asm()
            x('s_sub_u32 s28, s2, 120'); x('s_and_b32 s29, s28, 1'); x('s_lshr_b32 s28, s28, 1')
            x('s_mul_i32 s48, s29, 640'); perm_src(x, 28, 5, 1280, 33, 33, 48); x(f's_mov_b32 s70, {640*1280}')
            k.tail.append('DEC_WO:\n' + x.text() + '  s_branch DEC_WO_RET')
        else:
            a('s_sub_u32 s28, s2, 160'); a('s_min_u32 s28, s28, 79'); a('s_and_b32 s29, s28, 3'); a('s_lshr_b32 s28, s28, 2')
            a('s_mul_i32 s62, s29, 24'); a(f's_add_u32 s62, s62, s{S_W}')
            a('s_mul_i32 s62, s62, 20480'); a('s_lshl_b32 s3, s28, 10'); a('s_add_u32 s62, s62, s3'); a(f's_add_u32 s62, s62, {WS_W1}')
            a('s_mul_i32 s48, s29, 768'); perm_src(a, 28, 5, 3072, 33, 33, 48); a(f's_mov_b32 s70, {640*3072}')
    def dec_u2():
        tr_addr(a, 245, 8192, L_ST)
        a('s_cmp_ge_u32 s2, 120')
        a(f's_mov_b32 s34, {WS_WQ}'); a(f's_cselect_b32 s34, {WS_WO}, s34')
        a(f's_mov_b32 s35, {WS_FA}'); a(f's_cselect_b32 s35, {WS_FA + 2048}, s35')
        a('s_and_b32 s3, s29, 1'); a('s_mul_i32 s3, s3, 3'); a('s_lshr_b32 s48, s29, 1'); a('s_add_u32 s3, s3, s48')
        a('s_mul_i32 s3, s3, 20'); a('s_add_u32 s3, s3, s28'); a(f's_lshl2_add_u32 s3, s3, s{S_W}'); a('s_lshl2_add_u32 s35, s3, s35')
        a('s_mul_i32 s3, s29, 20'); a(f's_add_u32 s3, s3, s{S_W}')
        a('s_mul_i32 s3, s3, 20480'); a('s_add_u32 s34, s34, s3'); a('s_lshl_b32 s3, s28, 10'); a('s_add_u32 s34, s34, s3')
    def dec_x(rng):
        if 0 in rng:
            a(f's_lshl_b32 s3, s{S_J}, 2'); a('s_mov_b32 s50, 0x21043210'); a('s_movk_i32 s51, 0x1043'); a('s_lshr_b64 s[50:51], s[50:51], s3'); a('s_mov_b32 s73, s50')
            a(f's_lshl_b32 s3, s{S_RB}, 6'); a(f's_mul_i32 s79, s{S_W}, 20'); a('s_add_u32 s3, s3, s79'); a('s_sub_u32 s3, s3, 16')
            a('s_movk_i32 s51, 1280'); a('v_add_u32 v244, s3, v2'); a('v_lshlrev_b32 v39, 4, v1')
            a(f's_mov_b32 s{S_X+2}, {2048*1280}'); a(f's_mov_b32 s{S_X+3}, 0x20000')
        for i in rng:
            a(f's_bfe_u32 s3, s73, {hex(0x40000 + 4*i)}'); a('v_lshl_add_u32 v3, s3, 2, v244'); a('v_max_i32 v3, 0, v3'); a(f'v_mad_u32_u24 v{240+i}, v3, s51, v39')
    H = {}
    def uload():
        l = [('s_cmp_ge_u32 s2, 120\ns_cselect_b64 s[68:69], s[38:39], s[36:37]\n' if var == 'A' else '') + 's_and_b32 s69, s69, 0xffff']
        for t in range(5 if var == 'A' else 6): l.append(f's_add_u32 m0, s47, {t*896}\nbuffer_load_dwordx4 v33, s[68:71], s33 offen offset:{128*t}{NT} lds')
        return l + [lambda: H.update(u=a.vm[-1][0])]
    def xload(i):
        return [f'buffer_load_dwordx4 v[{XN+(i*5+u)*8+4}:{XN+(i*5+u)*8+7}], v{240+i}, s[{S_X}:{S_X+3}], 0 offen offset:{256*u}{NTX}' for u in range(5)]
    def em(l): spread(a, l, [])
    def eload(): a(f's_and_b32 s{S_WS+1}, s{S_WS+1}, 0xffff'); a(f's_mov_b32 s3, {WS_EP}'); a(f'buffer_load_dword v38, off, {WSR}, s3 sc1')
    def getE(): a(f'v_readfirstlane_b32 s{S_E}, v38'); a(f's_add_u32 s{S_E}, s{S_E}, 0x9E3779B0')
    def pubA(): getE(); a(f'v_mov_b32 v3, s{S_E}'); a.wait_id(H['st']); a(f'buffer_store_dword v3, off, {WSR}, s35 sc1'); tn(a, 'pub')
    def misc():
        a(f's_mov_b32 s{S_O+2}, {2048*1280}'); a(f's_mov_b32 s{S_O+3}, 0x20000'); a(f's_and_b32 s{S_O+1}, s{S_O+1}, 0xffff')
        a('v_lshlrev_b32 v4, 4, v0')
        for q in range(1, 4): a(f'v_add_u32 v{4+q}, {4096*q}, v4')
    def stats(i):
        S, Q = 250, 252; l = []
        for u in range(5):
            b = XN + (i * 5 + u) * 8
            for e in range(4): l += unpack(b + 2 * e, b + 2 * e + 1, b + 4 + e)
            for e in range(4):
                p = f'v[{b+2*e}:{b+2*e+1}]'
                l.append(f'v_pk_mul_f32 v[{Q}:{Q+1}], {p}, {p}' if u == 0 and e == 0 else f'v_pk_fma_f32 v[{Q}:{Q+1}], {p}, {p}, v[{Q}:{Q+1}]')
                if u == 0 and e == 1: l.append(f'v_pk_add_f32 v[{S}:{S+1}], v[{b}:{b+1}], {p}')
                elif not (u == 0 and e == 0): l.append(f'v_pk_add_f32 v[{S}:{S+1}], v[{S}:{S+1}], {p}')
        return l + [f'v_add_f32 v{240+2*i}, v{S}, v{S+1}', f'v_add_f32 v{241+2*i}, v{Q}, v{Q+1}']
    if var == 'A':
        m = Mod(True, 176, 196, 0, 35, 36, 37, 52, 56, 74, 29)
        dec_u(); tn(a, 'dec'); a.wait(lg=0); tn(a, 'ka')
        em(uload()); eload()
        a.raw('@SPLIT')
        dec_u2(); misc(); em(m.dec() + m.dec2()); dec_x([0, 1, 2, 3, 4]); a(f's_and_b32 s{S_X+1}, s{S_X+1}, 0xffff'); em(xload(0))
        a.wait_id(H['u']); tn(a, 'b1'); a.barrier()
        em(uproc(5, 156, 34, 20480, 245, 4)); H['st'] = a.vm[-1][0]; tn(a, 'st')
        em(xload(1))
        b2 = m.load('a'); a('s_mov_b32 s62, 0')
    else:
        m = Mod(False, 8, 28, 246, 35, 36, 37, 52, 56, 74, 44)
        em(m.dec()); tn(a, 'dec'); a.wait(lg=0); tn(a, 'ka')
        em(m.load()); eload()
        a.raw('@SPLIT')
        em(m.dec2()); dec_x([0, 1, 2, 3, 4]); a(f's_and_b32 s{S_X+1}, s{S_X+1}, 0xffff')
        dec_u(); misc()
        em(m.silu()); tn(a, 'b1')
        d = m.dot(); em(d[:27]); em(xload(0)); em(d[27:45]); tn(a, 'st'); em(xload(1)); em(d[45:]); getE()
        a.wait(lg=0); a.barrier(); em(m.fin()); tn(a, 'pub')
        b2 = uload()
    spread(a, stats(0), xload(2), lo=40, hi=78)
    tn(a, 'x0')
    if var == 'A': pubA()
    spread(a, stats(1), xload(3) + xload(4), hi=78)
    tn(a, 'xi')
    em(stats(2))
    st = stats(3) + stats(4); A = st.append
    A(lambda: tn(a, 'x4'))
    for ror in (8, 4, 2, 1):
        for c in range(240, 250): A(f'v_add_f32_dpp v{c}, v{c}, v{c} row_ror:{ror} row_mask:0xf bank_mask:0xf')
    spread(a, st, b2, lo=opt('b2lo', 0), hi=opt('b2hi', 160))
    a(f's_mul_i32 s3, s{S_W}, 1280'); a('v_add_u32 v34, s3, v4'); a('v_add_u32 v35, s3, v39'); a('v_add_u32 v35, 1024, v35')
    a('v_min_u32 v36, 59, v0'); a('v_lshlrev_b32 v36, 4, v36'); a('v_min_u32 v33, 304, v36')
    a(f's_lshr_b32 s50, s{S_J}, 2'); a('s_mul_i32 s50, s50, 960'); a(f's_add_u32 s50, s50, {WS_FA}'); a(f's_mov_b32 s49, {WS_MODP}')
    a(f's_mov_b32 s56, {fl(1/640)}'); a(f'v_mov_b32 v3, {fl(1e-5)}')
    for i in range(5): a(f'v_mul_f32 v{250+i}, s56, v{240+2*i}')
    for i in range(5): a(f'v_fma_f32 v{241+2*i}, v{241+2*i}, s56, v3')
    for i in range(5): a(f'v_fma_f32 v{241+2*i}, -v{250+i}, v{250+i}, v{241+2*i}')
    for i in range(5): a(f'v_max_f32 v{241+2*i}, v{241+2*i}, v3')
    for i in range(5): a(f'v_rsq_f32 v{240+2*i}, v{241+2*i}')
    for i in range(5): a(f'v_mul_f32 v{241+2*i}, -v{250+i}, v{240+2*i}')
    for i in range(5):
        P = 240 + 2 * i
        if i == opt('pol', 0):
            for t in POLLS: hp = a(t)
            tn(a, 'pi')
        for u in range(5):
            b = XN + (i * 5 + u) * 8
            for e in range(4):
                p = f'v[{b+2*e}:{b+2*e+1}]'
                a(f'v_pk_fma_f32 {p}, {p}, v[{P}:{P+1}], v[{P}:{P+1}] op_sel:[0,0,1] op_sel_hi:[1,0,1]')
    tn(a, 'ln')
    a('v_lshrrev_b32 v3, 2, v1'); a('v_lshlrev_b32 v3, 10, v3'); a('v_and_b32 v247, 3, v1'); a('v_lshl_add_u32 v3, v247, 8, v3')
    a('v_and_b32 v247, 7, v1'); a('s_movk_i32 s52, 20480'); a('v_add_u32 v250, s79, v2')
    for i in range(5):
        a(f's_bfe_u32 s3, s73, {hex(0x40000 + 4*i)}'); a('v_lshl_add_u32 v248, s3, 2, v250')
        a('v_and_b32 v249, 15, v248'); a('v_xor_b32 v249, v249, v247'); a('v_lshrrev_b32 v248, 4, v248')
        a('v_mad_u32_u24 v248, v248, s52, v3'); a(f'v_lshl_add_u32 v{240+i}, v249, 4, v248')
    a('v_lshlrev_b32 v247, 5, v1'); a(f'v_add_u32 v247, {L_MODL}, v247')
    a(f's_mul_i32 s52, s{S_J}, 5'); a(f's_add_u32 s53, s52, s{S_W}')
    a('s_add_u32 s32, s53, 40'); a('s_add_u32 s33, s53, 80'); a('s_mov_b32 s35, s53')
    a(f's_lshl_b32 s54, s{S_W}, 3'); a('s_lshr_b32 s34, 0x04542c, s54'); a('s_and_b32 s34, s34, 0xff'); a('s_add_u32 s34, s34, s52')
    for q in range(4):
        a(f's_mul_i32 s{32+q}, s{32+q}, 20480'); a(f's_add_u32 s{32+q}, s{32+q}, {WS_WQ}')
    a(f's_mov_b64 s[12:13], s[{S_WS}:{S_WS+1}]'); a(f's_cmp_eq_u32 s{S_W}, 3'); a(f's_cselect_b32 s14, 0, s{S_WS+2}'); a('s_mov_b32 s15, 0x20000')
    a(f'v_add_u32 v24, {L_MODL}, v34'); a('v_mov_b32 v254, v34'); a('v_mov_b32 v255, v35'); a(f'v_add_u32 v25, {L_MODL}, v35')
    tn(a, 'vp')
    a.wait_id(hp); tn(a, 'pw'); a.wait(lg=0)
POLLS = [f'buffer_load_dwordx4 v[16:19], v36, {WSR}, s50 offen sc1', f'buffer_load_dwordx4 v[8:11], v34, {WSR}, s49 offen sc1', f'buffer_load_dwordx4 v[12:15], v35, {WSR}, s49 offen sc1', f'buffer_load_dwordx4 v[20:23], v33, {WSR}, s50 offen offset:2048 sc1']
def main_kernel(a):
    k = K(a)
    tn(a, 's')
    a('s_cmp_ge_u32 s2, 256'); a('s_cbranch_scc1 EXIT_p0')
    for r, o in ((64 - 28, None), (S_WS, 80), (52, 48), (56, 56), (S_X, 0), (64, 40), (68, 32), (S_O, 64)):
        a('s_load_dwordx4 s[36:39], s[0:1], 8' if o is None else f's_load_dwordx2 s[{r}:{r+1}], s[0:1], {o}')
    a('v_lshrrev_b32 v2, 6, v0'); a('v_and_b32 v0, 63, v0'); a(f'v_readfirstlane_b32 s{S_W}, v2')
    a('v_and_b32 v1, 15, v0'); a('v_lshrrev_b32 v2, 4, v0')
    a('s_and_b32 s3, s2, 7'); a(f's_lshr_b32 s{S_J}, s2, 5'); a(f's_bfe_u32 s{S_RB}, s2, 0x20003')
    a(f's_lshl2_add_u32 s{S_RB}, s3, s{S_RB}')
    a(f's_mov_b32 s{S_WS+2}, 0x10000000'); a(f's_mov_b32 s{S_WS+3}, 0x20000')
    a('s_cmp_ge_u32 s2, 160'); a('s_cbranch_scc1 FRONT_B')
    import copy
    b = Asm(); b.vm = copy.deepcopy(a.vm); b.lg = copy.deepcopy(a.lg); b.n = a.n; b.hist = list(a.hist)
    kb = K(b); kb.nl = 500
    front(b, kb, 'B'); b.wait(lg=0)
    front(a, k, 'A'); a.wait(lg=0)
    b1, b2 = b.text().split('@SPLIT\n')
    a.out[a.out.index('@SPLIT')] = '  s_branch FRONT_A2\nFRONT_B:\n' + b1 + '  s_branch FRONT_B2\nFRONT_A2:'
    k.tail.append('FRONT_B2:\n' + b2 + '  s_branch JOIN')
    a.label('JOIN')
    wqs = [wq_ld(s, sl) for s in range(20) for sl in range(4)]
    fac = [f'v_xor_b32 v16, s{S_E}, v16'] + [f'v_bitop3_b32 v16, v16, s{S_E}, v{16+e} bitop3:0xf6' for e in range(1, 8)] + ['v_cmp_eq_u32 vcc, 0, v16']
    for t in fac: a(t)
    a('s_nop 3'); a('s_cmp_eq_u64 vcc, -1'); a('s_cbranch_scc0 FASPIN')
    a.label('FADONE')
    tn(a, 'fa')
    k.tail.append(f"""FASPIN:
  s_mov_b32 s72, 0x8000
FASPINL:
  {POLLS[0]}
  {POLLS[3]}
  {POLLS[1]}
  {POLLS[2]}
  s_waitcnt vmcnt(0)
  {chr(10).join(fac)}
  s_sub_u32 s72, s72, 1
  s_cbranch_scc1 FADONE
  s_cmp_eq_u64 vcc, -1
  s_cbranch_scc0 FASPINL
  s_branch FADONE""")
    NW0 = opt('nw0', 16)
    chk = [f'v_xor_b32 v17, s{S_E}, v8'] + [f'v_bitop3_b32 v17, v17, s{S_E}, v{8+e} bitop3:0xf6' for e in range(1, 8)] + ['v_lshlrev_b32 v17, 16, v17', 'v_cmp_eq_u32 vcc, 0, v17']
    for t in chk: a(t)
    for t in wqs[:NW0]: a(t)
    a('s_cmp_eq_u64 vcc, -1'); a('s_cbranch_scc0 MSPIN')
    a.label('MDONE')
    k.tail.append(f"""MSPIN:
  s_mov_b32 s72, 0x8000
MSPINL:
  {POLLS[1]}
  {POLLS[2]}
  s_waitcnt vmcnt(0)
""" + ''.join(f'  {t}\n' for t in chk) + """  s_sub_u32 s72, s72, 1
  s_cbranch_scc1 MDONE
  s_cmp_eq_u64 vcc, -1
  s_cbranch_scc0 MSPINL
  s_branch MDONE""")
    for e in range(8): a(f'v_and_b32 v{8+e}, 0xffff0000, v{8+e}')
    a('ds_write_b128 v24, v[8:11]'); a('ds_write_b128 v25, v[12:15]')
    tn(a, 'poll')
    a(f's_mul_i32 s36, s{S_J}, {5*20480}'); a(f's_mul_i32 s3, s{S_W}, 5120'); a('s_add_u32 s36, s36, s3'); a(f's_add_u32 s36, s36, {WS_WO}')
    a.wait(lg=0); a.barrier()
    tn(a, 'bar')
    def gs_read(u):
        b = 8 + 16 * (u % 2); l = []
        for q in range(2):
            l.append(f'ds_read_b128 v[{b+4*q}:{b+4*q+3}], v247 offset:{512*u + 16*q}')
            l.append(f'ds_read_b128 v[{b+8+4*q}:{b+8+4*q+3}], v247 offset:{2560 + 512*u + 16*q}')
        return l
    st = gs_read(0)
    for u in range(5):
        if u < 4: st += gs_read(u + 1)
        gb = 8 + 16 * (u % 2)
        for i in range(5):
            b = XN + (i * 5 + u) * 8
            for e in range(4):
                p = f'v[{b+2*e}:{b+2*e+1}]'
                st.append(f'v_pk_fma_f32 {p}, {p}, v[{gb+8+2*e}:{gb+9+2*e}], v[{gb+2*e}:{gb+2*e+1}]')
            for e in range(4): st.append(f'v_cvt_pk_bf16_f32 v{b+e}, v{b+2*e}, v{b+2*e+1}')
            st.append(f'ds_write_b128 v{240+i}, v[{b}:{b+3}] offset:{4096*u}')
    so = []; A = so.append
    for t in range(1, 5): A(f's_add_u32 s{36+t}, s{35+t}, 20480')
    A(f's_lshl2_add_u32 s41, s{S_J}, s{S_W}'); A(f's_mul_i32 s41, s41, {3*20480}'); A(f's_add_u32 s41, s41, {WS_W1}')
    A('s_add_u32 s42, s41, 20480'); A('s_add_u32 s43, s42, 20480')
    A(f's_mul_i32 s44, s{S_J}, {5*49152}'); A(f's_mul_i32 s3, s{S_W}, 12288'); A('s_add_u32 s44, s44, s3'); A(f's_add_u32 s44, s44, {WS_W2}')
    for t in range(1, 5): A(f's_add_u32 s{44+t}, s{43+t}, 49152')
    A(f's_lshl_b32 s27, s{S_RB}, 9'); A(f's_add_u32 s27, s27, {WS_FL}')
    A(f's_lshr_b32 s3, s{S_J}, 1'); A('s_lshl_b32 s3, s3, 7'); A('s_add_u32 s26, s27, s3')
    A(f's_and_b32 s3, s{S_J}, 1'); A(f's_lshl2_add_u32 s3, s3, s{S_W}'); A('s_lshl2_add_u32 s26, s3, s26')
    A(f's_lshl_b32 s3, s{S_W}, 7'); A('s_add_u32 s27, s27, s3')
    spread(a, st, wqs[NW0:4*RING])
    a('s_getreg_b32 s3, hwreg(HW_REG_XCC_ID)'); a('s_and_b32 s3, s3, 15'); a(f's_add_u32 s25, s{S_E}, s3')
    a(f's_lshl3_add_u32 s50, s{S_RB}, s{S_J}'); a(f's_lshl2_add_u32 s50, s50, {WS_FB}')
    a(f's_cmp_eq_u32 s{S_W}, 0'); a('s_cselect_b32 s3, 0, 0x80000000'); a('v_mov_b32 v250, s25'); a('v_mov_b32 v251, s3')
    a('v_add_u32 v8, 16384, v4')
    a('v_and_b32 v9, 7, v0'); a('v_lshlrev_b32 v9, 2, v9')
    a('v_xor_b32 v3, v1, v2'); a('v_lshlrev_b32 v20, 8, v2'); a('v_lshl_add_u32 v20, v3, 4, v20')
    a('v_xor_b32 v21, 64, v20'); a('v_add_u32 v22, 61440, v20'); a('v_add_u32 v23, 61440, v21')
    a.wait(lg=0); a.barrier()
    tn(a, 'p1')
    ACC = 40; XF = 116; QR = 160
    def xread(s):
        l = []
        for mt in range(5):
            r = XF + 20 * (s % 2) + 4 * mt
            off = (mt * 20 + s) * 1024; ad = 20 + (s & 1)
            if off >= 61440: off -= 61440; ad += 2
            l.append(f'ds_read_b128 v[{r}:{r+3}], v{ad} offset:{off}')
        return l
    for t in xread(0): a(t)
    side = []
    A = side.append
    A('v_lshrrev_b32 v3, 2, v1'); A('v_xor_b32 v3, v3, v2'); A('v_lshlrev_b32 v3, 3, v3'); A('v_lshl_add_u32 v3, v1, 5, v3')
    A(f's_add_u32 s57, s{S_W}, 5'); A(f's_add_u32 s58, s{S_W}, 10'); A(f's_mov_b32 s60, s{S_W}')
    A('s_lshr_b32 s59, 0x0f040e09, s54'); A('s_and_b32 s59, s59, 0xff')
    for q in range(4):
        A(f's_mul_i32 s{57+q}, s{57+q}, 2560'); A(f's_add_u32 s{57+q}, s{57+q}, {L_DUMP}'); A(f'v_add_u32 v{24+q}, s{57+q}, v3')
    A(f's_lshl_b32 s57, s{S_W}, 9'); A(f's_add_u32 s57, s57, {L_DUMP}')
    A('v_add_u32 v28, s57, v3')
    A('v_and_b32 v3, 3, v1'); A('v_xor_b32 v3, v3, v2'); A('v_lshlrev_b32 v3, 3, v3')
    A('v_and_b32 v10, 60, v0'); A('v_lshl_add_u32 v3, v10, 3, v3'); A('v_add_u32 v29, s57, v3')
    A('v_and_b32 v3, 1, v1'); A('v_cmp_eq_u32 s[74:75], 1, v3')
    A('v_lshl_add_u32 v10, v2, 2, v3'); A('v_cmp_le_u32 s[76:77], v10, v1')
    A('v_add_u32 v10, 2, v10'); A('v_cmp_le_u32 s[78:79], v10, v1')
    A('v_mov_b32 v10, 0x0c0c0100'); A('v_mov_b32 v11, 0x01000c0c'); A('v_cndmask_b32 v10, v10, v11, s[74:75]')
    A('v_mov_b32 v11, 0x0c0c0302'); A('v_mov_b32 v12, 0x03020c0c'); A('v_cndmask_b32 v11, v11, v12, s[74:75]')
    A('v_mov_b32 v12, 0x0c0c0c0c')
    A('v_cndmask_b32 v30, v10, v12, s[76:77]'); A('v_cndmask_b32 v31, v11, v12, s[78:79]')
    A('v_cndmask_b32 v32, v12, v10, s[76:77]'); A('v_cndmask_b32 v33, v12, v11, s[78:79]')
    A(f's_or_b32 s57, s{S_RB}, s{S_W}'); A('s_cmp_eq_u32 s57, 0'); A(f's_cselect_b32 s57, {fl(-1e30)}, 0')
    for q in range(4): A(f'v_mov_b32 v{34+q}, s57')
    for q in range(16): A(f'v_mov_b32 v{QR+q}, 0')
    M2 = 216; M3 = 224
    lm = Mod(True, LM['W'], LM['C'], LM['AC'], 0, 0, LM['T'], 0, 0, 0, 29)
    early = []; A = early.append
    tr_addr(A, 253, 8192, L_ST, 203, 55)
    A('s_cmp_lt_u32 s2, 160\ns_cselect_b32 s55, 0x80000000, 0'); A('v_or_b32 v252, s55, v4')
    H = {}
    early += uproc(6, 204, 62, 20480, 253, 252)
    A(f's_lshl3_add_u32 s73, s{S_RB}, s{S_J}'); A(f's_and_b32 s55, s{S_W}, 1'); A('s_lshl1_add_u32 s73, s73, s55'); A('s_mul_i32 s73, s73, 6144')
    A(f's_lshr_b32 s55, s{S_W}, 1'); A(f's_mul_i32 s55, s55, {WS_X1G - WS_OF}'); A('s_add_u32 s73, s73, s55'); A(f's_add_u32 s73, s73, {WS_OF}')
    if opt('prew', 1):
        for q in range(6): A(f'buffer_store_dwordx4 v[4:7], v{4 + q // 4}, {WSR}, s73 offen offset:{1024 * (q % 4)} sc1')
    A(lambda: H.update(v=a.vm[-1][0]))
    modw = [f'v_accvgpr_read_b32 v{r}, a{r}' for r in list(range(196, 201)) + list(range(176, 196))] + lm.silu() + lm.dot()
    s2 = []; A = s2.append
    A('s_min_u32 s52, s2, 239'); A('s_mul_i32 s28, s52, 13108'); A('s_lshr_b32 s28, s28, 16'); A('s_mul_i32 s53, s28, 5'); A('s_sub_u32 s52, s52, s53')
    A(f's_lshl3_add_u32 s62, s52, s{S_W}'); A('s_mul_i32 s62, s62, 49152'); A('s_lshl_b32 s53, s28, 10'); A('s_add_u32 s62, s62, s53'); A(f's_add_u32 s62, s62, {WS_W2}')
    A('s_lshl_b32 s52, s52, 8'); A('v_and_b32 v202, 7, v0'); A('v_lshlrev_b32 v202, 4, v202')
    perm_src(A, 28, 6, 1280, 202, 52, 52, 53, 55, 63, 202, 203)
    A(f's_mov_b32 s66, {1536*1280}'); A('s_mov_b32 s67, 0x20000'); A('s_and_b32 s65, s65, 0xffff'); A(f's_lshl_b32 s53, s{S_W}, 11'); A('s_add_u32 s53, s53, 61440')
    w2dma = [f's_add_u32 m0, s53, {t*896}\nbuffer_load_dwordx4 v202, s[64:67], s52 offen offset:{128*t}{NT} lds' for t in range(2)] + [lambda: H.update(w2=a.vm[-1][0])]
    A('v_min_u32 v204, 47, v0'); A('v_lshlrev_b32 v204, 7, v204')
    if opt('touch', 1): w2dma.append(f'buffer_load_dword v204, v204, {WSR}, s73 offen sc1{NTT}')
    w2dma.append(k.poll_issue(156))
    A(f's_lshl2_add_u32 s49, s{S_RB}, s{S_W}'); A(f's_mul_i32 s49, s49, {16*1280}'); A(f's_mul_i32 s61, s{S_J}, 160'); A('s_add_u32 s49, s49, s61')
    for i in range(3):
        r = 205 + i
        A(f'v_add_u32 v{r}, {64*i}, v0'); A(f'v_mul_u32_u24 v216, 6554, v{r}'); A('v_lshrrev_b32 v216, 16, v216'); A(f'v_lshlrev_b32 v{r}, 4, v{r}')
        A(f'v_mul_u32_u24 v216, {1280-160}, v216'); A(f'v_add_u32 v{r}, v216, v{r}')
    A('v_lshlrev_b32 v216, 26, v0'); A('v_and_b32 v216, 0x80000000, v216'); A('v_or_b32 v207, v216, v207')
    A(f's_mul_i32 s60, s{S_W}, 3072'); A(f's_add_u32 s60, s60, {L_XR}')
    for i in range(3): w2dma.append(f's_add_u32 m0, s60, {1024*i}\nbuffer_load_dwordx4 v{205+i}, s[{S_X}:{S_X+3}], s49 offen lds')
    w2dma += ['v_mul_u32_u24 v39, 160, v1', 'v_lshl_add_u32 v39, v2, 3, v39', 'v_add_u32 v39, s60, v39']
    s3_ = []; A = s3_.append
    tr_addr(A, 253, 2048, 61440, 203, 55)
    A(f's_lshl_b32 s55, s{S_W}, 4'); A('v_add_u32 v38, s55, v1')
    A('v_mul_u32_u24 v203, 3277, v0'); A('v_lshrrev_b32 v203, 16, v203')
    A('v_mul_u32_u24 v252, 320, v203'); A('v_sub_u32 v252, v4, v252')
    A('v_lshlrev_b32 v203, 2, v203'); A('s_movk_i32 s55, 0x3320'); A('v_lshrrev_b32 v203, v203, s55'); A('v_and_b32 v203, 15, v203')
    A('v_mul_u32_u24 v203, 2560, v203');
    A(f's_mul_i32 s55, s{S_J}, 320'); A('v_add3_u32 v252, v252, v203, s55'); A(f's_mov_b32 s63, {WS_MODP + 1280 * 4}')
    MLD = [f'buffer_load_dwordx4 v[{M3}:{M3+3}], v252, {WSR}, s63 offen sc1', f'buffer_load_dwordx4 v[{M2}:{M2+3}], v254, {WSR}, s63 offen offset:2560 sc1',
           f'buffer_load_dwordx4 v[{M2+4}:{M2+7}], v255, {WSR}, s63 offen offset:2560 sc1']
    s4 = []; A = s4.append
    A(f's_and_b32 s55, s{S_W}, 1'); A('s_mul_i32 s55, s55, 80')
    A(f's_cmp_ge_u32 s{S_W}, 2\ns_cselect_b32 s49, 0, 64'); A(f's_add_u32 s49, s49, {L_GS}')
    A('s_mov_b32 s58, 0x65483210'); A('s_mov_b32 s59, 0x97')
    for r in range(2):
        if r == 0: A('v_add_u32 v176, s55, v0')
        else: A('v_add_u32 v176, s55, v1'); A('v_add_u32 v176, 64, v176')
        A('v_lshrrev_b32 v177, 2, v176')
        A('v_mul_u32_u24 v178, 6554, v177'); A('v_lshrrev_b32 v178, 16, v178')
        A('v_mul_u32_u24 v179, 10, v178'); A('v_sub_u32 v177, v177, v179'); A('v_lshlrev_b32 v177, 2, v177')
        A('v_lshrrev_b64 v[180:181], v177, s[58:59]'); A('v_and_b32 v177, 15, v180')
        A('v_lshrrev_b32 v179, 1, v177'); A('v_mad_u32_u24 v178, v178, 5, v179')
        A('v_and_b32 v177, 1, v177'); A('v_lshlrev_b32 v177, 3, v177'); A('v_lshl_add_u32 v177, v178, 7, v177')
        A('v_and_b32 v176, 3, v176'); A('v_lshl_add_u32 v177, v176, 4, v177'); A(f'v_add_u32 v{250+r}, s49, v177')
    A(f'v_add_u32 v249, {L_OWN}, v4')
    def mod2_fin():
        chk = [f'v_xor_b32 v228, s{S_E}, v{M2}'] + [f'v_bitop3_b32 v228, v228, s{S_E}, v{M2+e} bitop3:0xf6' for e in range(1, 12)] + ['v_lshlrev_b32 v228, 16, v228', 'v_cmp_eq_u32 vcc, 0, v228']
        for t in chk: a(t)
        a('s_mov_b32 s3, 0x07060302'); a('s_nop 2'); a('s_cmp_eq_u64 vcc, -1'); a('s_cbranch_scc0 M2SPIN')
        a.label('M2DONE')
        k.tail.append('M2SPIN:\n  s_mov_b32 s72, 0x8000\nM2SPINL:\n' + ''.join(f'  {t}\n' for t in MLD + ['s_waitcnt vmcnt(0)'] + chk) +
                      '  s_sub_u32 s72, s72, 1\n  s_cbranch_scc1 M2DONE\n  s_cmp_eq_u64 vcc, -1\n  s_cbranch_scc0 M2SPINL\n  s_branch M2DONE')
        for e in range(4): a(f'v_perm_b32 v{228+e}, v{M2+2*e+1}, v{M2+2*e}, s3')
        for e in range(4): a(f'v_and_b32 v{M3+e}, 0xffff0000, v{M3+e}')
        a('ds_write_b64 v250, v[228:229]'); a('ds_write_b64 v251, v[230:231]'); a(f'ds_write_b128 v249, v[{M3}:{M3+3}]')
    FBL = f'buffer_load_dwordx4 v[232:235], v4, {WSR}, s51 offen sc1'
    fbc = [f'v_subrev_u32 v{236+e}, s{S_E}, v{232+e}' for e in range(4)] + ['v_max3_u32 v236, v236, v237, v238', 'v_max_u32 v236, v236, v239', 'v_cmp_gt_u32 vcc, 16, v236']
    def fb_issue(): a(f's_mov_b32 s51, {WS_FB}'); a(FBL)
    def fb_check():
        for t in fbc: a(t)
        a('s_nop 3'); a('s_cmp_eq_u64 vcc, -1'); a('s_cbranch_scc0 FBSPIN')
        a.label('FBDONE')
        a('v_xor_b32 v236, s25, v232')
        for e in range(1, 4): a(f'v_bitop3_b32 v236, v236, s25, v{232+e} bitop3:0xf6')
        a('v_cmp_eq_u32 vcc, 0, v236'); a(f's_lshl_b32 s3, s{S_RB}, 1'); a(f'v_mov_b32 v236, s{S_E}'); a(f's_or_b32 s49, s2, s{S_W}'); a('s_nop 1')
        a('s_lshr_b64 s[58:59], vcc, s3'); a('s_and_b32 s3, s58, 3'); a('s_cmp_eq_u32 s3, 3'); a(f's_cselect_b32 s{S_FAST}, {0 if "slow" in OPT else 1}, 0')
        a('s_cmp_eq_u32 s49, 0'); a('s_cselect_b32 s3, 0, 0x80000000'); a('v_mov_b32 v237, s3'); a(f's_mov_b32 s3, {WS_EP}')
        a(f'buffer_store_dword v236, v237, {WSR}, s3 offen sc1')
        k.tail.append('FBSPIN:\n  s_mov_b32 s72, 0x8000\nFBSPINL:\n  ' + FBL + '\n  s_waitcnt vmcnt(0)\n' + ''.join(f'  {t}\n' for t in fbc) +
                      '  s_sub_u32 s72, s72, 1\n  s_cbranch_scc1 FBDONE\n  s_cmp_eq_u64 vcc, -1\n  s_cbranch_scc0 FBSPINL\n  s_branch FBDONE')
    wos = [wo_ld(t, i) for i in range(5) for t in range(5)]
    FBI = opt('fbi', 16); MB = 10
    w1_early = []
    for s in range(20):
        main = []
        for mt in range(5):
            for sl in range(4):
                if sl == 3 and mt == 0: continue
                ac = ACC + 4 * (sl * 5 + mt - (1 if sl == 3 else 0))
                c = '0' if s == 0 else q4('v', ac)
                main.append(f'{MF} {q4("v", ac)}, {wq_reg(s, sl)}, {q4("v", XF + 20 * (s % 2) + 4 * mt)}, {c}')
        fill = xread(s + 1) if s < 19 else []
        if 1 <= s <= 20 - RING: fill += wqs[4 * (s - 1 + RING): 4 * (s + RING)]
        def part(l, lo, hi): n = -(-len(l) // (hi - lo)); return l[(s - lo) * n:(s - lo + 1) * n] if lo <= s < hi else []
        fill += part(wos, 12, 19)
        oth = part(early, 0, 2) + part(modw, 2, 10)
        if s == MB: oth += lm.fin()
        oth += part(so + s2, 9, 12) + part(w2dma, 12, 13) + part(s3_ + side + s4, 13, 20)
        if s == FBI: oth += [fb_issue] + MLD
        fill = mix(oth, fill) if len(oth) > len(fill) else mix(fill, oth)
        if s == MB:
            def mid(): a.wait_id(H['v']); a.wait(lg=0); a.barrier(); tn(a, 'mid'); a(f'buffer_store_dword v250, v251, {WSR}, s50 offen sc1')
            fill = [mid] + fill
        tn(a, f's{s}')
        spread(a, main, fill, hi=18)
    tn(a, 'p1e')
    w1q = [w1_ld(f) for f in range(60)]
    def w1n(n):
        l = w1q[:n]; del w1q[:n]; return l
    st = []
    for sl in range(4):
        for mt in range(5):
            if sl == 3 and mt == 0: continue
            ac = ACC + 4 * (sl * 5 + mt - (1 if sl == 3 else 0))
            st += [f'v_cvt_pk_bf16_f32 v{ac}, v{ac}, v{ac+1}', f'v_cvt_pk_bf16_f32 v{ac+1}, v{ac+2}, v{ac+3}',
                   f'ds_write_b64 v{24+sl}, v[{ac}:{ac+1}] offset:{512*mt}']
    spread(a, st[:30], [])
    fb_check()
    spread(a, st[30:], w1n(opt('n1', 6)))
    a.wait_id(H['w2']); a.wait(lg=0); a.barrier()
    K0, K1, VR, SR = 120, 130, 140, 176
    st = []; A = st.append
    def sx(m): A(f's_mov_b32 exec_lo, {hex(m & 0xffffffff)}'); A(f's_mov_b32 exec_hi, {hex(m >> 32)}')
    for t in range(5):
        a(f'ds_read_b64 v[{K0+2*t}:{K0+2*t+1}], v28 offset:{(5+t)*2560}')
        a(f'ds_read_b64 v[{K1+2*t}:{K1+2*t+1}], v28 offset:{(5+t)*2560+512}')
    for h in range(4):
        k.setexec((FULL << (16 * h)) & FULL)
        a(f'ds_read_b64 v[{QR+4*h}:{QR+4*h+1}], v28 offset:{h*2560+512}')
        k.setexec((1 << (16 * (h + 1))) - 1)
        a(f'ds_read_b64 v[{QR+4*h+2}:{QR+4*h+3}], v28 offset:{(h+1)*2560+512}')
    for t in range(5):
        a(f'ds_read_b64_tr_b16 v[{VR+4*t}:{VR+4*t+1}], v29 offset:{(10+t)*2560}')
        a(f'ds_read_b64_tr_b16 v[{VR+4*t+2}:{VR+4*t+3}], v29 offset:{(10+t)*2560+512}')
    w2p = uproc(2, 208, 62, 49152, 253, 4, 'v')
    for t in w2p[:4]: a(t)
    H = range(4)
    for h in H:
        A(f'{MF} v[{SR+8*h}:{SR+8*h+3}], v[{K0+2*h}:{K0+2*h+3}], v[{QR+4*h}:{QR+4*h+3}], v[34:37]')
        A(f'{MF} v[{SR+8*h+4}:{SR+8*h+7}], v[{K1+2*h}:{K1+2*h+3}], v[{QR+4*h}:{QR+4*h+3}], 0')
    for h in H:
        b = SR + 8 * h
        for e in (0, 2, 4, 6): A(f'v_cndmask_b32 v{b+e}, v{b+e}, v{b+e+1}, s[74:75]')
        A(f'v_cndmask_b32 v{b}, v{b}, v{b+4}, s[76:77]'); A(f'v_cndmask_b32 v{b+1}, v{b+2}, v{b+6}, s[78:79]')
    def bfly(op, r):
        for sw in ('v_permlane16_swap_b32', 'v_permlane32_swap_b32'):
            for h in H: A(f'v_mov_b32 v{SR+8*h+r+1}, v{SR+8*h+r}')
            for h in H: A(f'{sw} v{SR+8*h+r}, v{SR+8*h+r+1}')
            for h in H: A(f'{op} v{SR+8*h+r}, v{SR+8*h+r}, v{SR+8*h+r+1}')
    for h in H: A(f'v_max_f32 v{SR+8*h+2}, v{SR+8*h}, v{SR+8*h+1}')
    bfly('v_max_f32', 2)
    CS = LOG2E * 20 ** -0.5
    A(f's_mov_b32 s57, {fl(CS)}')
    for h in H: A(f'v_mul_f32 v{SR+8*h+2}, {fl(-CS)}, v{SR+8*h+2}')
    for h in H:
        b = SR + 8 * h
        A(f'v_fma_f32 v{b}, v{b}, s57, v{b+2}'); A(f'v_fma_f32 v{b+1}, v{b+1}, s57, v{b+2}')
    for h in H:
        b = SR + 8 * h
        A(f'v_exp_f32 v{b}, v{b}'); A(f'v_exp_f32 v{b+1}, v{b+1}')
    for h in H: A(f'v_add_f32 v{SR+8*h+2}, v{SR+8*h}, v{SR+8*h+1}')
    bfly('v_add_f32', 2)
    for h in H: A(f'v_rcp_f32 v{SR+8*h+2}, v{SR+8*h+2}')
    for h in H:
        b = SR + 8 * h
        A(f'v_mul_f32 v{b}, v{b}, v{b+2}'); A(f'v_mul_f32 v{b+1}, v{b+1}, v{b+2}')
    for h in H: A(f'v_cvt_pk_bf16_f32 v{SR+8*h}, v{SR+8*h}, v{SR+8*h+1}')
    for h in H:
        b = SR + 8 * h
        for q in range(4): A(f'v_perm_b32 v{b+4+q}, v{b}, v{b}, v{30+q}')
    OR = 40
    for h in H:
        b = SR + 8 * h + 4
        A(f'{MF} v[{OR+8*h}:{OR+8*h+3}], v[{VR+4*h}:{VR+4*h+3}], v[{b}:{b+3}], 0')
        A(f'{MF} v[{OR+8*h+4}:{OR+8*h+7}], v[{VR+4*h+4}:{VR+4*h+7}], v[{b}:{b+3}], 0')
    spread(a, st, w2p[4:] + w1n(opt('n2', 12)), lo=8, hi=opt('n2hi', 110))
    a(f's_mul_i32 s28, s{S_RB}, {RSZ}'); a(f's_add_u32 s28, s28, {WS_OF}'); a(f's_mul_i32 s57, s{S_W}, 20480'); a('s_add_u32 s57, s57, s28')
    frag_offsets(a, 57, 58, 3)
    F = 80
    a(f'v_cvt_pk_bf16_f32 v{F}, v{OR}, v{OR+1}'); a(f'v_cvt_pk_bf16_f32 v{F+1}, v{OR+2}, v{OR+3}')
    for t in (1, 2, 3, 4):
        s_ = OR + 8 * (t - 1) + 4
        a(f'v_cvt_pk_bf16_f32 v{F+2*t}, v{s_}, v{s_+1}'); a(f'v_cvt_pk_bf16_f32 v{F+2*t+1}, v{s_+2}, v{s_+3}')
    for t in (1, 2, 3):
        k.setexec((FULL << (16 * t)) & FULL)
        s_ = OR + 8 * t
        a(f'v_cvt_pk_bf16_f32 v{F+2*t}, v{s_}, v{s_+1}'); a(f'v_cvt_pk_bf16_f32 v{F+2*t+1}, v{s_+2}, v{s_+3}')
    a('s_mov_b64 exec, -1')
    h = k.stores(frag_store80(F, 57, 58))
    tn(a, 'att')
    XR, ACC = 64 + 28, 40
    GA, GG = 152, 40; X1 = 92
    a(f's_mul_i32 s3, s{S_W}, 5120')
    a('s_add_u32 s57, s28, s3')
    for q in range(4):
        a(f's_add_u32 s3, s{S_W}, {q+1}'); a('s_and_b32 s3, s3, 3')
        a(f's_mul_i32 s58, s3, 20480'); a(f's_add_u32 s{32+q}, s58, s57')
        if q < 3:
            a('s_mul_i32 s58, s3, 15360'); a(f's_add_u32 s58, s58, {q*5120}'); a(f'v_add_u32 v{20+q}, s58, v4')
    a(f's_mul_i32 s58, s{S_W}, 15360'); a('v_add_u32 v23, s58, v4')
    a(f'v_lshlrev_b32 v24, 4, v2'); a(f'v_add_u32 v24, {L_OWN}, v24')
    mod2_fin()
    for t in range(5): a(f'ds_read_b64 v[{10+2*t}:{11+2*t}], v39 offset:{32*t}')
    k.publish(h, 1, 3)
    for t in w1n(opt('n3', 3)): a(t)
    k.poll(1, 3)
    tn(a, 'p2')
    for q in range(4):
        for i in range(5): a(ld(q4('v', XR + (q * 5 + i) * 4), i, 32 + q, sc1=True))
    prev = []
    for q in range(4):
        ac = ACC + 20 * (q & 1)
        main = []
        for i in range(5):
            for t in range(5):
                c = '0' if i == 0 else q4('v', ac + 4 * t)
                main.append(f'{MF} {q4("v", ac + 4*t)}, {wo_reg(t, i)}, {q4("v", XR + (q*5+i)*4)}, {c}')
        spread(a, main, prev + (w1n(opt('n4', 6)) if q >= 1 else []), lo=4, hi=22)
        prev = [f'ds_write_b128 v{20+q}, {q4("v", ac+4*t)} offset:{1024*t}' for t in range(5)] if q < 3 else []
    a(f's_add_u32 s31, s28, {WS_X1G - WS_OF}'); a(f's_mul_i32 s57, s{S_W}, 20480'); a('s_add_u32 s57, s57, s31')
    frag_offsets(a, 57, 58, 3)
    a('v_lshlrev_b32 v38, 6, v38'); a(f's_lshl3_add_u32 s59, s{S_J}, s31'); a('s_add_u32 s59, s59, 81920')
    a(f's_cmp_eq_u32 s{S_W}, 0'); a('s_cselect_b32 s3, 0, 0x80000000'); a(f'v_mov_b32 v25, s{S_E}'); a('v_mov_b32 v26, s3')
    a.wait(lg=0); a.barrier()
    R = ACC + 20
    for q in range(3):
        for t in range(5): a(f'ds_read_b128 {q4("v", XR + (q*5+t)*4)}, v23 offset:{q*5120+t*1024}')
    for v, b in enumerate((GA, GG)):
        for t in range(5): a(f'ds_read_b128 v[{b+4*t}:{b+4*t+3}], v24 offset:{(20*v+4*t)*16}')
    a(f'buffer_store_dword v25, v26, {WSR}, s50 offen offset:1024 sc1')
    w2s = [w2_ld(f) for f in range(60)]
    st = []; A = st.append
    for q in range(3):
        for t in range(5):
            r = XR + (q * 5 + t) * 4
            for e in (0, 2): A(f'v_pk_add_f32 v[{R+4*t+e}:{R+4*t+e+1}], v[{R+4*t+e}:{R+4*t+e+1}], v[{r+e}:{r+e+1}]')
        if q == 0:
            for e in range(10): st += unpack(X1 + 2 * e, X1 + 2 * e + 1, 10 + e)
    for e in range(10): A(f'v_pk_fma_f32 v[{X1+2*e}:{X1+2*e+1}], v[{R+2*e}:{R+2*e+1}], v[{GA+2*e}:{GA+2*e+1}], v[{X1+2*e}:{X1+2*e+1}]')
    for e in range(10): A(f'v_cvt_pk_bf16_f32 v{10+e}, v{X1+2*e}, v{X1+2*e+1}')
    for e in range(10): st += unpack(X1 + 2 * e, X1 + 2 * e + 1, 10 + e)
    for e in range(10): A(f'v_pk_mul_f32 v[{R+2*e}:{R+2*e+1}], v[{X1+2*e}:{X1+2*e+1}], v[{GG+2*e}:{GG+2*e+1}]')
    F = 80
    for e in range(10): A(f'v_cvt_pk_bf16_f32 v{F+e}, v{R+2*e}, v{R+2*e+1}')
    spread(a, st, w1n(opt('n5', 5)), hi=30)
    k.stores(frag_store80(F, 57, 58))
    a(f'v_pk_add_f32 v[24:25], v[{X1}:{X1+1}], v[{X1+2}:{X1+3}]'); a(f'v_pk_mul_f32 v[26:27], v[{X1}:{X1+1}], v[{X1}:{X1+1}]')
    for e in range(1, 10):
        p = f'v[{X1+2*e}:{X1+2*e+1}]'
        if e > 1: a(f'v_pk_add_f32 v[24:25], v[24:25], {p}')
        a(f'v_pk_fma_f32 v[26:27], {p}, {p}, v[26:27]')
    a('v_add_f32 v24, v24, v25'); a('v_add_f32 v25, v26, v27')
    for sw in ('v_permlane16_swap_b32', 'v_permlane32_swap_b32'):
        a('v_mov_b32 v26, v24'); a('v_mov_b32 v27, v25')
        a(f'{sw} v24, v26'); a(f'{sw} v25, v27')
        a('v_add_f32 v24, v24, v26'); a('v_add_f32 v25, v25, v27')
    h = k.stores(['s_mov_b64 exec, 0xffff', f'buffer_store_dwordx2 v[24:25], v38, {WSR}, s59 offen', 's_mov_b64 exec, -1'])
    hst = a.vm[-1][0]
    tn(a, 'p2e')
    for t in w1n(99): a(t)
    XF = 40; NB = 6; ACC = 64; U1, T1, T = 88, 100, 112
    a('v_and_b32 v3, 1, v1'); a('v_lshlrev_b32 v3, 6, v3'); a('v_lshl_add_u32 v20, v2, 4, v3'); a(f'v_add_u32 v20, {L_GS}, v20')
    a(f'v_add_u32 v21, {L_X3}, v4'); a(f'v_add_u32 v22, {L_X3 + 40960}, v4')
    def xr(mt, s, slot):
        if mt == 4: return f'ds_read_b128 {q4("v", XF + 4*slot)}, v20 offset:{128*s}'
        return f'ds_read_b128 {q4("v", XF + 4*slot)}, v{21 + mt//2} offset:{((mt%2)*20+s)*1024}'
    PF = NB - 1
    def p3pass(mt, acb, fill, nxt=None, pre=True, lo=6, hi=56, base=0):
        if pre:
            for p in range(PF): a(xr(mt, p, (base + p) % NB))
        main = []
        for s in range(20):
            if s + PF < 20: main.append(xr(mt, s + PF, (base + s + PF) % NB))
            elif nxt is not None: main.append(xr(nxt, s + PF - 20, (base + s + PF) % NB))
            for t in range(3):
                c = '0' if s == 0 else q4('v', acb + 4 * t)
                main.append(f'{MF} {q4("v", acb + 4*t)}, {w1_reg(s*3+t)}, {q4("v", XF + 4*((base + s) % NB))}, {c}')
        spread(a, main, fill, lo=lo * 4 // 3, hi=hi * 4 // 3)
    a(f's_mul_i32 s55, s{S_W}, 5120'); a('s_add_u32 s29, s31, s55'); a(f's_add_u32 s55, s55, {L_X3}')
    def xdma(mt):
        a(f's_add_u32 s30, s29, {mt*20480}'); a(f's_add_u32 m0, s55, {mt*20480}')
        for i in range(4): a(f'buffer_load_dwordx4 v4, {WSR}, s30 offen offset:{1024*i} sc1 lds')
        a(f's_add_u32 m0, s55, {mt*20480 + 4096}')
        return a(f'buffer_load_dwordx4 v5, {WSR}, s30 offen sc1 lds')
    p3pass(4, ACC + 12, [lambda: k.publish(hst, 2, 3)], lo=18, hi=19)
    k.poll(2, 3)
    hx = [xdma(0)]
    FCL = f'buffer_load_dwordx4 v[124:127], v4, {WSR}, s51 offen offset:1024 sc1'
    a(FCL)
    hx += [xdma(mt) for mt in range(1, 4)]
    fcc = [f'v_xor_b32 v124, s{S_E}, v124'] + [f'v_bitop3_b32 v124, v124, s{S_E}, v{124+e} bitop3:0xf6' for e in range(1, 4)] + ['v_cmp_eq_u32 vcc, 0, v124']
    def fc_check():
        for t in fcc: a(t)
        a('s_nop 3'); a('s_cmp_eq_u64 vcc, -1'); a('s_cbranch_scc0 FCSPIN')
        a.label('FCDONE')
        k.tail.append('FCSPIN:\n  s_mov_b32 s72, 0x8000\nFCSPINL:\n' + ''.join(f'  {t}\n' for t in [FCL, 's_waitcnt vmcnt(0)'] + fcc) +
                      '  s_sub_u32 s72, s72, 1\n  s_cbranch_scc1 FCDONE\n  s_cmp_eq_u64 vcc, -1\n  s_cbranch_scc0 FCSPINL\n  s_branch FCDONE')
    C = -LOG2E
    for e in range(12):
        a(f'v_mov_b32_dpp v{U1+e}, v{ACC+12+e} quad_perm:[0,0,2,2] row_mask:0xf bank_mask:0xf')
        a(f'v_mov_b32_dpp v{T1+e}, v{ACC+12+e} quad_perm:[1,1,3,3] row_mask:0xf bank_mask:0xf')
    for e in range(12): a(f'v_mul_f32 v{T1+e}, {fl(C)}, v{T1+e}')
    a(f's_mul_i32 s53, s{S_J}, 6144'); a('s_add_u32 s52, s28, s53')
    a(f's_lshr_b32 s53, s{S_W}, 1'); a('s_lshl_b32 s53, s53, 10'); a('s_add_u32 s53, s53, s52'); a('s_add_u32 s53, s53, 4096')
    a(f's_and_b32 s3, s{S_W}, 1'); a('s_lshl3_add_u32 s53, s3, s53')
    a(f's_lshl_b32 s3, s{S_W}, 10'); a('s_add_u32 s52, s52, s3')
    a(f's_mov_b32 s54, {fl(C)}')
    a('s_add_u32 s30, s31, 81920')
    a('v_lshlrev_b32 v3, 6, v1'); a('v_lshl_add_u32 v3, v2, 4, v3')
    a.wait_id(hx[0]); a.barrier()
    tn(a, 'p3')
    for mt in range(4): a(f'buffer_load_dwordx4 v[{24+4*mt}:{27+4*mt}], v3, {WSR}, s30 offen offset:{1024*mt} sc1')
    M = range(4); st = []; A = st.append
    for m in M: A(f'v_add_f32 v{24+4*m}, v{24+4*m}, v{26+4*m}'); A(f'v_add_f32 v{25+4*m}, v{25+4*m}, v{27+4*m}')
    for sw in ('v_permlane16_swap_b32', 'v_permlane32_swap_b32'):
        for m in M: A(f'v_mov_b32 v{26+4*m}, v{24+4*m}'); A(f'v_mov_b32 v{27+4*m}, v{25+4*m}')
        for m in M: A(f'{sw} v{24+4*m}, v{26+4*m}'); A(f'{sw} v{25+4*m}, v{27+4*m}')
        for m in M: A(f'v_add_f32 v{24+4*m}, v{24+4*m}, v{26+4*m}'); A(f'v_add_f32 v{25+4*m}, v{25+4*m}, v{27+4*m}')
    A(f'v_mov_b32 v3, {fl(1e-5)}')
    for m in M: A(f'v_mul_f32 v{26+4*m}, s56, v{24+4*m}')
    for m in M: A(f'v_fma_f32 v{25+4*m}, v{25+4*m}, s56, v3')
    for m in M: A(f'v_fma_f32 v{25+4*m}, -v{26+4*m}, v{26+4*m}, v{25+4*m}')
    for m in M: A(f'v_max_f32 v{25+4*m}, v{25+4*m}, v3')
    for m in M: A(f'v_rsq_f32 v{24+4*m}, v{25+4*m}')
    for m in M: A(f'v_mul_f32 v{24+4*m}, s54, v{24+4*m}')
    for m in M: A(f'v_mul_f32 v{25+4*m}, -v{26+4*m}, v{24+4*m}')
    hs = {}
    def epi(mt):
        ac = ACC + 12 * (mt & 1); P = 24 + 4 * mt; l = []
        for e in range(12): l.append(f'v_fma_f32 v{T+e}, v{U1+e}, v{P+1}, v{T1+e}')
        for e in range(12): l.append(f'v_fma_f32 v{ac+e}, v{ac+e}, v{P}, v{T+e}')
        for e in range(12): l.append(f'v_exp_f32 v{T+e}, v{ac+e}')
        for e in range(12): l.append(f'v_fma_f32 v{T+e}, v{T+e}, s54, s54')
        for e in range(12): l.append(f'v_rcp_f32 v{T+e}, v{T+e}')
        for e in range(12): l.append(f'v_mul_f32 v{ac+e}, v{ac+e}, v{T+e}')
        for e in range(6): l.append(f'v_cvt_pk_bf16_f32 v{T+e}, v{ac+2*e}, v{ac+2*e+1}')
        def sto():
            hs[mt] = k.stores([f'buffer_store_dwordx4 v[{T}:{T+3}], v4, {WSR}, s52 offen', f'buffer_store_dwordx2 v[{T+4}:{T+5}], v4, {WSR}, s53 offen'])
            d = 49152 if mt != 1 else WS_X1G - WS_OF - 49152
            a(f's_add_u32 s52, s52, {d}'); a(f's_add_u32 s53, s53, {d}')
        l.append(sto)
        return l
    def x4reg(q, i):
        if q == 0: return q4('v', 124 + 4 * i)
        if q == 1: return q4('v', 172 + 4 * i)
        if q == 2: return q4('v', 80 + 4 * i) if i < 11 else q4('v', 220)
        return q4('v', 224 + 4 * i) if i < 8 else q4('a', 140 + 4 * (i - 8))
    def x4ld(q): return [ld(x4reg(q, i), i, 32 + q, sc1=True) for i in range(12)]
    p3pass(0, ACC, [fc_check] + w2s[:10] + st, lo=2, hi=58)
    a(f's_mul_i32 s3, s{S_W}, 12288'); a('s_add_u32 s32, s28, s3'); a('s_add_u32 s33, s32, 49152'); a('s_add_u32 s34, s31, s3'); a('s_add_u32 s35, s34, 49152')
    a('v_bfe_u32 v20, v0, 3, 2'); a('v_lshl_add_u32 v20, v20, 7, v9'); a('s_and_b32 s29, s27, 0xfffffe00')
    a.wait_id(hx[3]); a.barrier()
    p3pass(1, ACC + 12, mix(epi(0), w2s[10:20]), nxt=2, base=0)
    p3pass(2, ACC, mix(epi(1), w2s[20:25] + [lambda: k.publish(hs[0], 3, 23)]), nxt=3, pre=False, base=20)
    e2 = epi(2)
    w2late = w2s[25:]
    fill3 = [lambda: k.publish(hs[1], 4, 23), k.poll_issue(3, 20, 29)] + e2[:40] + [lambda: k.poll_check(3, 3, 20, 29)] + mix(e2[40:], x4ld(0))
    def p3last():
        main = []
        for s in range(20):
            if s + PF < 20: main.append(xr(3, s + PF, (40 + s + PF) % NB))
            for t in range(3):
                c = '0' if s == 0 else q4('v', ACC + 12 + 4 * t)
                main.append(f'{MF} {q4("v", ACC + 12 + 4*t)}, {w1_reg(s*3+t)}, {q4("v", XF + 4*((40 + s) % NB))}, {c}')
            if 1 <= s <= 8: main.append(w2late[s - 1])
        spread(a, main, fill3, lo=6, hi=80)
    p3last()
    tn(a, 'p4')
    e3 = epi(3)
    ACC4 = 24
    st = mix(e3[:-1], w2late[8:20]) + [e3[-1], lambda: k.publish(hs[2], 5, 23), k.poll_issue(3)]
    spread(a, st, [])
    a(f's_mul_i32 s3, s{S_W}, 5120'); a('v_add_u32 v20, s3, v4'); a('v_add_u32 v21, 61440, v20')
    a(f's_mul_i32 s3, s{S_W}, 20480'); a('v_add_u32 v22, s3, v4')
    prev = []
    for q in range(4):
        ac = ACC4 + 20 * (q & 1)
        main = []
        for i in range(12):
            for t in range(5):
                c = '0' if i == 0 else q4('v', ac + 4 * t)
                main.append(f'{MF} {q4("v", ac + 4*t)}, {w2_reg(i*5+t)}, {x4reg(q, i)}, {c}')
        fill = list(prev)
        if q == 0: fill = w2late[20:] + [lambda: k.poll_check(4, 3)] + x4ld(1) + [lambda: k.publish(hs[3], 6, 23), k.poll_issue(3)]
        if q == 1: fill += [lambda: k.poll_check(5, 3)] + x4ld(2) + [k.poll_issue(3)]
        if q == 2: fill += [lambda: k.poll_check(6, 3)] + x4ld(3)
        spread(a, main, fill, lo=1 if q == 0 else 4, hi=40)
        prev = [f'ds_write_b128 v{20 if q < 3 else 21}, {q4("v", ac+4*t)} offset:{(q%3)*20480 + 1024*t}' for t in range(5)]
    GB = 124; X1 = 144
    a(f'v_lshlrev_b32 v3, 4, v2'); a(f'v_add_u32 v3, {L_OWN}, v3')
    for t in range(5): a(f'ds_read_b128 {q4("v", GB + 4*t)}, v3 offset:{(40+4*t)*16}')
    for e in range(10):
        for t in unpack(X1 + 2 * e, X1 + 2 * e + 1, 10 + e): a(t)
    for t in prev: a(t)
    tn(a, 'p4e')
    a.wait(lg=0); a.barrier()
    RR = 172
    for q in range(4):
        for t in range(5): a(f'ds_read_b128 {q4("v", RR + (q*5+t)*4)}, v22 offset:{q*5120+t*1024}')
    for q in range(1, 4):
        for e in range(10): a(f'v_pk_add_f32 v[{RR+2*e}:{RR+2*e+1}], v[{RR+2*e}:{RR+2*e+1}], v[{RR+20*q+2*e}:{RR+20*q+2*e+1}]')
    for e in range(10): a(f'v_pk_fma_f32 v[{X1+2*e}:{X1+2*e+1}], v[{RR+2*e}:{RR+2*e+1}], v[{GB+2*e}:{GB+2*e+1}], v[{X1+2*e}:{X1+2*e+1}]')
    a(f's_lshl2_add_u32 s49, s{S_RB}, s{S_W}'); a('s_lshl_b32 s49, s49, 4'); a('v_add_u32 v3, s49, v1')
    a('s_movk_i32 s49, 1280'); a('v_mul_lo_u32 v3, v3, s49'); a('v_lshl_add_u32 v3, v2, 3, v3')
    for t in range(5):
        for e in (2 * t, 2 * t + 1): a(f'v_cvt_pk_bf16_f32 v{10+e}, v{X1+2*e}, v{X1+2*e+1}')
        a(f'buffer_store_dwordx2 v[{10+2*t}:{11+2*t}], v3, s[{S_O}:{S_O+3}], s61 offen offset:{32*t}')
    gen1.epilogue(a, 'p0')
    for t in k.tail: a.raw(t)
    return LDS_SIZE
if __name__ == '__main__':
    t, d, lds = gen1.kernel_text(gen1.NAME + '_kernel', main_kernel)
    open(sys.argv[1], 'w').write(f'; @launch grid=(256,1,1) block=(256,1,1) lds={lds}\n.amdgcn_target "amdgcn-amd-amdhsa--gfx950"\n.text\n' + t + '.section .rodata,"a"\n.p2align 6\n' + d)
```

```python
import sys, struct
from asmfw import *
import gen1
from gen1 import WS_MODP, WS_STATS, WS_WQ, WS_WO, WS_W1, WS_W2, WS_OF, WS_X1G, WS_H1, MF, LOG2E, fl, unpack, srd, S_WS, S_X, S_O, S_RB, S_J, S_W, ts, tsc, ts_flush
WSR = f's[{S_WS}:{S_WS+3}]'
WS_FL = 0x40000
WS_XID = 0x44000
S_FAST = 23
S_E = 24
FULL = (1 << 64) - 1
OPT = sys.argv[2] if len(sys.argv) > 2 else ''
L_DUMP = 102400; L_PERM = 147456
L_MODL = L_PERM; L_XR = L_PERM; L_GS = 159744; L_OWN = L_GS + 2560
L_X3 = 65536
LDS_SIZE = 163840
class K:
    def __init__(s, a): s.a = a; s.tail = []; s.nl = 0
    def setexec(s, m):
        s.a(f's_mov_b32 exec_lo, {hex(m & 0xffffffff)}'); s.a(f's_mov_b32 exec_hi, {hex(m >> 32)}')
    def stores(s, lst):
        a = s.a; s.nl += 1; n = s.nl
        a(f's_cmp_eq_u32 s{S_FAST}, 0'); a(f's_cbranch_scc1 SLOW{n}')
        h = None; n0 = len(a.out)
        for t in lst: h = a(t)
        assert len(a.out) - n0 == len(lst), a.out[n0:]
        a.label(f'RET{n}')
        s.tail.append(f'SLOW{n}:\n' + ''.join(f'  {t}{" sc1" if t.startswith("buffer") else ""}\n' for t in lst) + f'  s_branch RET{n}')
        return h
    def publish(s, h, val, vt):
        s.a(f's_add_u32 s72, s{S_E}, {val}'); s.a(f'v_mov_b32 v{vt}, s72')
        s.a.wait_id(h)
        s.stores([f'buffer_store_dword v{vt}, off, {WSR}, s26'])
    def spin_tail(s, n, val, vt, va=9, so=27):
        s.tail.append(f'''SPIN{n}:
  s_mov_b32 s72, 0x8000
SPINL{n}:
  buffer_load_dword v{vt}, v{va}, {WSR}, s{so} offen sc1
  s_waitcnt vmcnt(0)
  v_subrev_u32 v{vt}, s{S_E}, v{vt}
  v_add_u32 v{vt}, {-val}, v{vt}
  v_cmp_gt_u32 vcc, 8, v{vt}
  s_sub_u32 s72, s72, 1
  s_cbranch_scc1 PDONE{n}
  s_cmp_eq_u64 vcc, -1
  s_cbranch_scc0 SPINL{n}
  s_branch PDONE{n}''')
    def poll(s, val, vt):
        a = s.a; s.nl += 1; n = s.nl
        a.wait(lg=0)
        if not opt('sp', 0):
            a(f's_branch SPIN{n}')
        else:
            a(f's_cmp_eq_u32 s{S_FAST}, 0'); a(f's_cbranch_scc1 SPIN{n}')
            a('s_mov_b32 s72, 0x8000'); a(f's_add_u32 s73, s{S_E}, {val}')
            a.label(f'POLL{n}')
            a(f's_load_dwordx8 s[64:71], s[{S_WS}:{S_WS+1}], s27 glc')
            a('s_sub_u32 s72, s72, 1'); a(f's_cbranch_scc1 PDONE{n}')
            a.wait(lg=0)
            for q in range(8): a(f's_sub_u32 s{64+q}, s{64+q}, s73')
            for q in range(1, 8): a(f's_max_u32 s64, s64, s{64+q}')
            a('s_cmp_lt_u32 s64, 8'); a(f's_cbranch_scc0 POLL{n}')
        a.label(f'PDONE{n}')
        a.fwait('lgkmcnt(0)')
        s.spin_tail(n, val, vt)
    def poll_issue(s, vt, va=9, so=27): return f'buffer_load_dword v{vt}, v{va}, {WSR}, s{so} offen sc1'
    def poll_check(s, val, vt, va=9, so=27):
        a = s.a; s.nl += 1; n = s.nl
        a(f's_add_u32 s72, s{S_E}, {val}'); a(f'v_subrev_u32 v{vt}, s72, v{vt}'); a(f'v_cmp_gt_u32 vcc, 8, v{vt}'); a('s_nop 3')
        a('s_cmp_eq_u64 vcc, -1'); a(f's_cbranch_scc0 SPIN{n}')
        a.label(f'PDONE{n}')
        s.spin_tail(n, val, vt, va, so)
def spread(a, main, fill, lo=0, hi=None):
    n = len(main); hi = n if hi is None else hi
    fi = 0; m = len(fill)
    def em(x):
        if callable(x): x()
        else: a(x)
    for i, t in enumerate(main):
        em(t)
        if i >= lo:
            tgt = min(m, -(-m * (i - lo + 1) // max(1, hi - lo)))
            while fi < tgt: em(fill[fi]); fi += 1
    while fi < m: em(fill[fi]); fi += 1
def mix(x, y):
    out = []; j = 0
    for i, t in enumerate(x):
        out.append(t)
        while j < len(y) and j * len(x) < (i + 1) * len(y): out.append(y[j]); j += 1
    return out + y[j:]
def frag_offsets(a, sb, s2, st):
    a(f's_lshr_b32 s{st}, s{S_J}, 1'); a(f's_mul_i32 s{st}, s{st}, 5120'); a(f's_add_u32 s{sb}, s{sb}, s{st}')
    a(f's_and_b32 s{st}, s{S_J}, 1')
    a(f's_lshl3_add_u32 s{s2}, s{st}, s{sb}'); a(f's_add_u32 s{s2}, s{s2}, 4096')
    a(f's_lshl_b32 s{st}, s{st}, 11'); a(f's_add_u32 s{sb}, s{sb}, s{st}')
def frag_store80(F, sb, s2):
    return [f'buffer_store_dwordx4 v[{F}:{F+3}], v4, {WSR}, s{sb} offen',
            f'buffer_store_dwordx4 v[{F+4}:{F+7}], v4, {WSR}, s{sb} offen offset:1024',
            f'buffer_store_dwordx2 v[{F+8}:{F+9}], v4, {WSR}, s{s2} offen']
def ld(reg, s, soff, srd_=WSR, sc1=False):
    return f'buffer_load_dwordx4 {reg}, v{4 + s // 4}, {srd_}, s{soff} offen offset:{1024 * (s % 4)}' + (sc1 if isinstance(sc1, str) else ' sc1' if sc1 else '')
def q4(k, b): return f'{k}[{b}:{b+3}]'
RING = 9
def wq_reg(s, sl): return q4('a', 16 * (s % RING) + 4 * sl)
def wo_reg(t, i): return q4('a', 156 + 4 * (i * 5 + t))
def w1_reg(f): return q4('a', 4 * f) if f < 39 else q4('v', 172 + 4 * (f - 39))
def w2_reg(f): return q4('a', 156 + 4 * f) if f < 25 else q4('a', 4 * (f - 25))
WB = [' sc1', '', ' nt', ' sc1 nt', ' sc0', ' sc0 nt'][int(([o[3:] for o in OPT.split(',') if o.startswith('wb=')] + ['0'])[0])]
def wq_ld(s, sl): return ld(wq_reg(s, sl), s, 32 + sl, 's[12:15]' if sl == 2 else WSR, WB)
def wo_ld(t, i): return ld(wo_reg(t, i), i, 36 + t, WSR, WB)
def w1_ld(f): return ld(w1_reg(f), f // 3, 41 + f % 3, WSR, WB)
def w2_ld(f): return ld(w2_reg(f), f // 5, 44 + f % 5, WSR, WB)


WS_EP = 0x48000; WS_FA = 0x49000; WS_FB = 0x4A000
S_E = 24
L_ST = L_DUMP; L_MR = 143360; RSZ = 98304
def opt(name, d):
    for o in OPT.split(','):
        if o.startswith(name + '='): return int(o.split('=')[1])
    return d
NT = ' nt' if opt('nt', 1) else ''; NTM = ' nt' if opt('ntm', 1) else ''; NTX = ' nt' if opt('ntx', 0) else ''; NTT = ' nt' if opt('ntt', 0) else ''
NXE = opt('nxe', 3); PUBE = opt('pube', 1)
TS = {n: i for i, n in enumerate(('p3', 'a0', 'a1', 'a2', 'p4', 'e3', 'q0', 'q1', 'q2', 'p4e') if 'traceQ' in OPT else ('p1e', 'db', 'att', 'pb1', 'p2', 'p2m', 'p2b', 'p2e', 'u1', 'p3') if 'traceR' in OPT else ('p1', 's2', 's4', 's6', 's8', 's10', 's13', 's15', 's17', 'p1e') if 'traceP' in OPT else ('s', 'dec', 'ka', 'b1', 'st', 'pub', 'xi', 'x0', 'x4', 'ln') if 'traceG' in OPT else ('s', 'ln', 'b2', 'pi', 'mf', 'vp', 'pw', 'fa', 'poll', 'bar') if 'traceH' in OPT else ('s', 'pub', 'pi', 'pw', 'poll', 'bar', 'ln', 'p1', 'p1e', 'att') if 'traceF' in OPT else ('s', 'bar', 'p1', 'p1e', 'att', 'p2', 'p2e', 'p3', 'p4', 'p4e'))}
def tn(a, n):
    if n in TS: ts(a, TS[n])
XN = 40
def pairs(a, st, n, dA, dB, t):
    mg, ta, tb = (13108, 0x47520, 0x98631) if n == 5 else (10923, 0x829630, 0xb5a741)
    a(f's_mul_i32 s{dA}, s{st}, {mg}'); a(f's_lshr_b32 s{dA}, s{dA}, 16'); a(f's_mul_i32 s{dB}, s{dA}, {n}')
    a(f's_sub_u32 s{t}, s{st}, s{dB}'); a(f's_lshl_b32 s{t}, s{t}, 2')
    a(f's_lshr_b32 s{dA}, {hex(ta)}, s{t}'); a(f's_and_b32 s{dA}, s{dA}, 15'); a(f's_lshl1_add_u32 s{dA}, s{dB}, s{dA}')
    a(f's_lshr_b32 s{t}, {hex(tb)}, s{t}'); a(f's_and_b32 s{t}, s{t}, 15'); a(f's_lshl1_add_u32 s{dB}, s{dB}, s{t}')
def perm_src(x, st, n, stride, vd, so, colb, A=30, B=31, T=3, v7=5, vt=3):
    pairs(x, st, n, A, B, T)
    x(f's_sub_u32 s{B}, s{B}, s{A}'); x(f's_mul_i32 s{B}, s{B}, {16*stride}'); x(f's_lshl2_add_u32 s{A}, s{A}, s{S_W}')
    x(f's_mul_i32 s{A}, s{A}, {4*stride}'); x(f's_add_u32 s{so}, s{A}, s{colb}')
    x(f'v_bfe_u32 v{vt}, v0, 3, 2'); x(f's_movk_i32 s{T}, {stride}'); x(f'v_mad_u32_u24 v{vd}, v{vt}, s{T}, v{v7}')
    x(f'v_lshrrev_b32 v{vt}, 5, v0'); x(f'v_mad_u32_u24 v{vd}, v{vt}, s{B}, v{vd}')
def tr_addr(x, vd, blk, base, vt=3, T=3):
    x(f's_movk_i32 s{T}, {blk}'); x(f'v_and_b32 v{vt}, 3, v1'); x(f'v_lshlrev_b32 v{vt}, 3, v{vt}'); x(f'v_mad_u32_u24 v{vd}, v2, s{T}, v{vt}')
    x(f'v_lshrrev_b32 v{vt}, 2, v1'); x(f'v_lshl_add_u32 v{vd}, v{vt}, 7, v{vd}')
    x(f's_lshl_b32 s{T}, s{S_W}, 5'); x(f's_add_u32 s{T}, s{T}, {base}'); x(f'v_add_u32 v{vd}, s{T}, v{vd}')
def uproc(n, R, sd, tst, va, vo, k='a'):
    l = []
    for t in range(n):
        l += [f'ds_read_b64_tr_b16 {k}[{R+4*t}:{R+4*t+1}], v{va} offset:{1024*t}', f'ds_read_b64_tr_b16 {k}[{R+4*t+2}:{R+4*t+3}], v{va} offset:{1024*t + 512}']
    for t in range(n):
        l.append((f's_add_u32 s{sd}, s{sd}, {4*tst}\n' if t else '') + f'buffer_store_dwordx4 {k}[{R+4*t}:{R+4*t+3}], v{vo}, {WSR}, s{sd} offen sc1')
    return l
LM = dict(W=176, C=196, AC=208, T=201)
class Mod:
    def __init__(m, late, W, C, AC, VW, VC, T, SC, SW, SR, SG): m.__dict__.update(locals())
    def dec(m):
        G, D, R = m.SG, m.SG + 1, m.SR
        l = [f'v_lshrrev_b32 v{m.VC}, 3, v0', f'v_and_b32 v{m.T}, 7, v0', f'v_lshlrev_b32 v{m.T}, 4, v{m.T}',
             f's_and_b32 s{G}, s2, 7', f's_lshl3_add_u32 s{G}, s{S_J}, s{G}']
        l += [f's_add_u32 s{G}, s{G}, 24', f's_min_u32 s{G}, s{G}, 59'] if m.late else [f's_sub_u32 s{G}, s{G}, 40']
        l += [f's_bfe_u32 s{D}, s2, 0x20003', f's_lshl2_add_u32 s{R}, s{D}, s{S_W}', f's_mul_i32 s{R}, s{R}, 40', f'v_add_u32 v{m.VC}, s{R}, v{m.VC}', f's_movk_i32 s{R}, 7680',
              f'v_mad_u32_u24 v{m.VW}, v{m.VC}, s{R}, v{m.T}', f's_lshl_b32 s{R}, s{G}, 7', f'v_lshlrev_b32 v{m.VC}, 1, v{m.VC}',
              f's_movk_i32 s{m.SC+2}, 1280', f's_mov_b32 s{m.SC+3}, 0x20000', f's_mov_b32 s{m.SW+3}, 0x20000', f's_mov_b32 s{m.SW+2}, {640*7680}']
        return l
    def dec2(m):
        G, D = m.SG, m.SG + 1
        return [f's_lshl_b32 s{G}, s{G}, 10', f's_lshl2_add_u32 s{D}, s{D}, s{G}', f's_add_u32 s{D}, s{D}, {WS_MODP}']
    def load(m, k='v', vw=None):
        vw = m.VW if vw is None else vw
        l = [f's_and_b32 s{m.SC+1}, s{m.SC+1}, 0xffff\ns_and_b32 s{m.SW+1}, s{m.SW+1}, 0xffff']
        for i in range(5): l.append(f'buffer_load_ushort {k}{m.C+i}, v{m.VC}, s[{m.SC}:{m.SC+3}], 0 offen offset:{16*i} sc1')
        for i in range(5): l.append((f's_add_u32 s{m.SR}, s{m.SR}, {8*7680}\n' if i else '') + f'buffer_load_dwordx4 {k}[{m.W+4*i}:{m.W+3+4*i}], v{vw}, s[{m.SW}:{m.SW+3}], s{m.SR} offen{NTM}')
        return l
    def silu(m):
        C, AC = m.C, m.AC; l = []
        for f in ('v_lshlrev_b32 v{c}, 16, v{c}', 'v_mul_f32 v{t}, ' + fl(-LOG2E) + ', v{c}', 'v_exp_f32 v{t}, v{t}', 'v_add_f32 v{t}, 1.0, v{t}', 'v_rcp_f32 v{t}, v{t}',
                  'v_mul_f32 v{c}, v{c}, v{t}', 'v_cvt_pk_bf16_f32 v{c}, v{c}, 0'):
            l += [f.format(c=C + i, t=AC + i) for i in range(5)]
        return l
    def dot(m):
        AC, T = m.AC, m.T; l = []
        for i in range(5):
            l.append(f'v_lshlrev_b32 v{T}, 16, v{m.C+i}')
            if m.late and opt('sdot', 1):
                op = 'v_mul_f32' if i == 0 else 'v_fmac_f32'
                for q in range(4):
                    w = m.W + 4 * i + q
                    l += [f'v_lshlrev_b32 v{T+1}, 16, v{w}', f'v_and_b32 v{w}, 0xffff0000, v{w}', f'{op} v{AC+2*q}, v{T+1}, v{T}', f'{op} v{AC+2*q+1}, v{w}, v{T}']
                continue
            for q in range(4):
                for e, sv in ((0, m.C + i), (1, T)):
                    r = AC + 2 * q + e
                    l.append(f'v_dot2_f32_bf16 v{r}, v{m.W+4*i+q}, v{sv}, {"0" if i == 0 else f"v{r}"}')
        G = m.SG
        l += [f'v_and_b32 v{T}, 7, v0', f'v_lshlrev_b32 v{T}, 5, v{T}', f'v_lshl_add_u32 v{T}, v2, 3, v{T}']
        l += [f'v_permlane32_swap_b32 v{AC+q}, v{AC+4+q}' for q in range(4)] + [f'v_add_f32 v{AC+q}, v{AC+q}, v{AC+4+q}' for q in range(4)]
        l += [f's_lshl_b32 s{G}, s{S_W}, 8', f's_add_u32 s{G}, s{G}, {L_MR}']
        l += [f'v_permlane16_swap_b32 v{AC+q}, v{AC+2+q}' for q in range(2)] + [f'v_add_f32 v{AC+q}, v{AC+q}, v{AC+2+q}' for q in range(2)]
        l += [f'v_add_u32 v{T}, s{G}, v{T}', f'v_lshlrev_b32 v{AC+6}, 2, v0']
        l += [f'v_add_f32_dpp v{AC+q}, v{AC+q}, v{AC+q} row_ror:8 row_mask:0xf bank_mask:0xf' for q in range(2)]
        return l + [f'v_add_u32 v{AC+6}, {L_MR}, v{AC+6}', f'ds_write_b64 v{T}, v[{AC}:{AC+1}]']
    def fin(m):
        AC, G = m.AC, m.SG
        l = [f'ds_read2st64_b32 v[{AC}:{AC+1}], v{AC+6} offset0:0 offset1:1', f'ds_read2st64_b32 v[{AC+2}:{AC+3}], v{AC+6} offset0:2 offset1:3',
             f's_cmp_eq_u32 s{S_W}, 0\ns_cselect_b32 s{G}, 0, 0x80000000' + (f'\ns_cmp_lt_u32 s2, 160\ns_cselect_b32 s{G}, s{G}, 0x80000000' if m.late else ''),
             f'v_or_b32 v{AC+7}, s{G}, v4', f's_bfe_u32 s{G}, s{S_E}, 0x80004', f's_movk_i32 s{G+2}, 0xff00',
             f'v_add_f32 v{AC}, v{AC}, v{AC+1}', f'v_add_f32 v{AC+2}, v{AC+2}, v{AC+3}', f'v_mov_b32 v{AC+5}, s{G}', f'v_add_f32 v{AC}, v{AC}, v{AC+2}',
             f'v_and_or_b32 v{AC}, v{AC}, s{G+2}, v{AC+5}',
             f'buffer_store_dword v{AC}, v{AC+7}, {WSR}, s{G+1} offen sc1']
        return l
def mchk(r0, n, vt, st):
    return [f'v_xor_b32 v{vt}, s{st}, v{r0}'] + [f'v_bitop3_b32 v{vt}, v{vt}, s{st}, v{r0+e} bitop3:0xf6' for e in range(1, n)] + [f'v_lshlrev_b32 v{vt}, 24, v{vt}', f'v_cmp_eq_u32 vcc, 0, v{vt}']
def msum(r0, n, one, hi=True):
    l = []
    for e in range(4 * n): l.append(f'v_and_b32 v{r0+e}, 0xffffff00, v{r0+e}')
    for i in range(n): l.append(f'v_pk_add_f32 v[{r0+4*i}:{r0+4*i+1}], v[{r0+4*i}:{r0+4*i+1}], v[{r0+4*i+2}:{r0+4*i+3}]')
    for i in range(n): l.append(f'v_add_f32 v{r0+4*i}, v{r0+4*i}, v{r0+4*i+1}')
    for i in range(n): l.append(f'v_cvt_pk_bf16_f32 v{r0+4*i}, 0, v{r0+4*i}')
    for i in range(n): l.append(f'v_add_f32 v{r0+4*i}, {one[i]}, v{r0+4*i}')
    for i in range(n): l.append(f'v_cvt_pk_bf16_f32 v{r0+4*i}, 0, v{r0+4*i}' if hi[i] else f'v_cvt_pk_bf16_f32 v{r0+4*i}, v{r0+4*i}, 0')
    return l
def slice_addr(A, sd, st):
    A(f's_lshl3_add_u32 s{sd}, s{S_RB}, s{S_J}'); A(f's_and_b32 s{st}, s{S_W}, 1'); A(f's_lshl1_add_u32 s{sd}, s{sd}, s{st}'); A(f's_mul_i32 s{sd}, s{sd}, 6144')
    A(f's_lshr_b32 s{st}, s{S_W}, 1'); A(f's_mul_i32 s{st}, s{st}, {WS_X1G - WS_OF}'); A(f's_add_u32 s{sd}, s{sd}, s{st}'); A(f's_add_u32 s{sd}, s{sd}, {WS_OF}')
def prew(sd): return [f'buffer_store_dwordx4 v[4:7], v{4 + q // 4}, {WSR}, s{sd} offen offset:{1024 * (q % 4)} sc1' for q in range(6)]
PW = opt('prew', 1)
L_W2S = 135168
def stats(i):
    S, Q = 250, 252; l = []
    for u in range(5):
        b = XN + (i * 5 + u) * 8
        for e in range(4): l += unpack(b + 2 * e, b + 2 * e + 1, b + 4 + e)
        for e in range(4):
            p = f'v[{b+2*e}:{b+2*e+1}]'
            l.append(f'v_pk_mul_f32 v[{Q}:{Q+1}], {p}, {p}' if u == 0 and e == 0 else f'v_pk_fma_f32 v[{Q}:{Q+1}], {p}, {p}, v[{Q}:{Q+1}]')
            if u == 0 and e == 1: l.append(f'v_pk_add_f32 v[{S}:{S+1}], v[{b}:{b+1}], {p}')
            elif not (u == 0 and e == 0): l.append(f'v_pk_add_f32 v[{S}:{S+1}], v[{S}:{S+1}], {p}')
    return l + [f'v_add_f32 v{240+2*i}, v{S}, v{S+1}', f'v_add_f32 v{241+2*i}, v{Q}, v{Q+1}']
JS = 2
def front(a, k, var):
    TST = 20480 if var == 'A' else 49152
    def dec_u():
        a(f's_lshl_b32 s47, s{S_W}, 13'); a(f's_add_u32 s47, s47, {L_ST}'); a('s_mov_b32 s71, 0x20000')
        a('v_and_b32 v5, 7, v0'); a('v_lshlrev_b32 v5, 4, v5')
        if var == 'A':
            a('s_cmp_ge_u32 s2, 120'); a('s_cbranch_scc1 DEC_WO')
            a('s_mul_i32 s28, s2, 10923'); a('s_lshr_b32 s28, s28, 16'); a('s_mul_i32 s29, s28, 6'); a('s_sub_u32 s29, s2, s29')
            a(f's_lshl2_add_u32 s33, s28, s{S_W}')
            a(f's_mul_i32 s33, s33, {8*3840}'); a('s_mul_i32 s3, s29, 640'); a('s_add_u32 s33, s33, s3')
            a('v_lshrrev_b32 v3, 3, v0'); a('s_movk_i32 s3, 3840'); a('v_mad_u32_u24 v33, v3, s3, v5'); a(f's_mov_b32 s70, {640*3840}')
            a.label('DEC_WO_RET')
            x = Asm()
            x('s_sub_u32 s28, s2, 120'); x('s_and_b32 s29, s28, 1'); x('s_lshr_b32 s28, s28, 1')
            x('s_mul_i32 s48, s29, 640'); perm_src(x, 28, 5, 1280, 33, 33, 48); x(f's_mov_b32 s70, {640*1280}')
            k.tail.append('DEC_WO:\n' + x.text() + '  s_branch DEC_WO_RET')
        else:
            a('s_sub_u32 s28, s2, 160'); a('s_min_u32 s28, s28, 79'); a('s_and_b32 s29, s28, 3'); a('s_lshr_b32 s28, s28, 2')
            a('s_mul_i32 s62, s29, 24'); a(f's_add_u32 s62, s62, s{S_W}')
            a('s_mul_i32 s62, s62, 20480'); a('s_lshl_b32 s3, s28, 10'); a('s_add_u32 s62, s62, s3'); a(f's_add_u32 s62, s62, {WS_W1}')
            a('s_mul_i32 s48, s29, 768'); perm_src(a, 28, 5, 3072, 33, 33, 48); a(f's_mov_b32 s70, {640*3072}')
    def dec_u2():
        tr_addr(a, 245, 8192, L_ST)
        a('s_cmp_ge_u32 s2, 120')
        a(f's_mov_b32 s34, {WS_WQ}'); a(f's_cselect_b32 s34, {WS_WO}, s34')
        a(f's_mov_b32 s35, {WS_FA}'); a(f's_cselect_b32 s35, {WS_FA + 2048}, s35')
        a('s_and_b32 s3, s29, 1'); a('s_mul_i32 s3, s3, 3'); a('s_lshr_b32 s48, s29, 1'); a('s_add_u32 s3, s3, s48')
        a('s_mul_i32 s3, s3, 20'); a('s_add_u32 s3, s3, s28'); a(f's_lshl2_add_u32 s3, s3, s{S_W}'); a('s_lshl2_add_u32 s35, s3, s35')
        a('s_mul_i32 s3, s29, 20'); a(f's_add_u32 s3, s3, s{S_W}')
        a('s_mul_i32 s3, s3, 20480'); a('s_add_u32 s34, s34, s3'); a('s_lshl_b32 s3, s28, 10'); a('s_add_u32 s34, s34, s3')
    def dec_x(rng):
        if 0 in rng:
            a(f's_lshl_b32 s3, s{S_J}, 2'); a('s_mov_b32 s50, 0x21043210'); a('s_movk_i32 s51, 0x1043'); a('s_lshr_b64 s[50:51], s[50:51], s3'); a('s_mov_b32 s73, s50')
            a(f's_lshl_b32 s3, s{S_RB}, 6'); a(f's_mul_i32 s79, s{S_W}, 20'); a('s_add_u32 s3, s3, s79'); a('s_sub_u32 s3, s3, 16')
            a('s_movk_i32 s51, 1280'); a('v_add_u32 v244, s3, v2'); a('v_lshlrev_b32 v39, 4, v1')
            a(f's_mov_b32 s{S_X+2}, {2048*1280}'); a(f's_mov_b32 s{S_X+3}, 0x20000')
        for i in rng:
            a(f's_bfe_u32 s3, s73, {hex(0x40000 + 4*i)}'); a('v_lshl_add_u32 v3, s3, 2, v244'); a('v_max_i32 v3, 0, v3'); a(f'v_mad_u32_u24 v{240+i}, v3, s51, v39')
    H = {}
    def uload(v=33, so=33):
        l = [('s_cmp_ge_u32 s2, 120\ns_cselect_b64 s[68:69], s[38:39], s[36:37]\n' if var == 'A' else '') + 's_and_b32 s69, s69, 0xffff']
        for t in range(5 if var == 'A' else 6): l.append(f's_add_u32 m0, s47, {t*896}\nbuffer_load_dwordx4 v{v}, s[68:71], s{so} offen offset:{128*t}{NT} lds')
        return l + [lambda: H.update(u=a.vm[-1][0])]
    def xload(i):
        return [f'buffer_load_dwordx4 v[{XN+(i*5+u)*8+4}:{XN+(i*5+u)*8+7}], v{240+i}, s[{S_X}:{S_X+3}], 0 offen offset:{256*u}{NTX}' for u in range(5)]
    def em(l): spread(a, l, [])
    def eload(): a(f's_and_b32 s{S_WS+1}, s{S_WS+1}, 0xffff'); a(f's_mov_b32 s3, {WS_EP}'); a(f'buffer_load_dword v38, off, {WSR}, s3 sc1')
    def cpf():
        if not opt('cpf', 1): return
        a('s_getpc_b64 s[50:51]'); a.label(f'PC{var}')
        a('s_lshr_b32 s3, s2, 3'); a(f's_lshl2_add_u32 s3, s3, s{S_W}'); a('s_mul_i32 s3, s3, 3'); a('v_min_u32 v237, 2, v0'); a('v_add_u32 v237, s3, v237')
        a(f'v_min_u32 v237, (CODE_END-FRONT_A2-4)/128, v237'); a('v_lshlrev_b32 v237, 7, v237')
        a(f's_add_u32 s50, s50, FRONT_A2-PC{var}'); a('s_addc_u32 s51, s51, -1')
        a('v_mov_b32 v239, s51'); a('v_add_co_u32 v238, vcc, s50, v237'); a('v_addc_co_u32 v239, vcc, 0, v239, vcc')
        a('global_load_dword v237, v[238:239], off sc1')
    def getE(): a(f'v_readfirstlane_b32 s{S_E}, v38'); a(f's_add_u32 s{S_E}, s{S_E}, 0x9E3779B0')
    def pubA(): getE(); a(f'v_mov_b32 v3, s{S_E}'); a.wait_id(H['st']); a(f'buffer_store_dword v3, off, {WSR}, s35 sc1'); tn(a, 'pub')
    def misc():
        a(f's_mov_b32 s{S_O+2}, {2048*1280}'); a(f's_mov_b32 s{S_O+3}, 0x20000'); a(f's_and_b32 s{S_O+1}, s{S_O+1}, 0xffff')
        a('v_lshlrev_b32 v4, 4, v0')
        for q in range(1, 4): a(f'v_add_u32 v{4+q}, {4096*q}, v4')
    XE = opt('xe', 0); XB = opt('xb', 0)
    if var == 'A':
        m = Mod(True, 176, 196, 0, 35, 36, 37, 52, 56, 74, 29)
        dec_u(); tn(a, 'dec'); a.wait(lg=0); tn(a, 'ka')
        em(uload()); eload()
        a.raw('@SPLIT')
        dec_x([0, 1, 2, 3, 4]); a(f's_and_b32 s{S_X+1}, s{S_X+1}, 0xffff')
        if XE: em(xload(0))
        cpf(); dec_u2(); misc(); em(m.dec() + m.dec2())
        for i in range(1, XE): em(xload(i))
        a.wait_id(H['u']); tn(a, 'b1'); a.barrier()
        em(uproc(5, 156, 34, 20480, 245, 4)); H['st'] = a.vm[-1][0]; tn(a, 'st')
        ml = m.load('a'); b2 = ml[6:]
        xl = sum([xload(i) for i in range(XE, 5)], []) + ml[:6]
        a('s_mov_b32 s62, 0')
        n_ = opt('xp', 0) + (5 if XE == 0 else 0)
        em(xl[:n_]); xl = xl[n_:]
        if PUBE: pubA()
    else:
        m = Mod(False, 8, 28, 246, 35, 36, 37, 52, 56, 74, 44)
        em(m.dec()); tn(a, 'dec'); a.wait(lg=0); tn(a, 'ka')
        em(m.load()); eload()
        a.raw('@SPLIT')
        em(m.dec2()); dec_x([0, 1, 2, 3, 4]); a(f's_and_b32 s{S_X+1}, s{S_X+1}, 0xffff')
        cpf(); dec_u(); misc()
        for i in range(XB): em(xload(i))
        em(m.silu()); tn(a, 'b1')
        d = m.dot(); em(d[:27]); em(xload(XB)); em(d[27:45]); tn(a, 'st'); em(xload(XB + 1)); em(d[45:]); getE()
        a.wait(lg=0); a.barrier(); em(m.fin()); tn(a, 'pub')
        b2 = uload()[:-1]
        xl = sum([xload(i) for i in range(XB + 2, 5)], [])
    nx = opt('nx', 10)
    spread(a, stats(0), xl[:nx], lo=0, hi=opt('xhi', 60))
    tn(a, 'x0')
    if var == 'A' and not PUBE: pubA()
    spread(a, stats(1), xl[nx:], hi=40)
    tn(a, 'xi')
    a('v_min_u32 v31, 59, v0'); a(f's_mul_i32 s3, s{S_W}, 240'); a('v_lshl_add_u32 v31, v31, 2, s3')
    a(f's_lshr_b32 s50, s{S_J}, 2'); a('s_mul_i32 s50, s50, 960'); a(f's_add_u32 s50, s50, {WS_FA}'); a(f's_mul_i32 s49, s{S_W}, 5120'); a(f's_add_u32 s49, s49, {WS_MODP}')
    A = a
    A('s_min_u32 s52, s2, 239'); A('s_mul_i32 s28, s52, 13108'); A('s_lshr_b32 s28, s28, 16'); A('s_mul_i32 s53, s28, 5'); A('s_sub_u32 s52, s52, s53')
    A(f's_lshl3_add_u32 s63, s52, s{S_W}'); A('s_mul_i32 s63, s63, 49152'); A('s_lshl_b32 s53, s28, 10'); A('s_add_u32 s63, s63, s53'); A(f's_add_u32 s63, s63, {WS_W2}')
    A('s_lshl_b32 s52, s52, 8'); A('v_and_b32 v34, 7, v0'); A('v_lshlrev_b32 v34, 4, v34')
    perm_src(A, 28, 6, 1280, 34, 52, 52, 53, 55, 3, 34, 3)
    A(f's_mov_b32 s66, {1536*1280}'); A('s_mov_b32 s67, 0x20000'); A('s_and_b32 s65, s65, 0xffff'); A(f's_lshl_b32 s53, s{S_W}, 11'); A(f's_add_u32 s53, s53, {L_W2S}')
    b2 += [f's_add_u32 m0, s53, {t*896}\nbuffer_load_dwordx4 v34, s[64:67], s52 offen offset:{128*t}{NT} lds' for t in range(2)]
    slice_addr(a, 61, 3)
    a(f's_mul_i32 s3, s{S_W}, 1280'); a(f's_add_u32 s3, s3, {L_MODL}'); a('v_lshl_add_u32 v30, v0, 2, s3')
    a(f's_cmp_ge_u32 s{S_W}, 2'); a('s_cselect_b32 s51, 1.0, 0'); a(f's_lshr_b32 s48, s{S_E}, 4')
    pl = POLLS + [lambda: (H.update(p=a.vm[-1][0]), tn(a, 'pi'))]
    st = lnorm(a); PP = opt('pp', 240)
    b2 += [lambda: B2H.update({var: a.vm[-1][0]})]
    assert opt('b2hi', 80) < 400
    spread(a, st[:PP] + pl + st[PP:], b2, lo=opt('b2lo', 0), hi=opt('b2hi', 80))
    a(f's_mul_i32 s52, s{S_J}, 5'); a(f's_add_u32 s53, s52, s{S_W}')
    a('s_add_u32 s32, s53, 40'); a('s_add_u32 s33, s53, 80'); a('s_mov_b32 s35, s53')
    a(f's_lshl_b32 s54, s{S_W}, 3'); a('s_lshr_b32 s34, 0x04542c, s54'); a('s_and_b32 s34, s34, 0xff'); a('s_add_u32 s34, s34, s52')
    for q in range(4):
        a(f's_mul_i32 s{32+q}, s{32+q}, 20480'); a(f's_add_u32 s{32+q}, s{32+q}, {WS_WQ}')
    a(f's_mov_b64 s[12:13], s[{S_WS}:{S_WS+1}]'); a(f's_cmp_eq_u32 s{S_W}, 3'); a(f's_cselect_b32 s14, 0, s{S_WS+2}'); a('s_mov_b32 s15, 0x20000')
    tn(a, 'vp')
    a.wait_id(H['p']); tn(a, 'pw'); a.wait(lg=0)
B2H = {}
def lnorm(a):
    st = sum([stats(i) for i in range(JS, 5)], []); A = st.append
    A(lambda: tn(a, 'x4'))
    for ror in (8, 4, 2, 1):
        for c in range(240, 250): A(f'v_add_f32_dpp v{c}, v{c}, v{c} row_ror:{ror} row_mask:0xf bank_mask:0xf')
    A(f's_mov_b32 s60, {fl(1/640)}'); A(f'v_mov_b32 v3, {fl(1e-5)}')
    for i in range(5): A(f'v_mul_f32 v{250+i}, s60, v{240+2*i}')
    for i in range(5): A(f'v_fma_f32 v{241+2*i}, v{241+2*i}, s60, v3')
    for i in range(5): A(f'v_fma_f32 v{241+2*i}, -v{250+i}, v{250+i}, v{241+2*i}')
    for i in range(5): A(f'v_max_f32 v{241+2*i}, v{241+2*i}, v3')
    for i in range(5): A(f'v_rsq_f32 v{240+2*i}, v{241+2*i}')
    for i in range(5): A(f'v_mul_f32 v{241+2*i}, -v{250+i}, v{240+2*i}')
    for i in range(5):
        P = 240 + 2 * i
        for u in range(5):
            b = XN + (i * 5 + u) * 8
            for e in range(4):
                p = f'v[{b+2*e}:{b+2*e+1}]'
                A(f'v_pk_fma_f32 {p}, {p}, v[{P}:{P+1}], v[{P}:{P+1}] op_sel:[0,0,1] op_sel_hi:[1,0,1]')
    A('v_lshrrev_b32 v3, 2, v1'); A('v_lshlrev_b32 v3, 10, v3'); A('v_and_b32 v33, 3, v1'); A('v_lshl_add_u32 v3, v33, 8, v3')
    A('v_and_b32 v33, 7, v1'); A('s_movk_i32 s52, 20480'); A('v_add_u32 v35, s79, v2')
    for i in range(5):
        A(f's_bfe_u32 s3, s73, {hex(0x40000 + 4*i)}'); A('v_lshl_add_u32 v36, s3, 2, v35')
        A('v_and_b32 v37, 15, v36'); A('v_xor_b32 v37, v37, v33'); A('v_lshrrev_b32 v36, 4, v36')
        A('v_mad_u32_u24 v36, v36, s52, v3'); A(f'v_lshl_add_u32 v{250+i}, v37, 4, v36')
    A('v_lshlrev_b32 v255, 5, v1'); A(f'v_add_u32 v255, {L_MODL}, v255')
    A(lambda: tn(a, 'ln'))
    return st
PM = {0: '', 1: ' sc0', 2: ' nt', 3: ' sc0 nt'}[opt('pm', 1)]
FAP = [f'buffer_load_dword v28, v31, {WSR}, s50 offen sc1{PM}']
MP = [ld(q4('v', 8 + 4 * i), i, 49, WSR, True) for i in range(5)]
POLLS = MP + FAP
def main_kernel(a):
    k = K(a)
    tn(a, 's')
    a('s_cmp_ge_u32 s2, 256'); a('s_cbranch_scc1 EXIT_p0')
    for r, o in ((64 - 28, None), (S_WS, 80), (52, 48), (56, 56), (S_X, 0), (64, 40), (68, 32), (S_O, 64)):
        a('s_load_dwordx4 s[36:39], s[0:1], 8' if o is None else f's_load_dwordx2 s[{r}:{r+1}], s[0:1], {o}')
    a('v_lshrrev_b32 v2, 6, v0'); a('v_and_b32 v0, 63, v0'); a(f'v_readfirstlane_b32 s{S_W}, v2')
    a('v_and_b32 v1, 15, v0'); a('v_lshrrev_b32 v2, 4, v0')
    a('s_and_b32 s3, s2, 7'); a(f's_lshr_b32 s{S_J}, s2, 5'); a(f's_bfe_u32 s{S_RB}, s2, 0x20003')
    a(f's_lshl2_add_u32 s{S_RB}, s3, s{S_RB}')
    a(f's_mov_b32 s{S_WS+2}, 0x10000000'); a(f's_mov_b32 s{S_WS+3}, 0x20000')
    a('s_cmp_ge_u32 s2, 160'); a('s_cbranch_scc1 FRONT_B')
    import copy
    b = Asm(); b.vm = copy.deepcopy(a.vm); b.lg = copy.deepcopy(a.lg); b.n = a.n; b.hist = list(a.hist)
    kb = K(b); kb.nl = 500
    front(b, kb, 'B'); b.wait(lg=0)
    front(a, k, 'A'); a.wait(lg=0)
    b1, b2 = b.text().split('@SPLIT\n')
    a.out[a.out.index('@SPLIT')] = '  s_branch FRONT_A2\nFRONT_B:\n' + b1 + '  s_branch FRONT_B2\nFRONT_A2:'
    k.tail.append('FRONT_B2:\n' + b2 + '  s_branch JOIN')
    a.label('JOIN')
    wqs = [wq_ld(s, sl) for s in range(20) for sl in range(4)]
    def spin(nm, lds_, chk_):
        a('s_cmp_eq_u64 vcc, -1'); a(f's_cbranch_scc0 {nm}SPIN')
        a.label(f'{nm}DONE')
        k.tail.append(f'{nm}SPIN:\n  s_mov_b32 s72, 0x8000\n{nm}SPINL:\n  s_andn2_b64 exec, exec, vcc\n' + ''.join(f'  {t}\n' for t in lds_ + ['s_waitcnt vmcnt(0)'] + chk_) +
                      f'  s_sub_u32 s72, s72, 1\n  s_cbranch_scc1 {nm}OUT\n  s_nop 1\n  s_cmp_eq_u64 vcc, exec\n  s_cbranch_scc0 {nm}SPINL\n{nm}OUT:\n  s_mov_b64 exec, -1\n  s_branch {nm}DONE')
    NW0 = opt('nw0', 8)
    chk = mchk(8, 20, 29, 48)
    for t in chk: a(t)
    a('s_nop 3')
    spin('M', MP, chk)
    tn(a, 'fa')
    for t in msum(8, 5, ['s51'] * 5, [1] * 5): a(t)
    fac = [f'v_cmp_eq_u32 vcc, s{S_E}, v28']
    a(fac[0])
    for i in range(5): a(f'ds_write_b32 v30, v{8+4*i} offset:{256*i}')
    spin('FA', FAP, fac)
    tn(a, 'poll')
    a(f's_mul_i32 s36, s{S_J}, {5*20480}'); a(f's_mul_i32 s3, s{S_W}, 5120'); a('s_add_u32 s36, s36, s3'); a(f's_add_u32 s36, s36, {WS_WO}')
    a.wait(lg=0); a.barrier()
    tn(a, 'bar')
    def gs_read(u):
        b = 8 + 16 * (u % 2); l = []
        for q in range(2):
            l.append(f'ds_read_b128 v[{b+4*q}:{b+4*q+3}], v255 offset:{512*u + 16*q}')
            l.append(f'ds_read_b128 v[{b+8+4*q}:{b+8+4*q+3}], v255 offset:{2560 + 512*u + 16*q}')
        return l
    st = gs_read(0) + wqs[:NW0]
    for u in range(5):
        if u < 4: st += gs_read(u + 1)
        gb = 8 + 16 * (u % 2)
        for i in range(5):
            b = XN + (i * 5 + u) * 8
            for e in range(4):
                p = f'v[{b+2*e}:{b+2*e+1}]'
                st.append(f'v_pk_fma_f32 {p}, {p}, v[{gb+8+2*e}:{gb+9+2*e}], v[{gb+2*e}:{gb+2*e+1}]')
            for e in range(4): st.append(f'v_cvt_pk_bf16_f32 v{b+e}, v{b+2*e}, v{b+2*e+1}')
            st.append(f'ds_write_b128 v{250+i}, v[{b}:{b+3}] offset:{4096*u}')
    so = []; A = so.append
    for t in range(1, 5): A(f's_add_u32 s{36+t}, s{35+t}, 20480')
    A(f's_lshl2_add_u32 s41, s{S_J}, s{S_W}'); A(f's_mul_i32 s41, s41, {3*20480}'); A(f's_add_u32 s41, s41, {WS_W1}')
    A('s_add_u32 s42, s41, 20480'); A('s_add_u32 s43, s42, 20480')
    A(f's_mul_i32 s44, s{S_J}, {5*49152}'); A(f's_mul_i32 s3, s{S_W}, 12288'); A('s_add_u32 s44, s44, s3'); A(f's_add_u32 s44, s44, {WS_W2}')
    for t in range(1, 5): A(f's_add_u32 s{44+t}, s{43+t}, 49152')
    A(f's_lshl_b32 s27, s{S_RB}, 9'); A(f's_add_u32 s27, s27, {WS_FL}')
    A(f's_lshr_b32 s3, s{S_J}, 1'); A('s_lshl_b32 s3, s3, 7'); A('s_add_u32 s26, s27, s3')
    A(f's_and_b32 s3, s{S_J}, 1'); A(f's_lshl2_add_u32 s3, s3, s{S_W}'); A('s_lshl2_add_u32 s26, s3, s26')
    A(f's_lshl_b32 s3, s{S_W}, 7'); A('s_add_u32 s27, s27, s3')
    H = {}
    NWA = opt('nwa', 24)
    wq_all = wqs[NW0:]; napp = NWA - NW0
    spread(a, st, wq_all[:napp], lo=opt('alo', 0), hi=opt('ahi', len(st) - 20)); wq_rest = wq_all[napp:]
    a('v_min_u32 v250, 19, v0'); a(f's_mul_i32 s3, s{S_W}, 80'); a('s_add_u32 s3, s3, s50'); a('v_lshl_add_u32 v250, v250, 2, s3')
    WOP = [f'buffer_load_dword v247, v250, {WSR}, 0 offen offset:2048 sc1{PM}']; woc = [f'v_cmp_eq_u32 vcc, s{S_E}, v247']
    a('s_getreg_b32 s3, hwreg(HW_REG_XCC_ID)'); a('s_and_b32 s3, s3, 15'); a(f's_add_u32 s25, s{S_E}, s3')
    a(f's_lshl3_add_u32 s50, s{S_RB}, s{S_J}'); a(f's_lshl2_add_u32 s50, s50, {WS_FB}')
    a(f's_cmp_eq_u32 s{S_W}, 0'); a('s_cselect_b32 s3, 0, 0x80000000'); a('v_mov_b32 v248, s25'); a('v_mov_b32 v249, s3')
    a('v_add_u32 v8, 16384, v4')
    a('v_and_b32 v9, 7, v0'); a('v_lshlrev_b32 v9, 2, v9')
    a('v_xor_b32 v3, v1, v2'); a('v_lshlrev_b32 v20, 8, v2'); a('v_lshl_add_u32 v20, v3, 4, v20')
    a('v_xor_b32 v21, 64, v20'); a('v_add_u32 v22, 61440, v20'); a('v_add_u32 v23, 61440, v21')
    a.wait_id(B2H['A']); a.wait(lg=0); a.barrier()
    tn(a, 'p1')
    ACC = 40; XF = 116; QR = 160
    def xread(s):
        l = []
        for mt in range(5):
            r = XF + 20 * (s % 2) + 4 * mt
            off = (mt * 20 + s) * 1024; ad = 20 + (s & 1)
            if off >= 61440: off -= 61440; ad += 2
            l.append(f'ds_read_b128 v[{r}:{r+3}], v{ad} offset:{off}')
        return l
    for t in xread(0): a(t)
    side = []
    A = side.append
    A('v_lshrrev_b32 v3, 2, v1'); A('v_xor_b32 v3, v3, v2'); A('v_lshlrev_b32 v3, 3, v3'); A('v_lshl_add_u32 v3, v1, 5, v3')
    A(f's_add_u32 s57, s{S_W}, 5'); A(f's_add_u32 s58, s{S_W}, 10'); A(f's_mov_b32 s60, s{S_W}')
    A('s_lshr_b32 s59, 0x0f040e09, s54'); A('s_and_b32 s59, s59, 0xff')
    for q in range(4):
        A(f's_mul_i32 s{57+q}, s{57+q}, 2560'); A(f's_add_u32 s{57+q}, s{57+q}, {L_DUMP}'); A(f'v_add_u32 v{24+q}, s{57+q}, v3')
    A(f's_lshl_b32 s57, s{S_W}, 9'); A(f's_add_u32 s57, s57, {L_DUMP}')
    A('v_add_u32 v28, s57, v3')
    A('v_and_b32 v3, 3, v1'); A('v_xor_b32 v3, v3, v2'); A('v_lshlrev_b32 v3, 3, v3')
    A('v_and_b32 v10, 60, v0'); A('v_lshl_add_u32 v3, v10, 3, v3'); A('v_add_u32 v29, s57, v3')
    A('v_and_b32 v3, 1, v1'); A('v_cmp_eq_u32 s[74:75], 1, v3')
    A('v_lshl_add_u32 v10, v2, 2, v3'); A('v_cmp_le_u32 s[76:77], v10, v1')
    A('v_add_u32 v10, 2, v10'); A('v_cmp_le_u32 s[78:79], v10, v1')
    A('v_mov_b32 v10, 0x0c0c0100'); A('v_mov_b32 v11, 0x01000c0c'); A('v_cndmask_b32 v10, v10, v11, s[74:75]')
    A('v_mov_b32 v11, 0x0c0c0302'); A('v_mov_b32 v12, 0x03020c0c'); A('v_cndmask_b32 v11, v11, v12, s[74:75]')
    A('v_mov_b32 v12, 0x0c0c0c0c')
    A('v_cndmask_b32 v30, v10, v12, s[76:77]'); A('v_cndmask_b32 v31, v11, v12, s[78:79]')
    A('v_cndmask_b32 v32, v12, v10, s[76:77]'); A('v_cndmask_b32 v33, v12, v11, s[78:79]')
    A(f's_or_b32 s57, s{S_RB}, s{S_W}'); A('s_cmp_eq_u32 s57, 0'); A(f's_cselect_b32 s57, {fl(-1e30)}, 0')
    for q in range(4): A(f'v_mov_b32 v{34+q}, s57')
    for q in range(16): A(f'v_mov_b32 v{QR+q}, 0')
    M2 = 208; M3 = 228
    lm = Mod(True, LM['W'], LM['C'], LM['AC'], 0, 0, LM['T'], 0, 0, 0, 29)
    ust = []; A = ust.append
    tr_addr(A, 253, 8192, L_ST, 203, 55)
    tr_addr(A, 246, 2048, L_W2S, 203, 55)
    A('s_cmp_lt_u32 s2, 160\ns_cselect_b32 s55, 0x80000000, 0'); A('v_or_b32 v245, s55, v4')
    u1 = uproc(6, 204, 62, 20480, 253, 245); u2 = uproc(2, 228, 63, 49152, 246, 4)
    upr = u2[:4] + u1[:12] + u2[4:] + u1[12:] + [lambda: H.update(v=a.vm[-1][0])]
    early = []; A = early.append
    if PW == 1: early += prew(61) + [lambda: H.update(v=a.vm[-1][0])]
    modw = [f'v_accvgpr_read_b32 v{r}, a{r}' for r in list(range(196, 201)) + list(range(176, 196))] + lm.silu() + lm.dot()
    s2 = []; A = s2.append
    w2dma = []
    w2dma.append(k.poll_issue(156))
    A(f's_lshl2_add_u32 s49, s{S_RB}, s{S_W}'); A(f's_mul_i32 s49, s49, {16*1280}'); A(f's_mul_i32 s61, s{S_J}, 160'); A('s_add_u32 s49, s49, s61')
    for i in range(3):
        r = 205 + i
        A(f'v_add_u32 v{r}, {64*i}, v0'); A(f'v_mul_u32_u24 v216, 6554, v{r}'); A('v_lshrrev_b32 v216, 16, v216'); A(f'v_lshlrev_b32 v{r}, 4, v{r}')
        A(f'v_mul_u32_u24 v216, {1280-160}, v216'); A(f'v_add_u32 v{r}, v216, v{r}')
    A('v_lshlrev_b32 v216, 26, v0'); A('v_and_b32 v216, 0x80000000, v216'); A('v_or_b32 v207, v216, v207')
    A(f's_mul_i32 s60, s{S_W}, 3072'); A(f's_add_u32 s60, s60, {L_XR}')
    for i in range(3): w2dma.append(f's_add_u32 m0, s60, {1024*i}\nbuffer_load_dwordx4 v{205+i}, s[{S_X}:{S_X+3}], s49 offen lds')
    w2dma += ['v_mul_u32_u24 v39, 160, v1', 'v_lshl_add_u32 v39, v2, 3, v39', 'v_add_u32 v39, s60, v39']
    s3_ = []; A = s3_.append
    A(f's_mov_b32 s56, {fl(1/640)}')
    A(f's_lshl_b32 s55, s{S_W}, 4'); A('v_add_u32 v38, s55, v1')
    A(f's_mul_i32 s55, s{S_W}, 60'); A('v_min_u32 v252, 59, v0'); A('v_add_u32 v252, s55, v252'); A(f'v_lshlrev_b32 v249, 2, v252'); A(f'v_add_u32 v249, {L_OWN}, v249')
    A('v_mul_u32_u24 v203, 820, v252'); A('v_lshrrev_b32 v203, 16, v203')
    A('v_cmp_eq_u32 vcc, 1, v203\nv_cndmask_b32 v251, 0, 1.0, vcc')
    A('v_min_u32 v202, 1, v203'); A('v_add_u32 v202, v202, v203')
    A('v_mul_u32_u24 v202, 640, v202'); A('v_mul_u32_u24 v203, 80, v203'); A('v_sub_u32 v252, v252, v203'); A('v_add_u32 v252, v252, v202')
    A(f's_mul_i32 s55, s{S_J}, 80'); A('v_add_lshl_u32 v252, v252, s55, 4'); A(f's_mov_b32 s63, {WS_MODP + 1280 * 16}')
    A('v_lshrrev_b32 v203, 5, v0'); A('v_and_b32 v202, 1, v2'); A('v_mul_u32_u24 v254, 160, v203'); A('v_add_u32 v254, v254, v1')
    A(f's_mul_i32 s55, s{S_W}, 320'); A('s_add_u32 s55, s55, 640'); A('v_add_u32 v254, s55, v254')
    A('v_mul_u32_u24 v255, 80, v202'); A('v_add_lshl_u32 v255, v255, v254, 4'); A('v_lshl_add_u32 v254, v202, 4, v254'); A('v_lshlrev_b32 v254, 4, v254')
    MLD = [f'buffer_load_dwordx4 v[{M3}:{M3+3}], v252, {WSR}, s63 offen sc1'] + [f'buffer_load_dwordx4 v[{M2+4*i}:{M2+4*i+3}], v{254 if i < 4 else 255}, {WSR}, s63 offen offset:{256*t} sc1' for i, t in enumerate((0, 2, 5, 7, 4))]
    s4 = []; A = s4.append
    A(f's_and_b32 s55, s{S_W}, 1'); A('s_mul_i32 s55, s55, 1280')
    A(f's_cmp_ge_u32 s{S_W}, 2\ns_cselect_b32 s49, 0, 64'); A('s_add_u32 s49, s49, s55'); A(f's_add_u32 s49, s49, {L_GS}')
    A('v_mul_u32_u24 v250, 640, v203'); A('v_lshl_add_u32 v250, v202, 3, v250'); A('v_lshrrev_b32 v203, 2, v1'); A('v_lshl_add_u32 v250, v203, 4, v250')
    A('v_and_b32 v203, 3, v1'); A('v_lshl_add_u32 v250, v203, 1, v250'); A('v_add_u32 v250, s49, v250')
    def mod2_fin():
        a(f's_lshr_b32 s3, s{S_E}, 4')
        chk = mchk(M2, 24, 232, 3)
        for t in chk: a(t)
        a(f's_cmp_ge_u32 s{S_W}, 2'); a('s_cselect_b32 s58, 1.0, 0'); a('s_nop 1')
        spin('M2', MLD, chk)
        for t in msum(M2, 6, ['s58'] * 5 + ['v251'], [0] * 5 + [1]): a(t)
        for i in range(5): a(f'ds_write_b16 v250, v{M2+4*i} offset:{128*i}')
        a(f'ds_write_b32 v249, v{M3}')
    FBL = f'buffer_load_dword v232, v233, {WSR}, s51 offen sc1' + PM
    fbc = [f'v_subrev_u32 v232, s{S_E}, v232', 'v_cmp_gt_u32 vcc, 16, v232']
    def fb_issue(): a(f's_lshl_b32 s51, s{S_W}, 8'); a(f's_add_u32 s51, s51, {WS_FB}'); a('v_lshlrev_b32 v233, 2, v0'); a(FBL)
    def fb_check():
        for t in fbc: a(t)
        a(f's_or_b32 s49, s2, s{S_W}'); a('s_cmp_eq_u32 s49, 0'); a('s_cselect_b32 s3, 0, 0x80000000'); a('s_nop 0')
        spin('FB', [FBL], fbc)
        a('s_and_b32 s51, s50, -32')
        a(f'v_mov_b32 v236, s{S_E}'); a('v_mov_b32 v237, s3'); a(f's_mov_b32 s3, {WS_EP}')
    def fb_after():
        a(f'buffer_load_dword v232, v9, {WSR}, s51 offen sc1' + PM)
        a(f'buffer_store_dword v236, v237, {WSR}, s3 offen sc1')
    def fb_fast():
        a('v_cmp_eq_u32 vcc, s25, v232'); a('s_nop 3'); a('s_cmp_eq_u64 vcc, -1'); a(f's_cselect_b32 s{S_FAST}, {0 if "slow" in OPT else 1}, 0')
    wos = [wo_ld(t, i) for i in range(5) for t in range(5)]
    FBI = opt('fbi', 17); M1 = opt('m1', 0); MB = opt('mb', 10); WPS = opt('wps', 4); WO0 = opt('wo0', 12)
    for s in range(20):
        main = []
        for mt in range(5):
            for sl in range(4):
                if sl == 3 and mt == 0: continue
                ac = ACC + 4 * (sl * 5 + mt - (1 if sl == 3 else 0))
                c = '0' if s == 0 else q4('v', ac)
                main.append(f'{MF} {q4("v", ac)}, {wq_reg(s, sl)}, {q4("v", XF + 20 * (s % 2) + 4 * mt)}, {c}')
        fill = xread(s + 1) if s < 19 else []
        n = 0
        while wq_rest and n < WPS + (1 if 80 - len(wq_rest) < 4 * (s - 1 + RING) else 0):
            t = wq_rest[0]
            if not callable(t):
                if wqs.index(t) // 4 > s - 1 + RING: break
                n += 1
            fill.append(wq_rest.pop(0))
        if not wq_rest and s >= WO0:
            while wos and n < WPS: fill.append(wos.pop(0)); n += 1
        def part(l, lo, hi): n = -(-len(l) // (hi - lo)); return l[(s - lo) * n:(s - lo + 1) * n] if lo <= s < hi else []
        oth = part(ust + upr, M1, M1 + opt('un', 3)) + part(early, opt('e0', 3), opt('e1', 6)) + part(modw, opt('m0', 2), MB) + part(s2, 9, 12)
        if s == MB: oth += lm.fin()
        oth += part(so, 8, 12) + part(w2dma, opt('xr', 12), opt('xr', 12) + 1) + part(s3_ + s4 + side, 13, 20)
        if s == FBI: oth += [fb_issue]
        if s == opt('mli', 19): oth += MLD
        if s == opt('wop', 3): oth += WOP
        fill = mix(oth, fill) if len(oth) > len(fill) else mix(fill, oth)
        if s == MB:
            def mid(): a(woc[0]); a.wait_id(H['v']); a.wait(lg=0); a('s_nop 2'); spin('WO', WOP, woc); a.barrier(); tn(a, 'mid'); a(f'buffer_store_dword v248, v249, {WSR}, s50 offen sc1')
            fill = [mid] + fill
        tn(a, f's{s}')
        spread(a, main, fill, hi=18)
    assert not wq_rest
    tn(a, 'p1e')
    w1q = [w1_ld(f) for f in range(60)]
    def w1n(n):
        l = w1q[:n]; del w1q[:n]; return l
    st = []
    for sl in range(4):
        for mt in range(5):
            if sl == 3 and mt == 0: continue
            ac = ACC + 4 * (sl * 5 + mt - (1 if sl == 3 else 0))
            st += [f'v_cvt_pk_bf16_f32 v{ac}, v{ac}, v{ac+1}', f'v_cvt_pk_bf16_f32 v{ac+1}, v{ac+2}, v{ac+3}',
                   f'ds_write_b64 v{24+sl}, v[{ac}:{ac+1}] offset:{512*mt}']
    if FBI == 20: fb_issue()
    spread(a, st, wos)
    fb_check()
    a.wait(lg=0); a.barrier()
    tn(a, 'db')
    fb_after()
    K0, K1, VR, SR = 120, 130, 140, 176
    st = []; A = st.append
    def sx(m): A(f's_mov_b32 exec_lo, {hex(m & 0xffffffff)}'); A(f's_mov_b32 exec_hi, {hex(m >> 32)}')
    for t in w1n(opt('n1', 6)): a(t)
    for t in range(5):
        a(f'ds_read_b64 v[{K0+2*t}:{K0+2*t+1}], v28 offset:{(5+t)*2560}')
        a(f'ds_read_b64 v[{K1+2*t}:{K1+2*t+1}], v28 offset:{(5+t)*2560+512}')
    for h in range(4):
        k.setexec((FULL << (16 * h)) & FULL)
        a(f'ds_read_b64 v[{QR+4*h}:{QR+4*h+1}], v28 offset:{h*2560+512}')
        k.setexec((1 << (16 * (h + 1))) - 1)
        a(f'ds_read_b64 v[{QR+4*h+2}:{QR+4*h+3}], v28 offset:{(h+1)*2560+512}')
    for t in range(5):
        a(f'ds_read_b64_tr_b16 v[{VR+4*t}:{VR+4*t+1}], v29 offset:{(10+t)*2560}')
        a(f'ds_read_b64_tr_b16 v[{VR+4*t+2}:{VR+4*t+3}], v29 offset:{(10+t)*2560+512}')
    H = range(4)
    for h in H:
        A(f'{MF} v[{SR+8*h}:{SR+8*h+3}], v[{K0+2*h}:{K0+2*h+3}], v[{QR+4*h}:{QR+4*h+3}], v[34:37]')
        A(f'{MF} v[{SR+8*h+4}:{SR+8*h+7}], v[{K1+2*h}:{K1+2*h+3}], v[{QR+4*h}:{QR+4*h+3}], 0')
    for h in H:
        b = SR + 8 * h
        for e in (0, 2, 4, 6): A(f'v_cndmask_b32 v{b+e}, v{b+e}, v{b+e+1}, s[74:75]')
        A(f'v_cndmask_b32 v{b}, v{b}, v{b+4}, s[76:77]'); A(f'v_cndmask_b32 v{b+1}, v{b+2}, v{b+6}, s[78:79]')
    def bfly(op, r):
        for sw in ('v_permlane16_swap_b32', 'v_permlane32_swap_b32'):
            for h in H: A(f'v_mov_b32 v{SR+8*h+r+1}, v{SR+8*h+r}')
            for h in H: A(f'{sw} v{SR+8*h+r}, v{SR+8*h+r+1}')
            for h in H: A(f'{op} v{SR+8*h+r}, v{SR+8*h+r}, v{SR+8*h+r+1}')
    for h in H: A(f'v_max_f32 v{SR+8*h+2}, v{SR+8*h}, v{SR+8*h+1}')
    bfly('v_max_f32', 2)
    CS = LOG2E * 20 ** -0.5
    A(f's_mov_b32 s57, {fl(CS)}')
    for h in H: A(f'v_mul_f32 v{SR+8*h+2}, {fl(-CS)}, v{SR+8*h+2}')
    for h in H:
        b = SR + 8 * h
        A(f'v_fma_f32 v{b}, v{b}, s57, v{b+2}'); A(f'v_fma_f32 v{b+1}, v{b+1}, s57, v{b+2}')
    for h in H:
        b = SR + 8 * h
        A(f'v_exp_f32 v{b}, v{b}'); A(f'v_exp_f32 v{b+1}, v{b+1}')
    for h in H: A(f'v_add_f32 v{SR+8*h+2}, v{SR+8*h}, v{SR+8*h+1}')
    bfly('v_add_f32', 2)
    for h in H: A(f'v_rcp_f32 v{SR+8*h+2}, v{SR+8*h+2}')
    for h in H:
        b = SR + 8 * h
        A(f'v_mul_f32 v{b}, v{b}, v{b+2}'); A(f'v_mul_f32 v{b+1}, v{b+1}, v{b+2}')
    for h in H: A(f'v_cvt_pk_bf16_f32 v{SR+8*h}, v{SR+8*h}, v{SR+8*h+1}')
    for h in H:
        b = SR + 8 * h
        for q in range(4): A(f'v_perm_b32 v{b+4+q}, v{b}, v{b}, v{30+q}')
    OR = 40
    for h in H:
        b = SR + 8 * h + 4
        A(f'{MF} v[{OR+8*h}:{OR+8*h+3}], v[{VR+4*h}:{VR+4*h+3}], v[{b}:{b+3}], 0')
        A(f'{MF} v[{OR+8*h+4}:{OR+8*h+7}], v[{VR+4*h+4}:{VR+4*h+7}], v[{b}:{b+3}], 0')
    spread(a, st, w1n(opt('n2', 22)), lo=opt('n2lo', 8), hi=opt('n2hi', 110))
    a(f's_mul_i32 s28, s{S_RB}, {RSZ}'); a(f's_add_u32 s28, s28, {WS_OF}'); a(f's_mul_i32 s57, s{S_W}, 20480'); a('s_add_u32 s57, s57, s28')
    frag_offsets(a, 57, 58, 3)
    F = 80
    a(f'v_cvt_pk_bf16_f32 v{F}, v{OR}, v{OR+1}'); a(f'v_cvt_pk_bf16_f32 v{F+1}, v{OR+2}, v{OR+3}')
    for t in (1, 2, 3, 4):
        s_ = OR + 8 * (t - 1) + 4
        a(f'v_cvt_pk_bf16_f32 v{F+2*t}, v{s_}, v{s_+1}'); a(f'v_cvt_pk_bf16_f32 v{F+2*t+1}, v{s_+2}, v{s_+3}')
    for t in (1, 2, 3):
        k.setexec((FULL << (16 * t)) & FULL)
        s_ = OR + 8 * t
        a(f'v_cvt_pk_bf16_f32 v{F+2*t}, v{s_}, v{s_+1}'); a(f'v_cvt_pk_bf16_f32 v{F+2*t+1}, v{s_+2}, v{s_+3}')
    a('s_mov_b64 exec, -1')
    fb_fast()
    h = k.stores(frag_store80(F, 57, 58))
    tn(a, 'att')
    XR, ACC = 64 + 28, 40
    GA, GG = 152, 40; X1 = 92
    a(f's_mul_i32 s3, s{S_W}, 5120')
    a('s_add_u32 s57, s28, s3')
    for q in range(4):
        a(f's_add_u32 s3, s{S_W}, {q+1}'); a('s_and_b32 s3, s3, 3')
        a(f's_mul_i32 s58, s3, 20480'); a(f's_add_u32 s{32+q}, s58, s57')
        if q < 3:
            a('s_mul_i32 s58, s3, 15360'); a(f's_add_u32 s58, s58, {q*5120}'); a(f'v_add_u32 v{20+q}, s58, v4')
    a(f's_mul_i32 s58, s{S_W}, 15360'); a('v_add_u32 v23, s58, v4')
    a(f'v_lshlrev_b32 v24, 4, v2'); a(f'v_add_u32 v24, {L_OWN}, v24')
    mod2_fin()
    for t in range(5): a(f'ds_read_b64 v[{10+2*t}:{11+2*t}], v39 offset:{32*t}')
    k.publish(h, 1, 3)
    tn(a, 'pb1')
    for t in w1n(opt('n3', 0)): a(t)
    k.poll(1, 3)
    tn(a, 'p2')
    for q in range(4):
        for i in range(5): a(ld(q4('v', XR + (q * 5 + i) * 4), i, 32 + q, sc1=True))
    prev = []
    for q in range(4):
        ac = ACC + 20 * (q & 1)
        main = []
        for i in range(5):
            for t in range(5):
                c = '0' if i == 0 else q4('v', ac + 4 * t)
                main.append(f'{MF} {q4("v", ac + 4*t)}, {wo_reg(t, i)}, {q4("v", XR + (q*5+i)*4)}, {c}')
        spread(a, main, prev + (w1n(opt('n4', 8)) if q >= 1 else []), lo=4, hi=22)
        prev = [f'ds_write_b128 v{20+q}, {q4("v", ac+4*t)} offset:{1024*t}' for t in range(5)] if q < 3 else []
    tn(a, 'p2m')
    a(f's_add_u32 s31, s28, {WS_X1G - WS_OF}'); a(f's_mul_i32 s57, s{S_W}, 20480'); a('s_add_u32 s57, s57, s31')
    frag_offsets(a, 57, 58, 3)
    a('v_lshlrev_b32 v38, 6, v38'); a(f's_lshl3_add_u32 s59, s{S_J}, s31'); a('s_add_u32 s59, s59, 81920')
    a.wait(lg=0); a.barrier()
    tn(a, 'p2b')
    R = ACC + 20
    for q in range(3):
        for t in range(5): a(f'ds_read_b128 {q4("v", XR + (q*5+t)*4)}, v23 offset:{q*5120+t*1024}')
    for v, b in enumerate((GA, GG)):
        for t in range(5): a(f'ds_read_b128 v[{b+4*t}:{b+4*t+3}], v24 offset:{(20*v+4*t)*16}')
    w2s = [w2_ld(f) for f in range(60)]
    st = []; A = st.append
    for q in range(3):
        for t in range(5):
            r = XR + (q * 5 + t) * 4
            for e in (0, 2): A(f'v_pk_add_f32 v[{R+4*t+e}:{R+4*t+e+1}], v[{R+4*t+e}:{R+4*t+e+1}], v[{r+e}:{r+e+1}]')
        if q == 0:
            for e in range(10): st += unpack(X1 + 2 * e, X1 + 2 * e + 1, 10 + e)
    for e in range(10): A(f'v_pk_fma_f32 v[{X1+2*e}:{X1+2*e+1}], v[{R+2*e}:{R+2*e+1}], v[{GA+2*e}:{GA+2*e+1}], v[{X1+2*e}:{X1+2*e+1}]')
    for e in range(10): A(f'v_cvt_pk_bf16_f32 v{10+e}, v{X1+2*e}, v{X1+2*e+1}')
    for e in range(10): st += unpack(X1 + 2 * e, X1 + 2 * e + 1, 10 + e)
    for e in range(10): A(f'v_pk_mul_f32 v[{R+2*e}:{R+2*e+1}], v[{X1+2*e}:{X1+2*e+1}], v[{GG+2*e}:{GG+2*e+1}]')
    F = 80
    for e in range(10): A(f'v_cvt_pk_bf16_f32 v{F+e}, v{R+2*e}, v{R+2*e+1}')
    spread(a, st, w1n(opt('n5', 8)), hi=opt('n5hi', 60))
    k.stores(frag_store80(F, 57, 58))
    a(f'v_pk_add_f32 v[24:25], v[{X1}:{X1+1}], v[{X1+2}:{X1+3}]'); a(f'v_pk_mul_f32 v[26:27], v[{X1}:{X1+1}], v[{X1}:{X1+1}]')
    for e in range(1, 10):
        p = f'v[{X1+2*e}:{X1+2*e+1}]'
        if e > 1: a(f'v_pk_add_f32 v[24:25], v[24:25], {p}')
        a(f'v_pk_fma_f32 v[26:27], {p}, {p}, v[26:27]')
    a('v_add_f32 v24, v24, v25'); a('v_add_f32 v25, v26, v27')
    for sw in ('v_permlane16_swap_b32', 'v_permlane32_swap_b32'):
        a('v_mov_b32 v26, v24'); a('v_mov_b32 v27, v25')
        a(f'{sw} v24, v26'); a(f'{sw} v25, v27')
        a('v_add_f32 v24, v24, v26'); a('v_add_f32 v25, v25, v27')
    h = k.stores(['s_mov_b64 exec, 0xffff', f'buffer_store_dwordx2 v[24:25], v38, {WSR}, s59 offen', 's_mov_b64 exec, -1'])
    hst = a.vm[-1][0]
    tn(a, 'p2e')
    for t in w1n(99): a(t)
    XF = 40; NB = 6; ACC = 64; U1, T1, T = 88, 100, 112
    a('v_and_b32 v3, 1, v1'); a('v_lshlrev_b32 v3, 6, v3'); a('v_lshl_add_u32 v20, v2, 4, v3'); a(f'v_add_u32 v20, {L_GS}, v20')
    a(f'v_add_u32 v21, {L_X3}, v4'); a(f'v_add_u32 v22, {L_X3 + 40960}, v4')
    def xr(mt, s, slot):
        if mt == 4: return f'ds_read_b128 {q4("v", XF + 4*slot)}, v20 offset:{128*s}'
        return f'ds_read_b128 {q4("v", XF + 4*slot)}, v{21 + mt//2} offset:{((mt%2)*20+s)*1024}'
    PF = NB - 1
    def p3pass(mt, acb, fill, nxt=None, pre=True, lo=6, hi=56, base=0):
        if pre:
            for p in range(PF): a(xr(mt, p, (base + p) % NB))
        main = []
        for s in range(20):
            if s + PF < 20: main.append(xr(mt, s + PF, (base + s + PF) % NB))
            elif nxt is not None: main.append(xr(nxt, s + PF - 20, (base + s + PF) % NB))
            for t in range(3):
                c = '0' if s == 0 else q4('v', acb + 4 * t)
                main.append(f'{MF} {q4("v", acb + 4*t)}, {w1_reg(s*3+t)}, {q4("v", XF + 4*((base + s) % NB))}, {c}')
        spread(a, main, fill, lo=lo * 4 // 3, hi=hi * 4 // 3)
    a(f's_mul_i32 s55, s{S_W}, 5120'); a('s_add_u32 s29, s31, s55'); a(f's_add_u32 s55, s55, {L_X3}')
    def xdma(mt):
        a(f's_add_u32 s30, s29, {mt*20480}'); a(f's_add_u32 m0, s55, {mt*20480}')
        for i in range(4): a(f'buffer_load_dwordx4 v4, {WSR}, s30 offen offset:{1024*i} sc1 lds')
        a(f's_add_u32 m0, s55, {mt*20480 + 4096}')
        return a(f'buffer_load_dwordx4 v5, {WSR}, s30 offen sc1 lds')
    W2E = opt('w2e', 6)
    p3pass(4, ACC + 12, [lambda: k.publish(hst, 2, 3)] + w2s[:W2E], lo=opt('pb2', 18), hi=opt('pb2', 18) + 1 + 2 * W2E)
    for t in w2s[W2E:W2E + opt('w2f', 0)]: a(t)
    W2E += opt('w2f', 0)
    tn(a, 'u1')
    k.poll(2, 3)
    hx = [xdma(0)]
    hx += [xdma(mt) for mt in range(1, 4)]
    C = -LOG2E
    for e in range(12):
        a(f'v_mov_b32_dpp v{U1+e}, v{ACC+12+e} quad_perm:[0,0,2,2] row_mask:0xf bank_mask:0xf')
        a(f'v_mov_b32_dpp v{T1+e}, v{ACC+12+e} quad_perm:[1,1,3,3] row_mask:0xf bank_mask:0xf')
    for e in range(12): a(f'v_mul_f32 v{T1+e}, {fl(C)}, v{T1+e}')
    a(f's_mul_i32 s53, s{S_J}, 6144'); a('s_add_u32 s52, s28, s53')
    a(f's_lshr_b32 s53, s{S_W}, 1'); a('s_lshl_b32 s53, s53, 10'); a('s_add_u32 s53, s53, s52'); a('s_add_u32 s53, s53, 4096')
    a(f's_and_b32 s3, s{S_W}, 1'); a('s_lshl3_add_u32 s53, s3, s53')
    a(f's_lshl_b32 s3, s{S_W}, 10'); a('s_add_u32 s52, s52, s3')
    a(f's_mov_b32 s54, {fl(C)}')
    a('s_add_u32 s30, s31, 81920')
    a('v_lshlrev_b32 v3, 6, v1'); a('v_lshl_add_u32 v3, v2, 4, v3')
    a.wait_id(hx[0]); a.barrier()
    tn(a, 'p3')
    for mt in range(4): a(f'buffer_load_dwordx4 v[{24+4*mt}:{27+4*mt}], v3, {WSR}, s30 offen offset:{1024*mt} sc1')
    M = range(4); st = []; A = st.append
    for m in M: A(f'v_add_f32 v{24+4*m}, v{24+4*m}, v{26+4*m}'); A(f'v_add_f32 v{25+4*m}, v{25+4*m}, v{27+4*m}')
    for sw in ('v_permlane16_swap_b32', 'v_permlane32_swap_b32'):
        for m in M: A(f'v_mov_b32 v{26+4*m}, v{24+4*m}'); A(f'v_mov_b32 v{27+4*m}, v{25+4*m}')
        for m in M: A(f'{sw} v{24+4*m}, v{26+4*m}'); A(f'{sw} v{25+4*m}, v{27+4*m}')
        for m in M: A(f'v_add_f32 v{24+4*m}, v{24+4*m}, v{26+4*m}'); A(f'v_add_f32 v{25+4*m}, v{25+4*m}, v{27+4*m}')
    A(f'v_mov_b32 v3, {fl(1e-5)}')
    for m in M: A(f'v_mul_f32 v{26+4*m}, s56, v{24+4*m}')
    for m in M: A(f'v_fma_f32 v{25+4*m}, v{25+4*m}, s56, v3')
    for m in M: A(f'v_fma_f32 v{25+4*m}, -v{26+4*m}, v{26+4*m}, v{25+4*m}')
    for m in M: A(f'v_max_f32 v{25+4*m}, v{25+4*m}, v3')
    for m in M: A(f'v_rsq_f32 v{24+4*m}, v{25+4*m}')
    for m in M: A(f'v_mul_f32 v{24+4*m}, s54, v{24+4*m}')
    for m in M: A(f'v_mul_f32 v{25+4*m}, -v{26+4*m}, v{24+4*m}')
    hs = {}
    def epi_ops(mt):
        ac = ACC + 12 * (mt & 1); P = 24 + 4 * mt; o = {}
        for e in range(12):
            o['A', e] = ([], f'v_fma_f32 v{T+e}, v{U1+e}, v{P+1}, v{T1+e}')
            o['B', e] = ([('A', e)], f'v_fma_f32 v{ac+e}, v{ac+e}, v{P}, v{T+e}')
            o['X', e] = ([('B', e)], f'v_exp_f32 v{T+e}, v{ac+e}')
            o['C', e] = ([('X', e)], f'v_fma_f32 v{T+e}, v{T+e}, s54, s54')
            o['R', e] = ([('C', e)], f'v_rcp_f32 v{T+e}, v{T+e}')
            o['M', e] = ([('R', e)], f'v_mul_f32 v{ac+e}, v{ac+e}, v{T+e}')
        for e in range(6): o['V', e] = ([('M', 2 * e), ('M', 2 * e + 1)], f'v_cvt_pk_bf16_f32 v{T+e}, v{ac+2*e}, v{ac+2*e+1}')
        return o
    def sto(mt):
        def f():
            hs[mt] = k.stores([f'buffer_store_dwordx4 v[{T}:{T+3}], v4, {WSR}, s52 offen', f'buffer_store_dwordx2 v[{T+4}:{T+5}], v4, {WSR}, s53 offen'])
            d = 49152 if mt != 1 else WS_X1G - WS_OF - 49152
            a(f's_add_u32 s52, s52, {d}'); a(f's_add_u32 s53, s53, {d}')
        return f
    def epi_slots(mt, p0=1):
        o = epi_ops(mt); done = {}; sl = {}; p = p0
        def ready(x, n): return all(d in done and done[d] + (2 if o_k(d) else 0) < n for d in o[x][0])
        def o_k(x): return x[0] in 'XR'
        while len(done) < len(o):
            n = 2 * p
            c = [x for kk in 'RX' for x in o if x[0] == kk and x not in done and ready(x, n)]
            if c: sl.setdefault(n, []).append(o[c[0]][1]); done[c[0]] = n
            n += 1
            for _ in range(opt('npl', 3) if c else 5):
                c2 = [x for kk in 'CBVMA' for x in o if x[0] == kk and x not in done and ready(x, n)]
                if not c2: break
                sl.setdefault(n, []).append(o[c2[0]][1]); done[c2[0]] = n
            p += 1
        sl.setdefault(2 * p, []).append(sto(mt))
        return sl
    def emit(mf, *plans):
        sl = {}
        for pl in plans:
            if isinstance(pl, dict):
                for n, v in pl.items(): sl.setdefault(n, []).extend(v)
            else:
                it, lo, hi = pl
                for i, t in enumerate(it): sl.setdefault((lo + (hi - lo) * i // max(1, len(it))) // 2 * 2, []).append(t)
        assert max(sl) < len(mf), (max(sl), len(mf))
        for n, m_ in enumerate(mf):
            a(m_)
            for t in sl.get(n, []):
                if callable(t): t()
                else: a(t)
    def p3mf(mt, base): return [f'{MF} {q4("v", ACC + 12 * (mt & 1) + 4*t)}, {w1_reg(s*3+t)}, {q4("v", XF + 4*((base + s) % NB))}, {"0" if s == 0 else q4("v", ACC + 12 * (mt & 1) + 4*t)}' for s in range(20) for t in range(3)]
    def p3rd(mt, base, nxt):
        d = {}
        for s in range(20):
            n = (3 * s + 1) // 2 * 2 if s else 0
            n = max(n, 3 * s - 1); n += n & 1
            if s + PF < 20: d.setdefault(min(n, 58), []).append(xr(mt, s + PF, (base + s + PF) % NB))
            elif nxt is not None: d.setdefault(min(n, 58), []).append(xr(nxt, s + PF - 20, (base + s + PF) % NB))
        return d
    def x4reg(q, i):
        if q == 0: return q4('v', 124 + 4 * i)
        if q == 1: return q4('v', 172 + 4 * i)
        if q == 2: return q4('v', 80 + 4 * i) if i < 11 else q4('v', 220)
        return q4('v', 224 + 4 * i) if i < 8 else q4('a', 140 + 4 * (i - 8))
    def x4ld(q): return [ld(x4reg(q, i), i, 32 + q, sc1=True) for i in range(12)]
    SQ = {8: 0, 5: 20480, 6: 40960, 7: 61440}
    def stg(f):
        i, t = divmod(f, 5)
        b, o = (57, SQ[i] + 1024 * t) if i < 9 else (58, 1024 * t)
        return f's_add_u32 m0, s{b}, {o - 1024 * (i % 4)}\nbuffer_load_dwordx4 v{4 + i // 4}, {WSR}, s{44 + t} offen offset:{1024 * (i % 4)}{WB} lds'
    def stg_rd(f):
        i, t = divmod(f, 5)
        if i == 9: return f'ds_read_b128 {w2_reg(f)}, v23 offset:{1024 * t}'
        return f'ds_read_b128 {w2_reg(f)}, v21 offset:{SQ[i] + 1024 * t}' if SQ[i] + 1024 * t < 65536 else f'ds_read_b128 {w2_reg(f)}, v23 offset:{1024 * t}'
    a(f's_mul_i32 s57, s{S_W}, 5120'); a(f's_mul_i32 s58, s{S_W}, 3072'); a(f's_add_u32 s58, s58, {L_XR}')
    HS = {}
    wl = w2s[W2E:25] + [stg(f) for f in list(range(25, 35)) + list(range(40, 48))] + [stg(f) for f in range(35, 40)] + [lambda: HS.update(s=a.vm[-1][0])]
    L0 = opt('l0', 13); L1 = opt('l1', 14)
    assert len(wl) - L0 >= 6
    for p in range(PF): a(xr(0, p, p % NB))
    emit(p3mf(0, 0), p3rd(0, 0, None), (wl[:L0], 2, opt('l0hi', 56)), {n: st[4 * ((n - 15) // 2):4 * ((n - 15) // 2) + 4] for n in range(15, 59, 2)})
    assert len(st) <= 88
    a(f's_mul_i32 s3, s{S_W}, 12288'); a('s_add_u32 s32, s28, s3'); a('s_add_u32 s33, s32, 49152'); a('s_add_u32 s34, s31, s3'); a('s_add_u32 s35, s34, 49152')
    a('v_bfe_u32 v20, v0, 3, 2'); a('v_lshl_add_u32 v20, v20, 7, v9'); a('s_and_b32 s29, s27, 0xfffffe00')
    a.wait_id(hx[3]); a.barrier()
    tn(a, 'a0')
    for p in range(PF): a(xr(1, p, p % NB))
    PB = opt('pb', 14)
    emit(p3mf(1, 0), p3rd(1, 0, 2), epi_slots(0), (wl[L0:L0 + L1], 0, 54))
    tn(a, 'a1')
    emit(p3mf(2, 20), p3rd(2, 20, 3), epi_slots(1), {PB: [lambda: k.publish(hs[0], 3, 3)]}, (wl[L0 + L1:], 0, 54), {58: [k.poll_issue(3, 20, 29), 'v_add_u32 v21, s57, v4']})
    tn(a, 'a2')
    x0, x1, x2, x3 = (x4ld(q) for q in range(4))
    late = w2s[48:]
    rd = {}
    for f in list(range(25, 39)) + list(range(40, 45)): rd.setdefault(max(f - 25 + 3, 8 + 2 * (f - 25)) // 2 * 2, []).append(stg_rd(f))
    rd[6] = [lambda: a.wait_id(HS['s'])]
    rd.setdefault(48, []).extend(['v_add_u32 v23, 61440, v21', stg_rd(39)]); rd.setdefault(50, []).extend(['v_add_u32 v23, s58, v4', stg_rd(45)])
    rd.setdefault(52, []).append(stg_rd(46)); rd.setdefault(54, []).append(stg_rd(47))
    NL = opt('nl', 4); PC = opt('pc', 8)
    emit(p3mf(3, 40), p3rd(3, 40, None), epi_slots(2), {PC: [lambda: k.poll_check(3, 3, 20, 29)], PB: [lambda: k.publish(hs[1], 4, 3)]}, rd,
         (x0[:9], PC + 2, 40), (late[:NL], 42, 56), {58: [k.poll_issue(3)]})
    tn(a, 'p4')
    def ac4(q, t): return q4('v', 40 + 4 * t) if q % 2 == 0 else q4('v', 60 + 4 * t if t < 4 else 24)
    def p4mf(q, i0, i1): return [f'{MF} {ac4(q, t)}, {w2_reg(i*5+t)}, {x4reg(q, i)}, {"0" if i == 0 else ac4(q, t)}' for i in range(i0, i1) for t in range(5)]
    def red(q): return [f'ds_write_b128 v{21 if q < 3 else 23}, {ac4(q, t)} offset:{(q%3)*20480 + 1024*t}' for t in range(5)]
    mf = p4mf(0, 0, 9) + p4mf(1, 0, 9) + p4mf(0, 9, 12) + p4mf(1, 9, 12) + p4mf(2, 0, 12) + p4mf(3, 0, 12)
    e3 = epi_slots(3); E3 = max(e3)
    o = lambda n, d: opt(n, d)
    emit(mf, e3, {o('c4', 6): [lambda: k.poll_check(4, 3)], PB: [lambda: k.publish(hs[2], 5, 3)], o('i5', 48): [k.poll_issue(3)], E3 + 2: [lambda: k.poll_check(5, 3)],
                  E3 + PB: [lambda: k.publish(hs[3], 6, 3)], o('i6', 104): [k.poll_issue(3)], o('c6', 116): [lambda: k.poll_check(6, 3)],
                  45: [lambda: tn(a, 'e3')], 90: [lambda: tn(a, 'q0')], 120: [lambda: tn(a, 'q1')], 180: [lambda: tn(a, 'q2')],
                  2: ['v_add_u32 v23, 61440, v21', f's_mul_i32 s3, s{S_W}, 20480', 'v_add_u32 v22, s3, v4']},
         (x1[:9], o('c4', 6) + 2, o('x1hi', 30)), (late[NL:] + x0[9:] + x1[9:], o('x1hi', 30), o('lhi', 72)), (x2, max(E3 + 4, o('lhi', 72)), o('x2hi', 110)), (x3, o('c6', 116) + 2, o('x3hi', 160)),
         (red(0), 108, 118), (red(1), 124, 140), (red(2), 184, 200))
    prev = red(3)
    GB = 124; X1 = 144
    a(f'v_lshlrev_b32 v3, 4, v2'); a(f'v_add_u32 v3, {L_OWN}, v3')
    for t in range(5): a(f'ds_read_b128 {q4("v", GB + 4*t)}, v3 offset:{(40+4*t)*16}')
    for e in range(10):
        for t in unpack(X1 + 2 * e, X1 + 2 * e + 1, 10 + e): a(t)
    for t in prev: a(t)
    tn(a, 'p4e')
    a.wait(lg=0); a.barrier()
    RR = 172
    for q in range(4):
        for t in range(5): a(f'ds_read_b128 {q4("v", RR + (q*5+t)*4)}, v22 offset:{q*5120+t*1024}')
    for q in range(1, 4):
        for e in range(10): a(f'v_pk_add_f32 v[{RR+2*e}:{RR+2*e+1}], v[{RR+2*e}:{RR+2*e+1}], v[{RR+20*q+2*e}:{RR+20*q+2*e+1}]')
    for e in range(10): a(f'v_pk_fma_f32 v[{X1+2*e}:{X1+2*e+1}], v[{RR+2*e}:{RR+2*e+1}], v[{GB+2*e}:{GB+2*e+1}], v[{X1+2*e}:{X1+2*e+1}]')
    a(f's_lshl2_add_u32 s49, s{S_RB}, s{S_W}'); a('s_lshl_b32 s49, s49, 4'); a('v_add_u32 v3, s49, v1')
    a('s_movk_i32 s49, 1280'); a('v_mul_lo_u32 v3, v3, s49'); a('v_lshl_add_u32 v3, v2, 3, v3')
    for t in range(5):
        for e in (2 * t, 2 * t + 1): a(f'v_cvt_pk_bf16_f32 v{10+e}, v{X1+2*e}, v{X1+2*e+1}')
        a(f'buffer_store_dwordx2 v[{10+2*t}:{11+2*t}], v3, s[{S_O}:{S_O+3}], s61 offen offset:{32*t}')
    gen1.epilogue(a, 'p0')
    for t in k.tail: a.raw(t)
    a.raw('CODE_END:')
    return LDS_SIZE
if __name__ == '__main__':
    t, d, lds = gen1.kernel_text(gen1.NAME + '_kernel', main_kernel)
    open(sys.argv[1], 'w').write(f'; @launch grid=(256,1,1) block=(256,1,1) lds={lds}\n.amdgcn_target "amdgcn-amd-amdhsa--gfx950"\n.text\n' + t + '.section .rodata,"a"\n.p2align 6\n' + d)
```

```python
import sys, struct
from asmfw import *
import gen1
from gen1 import WS_MODP, WS_STATS, WS_WQ, WS_WO, WS_W1, WS_W2, WS_OF, WS_X1G, WS_H1, MF, LOG2E, fl, unpack, srd, S_WS, S_X, S_O, S_RB, S_J, S_W, ts, tsc, ts_flush
WSR = f's[{S_WS}:{S_WS+3}]'
WS_FL = 0x40000
WS_XID = 0x44000
S_FAST = 23
S_E = 24
FULL = (1 << 64) - 1
OPT = sys.argv[2] if len(sys.argv) > 2 else ''
L_DUMP = 102400; L_PERM = 147456
L_MODL = L_PERM; L_XR = L_PERM; L_GS = 159744; L_OWN = L_GS + 2560
L_X3 = 65536
LDS_SIZE = 163840
class K:
    def __init__(s, a): s.a = a; s.tail = []; s.nl = 0
    def setexec(s, m):
        s.a(f's_mov_b32 exec_lo, {hex(m & 0xffffffff)}'); s.a(f's_mov_b32 exec_hi, {hex(m >> 32)}')
    def stores(s, lst):
        a = s.a; s.nl += 1; n = s.nl
        a(f's_cmp_eq_u32 s{S_FAST}, 0'); a(f's_cbranch_scc1 SLOW{n}')
        h = None; n0 = len(a.out)
        for t in lst: h = a(t)
        assert len(a.out) - n0 == len(lst), a.out[n0:]
        a.label(f'RET{n}')
        s.tail.append(f'SLOW{n}:\n' + ''.join(f'  {t}{" sc1" if t.startswith("buffer") else ""}\n' for t in lst) + f'  s_branch RET{n}')
        return h
    def publish(s, h, val, vt):
        s.a(f's_add_u32 s72, s{S_E}, {val}'); s.a(f'v_mov_b32 v{vt}, s72')
        s.a.wait_id(h)
        s.stores([f'buffer_store_dword v{vt}, off, {WSR}, s26'])
    def spin_tail(s, n, val, vt, va=9, so=27):
        s.tail.append(f'''SPIN{n}:
  s_mov_b32 s72, 0x8000
SPINL{n}:
  buffer_load_dword v{vt}, v{va}, {WSR}, s{so} offen sc1
  s_waitcnt vmcnt(0)
  v_subrev_u32 v{vt}, s{S_E}, v{vt}
  v_add_u32 v{vt}, {-val}, v{vt}
  v_cmp_gt_u32 vcc, 8, v{vt}
  s_sub_u32 s72, s72, 1
  s_cbranch_scc1 PDONE{n}
  s_cmp_eq_u64 vcc, -1
  s_cbranch_scc0 SPINL{n}
  s_branch PDONE{n}''')
    def poll(s, val, vt):
        a = s.a; s.nl += 1; n = s.nl
        a.wait(lg=0)
        if not opt('sp', 0):
            a(f's_branch SPIN{n}')
        else:
            a(f's_cmp_eq_u32 s{S_FAST}, 0'); a(f's_cbranch_scc1 SPIN{n}')
            a('s_mov_b32 s72, 0x8000'); a(f's_add_u32 s73, s{S_E}, {val}')
            a.label(f'POLL{n}')
            a(f's_load_dwordx8 s[64:71], s[{S_WS}:{S_WS+1}], s27 glc')
            a('s_sub_u32 s72, s72, 1'); a(f's_cbranch_scc1 PDONE{n}')
            a.wait(lg=0)
            for q in range(8): a(f's_sub_u32 s{64+q}, s{64+q}, s73')
            for q in range(1, 8): a(f's_max_u32 s64, s64, s{64+q}')
            a('s_cmp_lt_u32 s64, 8'); a(f's_cbranch_scc0 POLL{n}')
        a.label(f'PDONE{n}')
        a.fwait('lgkmcnt(0)')
        s.spin_tail(n, val, vt)
    def poll_issue(s, vt, va=9, so=27): return f'buffer_load_dword v{vt}, v{va}, {WSR}, s{so} offen sc1'
    def poll_check(s, val, vt, va=9, so=27):
        a = s.a; s.nl += 1; n = s.nl
        a(f's_add_u32 s72, s{S_E}, {val}'); a(f'v_subrev_u32 v{vt}, s72, v{vt}'); a(f'v_cmp_gt_u32 vcc, 8, v{vt}'); a('s_nop 3')
        a('s_cmp_eq_u64 vcc, -1'); a(f's_cbranch_scc0 SPIN{n}')
        a.label(f'PDONE{n}')
        s.spin_tail(n, val, vt, va, so)
def spread(a, main, fill, lo=0, hi=None):
    n = len(main); hi = n if hi is None else hi
    fi = 0; m = len(fill)
    def em(x):
        if callable(x): x()
        else: a(x)
    for i, t in enumerate(main):
        em(t)
        if i >= lo:
            tgt = min(m, -(-m * (i - lo + 1) // max(1, hi - lo)))
            while fi < tgt: em(fill[fi]); fi += 1
    while fi < m: em(fill[fi]); fi += 1
def mix(x, y):
    out = []; j = 0
    for i, t in enumerate(x):
        out.append(t)
        while j < len(y) and j * len(x) < (i + 1) * len(y): out.append(y[j]); j += 1
    return out + y[j:]
def frag_offsets(a, sb, s2, st):
    a(f's_lshr_b32 s{st}, s{S_J}, 1'); a(f's_mul_i32 s{st}, s{st}, 5120'); a(f's_add_u32 s{sb}, s{sb}, s{st}')
    a(f's_and_b32 s{st}, s{S_J}, 1')
    a(f's_lshl3_add_u32 s{s2}, s{st}, s{sb}'); a(f's_add_u32 s{s2}, s{s2}, 4096')
    a(f's_lshl_b32 s{st}, s{st}, 11'); a(f's_add_u32 s{sb}, s{sb}, s{st}')
def frag_store80(F, sb, s2):
    return [f'buffer_store_dwordx4 v[{F}:{F+3}], v4, {WSR}, s{sb} offen',
            f'buffer_store_dwordx4 v[{F+4}:{F+7}], v4, {WSR}, s{sb} offen offset:1024',
            f'buffer_store_dwordx2 v[{F+8}:{F+9}], v4, {WSR}, s{s2} offen']
def ld(reg, s, soff, srd_=WSR, sc1=False):
    return f'buffer_load_dwordx4 {reg}, v{4 + s // 4}, {srd_}, s{soff} offen offset:{1024 * (s % 4)}' + (sc1 if isinstance(sc1, str) else ' sc1' if sc1 else '')
def q4(k, b): return f'{k}[{b}:{b+3}]'
RING = 9
def wq_reg(s, sl): return q4('a', 16 * (s % RING) + 4 * sl)
def wo_reg(t, i): return q4('a', 156 + 4 * (i * 5 + t))
def w1_reg(f): return q4('a', 4 * f) if f < 39 else q4('v', 172 + 4 * (f - 39))
def w2_reg(f): return q4('a', 156 + 4 * f) if f < 25 else q4('a', 4 * (f - 25))
WB = [' sc1', '', ' nt', ' sc1 nt', ' sc0', ' sc0 nt'][int(([o[3:] for o in OPT.split(',') if o.startswith('wb=')] + ['0'])[0])]
def wq_ld(s, sl): return ld(wq_reg(s, sl), s, 32 + sl, 's[12:15]' if sl == 2 else WSR, WB)
def wo_ld(t, i): return ld(wo_reg(t, i), i, 36 + t, WSR, WB)
def w1_ld(f): return ld(w1_reg(f), f // 3, 41 + f % 3, WSR, WB)
def w2_ld(f): return ld(w2_reg(f), f // 5, 44 + f % 5, WSR, WB)


WS_EP = 0x48000; WS_FA = 0x49000; WS_FB = 0x4A000
S_E = 24
L_ST = L_DUMP; L_MR = 143360; RSZ = 98304
def opt(name, d):
    for o in OPT.split(','):
        if o.startswith(name + '='): return int(o.split('=')[1])
    return d
NT = ' nt' if opt('nt', 1) else ''; NTM = ' nt' if opt('ntm', 1) else ''; NTX = ' nt' if opt('ntx', 0) else ''; NTT = ' nt' if opt('ntt', 0) else ''
NXE = opt('nxe', 3); PUBE = opt('pube', 1)
TS = {n: i for i, n in enumerate(('p3', 'a0', 'a1', 'a2', 'p4', 'e3', 'q0', 'q1', 'q2', 'p4e') if 'traceQ' in OPT else ('p1e', 'db', 'att', 'pb1', 'p2', 'p2m', 'p2b', 'p2e', 'u1', 'p3') if 'traceR' in OPT else ('p1', 's2', 's4', 's6', 's8', 's10', 's13', 's15', 's17', 'p1e') if 'traceP' in OPT else ('s', 'dec', 'ka', 'b1', 'st', 'pub', 'xi', 'x0', 'x4', 'ln') if 'traceG' in OPT else ('s', 'ln', 'b2', 'pi', 'mf', 'vp', 'pw', 'fa', 'poll', 'bar') if 'traceH' in OPT else ('s', 'pub', 'pi', 'pw', 'poll', 'bar', 'ln', 'p1', 'p1e', 'att') if 'traceF' in OPT else ('s', 'bar', 'p1', 'p1e', 'att', 'p2', 'p2e', 'p3', 'p4', 'p4e'))}
def tn(a, n):
    if n in TS: ts(a, TS[n])
XN = 40
def pairs(a, st, n, dA, dB, t):
    mg, ta, tb = (13108, 0x47520, 0x98631) if n == 5 else (10923, 0x829630, 0xb5a741)
    a(f's_mul_i32 s{dA}, s{st}, {mg}'); a(f's_lshr_b32 s{dA}, s{dA}, 16'); a(f's_mul_i32 s{dB}, s{dA}, {n}')
    a(f's_sub_u32 s{t}, s{st}, s{dB}'); a(f's_lshl_b32 s{t}, s{t}, 2')
    a(f's_lshr_b32 s{dA}, {hex(ta)}, s{t}'); a(f's_and_b32 s{dA}, s{dA}, 15'); a(f's_lshl1_add_u32 s{dA}, s{dB}, s{dA}')
    a(f's_lshr_b32 s{t}, {hex(tb)}, s{t}'); a(f's_and_b32 s{t}, s{t}, 15'); a(f's_lshl1_add_u32 s{dB}, s{dB}, s{t}')
def perm_src(x, st, n, stride, vd, so, colb, A=30, B=31, T=3, v7=5, vt=3):
    pairs(x, st, n, A, B, T)
    x(f's_sub_u32 s{B}, s{B}, s{A}'); x(f's_mul_i32 s{B}, s{B}, {16*stride}'); x(f's_lshl2_add_u32 s{A}, s{A}, s{S_W}')
    x(f's_mul_i32 s{A}, s{A}, {4*stride}'); x(f's_add_u32 s{so}, s{A}, s{colb}')
    x(f'v_bfe_u32 v{vt}, v0, 3, 2'); x(f's_movk_i32 s{T}, {stride}'); x(f'v_mad_u32_u24 v{vd}, v{vt}, s{T}, v{v7}')
    x(f'v_lshrrev_b32 v{vt}, 5, v0'); x(f'v_mad_u32_u24 v{vd}, v{vt}, s{B}, v{vd}')
def tr_addr(x, vd, blk, base, vt=3, T=3):
    x(f's_movk_i32 s{T}, {blk}'); x(f'v_and_b32 v{vt}, 3, v1'); x(f'v_lshlrev_b32 v{vt}, 3, v{vt}'); x(f'v_mad_u32_u24 v{vd}, v2, s{T}, v{vt}')
    x(f'v_lshrrev_b32 v{vt}, 2, v1'); x(f'v_lshl_add_u32 v{vd}, v{vt}, 7, v{vd}')
    x(f's_lshl_b32 s{T}, s{S_W}, 5'); x(f's_add_u32 s{T}, s{T}, {base}'); x(f'v_add_u32 v{vd}, s{T}, v{vd}')
def uproc(n, R, sd, tst, va, vo, k='a'):
    l = []
    for t in range(n):
        l += [f'ds_read_b64_tr_b16 {k}[{R+4*t}:{R+4*t+1}], v{va} offset:{1024*t}', f'ds_read_b64_tr_b16 {k}[{R+4*t+2}:{R+4*t+3}], v{va} offset:{1024*t + 512}']
    for t in range(n):
        l.append((f's_add_u32 s{sd}, s{sd}, {4*tst}\n' if t else '') + f'buffer_store_dwordx4 {k}[{R+4*t}:{R+4*t+3}], v{vo}, {WSR}, s{sd} offen sc1')
    return l
LM = dict(W=176, C=196, AC=208, T=201)
class Mod:
    def __init__(m, late, W, C, AC, VW, VC, T, SC, SW, SR, SG): m.__dict__.update(locals())
    def dec(m):
        G, D, R = m.SG, m.SG + 1, m.SR
        l = [f'v_lshrrev_b32 v{m.VC}, 3, v0', f'v_and_b32 v{m.T}, 7, v0', f'v_lshlrev_b32 v{m.T}, 4, v{m.T}',
             f's_and_b32 s{G}, s2, 7', f's_lshl3_add_u32 s{G}, s{S_J}, s{G}']
        l += [f's_add_u32 s{G}, s{G}, 24', f's_min_u32 s{G}, s{G}, 59'] if m.late else [f's_sub_u32 s{G}, s{G}, 40']
        l += [f's_bfe_u32 s{D}, s2, 0x20003', f's_lshl2_add_u32 s{R}, s{D}, s{S_W}', f's_mul_i32 s{R}, s{R}, 40', f'v_add_u32 v{m.VC}, s{R}, v{m.VC}', f's_movk_i32 s{R}, 7680',
              f'v_mad_u32_u24 v{m.VW}, v{m.VC}, s{R}, v{m.T}', f's_lshl_b32 s{R}, s{G}, 7', f'v_lshlrev_b32 v{m.VC}, 1, v{m.VC}',
              f's_movk_i32 s{m.SC+2}, 1280', f's_mov_b32 s{m.SC+3}, 0x20000', f's_mov_b32 s{m.SW+3}, 0x20000', f's_mov_b32 s{m.SW+2}, {640*7680}']
        return l
    def dec2(m):
        G, D = m.SG, m.SG + 1
        return [f's_lshl_b32 s{G}, s{G}, 10', f's_lshl2_add_u32 s{D}, s{D}, s{G}', f's_add_u32 s{D}, s{D}, {WS_MODP}']
    def load(m, k='v', vw=None):
        vw = m.VW if vw is None else vw
        l = [f's_and_b32 s{m.SC+1}, s{m.SC+1}, 0xffff\ns_and_b32 s{m.SW+1}, s{m.SW+1}, 0xffff']
        for i in range(5): l.append(f'buffer_load_ushort {k}{m.C+i}, v{m.VC}, s[{m.SC}:{m.SC+3}], 0 offen offset:{16*i} sc1')
        for i in range(5): l.append((f's_add_u32 s{m.SR}, s{m.SR}, {8*7680}\n' if i else '') + f'buffer_load_dwordx4 {k}[{m.W+4*i}:{m.W+3+4*i}], v{vw}, s[{m.SW}:{m.SW+3}], s{m.SR} offen{NTM}')
        return l
    def silu(m):
        C, AC = m.C, m.AC; l = []
        for f in ('v_lshlrev_b32 v{c}, 16, v{c}', 'v_mul_f32 v{t}, ' + fl(-LOG2E) + ', v{c}', 'v_exp_f32 v{t}, v{t}', 'v_add_f32 v{t}, 1.0, v{t}', 'v_rcp_f32 v{t}, v{t}',
                  'v_mul_f32 v{c}, v{c}, v{t}', 'v_cvt_pk_bf16_f32 v{c}, v{c}, 0'):
            l += [f.format(c=C + i, t=AC + i) for i in range(5)]
        return l
    def dot(m):
        AC, T = m.AC, m.T; l = []
        for i in range(5):
            l.append(f'v_lshlrev_b32 v{T}, 16, v{m.C+i}')
            if m.late and opt('sdot', 1):
                op = 'v_mul_f32' if i == 0 else 'v_fmac_f32'
                for q in range(4):
                    w = m.W + 4 * i + q
                    l += [f'v_lshlrev_b32 v{T+1}, 16, v{w}', f'v_and_b32 v{w}, 0xffff0000, v{w}', f'{op} v{AC+2*q}, v{T+1}, v{T}', f'{op} v{AC+2*q+1}, v{w}, v{T}']
                continue
            for q in range(4):
                for e, sv in ((0, m.C + i), (1, T)):
                    r = AC + 2 * q + e
                    l.append(f'v_dot2_f32_bf16 v{r}, v{m.W+4*i+q}, v{sv}, {"0" if i == 0 else f"v{r}"}')
        G = m.SG
        l += [f'v_and_b32 v{T}, 7, v0', f'v_lshlrev_b32 v{T}, 5, v{T}', f'v_lshl_add_u32 v{T}, v2, 3, v{T}']
        l += [f'v_permlane32_swap_b32 v{AC+q}, v{AC+4+q}' for q in range(4)] + [f'v_add_f32 v{AC+q}, v{AC+q}, v{AC+4+q}' for q in range(4)]
        l += [f's_lshl_b32 s{G}, s{S_W}, 8', f's_add_u32 s{G}, s{G}, {L_MR}']
        l += [f'v_permlane16_swap_b32 v{AC+q}, v{AC+2+q}' for q in range(2)] + [f'v_add_f32 v{AC+q}, v{AC+q}, v{AC+2+q}' for q in range(2)]
        l += [f'v_add_u32 v{T}, s{G}, v{T}', f'v_lshlrev_b32 v{AC+6}, 2, v0']
        l += [f'v_add_f32_dpp v{AC+q}, v{AC+q}, v{AC+q} row_ror:8 row_mask:0xf bank_mask:0xf' for q in range(2)]
        return l + [f'v_add_u32 v{AC+6}, {L_MR}, v{AC+6}', f'ds_write_b64 v{T}, v[{AC}:{AC+1}]']
    def fin(m):
        AC, G = m.AC, m.SG
        l = [f'ds_read2st64_b32 v[{AC}:{AC+1}], v{AC+6} offset0:0 offset1:1', f'ds_read2st64_b32 v[{AC+2}:{AC+3}], v{AC+6} offset0:2 offset1:3',
             f's_cmp_eq_u32 s{S_W}, 0\ns_cselect_b32 s{G}, 0, 0x80000000' + (f'\ns_cmp_lt_u32 s2, 160\ns_cselect_b32 s{G}, s{G}, 0x80000000' if m.late else ''),
             f'v_or_b32 v{AC+7}, s{G}, v4', f's_bfe_u32 s{G}, s{S_E}, 0x80004', f's_movk_i32 s{G+2}, 0xff00',
             f'v_add_f32 v{AC}, v{AC}, v{AC+1}', f'v_add_f32 v{AC+2}, v{AC+2}, v{AC+3}', f'v_mov_b32 v{AC+5}, s{G}', f'v_add_f32 v{AC}, v{AC}, v{AC+2}',
             f'v_and_or_b32 v{AC}, v{AC}, s{G+2}, v{AC+5}',
             f'buffer_store_dword v{AC}, v{AC+7}, {WSR}, s{G+1} offen sc1']
        return l
def mchk(r0, n, vt, st):
    return [f'v_xor_b32 v{vt}, s{st}, v{r0}'] + [f'v_bitop3_b32 v{vt}, v{vt}, s{st}, v{r0+e} bitop3:0xf6' for e in range(1, n)] + [f'v_lshlrev_b32 v{vt}, 24, v{vt}', f'v_cmp_eq_u32 vcc, 0, v{vt}']
def msum(r0, n, one, hi=True):
    l = []
    for e in range(4 * n): l.append(f'v_and_b32 v{r0+e}, 0xffffff00, v{r0+e}')
    for i in range(n): l.append(f'v_pk_add_f32 v[{r0+4*i}:{r0+4*i+1}], v[{r0+4*i}:{r0+4*i+1}], v[{r0+4*i+2}:{r0+4*i+3}]')
    for i in range(n): l.append(f'v_add_f32 v{r0+4*i}, v{r0+4*i}, v{r0+4*i+1}')
    for i in range(n): l.append(f'v_cvt_pk_bf16_f32 v{r0+4*i}, 0, v{r0+4*i}')
    for i in range(n): l.append(f'v_add_f32 v{r0+4*i}, {one[i]}, v{r0+4*i}')
    for i in range(n): l.append(f'v_cvt_pk_bf16_f32 v{r0+4*i}, 0, v{r0+4*i}' if hi[i] else f'v_cvt_pk_bf16_f32 v{r0+4*i}, v{r0+4*i}, 0')
    return l
def slice_addr(A, sd, st):
    A(f's_lshl3_add_u32 s{sd}, s{S_RB}, s{S_J}'); A(f's_and_b32 s{st}, s{S_W}, 1'); A(f's_lshl1_add_u32 s{sd}, s{sd}, s{st}'); A(f's_mul_i32 s{sd}, s{sd}, 6144')
    A(f's_lshr_b32 s{st}, s{S_W}, 1'); A(f's_mul_i32 s{st}, s{st}, {WS_X1G - WS_OF}'); A(f's_add_u32 s{sd}, s{sd}, s{st}'); A(f's_add_u32 s{sd}, s{sd}, {WS_OF}')
def prew(sd): return [f'buffer_store_dwordx4 v[4:7], v{4 + q // 4}, {WSR}, s{sd} offen offset:{1024 * (q % 4)} sc1' for q in range(6)]
PW = opt('prew', 1)
L_W2S = 135168
def stats(i):
    S, Q = 250, 252; l = []
    for u in range(5):
        b = XN + (i * 5 + u) * 8
        for e in range(4): l += unpack(b + 2 * e, b + 2 * e + 1, b + 4 + e)
        for e in range(4):
            p = f'v[{b+2*e}:{b+2*e+1}]'
            l.append(f'v_pk_mul_f32 v[{Q}:{Q+1}], {p}, {p}' if u == 0 and e == 0 else f'v_pk_fma_f32 v[{Q}:{Q+1}], {p}, {p}, v[{Q}:{Q+1}]')
            if u == 0 and e == 1: l.append(f'v_pk_add_f32 v[{S}:{S+1}], v[{b}:{b+1}], {p}')
            elif not (u == 0 and e == 0): l.append(f'v_pk_add_f32 v[{S}:{S+1}], v[{S}:{S+1}], {p}')
    return l + [f'v_add_f32 v{240+2*i}, v{S}, v{S+1}', f'v_add_f32 v{241+2*i}, v{Q}, v{Q+1}']
JS = 2
def front(a, k, var):
    TST = 20480 if var == 'A' else 49152
    def dec_u():
        a(f's_lshl_b32 s47, s{S_W}, 13'); a(f's_add_u32 s47, s47, {L_ST}'); a('s_mov_b32 s71, 0x20000')
        a('v_and_b32 v5, 7, v0'); a('v_lshlrev_b32 v5, 4, v5')
        if var == 'A':
            a('s_cmp_ge_u32 s2, 120'); a('s_cbranch_scc1 DEC_WO')
            a('s_mul_i32 s28, s2, 10923'); a('s_lshr_b32 s28, s28, 16'); a('s_mul_i32 s29, s28, 6'); a('s_sub_u32 s29, s2, s29')
            a(f's_lshl2_add_u32 s33, s28, s{S_W}')
            a(f's_mul_i32 s33, s33, {8*3840}'); a('s_mul_i32 s3, s29, 640'); a('s_add_u32 s33, s33, s3')
            a('v_lshrrev_b32 v3, 3, v0'); a('s_movk_i32 s3, 3840'); a('v_mad_u32_u24 v33, v3, s3, v5'); a(f's_mov_b32 s70, {640*3840}')
            a.label('DEC_WO_RET')
            x = Asm()
            x('s_sub_u32 s28, s2, 120'); x('s_and_b32 s29, s28, 1'); x('s_lshr_b32 s28, s28, 1')
            x('s_mul_i32 s48, s29, 640'); perm_src(x, 28, 5, 1280, 33, 33, 48); x(f's_mov_b32 s70, {640*1280}')
            k.tail.append('DEC_WO:\n' + x.text() + '  s_branch DEC_WO_RET')
        else:
            a('s_sub_u32 s28, s2, 160'); a('s_min_u32 s28, s28, 79'); a('s_and_b32 s29, s28, 3'); a('s_lshr_b32 s28, s28, 2')
            a('s_mul_i32 s62, s29, 24'); a(f's_add_u32 s62, s62, s{S_W}')
            a('s_mul_i32 s62, s62, 20480'); a('s_lshl_b32 s3, s28, 10'); a('s_add_u32 s62, s62, s3'); a(f's_add_u32 s62, s62, {WS_W1}')
            a('s_mul_i32 s48, s29, 768'); perm_src(a, 28, 5, 3072, 33, 33, 48); a(f's_mov_b32 s70, {640*3072}')
    def dec_u2():
        tr_addr(a, 245, 8192, L_ST)
        a('s_cmp_ge_u32 s2, 120')
        a(f's_mov_b32 s34, {WS_WQ}'); a(f's_cselect_b32 s34, {WS_WO}, s34')
        a(f's_mov_b32 s35, {WS_FA}'); a(f's_cselect_b32 s35, {WS_FA + 2048}, s35')
        a('s_and_b32 s3, s29, 1'); a('s_mul_i32 s3, s3, 3'); a('s_lshr_b32 s48, s29, 1'); a('s_add_u32 s3, s3, s48')
        a('s_mul_i32 s3, s3, 20'); a('s_add_u32 s3, s3, s28'); a(f's_lshl2_add_u32 s3, s3, s{S_W}'); a('s_lshl2_add_u32 s35, s3, s35')
        a('s_mul_i32 s3, s29, 20'); a(f's_add_u32 s3, s3, s{S_W}')
        a('s_mul_i32 s3, s3, 20480'); a('s_add_u32 s34, s34, s3'); a('s_lshl_b32 s3, s28, 10'); a('s_add_u32 s34, s34, s3')
    def dec_x(rng):
        if 0 in rng:
            a(f's_lshl_b32 s3, s{S_J}, 2'); a('s_mov_b32 s50, 0x21043210'); a('s_movk_i32 s51, 0x1043'); a('s_lshr_b64 s[50:51], s[50:51], s3'); a('s_mov_b32 s73, s50')
            a(f's_lshl_b32 s3, s{S_RB}, 6'); a(f's_mul_i32 s79, s{S_W}, 20'); a('s_add_u32 s3, s3, s79'); a('s_sub_u32 s3, s3, 16')
            a('s_movk_i32 s51, 1280'); a('v_add_u32 v244, s3, v2'); a('v_lshlrev_b32 v39, 4, v1')
            a(f's_mov_b32 s{S_X+2}, {2048*1280}'); a(f's_mov_b32 s{S_X+3}, 0x20000')
        for i in rng:
            a(f's_bfe_u32 s3, s73, {hex(0x40000 + 4*i)}'); a('v_lshl_add_u32 v3, s3, 2, v244'); a('v_max_i32 v3, 0, v3'); a(f'v_mad_u32_u24 v{240+i}, v3, s51, v39')
    H = {}
    def uload(v=33, so=33):
        l = [('s_cmp_ge_u32 s2, 120\ns_cselect_b64 s[68:69], s[38:39], s[36:37]\n' if var == 'A' else '') + 's_and_b32 s69, s69, 0xffff']
        for t in range(5 if var == 'A' else 6): l.append(f's_add_u32 m0, s47, {t*896}\nbuffer_load_dwordx4 v{v}, s[68:71], s{so} offen offset:{128*t}{NT} lds')
        return l + [lambda: H.update(u=a.vm[-1][0])]
    def xload(i):
        return [f'buffer_load_dwordx4 v[{XN+(i*5+u)*8+4}:{XN+(i*5+u)*8+7}], v{240+i}, s[{S_X}:{S_X+3}], 0 offen offset:{256*u}{NTX}' for u in range(5)]
    def em(l): spread(a, l, [])
    def eload(): a(f's_and_b32 s{S_WS+1}, s{S_WS+1}, 0xffff'); a(f's_mov_b32 s3, {WS_EP}'); a(f'buffer_load_dword v38, off, {WSR}, s3 sc1')
    def cpf():
        if not opt('cpf', 1): return
        a('s_getpc_b64 s[50:51]'); a.label(f'PC{var}')
        a('s_lshr_b32 s3, s2, 3'); a(f's_lshl2_add_u32 s3, s3, s{S_W}'); a('s_mul_i32 s3, s3, 3'); a('v_min_u32 v237, 2, v0'); a('v_add_u32 v237, s3, v237')
        a(f'v_min_u32 v237, (CODE_END-FRONT_A2-4)/128, v237'); a('v_lshlrev_b32 v237, 7, v237')
        a(f's_add_u32 s50, s50, FRONT_A2-PC{var}'); a('s_addc_u32 s51, s51, -1')
        a('v_mov_b32 v239, s51'); a('v_add_co_u32 v238, vcc, s50, v237'); a('v_addc_co_u32 v239, vcc, 0, v239, vcc')
        a('global_load_dword v237, v[238:239], off sc1')
    def getE(): a(f'v_readfirstlane_b32 s{S_E}, v38'); a(f's_add_u32 s{S_E}, s{S_E}, 0x9E3779B0')
    def pubA(): getE(); a(f'v_mov_b32 v3, s{S_E}'); a.wait_id(H['st']); a(f'buffer_store_dword v3, off, {WSR}, s35 sc1'); tn(a, 'pub')
    def misc():
        a(f's_mov_b32 s{S_O+2}, {2048*1280}'); a(f's_mov_b32 s{S_O+3}, 0x20000'); a(f's_and_b32 s{S_O+1}, s{S_O+1}, 0xffff')
        a('v_lshlrev_b32 v4, 4, v0')
        for q in range(1, 4): a(f'v_add_u32 v{4+q}, {4096*q}, v4')
    XE = opt('xe', 0); XB = opt('xb', 0)
    if var == 'A':
        m = Mod(True, 176, 196, 0, 35, 36, 37, 52, 56, 74, 29)
        dec_u(); tn(a, 'dec'); a.wait(lg=0); tn(a, 'ka')
        em(uload()); eload()
        a.raw('@SPLIT')
        dec_x([0, 1, 2, 3, 4]); a(f's_and_b32 s{S_X+1}, s{S_X+1}, 0xffff')
        if XE: em(xload(0))
        cpf(); dec_u2(); misc(); em(m.dec() + m.dec2())
        for i in range(1, XE): em(xload(i))
        a.wait_id(H['u']); tn(a, 'b1'); a.barrier()
        em(uproc(5, 156, 34, 20480, 245, 4)); H['st'] = a.vm[-1][0]; tn(a, 'st')
        ml = m.load('a'); b2 = ml[6:]
        xl = sum([xload(i) for i in range(XE, 5)], []) + ml[:6]
        a('s_mov_b32 s62, 0')
        n_ = opt('xp', 0) + (5 if XE == 0 else 0)
        em(xl[:n_]); xl = xl[n_:]
        if PUBE: pubA()
    else:
        m = Mod(False, 8, 28, 246, 35, 36, 37, 52, 56, 74, 44)
        em(m.dec()); tn(a, 'dec'); a.wait(lg=0); tn(a, 'ka')
        em(m.load()); eload()
        a.raw('@SPLIT')
        em(m.dec2()); dec_x([0, 1, 2, 3, 4]); a(f's_and_b32 s{S_X+1}, s{S_X+1}, 0xffff')
        cpf(); dec_u(); misc()
        for i in range(XB): em(xload(i))
        em(m.silu()); tn(a, 'b1')
        d = m.dot(); em(d[:27]); em(xload(XB)); em(d[27:45]); tn(a, 'st'); em(xload(XB + 1)); em(d[45:]); getE()
        a.wait(lg=0); a.barrier(); em(m.fin()); tn(a, 'pub')
        b2 = uload()[:-1]
        xl = sum([xload(i) for i in range(XB + 2, 5)], [])
    nx = opt('nx', 10)
    spread(a, stats(0), xl[:nx], lo=0, hi=opt('xhi', 60))
    tn(a, 'x0')
    if var == 'A' and not PUBE: pubA()
    spread(a, stats(1), xl[nx:], hi=40)
    tn(a, 'xi')
    a('v_min_u32 v31, 59, v0'); a(f's_mul_i32 s3, s{S_W}, 240'); a('v_lshl_add_u32 v31, v31, 2, s3')
    a(f's_lshr_b32 s50, s{S_J}, 2'); a('s_mul_i32 s50, s50, 960'); a(f's_add_u32 s50, s50, {WS_FA}'); a(f's_mul_i32 s49, s{S_W}, 5120'); a(f's_add_u32 s49, s49, {WS_MODP}')
    A = a
    A('s_min_u32 s52, s2, 239'); A('s_mul_i32 s28, s52, 13108'); A('s_lshr_b32 s28, s28, 16'); A('s_mul_i32 s53, s28, 5'); A('s_sub_u32 s52, s52, s53')
    A(f's_lshl3_add_u32 s63, s52, s{S_W}'); A('s_mul_i32 s63, s63, 49152'); A('s_lshl_b32 s53, s28, 10'); A('s_add_u32 s63, s63, s53'); A(f's_add_u32 s63, s63, {WS_W2}')
    A('s_lshl_b32 s52, s52, 8'); A('v_and_b32 v34, 7, v0'); A('v_lshlrev_b32 v34, 4, v34')
    perm_src(A, 28, 6, 1280, 34, 52, 52, 53, 55, 3, 34, 3)
    A(f's_mov_b32 s66, {1536*1280}'); A('s_mov_b32 s67, 0x20000'); A('s_and_b32 s65, s65, 0xffff'); A(f's_lshl_b32 s53, s{S_W}, 11'); A(f's_add_u32 s53, s53, {L_W2S}')
    b2 += [f's_add_u32 m0, s53, {t*896}\nbuffer_load_dwordx4 v34, s[64:67], s52 offen offset:{128*t}{NT} lds' for t in range(2)]
    slice_addr(a, 61, 3)
    a(f's_mul_i32 s3, s{S_W}, 1280'); a(f's_add_u32 s3, s3, {L_MODL}'); a('v_lshl_add_u32 v30, v0, 2, s3')
    a(f's_cmp_ge_u32 s{S_W}, 2'); a('s_cselect_b32 s51, 1.0, 0'); a(f's_lshr_b32 s48, s{S_E}, 4')
    pl = POLLS + [lambda: (H.update(p=a.vm[-1][0]), tn(a, 'pi'))]
    st = lnorm(a); PP = opt('pp', 240)
    b2 += [lambda: B2H.update({var: a.vm[-1][0]})]
    assert opt('b2hi', 80) < 400
    spread(a, st[:PP] + pl + st[PP:], b2, lo=opt('b2lo', 0), hi=opt('b2hi', 80))
    a(f's_mul_i32 s52, s{S_J}, 5'); a(f's_add_u32 s53, s52, s{S_W}')
    a('s_add_u32 s32, s53, 40'); a('s_add_u32 s33, s53, 80'); a('s_mov_b32 s35, s53')
    a(f's_lshl_b32 s54, s{S_W}, 3'); a('s_lshr_b32 s34, 0x04542c, s54'); a('s_and_b32 s34, s34, 0xff'); a('s_add_u32 s34, s34, s52')
    for q in range(4):
        a(f's_mul_i32 s{32+q}, s{32+q}, 20480'); a(f's_add_u32 s{32+q}, s{32+q}, {WS_WQ}')
    a(f's_mov_b64 s[12:13], s[{S_WS}:{S_WS+1}]'); a(f's_cmp_eq_u32 s{S_W}, 3'); a(f's_cselect_b32 s14, 0, s{S_WS+2}'); a('s_mov_b32 s15, 0x20000')
    tn(a, 'vp')
    a.wait_id(H['p']); tn(a, 'pw'); a.wait(lg=0)
B2H = {}
def lnorm(a):
    st = sum([stats(i) for i in range(JS, 5)], []); A = st.append
    A(lambda: tn(a, 'x4'))
    for ror in (8, 4, 2, 1):
        for c in range(240, 250): A(f'v_add_f32_dpp v{c}, v{c}, v{c} row_ror:{ror} row_mask:0xf bank_mask:0xf')
    A(f's_mov_b32 s60, {fl(1/640)}'); A(f'v_mov_b32 v3, {fl(1e-5)}')
    for i in range(5): A(f'v_mul_f32 v{250+i}, s60, v{240+2*i}')
    for i in range(5): A(f'v_fma_f32 v{241+2*i}, v{241+2*i}, s60, v3')
    for i in range(5): A(f'v_fma_f32 v{241+2*i}, -v{250+i}, v{250+i}, v{241+2*i}')
    for i in range(5): A(f'v_max_f32 v{241+2*i}, v{241+2*i}, v3')
    for i in range(5): A(f'v_rsq_f32 v{240+2*i}, v{241+2*i}')
    for i in range(5): A(f'v_mul_f32 v{241+2*i}, -v{250+i}, v{240+2*i}')
    for i in range(5):
        P = 240 + 2 * i
        for u in range(5):
            b = XN + (i * 5 + u) * 8
            for e in range(4):
                p = f'v[{b+2*e}:{b+2*e+1}]'
                A(f'v_pk_fma_f32 {p}, {p}, v[{P}:{P+1}], v[{P}:{P+1}] op_sel:[0,0,1] op_sel_hi:[1,0,1]')
    A('v_lshrrev_b32 v3, 2, v1'); A('v_lshlrev_b32 v3, 10, v3'); A('v_and_b32 v33, 3, v1'); A('v_lshl_add_u32 v3, v33, 8, v3')
    A('v_and_b32 v33, 7, v1'); A('s_movk_i32 s52, 20480'); A('v_add_u32 v35, s79, v2')
    for i in range(5):
        A(f's_bfe_u32 s3, s73, {hex(0x40000 + 4*i)}'); A('v_lshl_add_u32 v36, s3, 2, v35')
        A('v_and_b32 v37, 15, v36'); A('v_xor_b32 v37, v37, v33'); A('v_lshrrev_b32 v36, 4, v36')
        A('v_mad_u32_u24 v36, v36, s52, v3'); A(f'v_lshl_add_u32 v{250+i}, v37, 4, v36')
    A('v_lshlrev_b32 v255, 5, v1'); A(f'v_add_u32 v255, {L_MODL}, v255')
    A(lambda: tn(a, 'ln'))
    return st
PM = {0: '', 1: ' sc0', 2: ' nt', 3: ' sc0 nt'}[opt('pm', 1)]
FAP = [f'buffer_load_dword v28, v31, {WSR}, s50 offen sc1{PM}']
MP = [ld(q4('v', 8 + 4 * i), i, 49, WSR, True) for i in range(5)]
POLLS = MP + FAP
def main_kernel(a):
    k = K(a)
    tn(a, 's')
    a('s_cmp_ge_u32 s2, 256'); a('s_cbranch_scc1 EXIT_p0')
    for r, o in ((64 - 28, None), (S_WS, 80), (52, 48), (56, 56), (S_X, 0), (64, 40), (68, 32), (S_O, 64)):
        a('s_load_dwordx4 s[36:39], s[0:1], 8' if o is None else f's_load_dwordx2 s[{r}:{r+1}], s[0:1], {o}')
    a('v_lshrrev_b32 v2, 6, v0'); a('v_and_b32 v0, 63, v0'); a(f'v_readfirstlane_b32 s{S_W}, v2')
    a('v_and_b32 v1, 15, v0'); a('v_lshrrev_b32 v2, 4, v0')
    a('s_and_b32 s3, s2, 7'); a(f's_lshr_b32 s{S_J}, s2, 5'); a(f's_bfe_u32 s{S_RB}, s2, 0x20003')
    a(f's_lshl2_add_u32 s{S_RB}, s3, s{S_RB}')
    a(f's_mov_b32 s{S_WS+2}, 0x10000000'); a(f's_mov_b32 s{S_WS+3}, 0x20000')
    a('s_cmp_ge_u32 s2, 160'); a('s_cbranch_scc1 FRONT_B')
    import copy
    b = Asm(); b.vm = copy.deepcopy(a.vm); b.lg = copy.deepcopy(a.lg); b.n = a.n; b.hist = list(a.hist)
    kb = K(b); kb.nl = 500
    front(b, kb, 'B'); b.wait(lg=0)
    front(a, k, 'A'); a.wait(lg=0)
    b1, b2 = b.text().split('@SPLIT\n')
    a.out[a.out.index('@SPLIT')] = '  s_branch FRONT_A2\nFRONT_B:\n' + b1 + '  s_branch FRONT_B2\nFRONT_A2:'
    k.tail.append('FRONT_B2:\n' + b2 + '  s_branch JOIN')
    a.label('JOIN')
    wqs = [wq_ld(s, sl) for s in range(20) for sl in range(4)]
    def spin(nm, lds_, chk_):
        a('s_cmp_eq_u64 vcc, -1'); a(f's_cbranch_scc0 {nm}SPIN')
        a.label(f'{nm}DONE')
        k.tail.append(f'{nm}SPIN:\n  s_mov_b32 s72, 0x8000\n{nm}SPINL:\n  s_andn2_b64 exec, exec, vcc\n' + ''.join(f'  {t}\n' for t in lds_ + ['s_waitcnt vmcnt(0)'] + chk_) +
                      f'  s_sub_u32 s72, s72, 1\n  s_cbranch_scc1 {nm}OUT\n  s_nop 1\n  s_cmp_eq_u64 vcc, exec\n  s_cbranch_scc0 {nm}SPINL\n{nm}OUT:\n  s_mov_b64 exec, -1\n  s_branch {nm}DONE')
    NW0 = opt('nw0', 8)
    chk = mchk(8, 20, 29, 48)
    for t in chk: a(t)
    a('s_nop 3')
    spin('M', MP, chk)
    tn(a, 'fa')
    for t in msum(8, 5, ['s51'] * 5, [1] * 5): a(t)
    fac = [f'v_cmp_eq_u32 vcc, s{S_E}, v28']
    a(fac[0])
    for i in range(5): a(f'ds_write_b32 v30, v{8+4*i} offset:{256*i}')
    spin('FA', FAP, fac)
    tn(a, 'poll')
    a(f's_mul_i32 s36, s{S_J}, {5*20480}'); a(f's_mul_i32 s3, s{S_W}, 5120'); a('s_add_u32 s36, s36, s3'); a(f's_add_u32 s36, s36, {WS_WO}')
    a.wait(lg=0); a.barrier()
    tn(a, 'bar')
    def gs_read(u):
        b = 8 + 16 * (u % 2); l = []
        for q in range(2):
            l.append(f'ds_read_b128 v[{b+4*q}:{b+4*q+3}], v255 offset:{512*u + 16*q}')
            l.append(f'ds_read_b128 v[{b+8+4*q}:{b+8+4*q+3}], v255 offset:{2560 + 512*u + 16*q}')
        return l
    st = gs_read(0) + wqs[:NW0]
    for u in range(5):
        if u < 4: st += gs_read(u + 1)
        gb = 8 + 16 * (u % 2)
        for i in range(5):
            b = XN + (i * 5 + u) * 8
            for e in range(4):
                p = f'v[{b+2*e}:{b+2*e+1}]'
                st.append(f'v_pk_fma_f32 {p}, {p}, v[{gb+8+2*e}:{gb+9+2*e}], v[{gb+2*e}:{gb+2*e+1}]')
            for e in range(4): st.append(f'v_cvt_pk_bf16_f32 v{b+e}, v{b+2*e}, v{b+2*e+1}')
            st.append(f'ds_write_b128 v{250+i}, v[{b}:{b+3}] offset:{4096*u}')
    so = []; A = so.append
    for t in range(1, 5): A(f's_add_u32 s{36+t}, s{35+t}, 20480')
    A(f's_lshl2_add_u32 s41, s{S_J}, s{S_W}'); A(f's_mul_i32 s41, s41, {3*20480}'); A(f's_add_u32 s41, s41, {WS_W1}')
    A('s_add_u32 s42, s41, 20480'); A('s_add_u32 s43, s42, 20480')
    A(f's_mul_i32 s44, s{S_J}, {5*49152}'); A(f's_mul_i32 s3, s{S_W}, 12288'); A('s_add_u32 s44, s44, s3'); A(f's_add_u32 s44, s44, {WS_W2}')
    for t in range(1, 5): A(f's_add_u32 s{44+t}, s{43+t}, 49152')
    A(f's_lshl_b32 s27, s{S_RB}, 9'); A(f's_add_u32 s27, s27, {WS_FL}')
    A(f's_lshr_b32 s3, s{S_J}, 1'); A('s_lshl_b32 s3, s3, 7'); A('s_add_u32 s26, s27, s3')
    A(f's_and_b32 s3, s{S_J}, 1'); A(f's_lshl2_add_u32 s3, s3, s{S_W}'); A('s_lshl2_add_u32 s26, s3, s26')
    A(f's_lshl_b32 s3, s{S_W}, 7'); A('s_add_u32 s27, s27, s3')
    H = {}
    NWA = opt('nwa', 24)
    wq_all = wqs[NW0:]; napp = NWA - NW0
    spread(a, st, wq_all[:napp], lo=opt('alo', 0), hi=opt('ahi', len(st) - 20)); wq_rest = wq_all[napp:]
    a('v_min_u32 v250, 19, v0'); a(f's_mul_i32 s3, s{S_W}, 80'); a('s_add_u32 s3, s3, s50'); a('v_lshl_add_u32 v250, v250, 2, s3')
    WOP = [f'buffer_load_dword v247, v250, {WSR}, 0 offen offset:2048 sc1{PM}']; woc = [f'v_cmp_eq_u32 vcc, s{S_E}, v247']
    a('s_getreg_b32 s3, hwreg(HW_REG_XCC_ID)'); a('s_and_b32 s3, s3, 15'); a(f's_add_u32 s25, s{S_E}, s3')
    a(f's_lshl3_add_u32 s50, s{S_RB}, s{S_J}'); a(f's_lshl2_add_u32 s50, s50, {WS_FB}')
    a(f's_cmp_eq_u32 s{S_W}, 0'); a('s_cselect_b32 s3, 0, 0x80000000'); a('v_mov_b32 v248, s25'); a('v_mov_b32 v249, s3')
    a('v_add_u32 v8, 16384, v4')
    a('v_and_b32 v9, 7, v0'); a('v_lshlrev_b32 v9, 2, v9')
    a('v_xor_b32 v3, v1, v2'); a('v_lshlrev_b32 v20, 8, v2'); a('v_lshl_add_u32 v20, v3, 4, v20')
    a('v_xor_b32 v21, 64, v20'); a('v_add_u32 v22, 61440, v20'); a('v_add_u32 v23, 61440, v21')
    a.wait_id(B2H['A']); a.wait(lg=0); a.barrier()
    tn(a, 'p1')
    ACC = 40; XF = 116; QR = 160
    def xread(s):
        l = []
        for mt in range(5):
            r = XF + 20 * (s % 2) + 4 * mt
            off = (mt * 20 + s) * 1024; ad = 20 + (s & 1)
            if off >= 61440: off -= 61440; ad += 2
            l.append(f'ds_read_b128 v[{r}:{r+3}], v{ad} offset:{off}')
        return l
    for t in xread(0): a(t)
    side = []
    A = side.append
    A('v_lshrrev_b32 v3, 2, v1'); A('v_xor_b32 v3, v3, v2'); A('v_lshlrev_b32 v3, 3, v3'); A('v_lshl_add_u32 v3, v1, 5, v3')
    A(f's_add_u32 s57, s{S_W}, 5'); A(f's_add_u32 s58, s{S_W}, 10'); A(f's_mov_b32 s60, s{S_W}')
    A('s_lshr_b32 s59, 0x0f040e09, s54'); A('s_and_b32 s59, s59, 0xff')
    for q in range(4):
        A(f's_mul_i32 s{57+q}, s{57+q}, 2560'); A(f's_add_u32 s{57+q}, s{57+q}, {L_DUMP}'); A(f'v_add_u32 v{24+q}, s{57+q}, v3')
    A(f's_lshl_b32 s57, s{S_W}, 9'); A(f's_add_u32 s57, s57, {L_DUMP}')
    A('v_add_u32 v28, s57, v3')
    A('v_and_b32 v3, 3, v1'); A('v_xor_b32 v3, v3, v2'); A('v_lshlrev_b32 v3, 3, v3')
    A('v_and_b32 v10, 60, v0'); A('v_lshl_add_u32 v3, v10, 3, v3'); A('v_add_u32 v29, s57, v3')
    A('v_and_b32 v3, 1, v1'); A('v_cmp_eq_u32 s[74:75], 1, v3')
    A('v_lshl_add_u32 v10, v2, 2, v3'); A('v_cmp_le_u32 s[76:77], v10, v1')
    A('v_add_u32 v10, 2, v10'); A('v_cmp_le_u32 s[78:79], v10, v1')
    A('v_mov_b32 v10, 0x0c0c0100'); A('v_mov_b32 v11, 0x01000c0c'); A('v_cndmask_b32 v10, v10, v11, s[74:75]')
    A('v_mov_b32 v11, 0x0c0c0302'); A('v_mov_b32 v12, 0x03020c0c'); A('v_cndmask_b32 v11, v11, v12, s[74:75]')
    A('v_mov_b32 v12, 0x0c0c0c0c')
    A('v_cndmask_b32 v30, v10, v12, s[76:77]'); A('v_cndmask_b32 v31, v11, v12, s[78:79]')
    A('v_cndmask_b32 v32, v12, v10, s[76:77]'); A('v_cndmask_b32 v33, v12, v11, s[78:79]')
    A(f's_or_b32 s57, s{S_RB}, s{S_W}'); A('s_cmp_eq_u32 s57, 0'); A(f's_cselect_b32 s57, {fl(-1e30)}, 0')
    for q in range(4): A(f'v_mov_b32 v{34+q}, s57')
    for q in range(16): A(f'v_mov_b32 v{QR+q}, 0')
    M2 = 208; M3 = 228
    lm = Mod(True, LM['W'], LM['C'], LM['AC'], 0, 0, LM['T'], 0, 0, 0, 29)
    ust = []; A = ust.append
    tr_addr(A, 253, 8192, L_ST, 203, 55)
    tr_addr(A, 246, 2048, L_W2S, 203, 55)
    A('s_cmp_lt_u32 s2, 160\ns_cselect_b32 s55, 0x80000000, 0'); A('v_or_b32 v245, s55, v4')
    u1 = uproc(6, 204, 62, 20480, 253, 245); u2 = uproc(2, 228, 63, 49152, 246, 4)
    upr = u2[:4] + u1[:12] + u2[4:] + u1[12:] + [lambda: H.update(v=a.vm[-1][0])]
    early = []; A = early.append
    if PW == 1: early += prew(61) + [lambda: H.update(v=a.vm[-1][0])]
    modw = [f'v_accvgpr_read_b32 v{r}, a{r}' for r in list(range(196, 201)) + list(range(176, 196))] + lm.silu() + lm.dot()
    s2 = []; A = s2.append
    w2dma = []
    w2dma.append(k.poll_issue(156))
    A(f's_lshl2_add_u32 s49, s{S_RB}, s{S_W}'); A(f's_mul_i32 s49, s49, {16*1280}'); A(f's_mul_i32 s61, s{S_J}, 160'); A('s_add_u32 s49, s49, s61')
    for i in range(3):
        r = 205 + i
        A(f'v_add_u32 v{r}, {64*i}, v0'); A(f'v_mul_u32_u24 v216, 6554, v{r}'); A('v_lshrrev_b32 v216, 16, v216'); A(f'v_lshlrev_b32 v{r}, 4, v{r}')
        A(f'v_mul_u32_u24 v216, {1280-160}, v216'); A(f'v_add_u32 v{r}, v216, v{r}')
    A('v_lshlrev_b32 v216, 26, v0'); A('v_and_b32 v216, 0x80000000, v216'); A('v_or_b32 v207, v216, v207')
    A(f's_mul_i32 s60, s{S_W}, 3072'); A(f's_add_u32 s60, s60, {L_XR}')
    for i in range(3): w2dma.append(f's_add_u32 m0, s60, {1024*i}\nbuffer_load_dwordx4 v{205+i}, s[{S_X}:{S_X+3}], s49 offen lds')
    w2dma += ['v_mul_u32_u24 v39, 160, v1', 'v_lshl_add_u32 v39, v2, 3, v39', 'v_add_u32 v39, s60, v39']
    s3_ = []; A = s3_.append
    A(f's_mov_b32 s56, {fl(1/640)}')
    A(f's_lshl_b32 s55, s{S_W}, 4'); A('v_add_u32 v38, s55, v1')
    A(f's_mul_i32 s55, s{S_W}, 60'); A('v_min_u32 v252, 59, v0'); A('v_add_u32 v252, s55, v252'); A(f'v_lshlrev_b32 v249, 2, v252'); A(f'v_add_u32 v249, {L_OWN}, v249')
    A('v_mul_u32_u24 v203, 820, v252'); A('v_lshrrev_b32 v203, 16, v203')
    A('v_cmp_eq_u32 vcc, 1, v203\nv_cndmask_b32 v251, 0, 1.0, vcc')
    A('v_min_u32 v202, 1, v203'); A('v_add_u32 v202, v202, v203')
    A('v_mul_u32_u24 v202, 640, v202'); A('v_mul_u32_u24 v203, 80, v203'); A('v_sub_u32 v252, v252, v203'); A('v_add_u32 v252, v252, v202')
    A(f's_mul_i32 s55, s{S_J}, 80'); A('v_add_lshl_u32 v252, v252, s55, 4'); A(f's_mov_b32 s63, {WS_MODP + 1280 * 16}')
    A('v_lshrrev_b32 v203, 5, v0'); A('v_and_b32 v202, 1, v2'); A('v_mul_u32_u24 v254, 160, v203'); A('v_add_u32 v254, v254, v1')
    A(f's_mul_i32 s55, s{S_W}, 320'); A('s_add_u32 s55, s55, 640'); A('v_add_u32 v254, s55, v254')
    A('v_mul_u32_u24 v255, 80, v202'); A('v_add_lshl_u32 v255, v255, v254, 4'); A('v_lshl_add_u32 v254, v202, 4, v254'); A('v_lshlrev_b32 v254, 4, v254')
    MLD = [f'buffer_load_dwordx4 v[{M3}:{M3+3}], v252, {WSR}, s63 offen sc1'] + [f'buffer_load_dwordx4 v[{M2+4*i}:{M2+4*i+3}], v{254 if i < 4 else 255}, {WSR}, s63 offen offset:{256*t} sc1' for i, t in enumerate((0, 2, 5, 7, 4))]
    s4 = []; A = s4.append
    A(f's_and_b32 s55, s{S_W}, 1'); A('s_mul_i32 s55, s55, 1280')
    A(f's_cmp_ge_u32 s{S_W}, 2\ns_cselect_b32 s49, 0, 64'); A('s_add_u32 s49, s49, s55'); A(f's_add_u32 s49, s49, {L_GS}')
    A('v_mul_u32_u24 v250, 640, v203'); A('v_lshl_add_u32 v250, v202, 3, v250'); A('v_lshrrev_b32 v203, 2, v1'); A('v_lshl_add_u32 v250, v203, 4, v250')
    A('v_and_b32 v203, 3, v1'); A('v_lshl_add_u32 v250, v203, 1, v250'); A('v_add_u32 v250, s49, v250')
    def mod2_fin():
        a(f's_lshr_b32 s3, s{S_E}, 4')
        chk = mchk(M2, 24, 232, 3)
        for t in chk: a(t)
        a(f's_cmp_ge_u32 s{S_W}, 2'); a('s_cselect_b32 s58, 1.0, 0'); a('s_nop 1')
        spin('M2', MLD, chk)
        for t in msum(M2, 6, ['s58'] * 5 + ['v251'], [0] * 5 + [1]): a(t)
        for i in range(5): a(f'ds_write_b16 v250, v{M2+4*i} offset:{128*i}')
        a(f'ds_write_b32 v249, v{M3}')
    FBL = f'buffer_load_dword v232, v233, {WSR}, s51 offen sc1' + PM
    fbc = [f'v_subrev_u32 v232, s{S_E}, v232', 'v_cmp_gt_u32 vcc, 16, v232']
    def fb_issue(): a(f's_lshl_b32 s51, s{S_W}, 8'); a(f's_add_u32 s51, s51, {WS_FB}'); a('v_lshlrev_b32 v233, 2, v0'); a(FBL)
    def fb_check():
        for t in fbc: a(t)
        a(f's_or_b32 s49, s2, s{S_W}'); a('s_cmp_eq_u32 s49, 0'); a('s_cselect_b32 s3, 0, 0x80000000'); a('s_nop 0')
        spin('FB', [FBL], fbc)
        a('s_and_b32 s51, s50, -32')
        a(f'v_mov_b32 v236, s{S_E}'); a('v_mov_b32 v237, s3'); a(f's_mov_b32 s3, {WS_EP}')
    def fb_after():
        a(f'buffer_load_dword v232, v9, {WSR}, s51 offen sc1' + PM)
        a(f'buffer_store_dword v236, v237, {WSR}, s3 offen sc1')
    def fb_fast():
        a('v_cmp_eq_u32 vcc, s25, v232'); a('s_nop 3'); a('s_cmp_eq_u64 vcc, -1'); a(f's_cselect_b32 s{S_FAST}, {0 if "slow" in OPT else 1}, 0')
    wos = [wo_ld(t, i) for i in range(5) for t in range(5)]
    FBI = opt('fbi', 17); M1 = opt('m1', 0); MB = opt('mb', 10); WPS = opt('wps', 4); WO0 = opt('wo0', 12)
    for s in range(20):
        main = []
        for mt in range(5):
            for sl in range(4):
                if sl == 3 and mt == 0: continue
                ac = ACC + 4 * (sl * 5 + mt - (1 if sl == 3 else 0))
                c = '0' if s == 0 else q4('v', ac)
                main.append(f'{MF} {q4("v", ac)}, {wq_reg(s, sl)}, {q4("v", XF + 20 * (s % 2) + 4 * mt)}, {c}')
        fill = xread(s + 1) if s < 19 else []
        n = 0
        while wq_rest and n < WPS + (1 if 80 - len(wq_rest) < 4 * (s - 1 + RING) else 0):
            t = wq_rest[0]
            if not callable(t):
                if wqs.index(t) // 4 > s - 1 + RING: break
                n += 1
            fill.append(wq_rest.pop(0))
        if not wq_rest and s >= WO0:
            while wos and n < WPS: fill.append(wos.pop(0)); n += 1
        def part(l, lo, hi): n = -(-len(l) // (hi - lo)); return l[(s - lo) * n:(s - lo + 1) * n] if lo <= s < hi else []
        oth = part(ust + upr, M1, M1 + opt('un', 3)) + part(early, opt('e0', 3), opt('e1', 6)) + part(modw, opt('m0', 2), MB) + part(s2, 9, 12)
        if s == MB: oth += lm.fin()
        oth += part(so, 8, 12) + part(w2dma, opt('xr', 12), opt('xr', 12) + 1) + part(s3_ + s4 + side, 13, 20)
        if s == FBI: oth += [fb_issue]
        if s == opt('mli', 19): oth += MLD
        if s == opt('wop', 3): oth += WOP
        fill = mix(oth, fill) if len(oth) > len(fill) else mix(fill, oth)
        if s == MB:
            def mid(): a(woc[0]); a.wait_id(H['v']); a.wait(lg=0); a('s_nop 2'); spin('WO', WOP, woc); a.barrier(); tn(a, 'mid'); a(f'buffer_store_dword v248, v249, {WSR}, s50 offen sc1')
            fill = [mid] + fill
        tn(a, f's{s}')
        spread(a, main, fill, hi=18)
    assert not wq_rest
    tn(a, 'p1e')
    w1q = [w1_ld(f) for f in range(60)]
    def w1n(n):
        l = w1q[:n]; del w1q[:n]; return l
    st = []
    for sl in range(4):
        for mt in range(5):
            if sl == 3 and mt == 0: continue
            ac = ACC + 4 * (sl * 5 + mt - (1 if sl == 3 else 0))
            st += [f'v_cvt_pk_bf16_f32 v{ac}, v{ac}, v{ac+1}', f'v_cvt_pk_bf16_f32 v{ac+1}, v{ac+2}, v{ac+3}',
                   f'ds_write_b64 v{24+sl}, v[{ac}:{ac+1}] offset:{512*mt}']
    if FBI == 20: fb_issue()
    spread(a, st, wos)
    fb_check()
    a.wait(lg=0); a.barrier()
    tn(a, 'db')
    fb_after()
    K0, K1, VR, SR = 120, 130, 140, 176
    st = []; A = st.append
    def sx(m): A(f's_mov_b32 exec_lo, {hex(m & 0xffffffff)}'); A(f's_mov_b32 exec_hi, {hex(m >> 32)}')
    for t in w1n(opt('n1', 6)): a(t)
    for t in range(5):
        a(f'ds_read_b64 v[{K0+2*t}:{K0+2*t+1}], v28 offset:{(5+t)*2560}')
        a(f'ds_read_b64 v[{K1+2*t}:{K1+2*t+1}], v28 offset:{(5+t)*2560+512}')
    for h in range(4):
        k.setexec((FULL << (16 * h)) & FULL)
        a(f'ds_read_b64 v[{QR+4*h}:{QR+4*h+1}], v28 offset:{h*2560+512}')
        k.setexec((1 << (16 * (h + 1))) - 1)
        a(f'ds_read_b64 v[{QR+4*h+2}:{QR+4*h+3}], v28 offset:{(h+1)*2560+512}')
    for t in range(5):
        a(f'ds_read_b64_tr_b16 v[{VR+4*t}:{VR+4*t+1}], v29 offset:{(10+t)*2560}')
        a(f'ds_read_b64_tr_b16 v[{VR+4*t+2}:{VR+4*t+3}], v29 offset:{(10+t)*2560+512}')
    H = range(4)
    for h in H:
        A(f'{MF} v[{SR+8*h}:{SR+8*h+3}], v[{K0+2*h}:{K0+2*h+3}], v[{QR+4*h}:{QR+4*h+3}], v[34:37]')
        A(f'{MF} v[{SR+8*h+4}:{SR+8*h+7}], v[{K1+2*h}:{K1+2*h+3}], v[{QR+4*h}:{QR+4*h+3}], 0')
    for h in H:
        b = SR + 8 * h
        for e in (0, 2, 4, 6): A(f'v_cndmask_b32 v{b+e}, v{b+e}, v{b+e+1}, s[74:75]')
        A(f'v_cndmask_b32 v{b}, v{b}, v{b+4}, s[76:77]'); A(f'v_cndmask_b32 v{b+1}, v{b+2}, v{b+6}, s[78:79]')
    def bfly(op, r):
        for sw in ('v_permlane16_swap_b32', 'v_permlane32_swap_b32'):
            for h in H: A(f'v_mov_b32 v{SR+8*h+r+1}, v{SR+8*h+r}')
            for h in H: A(f'{sw} v{SR+8*h+r}, v{SR+8*h+r+1}')
            for h in H: A(f'{op} v{SR+8*h+r}, v{SR+8*h+r}, v{SR+8*h+r+1}')
    for h in H: A(f'v_max_f32 v{SR+8*h+2}, v{SR+8*h}, v{SR+8*h+1}')
    bfly('v_max_f32', 2)
    CS = LOG2E * 20 ** -0.5
    A(f's_mov_b32 s57, {fl(CS)}')
    for h in H: A(f'v_mul_f32 v{SR+8*h+2}, {fl(-CS)}, v{SR+8*h+2}')
    for h in H:
        b = SR + 8 * h
        A(f'v_fma_f32 v{b}, v{b}, s57, v{b+2}'); A(f'v_fma_f32 v{b+1}, v{b+1}, s57, v{b+2}')
    for h in H:
        b = SR + 8 * h
        A(f'v_exp_f32 v{b}, v{b}'); A(f'v_exp_f32 v{b+1}, v{b+1}')
    for h in H: A(f'v_add_f32 v{SR+8*h+2}, v{SR+8*h}, v{SR+8*h+1}')
    bfly('v_add_f32', 2)
    for h in H: A(f'v_rcp_f32 v{SR+8*h+2}, v{SR+8*h+2}')
    for h in H:
        b = SR + 8 * h
        A(f'v_mul_f32 v{b}, v{b}, v{b+2}'); A(f'v_mul_f32 v{b+1}, v{b+1}, v{b+2}')
    for h in H: A(f'v_cvt_pk_bf16_f32 v{SR+8*h}, v{SR+8*h}, v{SR+8*h+1}')
    for h in H:
        b = SR + 8 * h
        for q in range(4): A(f'v_perm_b32 v{b+4+q}, v{b}, v{b}, v{30+q}')
    OR = 40
    for h in H:
        b = SR + 8 * h + 4
        A(f'{MF} v[{OR+8*h}:{OR+8*h+3}], v[{VR+4*h}:{VR+4*h+3}], v[{b}:{b+3}], 0')
        A(f'{MF} v[{OR+8*h+4}:{OR+8*h+7}], v[{VR+4*h+4}:{VR+4*h+7}], v[{b}:{b+3}], 0')
    spread(a, st, w1n(opt('n2', 22)), lo=opt('n2lo', 8), hi=opt('n2hi', 110))
    a(f's_mul_i32 s28, s{S_RB}, {RSZ}'); a(f's_add_u32 s28, s28, {WS_OF}'); a(f's_mul_i32 s57, s{S_W}, 20480'); a('s_add_u32 s57, s57, s28')
    frag_offsets(a, 57, 58, 3)
    F = 80
    a(f'v_cvt_pk_bf16_f32 v{F}, v{OR}, v{OR+1}'); a(f'v_cvt_pk_bf16_f32 v{F+1}, v{OR+2}, v{OR+3}')
    for t in (1, 2, 3, 4):
        s_ = OR + 8 * (t - 1) + 4
        a(f'v_cvt_pk_bf16_f32 v{F+2*t}, v{s_}, v{s_+1}'); a(f'v_cvt_pk_bf16_f32 v{F+2*t+1}, v{s_+2}, v{s_+3}')
    for t in (1, 2, 3):
        k.setexec((FULL << (16 * t)) & FULL)
        s_ = OR + 8 * t
        a(f'v_cvt_pk_bf16_f32 v{F+2*t}, v{s_}, v{s_+1}'); a(f'v_cvt_pk_bf16_f32 v{F+2*t+1}, v{s_+2}, v{s_+3}')
    a('s_mov_b64 exec, -1')
    fb_fast()
    h = k.stores(frag_store80(F, 57, 58))
    tn(a, 'att')
    XR, ACC = 64 + 28, 40
    GA, GG = 152, 40; X1 = 92
    a(f's_mul_i32 s3, s{S_W}, 5120')
    a('s_add_u32 s57, s28, s3')
    for q in range(4):
        a(f's_add_u32 s3, s{S_W}, {q+1}'); a('s_and_b32 s3, s3, 3')
        a(f's_mul_i32 s58, s3, 20480'); a(f's_add_u32 s{32+q}, s58, s57')
        if q < 3:
            a('s_mul_i32 s58, s3, 15360'); a(f's_add_u32 s58, s58, {q*5120}'); a(f'v_add_u32 v{20+q}, s58, v4')
    a(f's_mul_i32 s58, s{S_W}, 15360'); a('v_add_u32 v23, s58, v4')
    a(f'v_lshlrev_b32 v24, 4, v2'); a(f'v_add_u32 v24, {L_OWN}, v24')
    mod2_fin()
    for t in range(5): a(f'ds_read_b64 v[{10+2*t}:{11+2*t}], v39 offset:{32*t}')
    k.publish(h, 1, 3)
    tn(a, 'pb1')
    for t in w1n(opt('n3', 0)): a(t)
    k.poll(1, 3)
    tn(a, 'p2')
    for q in range(4):
        for i in range(5): a(ld(q4('v', XR + (q * 5 + i) * 4), i, 32 + q, sc1=True))
    prev = []
    for q in range(4):
        ac = ACC + 20 * (q & 1)
        main = []
        for i in range(5):
            for t in range(5):
                c = '0' if i == 0 else q4('v', ac + 4 * t)
                main.append(f'{MF} {q4("v", ac + 4*t)}, {wo_reg(t, i)}, {q4("v", XR + (q*5+i)*4)}, {c}')
        spread(a, main, prev + (w1n(opt('n4', 8)) if q >= 1 else []), lo=4, hi=22)
        prev = [f'ds_write_b128 v{20+q}, {q4("v", ac+4*t)} offset:{1024*t}' for t in range(5)] if q < 3 else []
    tn(a, 'p2m')
    a(f's_add_u32 s31, s28, {WS_X1G - WS_OF}'); a(f's_mul_i32 s57, s{S_W}, 20480'); a('s_add_u32 s57, s57, s31')
    frag_offsets(a, 57, 58, 3)
    a('v_lshlrev_b32 v38, 6, v38'); a(f's_lshl3_add_u32 s59, s{S_J}, s31'); a('s_add_u32 s59, s59, 81920')
    a.wait(lg=0); a.barrier()
    tn(a, 'p2b')
    R = ACC + 20
    for q in range(3):
        for t in range(5): a(f'ds_read_b128 {q4("v", XR + (q*5+t)*4)}, v23 offset:{q*5120+t*1024}')
    for v, b in enumerate((GA, GG)):
        for t in range(5): a(f'ds_read_b128 v[{b+4*t}:{b+4*t+3}], v24 offset:{(20*v+4*t)*16}')
    w2s = [w2_ld(f) for f in range(60)]
    st = []; A = st.append
    for q in range(3):
        for t in range(5):
            r = XR + (q * 5 + t) * 4
            for e in (0, 2): A(f'v_pk_add_f32 v[{R+4*t+e}:{R+4*t+e+1}], v[{R+4*t+e}:{R+4*t+e+1}], v[{r+e}:{r+e+1}]')
        if q == 0:
            for e in range(10): st += unpack(X1 + 2 * e, X1 + 2 * e + 1, 10 + e)
    for e in range(10): A(f'v_pk_fma_f32 v[{X1+2*e}:{X1+2*e+1}], v[{R+2*e}:{R+2*e+1}], v[{GA+2*e}:{GA+2*e+1}], v[{X1+2*e}:{X1+2*e+1}]')
    for e in range(10): A(f'v_cvt_pk_bf16_f32 v{10+e}, v{X1+2*e}, v{X1+2*e+1}')
    for e in range(10): st += unpack(X1 + 2 * e, X1 + 2 * e + 1, 10 + e)
    for e in range(10): A(f'v_pk_mul_f32 v[{R+2*e}:{R+2*e+1}], v[{X1+2*e}:{X1+2*e+1}], v[{GG+2*e}:{GG+2*e+1}]')
    F = 80
    for e in range(10): A(f'v_cvt_pk_bf16_f32 v{F+e}, v{R+2*e}, v{R+2*e+1}')
    spread(a, st, w1n(opt('n5', 8)), hi=opt('n5hi', 60))
    k.stores(frag_store80(F, 57, 58))
    a(f'v_pk_add_f32 v[24:25], v[{X1}:{X1+1}], v[{X1+2}:{X1+3}]'); a(f'v_pk_mul_f32 v[26:27], v[{X1}:{X1+1}], v[{X1}:{X1+1}]')
    for e in range(1, 10):
        p = f'v[{X1+2*e}:{X1+2*e+1}]'
        if e > 1: a(f'v_pk_add_f32 v[24:25], v[24:25], {p}')
        a(f'v_pk_fma_f32 v[26:27], {p}, {p}, v[26:27]')
    a('v_add_f32 v24, v24, v25'); a('v_add_f32 v25, v26, v27')
    for sw in ('v_permlane16_swap_b32', 'v_permlane32_swap_b32'):
        a('v_mov_b32 v26, v24'); a('v_mov_b32 v27, v25')
        a(f'{sw} v24, v26'); a(f'{sw} v25, v27')
        a('v_add_f32 v24, v24, v26'); a('v_add_f32 v25, v25, v27')
    h = k.stores(['s_mov_b64 exec, 0xffff', f'buffer_store_dwordx2 v[24:25], v38, {WSR}, s59 offen', 's_mov_b64 exec, -1'])
    hst = a.vm[-1][0]
    tn(a, 'p2e')
    for t in w1n(99): a(t)
    XF = 40; NB = 6; ACC = 64; U1, T1, T = 88, 100, 112
    a('v_and_b32 v3, 1, v1'); a('v_lshlrev_b32 v3, 6, v3'); a('v_lshl_add_u32 v20, v2, 4, v3'); a(f'v_add_u32 v20, {L_GS}, v20')
    a(f'v_add_u32 v21, {L_X3}, v4'); a(f'v_add_u32 v22, {L_X3 + 40960}, v4')
    def xr(mt, s, slot):
        if mt == 4: return f'ds_read_b128 {q4("v", XF + 4*slot)}, v20 offset:{128*s}'
        return f'ds_read_b128 {q4("v", XF + 4*slot)}, v{21 + mt//2} offset:{((mt%2)*20+s)*1024}'
    PF = NB - 1
    def p3pass(mt, acb, fill, nxt=None, pre=True, lo=6, hi=56, base=0):
        if pre:
            for p in range(PF): a(xr(mt, p, (base + p) % NB))
        main = []
        for s in range(20):
            if s + PF < 20: main.append(xr(mt, s + PF, (base + s + PF) % NB))
            elif nxt is not None: main.append(xr(nxt, s + PF - 20, (base + s + PF) % NB))
            for t in range(3):
                c = '0' if s == 0 else q4('v', acb + 4 * t)
                main.append(f'{MF} {q4("v", acb + 4*t)}, {w1_reg(s*3+t)}, {q4("v", XF + 4*((base + s) % NB))}, {c}')
        spread(a, main, fill, lo=lo * 4 // 3, hi=hi * 4 // 3)
    a(f's_mul_i32 s55, s{S_W}, 5120'); a('s_add_u32 s29, s31, s55'); a(f's_add_u32 s55, s55, {L_X3}')
    def xdma(mt):
        a(f's_add_u32 s30, s29, {mt*20480}'); a(f's_add_u32 m0, s55, {mt*20480}')
        for i in range(4): a(f'buffer_load_dwordx4 v4, {WSR}, s30 offen offset:{1024*i} sc1 lds')
        a(f's_add_u32 m0, s55, {mt*20480 + 4096}')
        return a(f'buffer_load_dwordx4 v5, {WSR}, s30 offen sc1 lds')
    W2E = opt('w2e', 6)
    p3pass(4, ACC + 12, [lambda: k.publish(hst, 2, 3)] + w2s[:W2E], lo=opt('pb2', 18), hi=opt('pb2', 18) + 1 + 2 * W2E)
    for t in w2s[W2E:W2E + opt('w2f', 0)]: a(t)
    W2E += opt('w2f', 0)
    tn(a, 'u1')
    k.poll(2, 3)
    hx = [xdma(0)]
    hx += [xdma(mt) for mt in range(1, 4)]
    C = -LOG2E
    for e in range(12):
        a(f'v_mov_b32_dpp v{U1+e}, v{ACC+12+e} quad_perm:[0,0,2,2] row_mask:0xf bank_mask:0xf')
        a(f'v_mov_b32_dpp v{T1+e}, v{ACC+12+e} quad_perm:[1,1,3,3] row_mask:0xf bank_mask:0xf')
    for e in range(12): a(f'v_mul_f32 v{T1+e}, {fl(C)}, v{T1+e}')
    a(f's_mul_i32 s53, s{S_J}, 6144'); a('s_add_u32 s52, s28, s53')
    a(f's_lshr_b32 s53, s{S_W}, 1'); a('s_lshl_b32 s53, s53, 10'); a('s_add_u32 s53, s53, s52'); a('s_add_u32 s53, s53, 4096')
    a(f's_and_b32 s3, s{S_W}, 1'); a('s_lshl3_add_u32 s53, s3, s53')
    a(f's_lshl_b32 s3, s{S_W}, 10'); a('s_add_u32 s52, s52, s3')
    a(f's_mov_b32 s54, {fl(C)}')
    a('s_add_u32 s30, s31, 81920')
    a('v_lshlrev_b32 v3, 6, v1'); a('v_lshl_add_u32 v3, v2, 4, v3')
    a.wait_id(hx[0]); a.barrier()
    tn(a, 'p3')
    for mt in range(4): a(f'buffer_load_dwordx4 v[{24+4*mt}:{27+4*mt}], v3, {WSR}, s30 offen offset:{1024*mt} sc1')
    M = range(4); st = []; A = st.append
    for m in M: A(f'v_add_f32 v{24+4*m}, v{24+4*m}, v{26+4*m}'); A(f'v_add_f32 v{25+4*m}, v{25+4*m}, v{27+4*m}')
    for sw in ('v_permlane16_swap_b32', 'v_permlane32_swap_b32'):
        for m in M: A(f'v_mov_b32 v{26+4*m}, v{24+4*m}'); A(f'v_mov_b32 v{27+4*m}, v{25+4*m}')
        for m in M: A(f'{sw} v{24+4*m}, v{26+4*m}'); A(f'{sw} v{25+4*m}, v{27+4*m}')
        for m in M: A(f'v_add_f32 v{24+4*m}, v{24+4*m}, v{26+4*m}'); A(f'v_add_f32 v{25+4*m}, v{25+4*m}, v{27+4*m}')
    A(f'v_mov_b32 v3, {fl(1e-5)}')
    for m in M: A(f'v_mul_f32 v{26+4*m}, s56, v{24+4*m}')
    for m in M: A(f'v_fma_f32 v{25+4*m}, v{25+4*m}, s56, v3')
    for m in M: A(f'v_fma_f32 v{25+4*m}, -v{26+4*m}, v{26+4*m}, v{25+4*m}')
    for m in M: A(f'v_max_f32 v{25+4*m}, v{25+4*m}, v3')
    for m in M: A(f'v_rsq_f32 v{24+4*m}, v{25+4*m}')
    for m in M: A(f'v_mul_f32 v{24+4*m}, s54, v{24+4*m}')
    for m in M: A(f'v_mul_f32 v{25+4*m}, -v{26+4*m}, v{24+4*m}')
    hs = {}
    def epi_ops(mt):
        ac = ACC + 12 * (mt & 1); P = 24 + 4 * mt; o = {}
        for e in range(12):
            o['A', e] = ([], f'v_fma_f32 v{T+e}, v{U1+e}, v{P+1}, v{T1+e}')
            o['B', e] = ([('A', e)], f'v_fma_f32 v{ac+e}, v{ac+e}, v{P}, v{T+e}')
            o['X', e] = ([('B', e)], f'v_exp_f32 v{T+e}, v{ac+e}')
            o['C', e] = ([('X', e)], f'v_fma_f32 v{T+e}, v{T+e}, s54, s54')
            o['R', e] = ([('C', e)], f'v_rcp_f32 v{T+e}, v{T+e}')
            o['M', e] = ([('R', e)], f'v_mul_f32 v{ac+e}, v{ac+e}, v{T+e}')
        for e in range(6): o['V', e] = ([('M', 2 * e), ('M', 2 * e + 1)], f'v_cvt_pk_bf16_f32 v{T+e}, v{ac+2*e}, v{ac+2*e+1}')
        return o
    def sto(mt):
        def f():
            hs[mt] = k.stores([f'buffer_store_dwordx4 v[{T}:{T+3}], v4, {WSR}, s52 offen', f'buffer_store_dwordx2 v[{T+4}:{T+5}], v4, {WSR}, s53 offen'])
            d = 49152 if mt != 1 else WS_X1G - WS_OF - 49152
            a(f's_add_u32 s52, s52, {d}'); a(f's_add_u32 s53, s53, {d}')
        return f
    def epi_slots(mt, p0=1):
        o = epi_ops(mt); done = {}; sl = {}; p = p0
        def ready(x, n): return all(d in done and done[d] + (2 if o_k(d) else 0) < n for d in o[x][0])
        def o_k(x): return x[0] in 'XR'
        while len(done) < len(o):
            n = 2 * p
            c = [x for kk in 'RX' for x in o if x[0] == kk and x not in done and ready(x, n)]
            if c: sl.setdefault(n, []).append(o[c[0]][1]); done[c[0]] = n
            n += 1
            for _ in range(opt('npl', 3) if c else 5):
                c2 = [x for kk in 'CBVMA' for x in o if x[0] == kk and x not in done and ready(x, n)]
                if not c2: break
                sl.setdefault(n, []).append(o[c2[0]][1]); done[c2[0]] = n
            p += 1
        sl.setdefault(2 * p, []).append(sto(mt))
        return sl
    def emit(mf, *plans):
        sl = {}
        for pl in plans:
            if isinstance(pl, dict):
                for n, v in pl.items(): sl.setdefault(n, []).extend(v)
            else:
                it, lo, hi = pl
                for i, t in enumerate(it): sl.setdefault((lo + (hi - lo) * i // max(1, len(it))) // 2 * 2, []).append(t)
        assert max(sl) < len(mf), (max(sl), len(mf))
        for n, m_ in enumerate(mf):
            a(m_)
            for t in sl.get(n, []):
                if callable(t): t()
                else: a(t)
    def p3mf(mt, base): return [f'{MF} {q4("v", ACC + 12 * (mt & 1) + 4*t)}, {w1_reg(s*3+t)}, {q4("v", XF + 4*((base + s) % NB))}, {"0" if s == 0 else q4("v", ACC + 12 * (mt & 1) + 4*t)}' for s in range(20) for t in range(3)]
    def p3rd(mt, base, nxt):
        d = {}
        for s in range(20):
            n = (3 * s + 1) // 2 * 2 if s else 0
            n = max(n, 3 * s - 1); n += n & 1
            if s + PF < 20: d.setdefault(min(n, 58), []).append(xr(mt, s + PF, (base + s + PF) % NB))
            elif nxt is not None: d.setdefault(min(n, 58), []).append(xr(nxt, s + PF - 20, (base + s + PF) % NB))
        return d
    def x4reg(q, i):
        if q == 0: return q4('v', 124 + 4 * i)
        if q == 1: return q4('v', 172 + 4 * i)
        if q == 2: return q4('v', 80 + 4 * i) if i < 11 else q4('v', 220)
        return q4('v', 224 + 4 * i) if i < 8 else q4('a', 140 + 4 * (i - 8))
    def x4ld(q): return [ld(x4reg(q, i), i, 32 + q, sc1=True) for i in range(12)]
    SQ = {8: 0, 5: 20480, 6: 40960, 7: 61440}
    def stg(f):
        i, t = divmod(f, 5)
        b, o = (57, SQ[i] + 1024 * t) if i < 9 else (58, 1024 * t)
        return f's_add_u32 m0, s{b}, {o - 1024 * (i % 4)}\nbuffer_load_dwordx4 v{4 + i // 4}, {WSR}, s{44 + t} offen offset:{1024 * (i % 4)}{WB} lds'
    def stg_rd(f):
        i, t = divmod(f, 5)
        if i == 9: return f'ds_read_b128 {w2_reg(f)}, v23 offset:{1024 * t}'
        return f'ds_read_b128 {w2_reg(f)}, v21 offset:{SQ[i] + 1024 * t}' if SQ[i] + 1024 * t < 65536 else f'ds_read_b128 {w2_reg(f)}, v23 offset:{1024 * t}'
    a(f's_mul_i32 s57, s{S_W}, 5120'); a(f's_mul_i32 s58, s{S_W}, 3072'); a(f's_add_u32 s58, s58, {L_XR}')
    HS = {}
    wl = w2s[W2E:25] + [stg(f) for f in list(range(25, 35)) + list(range(40, 48))] + [stg(f) for f in range(35, 40)] + [lambda: HS.update(s=a.vm[-1][0])]
    L0 = opt('l0', 13); L1 = opt('l1', 14)
    assert len(wl) - L0 >= 6
    for p in range(PF): a(xr(0, p, p % NB))
    emit(p3mf(0, 0), p3rd(0, 0, None), (wl[:L0], 2, opt('l0hi', 56)), {n: st[4 * ((n - 15) // 2):4 * ((n - 15) // 2) + 4] for n in range(15, 59, 2)})
    assert len(st) <= 88
    a(f's_mul_i32 s3, s{S_W}, 12288'); a('s_add_u32 s32, s28, s3'); a('s_add_u32 s33, s32, 49152'); a('s_add_u32 s34, s31, s3'); a('s_add_u32 s35, s34, 49152')
    a('v_bfe_u32 v20, v0, 3, 2'); a('v_lshl_add_u32 v20, v20, 7, v9'); a('s_and_b32 s29, s27, 0xfffffe00')
    a.wait_id(hx[3]); a.barrier()
    tn(a, 'a0')
    for p in range(PF): a(xr(1, p, p % NB))
    PB = opt('pb', 14)
    emit(p3mf(1, 0), p3rd(1, 0, 2), epi_slots(0), (wl[L0:L0 + L1], 0, 54))
    tn(a, 'a1')
    emit(p3mf(2, 20), p3rd(2, 20, 3), epi_slots(1), {PB: [lambda: k.publish(hs[0], 3, 3)]}, (wl[L0 + L1:], 0, 54), {58: [k.poll_issue(3, 20, 29), 'v_add_u32 v21, s57, v4']})
    tn(a, 'a2')
    x0, x1, x2, x3 = (x4ld(q) for q in range(4))
    late = w2s[48:]
    rd = {}
    for f in list(range(25, 39)) + list(range(40, 45)): rd.setdefault(max(f - 25 + 3, 8 + 2 * (f - 25)) // 2 * 2, []).append(stg_rd(f))
    rd[6] = [lambda: a.wait_id(HS['s'])]
    rd.setdefault(48, []).extend(['v_add_u32 v23, 61440, v21', stg_rd(39)]); rd.setdefault(50, []).extend(['v_add_u32 v23, s58, v4', stg_rd(45)])
    rd.setdefault(52, []).append(stg_rd(46)); rd.setdefault(54, []).append(stg_rd(47))
    NL = opt('nl', 4); PC = opt('pc', 8)
    emit(p3mf(3, 40), p3rd(3, 40, None), epi_slots(2), {PC: [lambda: k.poll_check(3, 3, 20, 29)], PB: [lambda: k.publish(hs[1], 4, 3)]}, rd,
         (x0[:9], PC + 2, 40), (late[:NL], 42, 56), {58: [k.poll_issue(3)]})
    tn(a, 'p4')
    def ac4(q, t): return q4('v', 40 + 4 * t) if q % 2 == 0 else q4('v', 60 + 4 * t if t < 4 else 24)
    def p4mf(q, i0, i1): return [f'{MF} {ac4(q, t)}, {w2_reg(i*5+t)}, {x4reg(q, i)}, {"0" if i == 0 else ac4(q, t)}' for i in range(i0, i1) for t in range(5)]
    def red(q): return [f'ds_write_b128 v{21 if q < 3 else 23}, {ac4(q, t)} offset:{(q%3)*20480 + 1024*t}' for t in range(5)]
    mf = p4mf(0, 0, 9) + p4mf(1, 0, 9) + p4mf(0, 9, 12) + p4mf(1, 9, 12) + p4mf(2, 0, 12) + p4mf(3, 0, 12)
    def wb():
        n = opt('wb2', 0)
        if not n: return
        a(f's_lshl2_add_u32 s3, s2, s{S_W}'); a(f's_and_b32 s3, s3, {hex({1: 0x3e3, 2: 0x383, 3: 3}[n])}'); a('s_cbranch_scc0 WBL')
        a(k.poll_issue(20)); a.label('WBR')
        k.tail.append('WBL:\n  buffer_wbl2 sc1\n  s_branch WBR')
    e3 = epi_slots(3); E3 = max(e3)
    o = lambda n, d: opt(n, d)
    emit(mf, e3, {o('c4', 6): [lambda: k.poll_check(4, 3)], PB: [lambda: k.publish(hs[2], 5, 3)], o('i5', 48): [k.poll_issue(3)], E3 + 2: [lambda: k.poll_check(5, 3)],
                  E3 + PB: [lambda: k.publish(hs[3], 6, 3)], o('i6', 104): [k.poll_issue(3)], o('c6', 116): [lambda: k.poll_check(6, 3)],
                  45: [lambda: tn(a, 'e3')], 90: [lambda: tn(a, 'q0')], 120: [lambda: tn(a, 'q1')], 180: [lambda: tn(a, 'q2')],
                  o('wbp', 162): [wb], 2: ['v_add_u32 v23, 61440, v21', f's_mul_i32 s3, s{S_W}, 20480', 'v_add_u32 v22, s3, v4']},
         (x1[:9], o('c4', 6) + 2, o('x1hi', 30)), (late[NL:] + x0[9:] + x1[9:], o('x1hi', 30), o('lhi', 72)), (x2, max(E3 + 4, o('lhi', 72)), o('x2hi', 110)), (x3, o('c6', 116) + 2, o('x3hi', 160)),
         (red(0), 108, 118), (red(1), 124, 140), (red(2), 184, 200))
    prev = red(3)
    GB = 124; X1 = 144
    a(f'v_lshlrev_b32 v3, 4, v2'); a(f'v_add_u32 v3, {L_OWN}, v3')
    for t in range(5): a(f'ds_read_b128 {q4("v", GB + 4*t)}, v3 offset:{(40+4*t)*16}')
    for e in range(10):
        for t in unpack(X1 + 2 * e, X1 + 2 * e + 1, 10 + e): a(t)
    for t in prev: a(t)
    tn(a, 'p4e')
    a.wait(lg=0); a.barrier()
    RR = 172
    for q in range(4):
        for t in range(5): a(f'ds_read_b128 {q4("v", RR + (q*5+t)*4)}, v22 offset:{q*5120+t*1024}')
    for q in range(1, 4):
        for e in range(10): a(f'v_pk_add_f32 v[{RR+2*e}:{RR+2*e+1}], v[{RR+2*e}:{RR+2*e+1}], v[{RR+20*q+2*e}:{RR+20*q+2*e+1}]')
    for e in range(10): a(f'v_pk_fma_f32 v[{X1+2*e}:{X1+2*e+1}], v[{RR+2*e}:{RR+2*e+1}], v[{GB+2*e}:{GB+2*e+1}], v[{X1+2*e}:{X1+2*e+1}]')
    a(f's_lshl2_add_u32 s49, s{S_RB}, s{S_W}'); a('s_lshl_b32 s49, s49, 4'); a('v_add_u32 v3, s49, v1')
    a('s_movk_i32 s49, 1280'); a('v_mul_lo_u32 v3, v3, s49'); a('v_lshl_add_u32 v3, v2, 3, v3')
    for t in range(5):
        for e in (2 * t, 2 * t + 1): a(f'v_cvt_pk_bf16_f32 v{10+e}, v{X1+2*e}, v{X1+2*e+1}')
        a(f'buffer_store_dwordx2 v[{10+2*t}:{11+2*t}], v3, s[{S_O}:{S_O+3}], s61 offen offset:{32*t}' + ['', ' sc1', ' nt', ' sc0 sc1', ' sc1 nt'][opt('ob', 0)])
    gen1.epilogue(a, 'p0')
    for t in k.tail: a.raw(t)
    a.raw('CODE_END:')
    return LDS_SIZE
if __name__ == '__main__':
    t, d, lds = gen1.kernel_text(gen1.NAME + '_kernel', main_kernel)
    open(sys.argv[1], 'w').write(f'; @launch grid=(256,1,1) block=(256,1,1) lds={lds}\n.amdgcn_target "amdgcn-amd-amdhsa--gfx950"\n.text\n' + t + '.section .rodata,"a"\n.p2align 6\n' + d)
```

```python
import sys, struct
from asmfw import *
import gen1
from gen1 import WS_MODP, WS_STATS, WS_WQ, WS_WO, WS_W1, WS_W2, WS_OF, WS_X1G, WS_H1, MF, LOG2E, fl, unpack, srd, S_WS, S_X, S_O, S_RB, S_J, S_W, ts, tsc, ts_flush
WSR = f's[{S_WS}:{S_WS+3}]'
WS_FL = 0x40000
WS_XID = 0x44000
S_FAST = 23
S_E = 24
FULL = (1 << 64) - 1
OPT = sys.argv[2] if len(sys.argv) > 2 else ''
L_DUMP = 102400; L_PERM = 147456
L_MODL = L_PERM; L_XR = L_PERM; L_GS = 159744; L_OWN = L_GS + 2560
L_X3 = 65536
LDS_SIZE = 163840
class K:
    def __init__(s, a): s.a = a; s.tail = []; s.nl = 0
    def setexec(s, m):
        s.a(f's_mov_b32 exec_lo, {hex(m & 0xffffffff)}'); s.a(f's_mov_b32 exec_hi, {hex(m >> 32)}')
    def stores(s, lst):
        a = s.a; s.nl += 1; n = s.nl
        a(f's_cmp_eq_u32 s{S_FAST}, 0'); a(f's_cbranch_scc1 SLOW{n}')
        h = None; n0 = len(a.out)
        for t in lst: h = a(t)
        assert len(a.out) - n0 == len(lst), a.out[n0:]
        a.label(f'RET{n}')
        s.tail.append(f'SLOW{n}:\n' + ''.join(f'  {t}{" sc1" if t.startswith("buffer") else ""}\n' for t in lst) + f'  s_branch RET{n}')
        return h
    def publish(s, h, val, vt):
        s.a(f's_add_u32 s72, s{S_E}, {val}'); s.a(f'v_mov_b32 v{vt}, s72')
        s.a.wait_id(h)
        s.stores([f'buffer_store_dword v{vt}, off, {WSR}, s26'])
    def spin_tail(s, n, val, vt, va=9, so=27):
        s.tail.append(f'''SPIN{n}:
  s_mov_b32 s72, 0x8000
SPINL{n}:
  buffer_load_dword v{vt}, v{va}, {WSR}, s{so} offen sc1
  s_waitcnt vmcnt(0)
  v_subrev_u32 v{vt}, s{S_E}, v{vt}
  v_add_u32 v{vt}, {-val}, v{vt}
  v_cmp_gt_u32 vcc, 8, v{vt}
  s_sub_u32 s72, s72, 1
  s_cbranch_scc1 PDONE{n}
  s_cmp_eq_u64 vcc, -1
  s_cbranch_scc0 SPINL{n}
  s_branch PDONE{n}''')
    def poll(s, val, vt):
        a = s.a; s.nl += 1; n = s.nl
        a.wait(lg=0)
        if not opt('sp', 0):
            a(f's_branch SPIN{n}')
        else:
            a(f's_cmp_eq_u32 s{S_FAST}, 0'); a(f's_cbranch_scc1 SPIN{n}')
            a('s_mov_b32 s72, 0x8000'); a(f's_add_u32 s73, s{S_E}, {val}')
            a.label(f'POLL{n}')
            a(f's_load_dwordx8 s[64:71], s[{S_WS}:{S_WS+1}], s27 glc')
            a('s_sub_u32 s72, s72, 1'); a(f's_cbranch_scc1 PDONE{n}')
            a.wait(lg=0)
            for q in range(8): a(f's_sub_u32 s{64+q}, s{64+q}, s73')
            for q in range(1, 8): a(f's_max_u32 s64, s64, s{64+q}')
            a('s_cmp_lt_u32 s64, 8'); a(f's_cbranch_scc0 POLL{n}')
        a.label(f'PDONE{n}')
        a.fwait('lgkmcnt(0)')
        s.spin_tail(n, val, vt)
    def poll_issue(s, vt, va=9, so=27): return f'buffer_load_dword v{vt}, v{va}, {WSR}, s{so} offen sc1'
    def poll_check(s, val, vt, va=9, so=27):
        a = s.a; s.nl += 1; n = s.nl
        a(f's_add_u32 s72, s{S_E}, {val}'); a(f'v_subrev_u32 v{vt}, s72, v{vt}'); a(f'v_cmp_gt_u32 vcc, 8, v{vt}'); a('s_nop 3')
        a('s_cmp_eq_u64 vcc, -1'); a(f's_cbranch_scc0 SPIN{n}')
        a.label(f'PDONE{n}')
        s.spin_tail(n, val, vt, va, so)
def spread(a, main, fill, lo=0, hi=None):
    n = len(main); hi = n if hi is None else hi
    fi = 0; m = len(fill)
    def em(x):
        if callable(x): x()
        else: a(x)
    for i, t in enumerate(main):
        em(t)
        if i >= lo:
            tgt = min(m, -(-m * (i - lo + 1) // max(1, hi - lo)))
            while fi < tgt: em(fill[fi]); fi += 1
    while fi < m: em(fill[fi]); fi += 1
def mix(x, y):
    out = []; j = 0
    for i, t in enumerate(x):
        out.append(t)
        while j < len(y) and j * len(x) < (i + 1) * len(y): out.append(y[j]); j += 1
    return out + y[j:]
def frag_offsets(a, sb, s2, st):
    a(f's_lshr_b32 s{st}, s{S_J}, 1'); a(f's_mul_i32 s{st}, s{st}, 5120'); a(f's_add_u32 s{sb}, s{sb}, s{st}')
    a(f's_and_b32 s{st}, s{S_J}, 1')
    a(f's_lshl3_add_u32 s{s2}, s{st}, s{sb}'); a(f's_add_u32 s{s2}, s{s2}, 4096')
    a(f's_lshl_b32 s{st}, s{st}, 11'); a(f's_add_u32 s{sb}, s{sb}, s{st}')
def frag_store80(F, sb, s2):
    return [f'buffer_store_dwordx4 v[{F}:{F+3}], v4, {WSR}, s{sb} offen',
            f'buffer_store_dwordx4 v[{F+4}:{F+7}], v4, {WSR}, s{sb} offen offset:1024',
            f'buffer_store_dwordx2 v[{F+8}:{F+9}], v4, {WSR}, s{s2} offen']
def ld(reg, s, soff, srd_=WSR, sc1=False):
    return f'buffer_load_dwordx4 {reg}, v{4 + s // 4}, {srd_}, s{soff} offen offset:{1024 * (s % 4)}' + (sc1 if isinstance(sc1, str) else ' sc1' if sc1 else '')
def q4(k, b): return f'{k}[{b}:{b+3}]'
RING = 9
def wq_reg(s, sl): return q4('a', 16 * (s % RING) + 4 * sl)
def wo_reg(t, i): return q4('a', 156 + 4 * (i * 5 + t))
def w1_reg(f): return q4('a', 4 * f) if f < 39 else q4('v', 172 + 4 * (f - 39))
def w2_reg(f): return q4('a', 156 + 4 * f) if f < 25 else q4('a', 4 * (f - 25))
WB = [' sc1', '', ' nt', ' sc1 nt', ' sc0', ' sc0 nt'][int(([o[3:] for o in OPT.split(',') if o.startswith('wb=')] + ['0'])[0])]
def wq_ld(s, sl): return ld(wq_reg(s, sl), s, 32 + sl, 's[12:15]' if sl == 2 else WSR, WB)
def wo_ld(t, i): return ld(wo_reg(t, i), i, 36 + t, WSR, WB)
def w1_ld(f): return ld(w1_reg(f), f // 3, 41 + f % 3, WSR, WB)
def w2_ld(f): return ld(w2_reg(f), f // 5, 44 + f % 5, WSR, WB)


WS_EP = 0x48000; WS_FA = 0x49000; WS_FB = 0x4A000
S_E = 24
L_ST = L_DUMP; L_MR = 143360; RSZ = 98304
def opt(name, d):
    for o in OPT.split(','):
        if o.startswith(name + '='): return int(o.split('=')[1])
    return d
NT = ' nt' if opt('nt', 1) else ''; NTM = ' nt' if opt('ntm', 1) else ''; NTX = ' nt' if opt('ntx', 0) else ''; NTT = ' nt' if opt('ntt', 0) else ''
NXE = opt('nxe', 3); PUBE = opt('pube', 1)
TS = {n: i for i, n in enumerate(('p3', 'a0', 'a1', 'a2', 'p4', 'e3', 'q0', 'q1', 'q2', 'p4e') if 'traceQ' in OPT else ('p1e', 'db', 'att', 'pb1', 'p2', 'p2m', 'p2b', 'p2e', 'u1', 'p3') if 'traceR' in OPT else ('p1', 's2', 's4', 's6', 's8', 's10', 's13', 's15', 's17', 'p1e') if 'traceP' in OPT else ('s', 'dec', 'ka', 'b1', 'st', 'pub', 'xi', 'x0', 'x4', 'ln') if 'traceG' in OPT else ('s', 'ln', 'b2', 'pi', 'mf', 'vp', 'pw', 'fa', 'poll', 'bar') if 'traceH' in OPT else ('s', 'pub', 'pi', 'pw', 'poll', 'bar', 'ln', 'p1', 'p1e', 'att') if 'traceF' in OPT else ('s', 'bar', 'p1', 'p1e', 'att', 'p2', 'p2e', 'p3', 'p4', 'p4e'))}
def tn(a, n):
    if n in TS: ts(a, TS[n])
XN = 40
def pairs(a, st, n, dA, dB, t):
    mg, ta, tb = (13108, 0x47520, 0x98631) if n == 5 else (10923, 0x829630, 0xb5a741)
    a(f's_mul_i32 s{dA}, s{st}, {mg}'); a(f's_lshr_b32 s{dA}, s{dA}, 16'); a(f's_mul_i32 s{dB}, s{dA}, {n}')
    a(f's_sub_u32 s{t}, s{st}, s{dB}'); a(f's_lshl_b32 s{t}, s{t}, 2')
    a(f's_lshr_b32 s{dA}, {hex(ta)}, s{t}'); a(f's_and_b32 s{dA}, s{dA}, 15'); a(f's_lshl1_add_u32 s{dA}, s{dB}, s{dA}')
    a(f's_lshr_b32 s{t}, {hex(tb)}, s{t}'); a(f's_and_b32 s{t}, s{t}, 15'); a(f's_lshl1_add_u32 s{dB}, s{dB}, s{t}')
def perm_src(x, st, n, stride, vd, so, colb, A=30, B=31, T=3, v7=5, vt=3):
    pairs(x, st, n, A, B, T)
    x(f's_sub_u32 s{B}, s{B}, s{A}'); x(f's_mul_i32 s{B}, s{B}, {16*stride}'); x(f's_lshl2_add_u32 s{A}, s{A}, s{S_W}')
    x(f's_mul_i32 s{A}, s{A}, {4*stride}'); x(f's_add_u32 s{so}, s{A}, s{colb}')
    x(f'v_bfe_u32 v{vt}, v0, 3, 2'); x(f's_movk_i32 s{T}, {stride}'); x(f'v_mad_u32_u24 v{vd}, v{vt}, s{T}, v{v7}')
    x(f'v_lshrrev_b32 v{vt}, 5, v0'); x(f'v_mad_u32_u24 v{vd}, v{vt}, s{B}, v{vd}')
def tr_addr(x, vd, blk, base, vt=3, T=3):
    x(f's_movk_i32 s{T}, {blk}'); x(f'v_and_b32 v{vt}, 3, v1'); x(f'v_lshlrev_b32 v{vt}, 3, v{vt}'); x(f'v_mad_u32_u24 v{vd}, v2, s{T}, v{vt}')
    x(f'v_lshrrev_b32 v{vt}, 2, v1'); x(f'v_lshl_add_u32 v{vd}, v{vt}, 7, v{vd}')
    x(f's_lshl_b32 s{T}, s{S_W}, 5'); x(f's_add_u32 s{T}, s{T}, {base}'); x(f'v_add_u32 v{vd}, s{T}, v{vd}')
def uproc(n, R, sd, tst, va, vo, k='a'):
    l = []
    for t in range(n):
        l += [f'ds_read_b64_tr_b16 {k}[{R+4*t}:{R+4*t+1}], v{va} offset:{1024*t}', f'ds_read_b64_tr_b16 {k}[{R+4*t+2}:{R+4*t+3}], v{va} offset:{1024*t + 512}']
    for t in range(n):
        l.append((f's_add_u32 s{sd}, s{sd}, {4*tst}\n' if t else '') + f'buffer_store_dwordx4 {k}[{R+4*t}:{R+4*t+3}], v{vo}, {WSR}, s{sd} offen sc1')
    return l
LM = dict(W=176, C=196, AC=208, T=201)
class Mod:
    def __init__(m, late, W, C, AC, VW, VC, T, SC, SW, SR, SG): m.__dict__.update(locals())
    def dec(m):
        G, D, R = m.SG, m.SG + 1, m.SR
        l = [f'v_lshrrev_b32 v{m.VC}, 3, v0', f'v_and_b32 v{m.T}, 7, v0', f'v_lshlrev_b32 v{m.T}, 4, v{m.T}',
             f's_and_b32 s{G}, s2, 7', f's_lshl3_add_u32 s{G}, s{S_J}, s{G}']
        l += [f's_add_u32 s{G}, s{G}, 24', f's_min_u32 s{G}, s{G}, 59'] if m.late else [f's_sub_u32 s{G}, s{G}, 40']
        l += [f's_bfe_u32 s{D}, s2, 0x20003', f's_lshl2_add_u32 s{R}, s{D}, s{S_W}', f's_mul_i32 s{R}, s{R}, 40', f'v_add_u32 v{m.VC}, s{R}, v{m.VC}', f's_movk_i32 s{R}, 7680',
              f'v_mad_u32_u24 v{m.VW}, v{m.VC}, s{R}, v{m.T}', f's_lshl_b32 s{R}, s{G}, 7', f'v_lshlrev_b32 v{m.VC}, 1, v{m.VC}',
              f's_movk_i32 s{m.SC+2}, 1280', f's_mov_b32 s{m.SC+3}, 0x20000', f's_mov_b32 s{m.SW+3}, 0x20000', f's_mov_b32 s{m.SW+2}, {640*7680}']
        return l
    def dec2(m):
        G, D = m.SG, m.SG + 1
        return [f's_lshl_b32 s{G}, s{G}, 10', f's_lshl2_add_u32 s{D}, s{D}, s{G}', f's_add_u32 s{D}, s{D}, {WS_MODP}']
    def load(m, k='v', vw=None):
        vw = m.VW if vw is None else vw
        l = [f's_and_b32 s{m.SC+1}, s{m.SC+1}, 0xffff\ns_and_b32 s{m.SW+1}, s{m.SW+1}, 0xffff']
        for i in range(5): l.append(f'buffer_load_ushort {k}{m.C+i}, v{m.VC}, s[{m.SC}:{m.SC+3}], 0 offen offset:{16*i} sc1')
        for i in range(5): l.append((f's_add_u32 s{m.SR}, s{m.SR}, {8*7680}\n' if i else '') + f'buffer_load_dwordx4 {k}[{m.W+4*i}:{m.W+3+4*i}], v{vw}, s[{m.SW}:{m.SW+3}], s{m.SR} offen{NTM}')
        return l
    def silu(m):
        C, AC = m.C, m.AC; l = []
        for f in ('v_lshlrev_b32 v{c}, 16, v{c}', 'v_mul_f32 v{t}, ' + fl(-LOG2E) + ', v{c}', 'v_exp_f32 v{t}, v{t}', 'v_add_f32 v{t}, 1.0, v{t}', 'v_rcp_f32 v{t}, v{t}',
                  'v_mul_f32 v{c}, v{c}, v{t}', 'v_cvt_pk_bf16_f32 v{c}, v{c}, 0'):
            l += [f.format(c=C + i, t=AC + i) for i in range(5)]
        return l
    def dot(m):
        AC, T = m.AC, m.T; l = []
        for i in range(5):
            l.append(f'v_lshlrev_b32 v{T}, 16, v{m.C+i}')
            if m.late and opt('sdot', 1):
                op = 'v_mul_f32' if i == 0 else 'v_fmac_f32'
                for q in range(4):
                    w = m.W + 4 * i + q
                    l += [f'v_lshlrev_b32 v{T+1}, 16, v{w}', f'v_and_b32 v{w}, 0xffff0000, v{w}', f'{op} v{AC+2*q}, v{T+1}, v{T}', f'{op} v{AC+2*q+1}, v{w}, v{T}']
                continue
            for q in range(4):
                for e, sv in ((0, m.C + i), (1, T)):
                    r = AC + 2 * q + e
                    l.append(f'v_dot2_f32_bf16 v{r}, v{m.W+4*i+q}, v{sv}, {"0" if i == 0 else f"v{r}"}')
        G = m.SG
        l += [f'v_and_b32 v{T}, 7, v0', f'v_lshlrev_b32 v{T}, 5, v{T}', f'v_lshl_add_u32 v{T}, v2, 3, v{T}']
        l += [f'v_permlane32_swap_b32 v{AC+q}, v{AC+4+q}' for q in range(4)] + [f'v_add_f32 v{AC+q}, v{AC+q}, v{AC+4+q}' for q in range(4)]
        l += [f's_lshl_b32 s{G}, s{S_W}, 8', f's_add_u32 s{G}, s{G}, {L_MR}']
        l += [f'v_permlane16_swap_b32 v{AC+q}, v{AC+2+q}' for q in range(2)] + [f'v_add_f32 v{AC+q}, v{AC+q}, v{AC+2+q}' for q in range(2)]
        l += [f'v_add_u32 v{T}, s{G}, v{T}', f'v_lshlrev_b32 v{AC+6}, 2, v0']
        l += [f'v_add_f32_dpp v{AC+q}, v{AC+q}, v{AC+q} row_ror:8 row_mask:0xf bank_mask:0xf' for q in range(2)]
        return l + [f'v_add_u32 v{AC+6}, {L_MR}, v{AC+6}', f'ds_write_b64 v{T}, v[{AC}:{AC+1}]']
    def fin(m):
        AC, G = m.AC, m.SG
        l = [f'ds_read2st64_b32 v[{AC}:{AC+1}], v{AC+6} offset0:0 offset1:1', f'ds_read2st64_b32 v[{AC+2}:{AC+3}], v{AC+6} offset0:2 offset1:3',
             f's_cmp_eq_u32 s{S_W}, 0\ns_cselect_b32 s{G}, 0, 0x80000000' + (f'\ns_cmp_lt_u32 s2, 160\ns_cselect_b32 s{G}, s{G}, 0x80000000' if m.late else ''),
             f'v_or_b32 v{AC+7}, s{G}, v4', f's_bfe_u32 s{G}, s{S_E}, 0x80004', f's_movk_i32 s{G+2}, 0xff00',
             f'v_add_f32 v{AC}, v{AC}, v{AC+1}', f'v_add_f32 v{AC+2}, v{AC+2}, v{AC+3}', f'v_mov_b32 v{AC+5}, s{G}', f'v_add_f32 v{AC}, v{AC}, v{AC+2}',
             f'v_and_or_b32 v{AC}, v{AC}, s{G+2}, v{AC+5}',
             f'buffer_store_dword v{AC}, v{AC+7}, {WSR}, s{G+1} offen sc1']
        return l
def mchk(r0, n, vt, st):
    return [f'v_xor_b32 v{vt}, s{st}, v{r0}'] + [f'v_bitop3_b32 v{vt}, v{vt}, s{st}, v{r0+e} bitop3:0xf6' for e in range(1, n)] + [f'v_lshlrev_b32 v{vt}, 24, v{vt}', f'v_cmp_eq_u32 vcc, 0, v{vt}']
def msum(r0, n, one, hi=True):
    l = []
    for e in range(4 * n): l.append(f'v_and_b32 v{r0+e}, 0xffffff00, v{r0+e}')
    for i in range(n): l.append(f'v_pk_add_f32 v[{r0+4*i}:{r0+4*i+1}], v[{r0+4*i}:{r0+4*i+1}], v[{r0+4*i+2}:{r0+4*i+3}]')
    for i in range(n): l.append(f'v_add_f32 v{r0+4*i}, v{r0+4*i}, v{r0+4*i+1}')
    for i in range(n): l.append(f'v_cvt_pk_bf16_f32 v{r0+4*i}, 0, v{r0+4*i}')
    for i in range(n): l.append(f'v_add_f32 v{r0+4*i}, {one[i]}, v{r0+4*i}')
    for i in range(n): l.append(f'v_cvt_pk_bf16_f32 v{r0+4*i}, 0, v{r0+4*i}' if hi[i] else f'v_cvt_pk_bf16_f32 v{r0+4*i}, v{r0+4*i}, 0')
    return l
def slice_addr(A, sd, st):
    A(f's_lshl3_add_u32 s{sd}, s{S_RB}, s{S_J}'); A(f's_and_b32 s{st}, s{S_W}, 1'); A(f's_lshl1_add_u32 s{sd}, s{sd}, s{st}'); A(f's_mul_i32 s{sd}, s{sd}, 6144')
    A(f's_lshr_b32 s{st}, s{S_W}, 1'); A(f's_mul_i32 s{st}, s{st}, {WS_X1G - WS_OF}'); A(f's_add_u32 s{sd}, s{sd}, s{st}'); A(f's_add_u32 s{sd}, s{sd}, {WS_OF}')
def prew(sd): return [f'buffer_store_dwordx4 v[4:7], v{4 + q // 4}, {WSR}, s{sd} offen offset:{1024 * (q % 4)} sc1' for q in range(6)]
PW = opt('prew', 1)
L_W2S = 135168
def stats(i):
    S, Q = 250, 252; l = []
    for u in range(5):
        b = XN + (i * 5 + u) * 8
        for e in range(4): l += unpack(b + 2 * e, b + 2 * e + 1, b + 4 + e)
        for e in range(4):
            p = f'v[{b+2*e}:{b+2*e+1}]'
            l.append(f'v_pk_mul_f32 v[{Q}:{Q+1}], {p}, {p}' if u == 0 and e == 0 else f'v_pk_fma_f32 v[{Q}:{Q+1}], {p}, {p}, v[{Q}:{Q+1}]')
            if u == 0 and e == 1: l.append(f'v_pk_add_f32 v[{S}:{S+1}], v[{b}:{b+1}], {p}')
            elif not (u == 0 and e == 0): l.append(f'v_pk_add_f32 v[{S}:{S+1}], v[{S}:{S+1}], {p}')
    return l + [f'v_add_f32 v{240+2*i}, v{S}, v{S+1}', f'v_add_f32 v{241+2*i}, v{Q}, v{Q+1}']
JS = 2
def front(a, k, var):
    TST = 20480 if var == 'A' else 49152
    def dec_u():
        a(f's_lshl_b32 s47, s{S_W}, 13'); a(f's_add_u32 s47, s47, {L_ST}'); a('s_mov_b32 s71, 0x20000')
        a('v_and_b32 v5, 7, v0'); a('v_lshlrev_b32 v5, 4, v5')
        if var == 'A':
            a('s_cmp_ge_u32 s2, 120'); a('s_cbranch_scc1 DEC_WO')
            a('s_mul_i32 s28, s2, 10923'); a('s_lshr_b32 s28, s28, 16'); a('s_mul_i32 s29, s28, 6'); a('s_sub_u32 s29, s2, s29')
            a(f's_lshl2_add_u32 s33, s28, s{S_W}')
            a(f's_mul_i32 s33, s33, {8*3840}'); a('s_mul_i32 s3, s29, 640'); a('s_add_u32 s33, s33, s3')
            a('v_lshrrev_b32 v3, 3, v0'); a('s_movk_i32 s3, 3840'); a('v_mad_u32_u24 v33, v3, s3, v5'); a(f's_mov_b32 s70, {640*3840}')
            a.label('DEC_WO_RET')
            x = Asm()
            x('s_sub_u32 s28, s2, 120'); x('s_and_b32 s29, s28, 1'); x('s_lshr_b32 s28, s28, 1')
            x('s_mul_i32 s48, s29, 640'); perm_src(x, 28, 5, 1280, 33, 33, 48); x(f's_mov_b32 s70, {640*1280}')
            k.tail.append('DEC_WO:\n' + x.text() + '  s_branch DEC_WO_RET')
        else:
            a('s_sub_u32 s28, s2, 160'); a('s_min_u32 s28, s28, 79'); a('s_and_b32 s29, s28, 3'); a('s_lshr_b32 s28, s28, 2')
            a('s_mul_i32 s62, s29, 24'); a(f's_add_u32 s62, s62, s{S_W}')
            a('s_mul_i32 s62, s62, 20480'); a('s_lshl_b32 s3, s28, 10'); a('s_add_u32 s62, s62, s3'); a(f's_add_u32 s62, s62, {WS_W1}')
            a('s_mul_i32 s48, s29, 768'); perm_src(a, 28, 5, 3072, 33, 33, 48); a(f's_mov_b32 s70, {640*3072}')
    def dec_u2():
        tr_addr(a, 245, 8192, L_ST)
        a('s_cmp_ge_u32 s2, 120')
        a(f's_mov_b32 s34, {WS_WQ}'); a(f's_cselect_b32 s34, {WS_WO}, s34')
        a(f's_mov_b32 s35, {WS_FA}'); a(f's_cselect_b32 s35, {WS_FA + 2048}, s35')
        a('s_and_b32 s3, s29, 1'); a('s_mul_i32 s3, s3, 3'); a('s_lshr_b32 s48, s29, 1'); a('s_add_u32 s3, s3, s48')
        a('s_mul_i32 s3, s3, 20'); a('s_add_u32 s3, s3, s28'); a(f's_lshl2_add_u32 s3, s3, s{S_W}'); a('s_lshl2_add_u32 s35, s3, s35')
        a('s_mul_i32 s3, s29, 20'); a(f's_add_u32 s3, s3, s{S_W}')
        a('s_mul_i32 s3, s3, 20480'); a('s_add_u32 s34, s34, s3'); a('s_lshl_b32 s3, s28, 10'); a('s_add_u32 s34, s34, s3')
    def dec_x(rng):
        if 0 in rng:
            a(f's_lshl_b32 s3, s{S_J}, 2'); a('s_mov_b32 s50, 0x21043210'); a('s_movk_i32 s51, 0x1043'); a('s_lshr_b64 s[50:51], s[50:51], s3'); a('s_mov_b32 s73, s50')
            a(f's_lshl_b32 s3, s{S_RB}, 6'); a(f's_mul_i32 s79, s{S_W}, 20'); a('s_add_u32 s3, s3, s79'); a('s_sub_u32 s3, s3, 16')
            a('s_movk_i32 s51, 1280'); a('v_add_u32 v244, s3, v2'); a('v_lshlrev_b32 v39, 4, v1')
            a(f's_mov_b32 s{S_X+2}, {2048*1280}'); a(f's_mov_b32 s{S_X+3}, 0x20000')
        for i in rng:
            a(f's_bfe_u32 s3, s73, {hex(0x40000 + 4*i)}'); a('v_lshl_add_u32 v3, s3, 2, v244'); a('v_max_i32 v3, 0, v3'); a(f'v_mad_u32_u24 v{240+i}, v3, s51, v39')
    H = {}
    def uload(v=33, so=33):
        l = [('s_cmp_ge_u32 s2, 120\ns_cselect_b64 s[68:69], s[38:39], s[36:37]\n' if var == 'A' else '') + 's_and_b32 s69, s69, 0xffff']
        for t in range(5 if var == 'A' else 6): l.append(f's_add_u32 m0, s47, {t*896}\nbuffer_load_dwordx4 v{v}, s[68:71], s{so} offen offset:{128*t}{NT} lds')
        return l + [lambda: H.update(u=a.vm[-1][0])]
    def xload(i):
        return [f'buffer_load_dwordx4 v[{XN+(i*5+u)*8+4}:{XN+(i*5+u)*8+7}], v{240+i}, s[{S_X}:{S_X+3}], 0 offen offset:{256*u}{NTX}' for u in range(5)]
    def em(l): spread(a, l, [])
    def eload(): a(f's_and_b32 s{S_WS+1}, s{S_WS+1}, 0xffff'); a(f's_mov_b32 s3, {WS_EP}'); a(f'buffer_load_dword v38, off, {WSR}, s3 sc1')
    def cpf():
        if not opt('cpf', 1): return
        a('s_getpc_b64 s[50:51]'); a.label(f'PC{var}')
        a('s_lshr_b32 s3, s2, 3'); a(f's_lshl2_add_u32 s3, s3, s{S_W}'); a('s_mul_i32 s3, s3, 3'); a('v_min_u32 v237, 2, v0'); a('v_add_u32 v237, s3, v237')
        a(f'v_min_u32 v237, (CODE_END-FRONT_A2-4)/128, v237'); a('v_lshlrev_b32 v237, 7, v237')
        a(f's_add_u32 s50, s50, FRONT_A2-PC{var}'); a('s_addc_u32 s51, s51, -1')
        a('v_mov_b32 v239, s51'); a('v_add_co_u32 v238, vcc, s50, v237'); a('v_addc_co_u32 v239, vcc, 0, v239, vcc')
        a('global_load_dword v237, v[238:239], off sc1')
    def getE(): a(f'v_readfirstlane_b32 s{S_E}, v38'); a(f's_add_u32 s{S_E}, s{S_E}, 0x9E3779B0')
    def pubA(): getE(); a(f'v_mov_b32 v3, s{S_E}'); a.wait_id(H['st']); a(f'buffer_store_dword v3, off, {WSR}, s35 sc1'); tn(a, 'pub')
    def misc():
        a(f's_mov_b32 s{S_O+2}, {2048*1280}'); a(f's_mov_b32 s{S_O+3}, 0x20000'); a(f's_and_b32 s{S_O+1}, s{S_O+1}, 0xffff')
        a('v_lshlrev_b32 v4, 4, v0')
        for q in range(1, 4): a(f'v_add_u32 v{4+q}, {4096*q}, v4')
    XE = opt('xe', 0); XB = opt('xb', 0)
    if var == 'A':
        m = Mod(True, 176, 196, 0, 35, 36, 37, 52, 56, 74, 29)
        dec_u(); tn(a, 'dec'); a.wait(lg=0); tn(a, 'ka')
        em(uload()); eload()
        a.raw('@SPLIT')
        dec_x([0, 1, 2, 3, 4]); a(f's_and_b32 s{S_X+1}, s{S_X+1}, 0xffff')
        if XE: em(xload(0))
        cpf(); dec_u2(); misc(); em(m.dec() + m.dec2())
        for i in range(1, XE): em(xload(i))
        a.wait_id(H['u']); tn(a, 'b1'); a.barrier()
        em(uproc(5, 156, 34, 20480, 245, 4)); H['st'] = a.vm[-1][0]; tn(a, 'st')
        ml = m.load('a'); b2 = ml[6:]
        xl = sum([xload(i) for i in range(XE, 5)], []) + ml[:6]
        a('s_mov_b32 s62, 0')
        n_ = opt('xp', 0) + (5 if XE == 0 else 0)
        em(xl[:n_]); xl = xl[n_:]
        if PUBE: pubA()
    else:
        m = Mod(False, 8, 28, 246, 35, 36, 37, 52, 56, 74, 44)
        em(m.dec()); tn(a, 'dec'); a.wait(lg=0); tn(a, 'ka')
        em(m.load()); eload()
        a.raw('@SPLIT')
        em(m.dec2()); dec_x([0, 1, 2, 3, 4]); a(f's_and_b32 s{S_X+1}, s{S_X+1}, 0xffff')
        cpf(); dec_u(); misc()
        for i in range(XB): em(xload(i))
        em(m.silu()); tn(a, 'b1')
        d = m.dot(); em(d[:27]); em(xload(XB)); em(d[27:45]); tn(a, 'st'); em(xload(XB + 1)); em(d[45:]); getE()
        a.wait(lg=0); a.barrier(); em(m.fin()); tn(a, 'pub')
        b2 = uload()[:-1]
        xl = sum([xload(i) for i in range(XB + 2, 5)], [])
    nx = opt('nx', 10)
    spread(a, stats(0), xl[:nx], lo=0, hi=opt('xhi', 60))
    tn(a, 'x0')
    if var == 'A' and not PUBE: pubA()
    spread(a, stats(1), xl[nx:], hi=40)
    tn(a, 'xi')
    a('v_min_u32 v31, 59, v0'); a(f's_mul_i32 s3, s{S_W}, 240'); a('v_lshl_add_u32 v31, v31, 2, s3')
    a(f's_lshr_b32 s50, s{S_J}, 2'); a('s_mul_i32 s50, s50, 960'); a(f's_add_u32 s50, s50, {WS_FA}'); a(f's_mul_i32 s49, s{S_W}, 5120'); a(f's_add_u32 s49, s49, {WS_MODP}')
    A = a
    A('s_min_u32 s52, s2, 239'); A('s_mul_i32 s28, s52, 13108'); A('s_lshr_b32 s28, s28, 16'); A('s_mul_i32 s53, s28, 5'); A('s_sub_u32 s52, s52, s53')
    A(f's_lshl3_add_u32 s63, s52, s{S_W}'); A('s_mul_i32 s63, s63, 49152'); A('s_lshl_b32 s53, s28, 10'); A('s_add_u32 s63, s63, s53'); A(f's_add_u32 s63, s63, {WS_W2}')
    A('s_lshl_b32 s52, s52, 8'); A('v_and_b32 v34, 7, v0'); A('v_lshlrev_b32 v34, 4, v34')
    perm_src(A, 28, 6, 1280, 34, 52, 52, 53, 55, 3, 34, 3)
    A(f's_mov_b32 s66, {1536*1280}'); A('s_mov_b32 s67, 0x20000'); A('s_and_b32 s65, s65, 0xffff'); A(f's_lshl_b32 s53, s{S_W}, 11'); A(f's_add_u32 s53, s53, {L_W2S}')
    b2 += [f's_add_u32 m0, s53, {t*896}\nbuffer_load_dwordx4 v34, s[64:67], s52 offen offset:{128*t}{NT} lds' for t in range(2)]
    slice_addr(a, 61, 3)
    if opt('ot', 0) == 1: b2 += [OTCH.format(29)]
    a(f's_mul_i32 s3, s{S_W}, 1280'); a(f's_add_u32 s3, s3, {L_MODL}'); a('v_lshl_add_u32 v30, v0, 2, s3')
    a(f's_cmp_ge_u32 s{S_W}, 2'); a('s_cselect_b32 s51, 1.0, 0'); a(f's_lshr_b32 s48, s{S_E}, 4')
    pl = POLLS + [lambda: (H.update(p=a.vm[-1][0]), tn(a, 'pi'))]
    st = lnorm(a); PP = opt('pp', 240)
    b2 += [lambda: B2H.update({var: a.vm[-1][0]})]
    assert opt('b2hi', 80) < 400
    spread(a, st[:PP] + pl + st[PP:], b2, lo=opt('b2lo', 0), hi=opt('b2hi', 80))
    a(f's_mul_i32 s52, s{S_J}, 5'); a(f's_add_u32 s53, s52, s{S_W}')
    a('s_add_u32 s32, s53, 40'); a('s_add_u32 s33, s53, 80'); a('s_mov_b32 s35, s53')
    a(f's_lshl_b32 s54, s{S_W}, 3'); a('s_lshr_b32 s34, 0x04542c, s54'); a('s_and_b32 s34, s34, 0xff'); a('s_add_u32 s34, s34, s52')
    for q in range(4):
        a(f's_mul_i32 s{32+q}, s{32+q}, 20480'); a(f's_add_u32 s{32+q}, s{32+q}, {WS_WQ}')
    a(f's_mov_b64 s[12:13], s[{S_WS}:{S_WS+1}]'); a(f's_cmp_eq_u32 s{S_W}, 3'); a(f's_cselect_b32 s14, 0, s{S_WS+2}'); a('s_mov_b32 s15, 0x20000')
    tn(a, 'vp')
    a.wait_id(H['p']); tn(a, 'pw'); a.wait(lg=0)
B2H = {}
OTCH = f's_mul_i32 s3, s{S_RB}, 81920\nbuffer_load_dword v{{}}, off, s[{S_O}:{S_O+3}], s3'
def lnorm(a):
    st = sum([stats(i) for i in range(JS, 5)], []); A = st.append
    A(lambda: tn(a, 'x4'))
    for ror in (8, 4, 2, 1):
        for c in range(240, 250): A(f'v_add_f32_dpp v{c}, v{c}, v{c} row_ror:{ror} row_mask:0xf bank_mask:0xf')
    A(f's_mov_b32 s60, {fl(1/640)}'); A(f'v_mov_b32 v3, {fl(1e-5)}')
    for i in range(5): A(f'v_mul_f32 v{250+i}, s60, v{240+2*i}')
    for i in range(5): A(f'v_fma_f32 v{241+2*i}, v{241+2*i}, s60, v3')
    for i in range(5): A(f'v_fma_f32 v{241+2*i}, -v{250+i}, v{250+i}, v{241+2*i}')
    for i in range(5): A(f'v_max_f32 v{241+2*i}, v{241+2*i}, v3')
    for i in range(5): A(f'v_rsq_f32 v{240+2*i}, v{241+2*i}')
    for i in range(5): A(f'v_mul_f32 v{241+2*i}, -v{250+i}, v{240+2*i}')
    for i in range(5):
        P = 240 + 2 * i
        for u in range(5):
            b = XN + (i * 5 + u) * 8
            for e in range(4):
                p = f'v[{b+2*e}:{b+2*e+1}]'
                A(f'v_pk_fma_f32 {p}, {p}, v[{P}:{P+1}], v[{P}:{P+1}] op_sel:[0,0,1] op_sel_hi:[1,0,1]')
    A('v_lshrrev_b32 v3, 2, v1'); A('v_lshlrev_b32 v3, 10, v3'); A('v_and_b32 v33, 3, v1'); A('v_lshl_add_u32 v3, v33, 8, v3')
    A('v_and_b32 v33, 7, v1'); A('s_movk_i32 s52, 20480'); A('v_add_u32 v35, s79, v2')
    for i in range(5):
        A(f's_bfe_u32 s3, s73, {hex(0x40000 + 4*i)}'); A('v_lshl_add_u32 v36, s3, 2, v35')
        A('v_and_b32 v37, 15, v36'); A('v_xor_b32 v37, v37, v33'); A('v_lshrrev_b32 v36, 4, v36')
        A('v_mad_u32_u24 v36, v36, s52, v3'); A(f'v_lshl_add_u32 v{250+i}, v37, 4, v36')
    A('v_lshlrev_b32 v255, 5, v1'); A(f'v_add_u32 v255, {L_MODL}, v255')
    A(lambda: tn(a, 'ln'))
    return st
PM = {0: '', 1: ' sc0', 2: ' nt', 3: ' sc0 nt'}[opt('pm', 1)]
FAP = [f'buffer_load_dword v28, v31, {WSR}, s50 offen sc1{PM}']
MP = [ld(q4('v', 8 + 4 * i), i, 49, WSR, True) for i in range(5)]
POLLS = MP + FAP
def main_kernel(a):
    k = K(a)
    tn(a, 's')
    a('s_cmp_ge_u32 s2, 256'); a('s_cbranch_scc1 EXIT_p0')
    for r, o in ((64 - 28, None), (S_WS, 80), (52, 48), (56, 56), (S_X, 0), (64, 40), (68, 32), (S_O, 64)):
        a('s_load_dwordx4 s[36:39], s[0:1], 8' if o is None else f's_load_dwordx2 s[{r}:{r+1}], s[0:1], {o}')
    a('v_lshrrev_b32 v2, 6, v0'); a('v_and_b32 v0, 63, v0'); a(f'v_readfirstlane_b32 s{S_W}, v2')
    a('v_and_b32 v1, 15, v0'); a('v_lshrrev_b32 v2, 4, v0')
    a('s_and_b32 s3, s2, 7'); a(f's_lshr_b32 s{S_J}, s2, 5'); a(f's_bfe_u32 s{S_RB}, s2, 0x20003')
    a(f's_lshl2_add_u32 s{S_RB}, s3, s{S_RB}')
    a(f's_mov_b32 s{S_WS+2}, 0x10000000'); a(f's_mov_b32 s{S_WS+3}, 0x20000')
    a('s_cmp_ge_u32 s2, 160'); a('s_cbranch_scc1 FRONT_B')
    import copy
    b = Asm(); b.vm = copy.deepcopy(a.vm); b.lg = copy.deepcopy(a.lg); b.n = a.n; b.hist = list(a.hist)
    kb = K(b); kb.nl = 500
    front(b, kb, 'B'); b.wait(lg=0)
    front(a, k, 'A'); a.wait(lg=0)
    b1, b2 = b.text().split('@SPLIT\n')
    a.out[a.out.index('@SPLIT')] = '  s_branch FRONT_A2\nFRONT_B:\n' + b1 + '  s_branch FRONT_B2\nFRONT_A2:'
    k.tail.append('FRONT_B2:\n' + b2 + '  s_branch JOIN')
    a.label('JOIN')
    wqs = [wq_ld(s, sl) for s in range(20) for sl in range(4)]
    def spin(nm, lds_, chk_):
        a('s_cmp_eq_u64 vcc, -1'); a(f's_cbranch_scc0 {nm}SPIN')
        a.label(f'{nm}DONE')
        k.tail.append(f'{nm}SPIN:\n  s_mov_b32 s72, 0x8000\n{nm}SPINL:\n  s_andn2_b64 exec, exec, vcc\n' + ''.join(f'  {t}\n' for t in lds_ + ['s_waitcnt vmcnt(0)'] + chk_) +
                      f'  s_sub_u32 s72, s72, 1\n  s_cbranch_scc1 {nm}OUT\n  s_nop 1\n  s_cmp_eq_u64 vcc, exec\n  s_cbranch_scc0 {nm}SPINL\n{nm}OUT:\n  s_mov_b64 exec, -1\n  s_branch {nm}DONE')
    NW0 = opt('nw0', 8)
    chk = mchk(8, 20, 29, 48)
    for t in chk: a(t)
    a('s_nop 3')
    spin('M', MP, chk)
    tn(a, 'fa')
    for t in msum(8, 5, ['s51'] * 5, [1] * 5): a(t)
    fac = [f'v_cmp_eq_u32 vcc, s{S_E}, v28']
    a(fac[0])
    for i in range(5): a(f'ds_write_b32 v30, v{8+4*i} offset:{256*i}')
    spin('FA', FAP, fac)
    tn(a, 'poll')
    a(f's_mul_i32 s36, s{S_J}, {5*20480}'); a(f's_mul_i32 s3, s{S_W}, 5120'); a('s_add_u32 s36, s36, s3'); a(f's_add_u32 s36, s36, {WS_WO}')
    a.wait(lg=0); a.barrier()
    tn(a, 'bar')
    def gs_read(u):
        b = 8 + 16 * (u % 2); l = []
        for q in range(2):
            l.append(f'ds_read_b128 v[{b+4*q}:{b+4*q+3}], v255 offset:{512*u + 16*q}')
            l.append(f'ds_read_b128 v[{b+8+4*q}:{b+8+4*q+3}], v255 offset:{2560 + 512*u + 16*q}')
        return l
    st = gs_read(0) + wqs[:NW0]
    for u in range(5):
        if u < 4: st += gs_read(u + 1)
        gb = 8 + 16 * (u % 2)
        for i in range(5):
            b = XN + (i * 5 + u) * 8
            for e in range(4):
                p = f'v[{b+2*e}:{b+2*e+1}]'
                st.append(f'v_pk_fma_f32 {p}, {p}, v[{gb+8+2*e}:{gb+9+2*e}], v[{gb+2*e}:{gb+2*e+1}]')
            for e in range(4): st.append(f'v_cvt_pk_bf16_f32 v{b+e}, v{b+2*e}, v{b+2*e+1}')
            st.append(f'ds_write_b128 v{250+i}, v[{b}:{b+3}] offset:{4096*u}')
    so = []; A = so.append
    for t in range(1, 5): A(f's_add_u32 s{36+t}, s{35+t}, 20480')
    A(f's_lshl2_add_u32 s41, s{S_J}, s{S_W}'); A(f's_mul_i32 s41, s41, {3*20480}'); A(f's_add_u32 s41, s41, {WS_W1}')
    A('s_add_u32 s42, s41, 20480'); A('s_add_u32 s43, s42, 20480')
    A(f's_mul_i32 s44, s{S_J}, {5*49152}'); A(f's_mul_i32 s3, s{S_W}, 12288'); A('s_add_u32 s44, s44, s3'); A(f's_add_u32 s44, s44, {WS_W2}')
    for t in range(1, 5): A(f's_add_u32 s{44+t}, s{43+t}, 49152')
    A(f's_lshl_b32 s27, s{S_RB}, 9'); A(f's_add_u32 s27, s27, {WS_FL}')
    A(f's_lshr_b32 s3, s{S_J}, 1'); A('s_lshl_b32 s3, s3, 7'); A('s_add_u32 s26, s27, s3')
    A(f's_and_b32 s3, s{S_J}, 1'); A(f's_lshl2_add_u32 s3, s3, s{S_W}'); A('s_lshl2_add_u32 s26, s3, s26')
    A(f's_lshl_b32 s3, s{S_W}, 7'); A('s_add_u32 s27, s27, s3')
    H = {}
    NWA = opt('nwa', 24)
    wq_all = wqs[NW0:]; napp = NWA - NW0
    spread(a, st, wq_all[:napp], lo=opt('alo', 0), hi=opt('ahi', len(st) - 20)); wq_rest = wq_all[napp:]
    a('v_min_u32 v250, 19, v0'); a(f's_mul_i32 s3, s{S_W}, 80'); a('s_add_u32 s3, s3, s50'); a('v_lshl_add_u32 v250, v250, 2, s3')
    WOP = [f'buffer_load_dword v247, v250, {WSR}, 0 offen offset:2048 sc1{PM}']; woc = [f'v_cmp_eq_u32 vcc, s{S_E}, v247']
    a('s_getreg_b32 s3, hwreg(HW_REG_XCC_ID)'); a('s_and_b32 s3, s3, 15'); a(f's_add_u32 s25, s{S_E}, s3')
    a(f's_lshl3_add_u32 s50, s{S_RB}, s{S_J}'); a(f's_lshl2_add_u32 s50, s50, {WS_FB}')
    a(f's_cmp_eq_u32 s{S_W}, 0'); a('s_cselect_b32 s3, 0, 0x80000000'); a('v_mov_b32 v248, s25'); a('v_mov_b32 v249, s3')
    a('v_add_u32 v8, 16384, v4')
    a('v_and_b32 v9, 7, v0'); a('v_lshlrev_b32 v9, 2, v9')
    a('v_xor_b32 v3, v1, v2'); a('v_lshlrev_b32 v20, 8, v2'); a('v_lshl_add_u32 v20, v3, 4, v20')
    a('v_xor_b32 v21, 64, v20'); a('v_add_u32 v22, 61440, v20'); a('v_add_u32 v23, 61440, v21')
    a.wait_id(B2H['A']); a.wait(lg=0); a.barrier()
    tn(a, 'p1')
    ACC = 40; XF = 116; QR = 160
    def xread(s):
        l = []
        for mt in range(5):
            r = XF + 20 * (s % 2) + 4 * mt
            off = (mt * 20 + s) * 1024; ad = 20 + (s & 1)
            if off >= 61440: off -= 61440; ad += 2
            l.append(f'ds_read_b128 v[{r}:{r+3}], v{ad} offset:{off}')
        return l
    for t in xread(0): a(t)
    side = []
    A = side.append
    A('v_lshrrev_b32 v3, 2, v1'); A('v_xor_b32 v3, v3, v2'); A('v_lshlrev_b32 v3, 3, v3'); A('v_lshl_add_u32 v3, v1, 5, v3')
    A(f's_add_u32 s57, s{S_W}, 5'); A(f's_add_u32 s58, s{S_W}, 10'); A(f's_mov_b32 s60, s{S_W}')
    A('s_lshr_b32 s59, 0x0f040e09, s54'); A('s_and_b32 s59, s59, 0xff')
    for q in range(4):
        A(f's_mul_i32 s{57+q}, s{57+q}, 2560'); A(f's_add_u32 s{57+q}, s{57+q}, {L_DUMP}'); A(f'v_add_u32 v{24+q}, s{57+q}, v3')
    A(f's_lshl_b32 s57, s{S_W}, 9'); A(f's_add_u32 s57, s57, {L_DUMP}')
    A('v_add_u32 v28, s57, v3')
    A('v_and_b32 v3, 3, v1'); A('v_xor_b32 v3, v3, v2'); A('v_lshlrev_b32 v3, 3, v3')
    A('v_and_b32 v10, 60, v0'); A('v_lshl_add_u32 v3, v10, 3, v3'); A('v_add_u32 v29, s57, v3')
    A('v_and_b32 v3, 1, v1'); A('v_cmp_eq_u32 s[74:75], 1, v3')
    A('v_lshl_add_u32 v10, v2, 2, v3'); A('v_cmp_le_u32 s[76:77], v10, v1')
    A('v_add_u32 v10, 2, v10'); A('v_cmp_le_u32 s[78:79], v10, v1')
    A('v_mov_b32 v10, 0x0c0c0100'); A('v_mov_b32 v11, 0x01000c0c'); A('v_cndmask_b32 v10, v10, v11, s[74:75]')
    A('v_mov_b32 v11, 0x0c0c0302'); A('v_mov_b32 v12, 0x03020c0c'); A('v_cndmask_b32 v11, v11, v12, s[74:75]')
    A('v_mov_b32 v12, 0x0c0c0c0c')
    A('v_cndmask_b32 v30, v10, v12, s[76:77]'); A('v_cndmask_b32 v31, v11, v12, s[78:79]')
    A('v_cndmask_b32 v32, v12, v10, s[76:77]'); A('v_cndmask_b32 v33, v12, v11, s[78:79]')
    A(f's_or_b32 s57, s{S_RB}, s{S_W}'); A('s_cmp_eq_u32 s57, 0'); A(f's_cselect_b32 s57, {fl(-1e30)}, 0')
    for q in range(4): A(f'v_mov_b32 v{34+q}, s57')
    for q in range(16): A(f'v_mov_b32 v{QR+q}, 0')
    M2 = 208; M3 = 228
    lm = Mod(True, LM['W'], LM['C'], LM['AC'], 0, 0, LM['T'], 0, 0, 0, 29)
    ust = []; A = ust.append
    tr_addr(A, 253, 8192, L_ST, 203, 55)
    tr_addr(A, 246, 2048, L_W2S, 203, 55)
    A('s_cmp_lt_u32 s2, 160\ns_cselect_b32 s55, 0x80000000, 0'); A('v_or_b32 v245, s55, v4')
    u1 = uproc(6, 204, 62, 20480, 253, 245); u2 = uproc(2, 228, 63, 49152, 246, 4)
    upr = u2[:4] + u1[:12] + u2[4:] + u1[12:] + [lambda: H.update(v=a.vm[-1][0])]
    early = []; A = early.append
    if PW == 1: early += prew(61) + [lambda: H.update(v=a.vm[-1][0])]
    modw = [f'v_accvgpr_read_b32 v{r}, a{r}' for r in list(range(196, 201)) + list(range(176, 196))] + lm.silu() + lm.dot()
    s2 = []; A = s2.append
    w2dma = []
    if opt('ot', 0) == 3: w2dma.append(OTCH.format(157))
    w2dma.append(k.poll_issue(156))
    A(f's_lshl2_add_u32 s49, s{S_RB}, s{S_W}'); A(f's_mul_i32 s49, s49, {16*1280}'); A(f's_mul_i32 s61, s{S_J}, 160'); A('s_add_u32 s49, s49, s61')
    for i in range(3):
        r = 205 + i
        A(f'v_add_u32 v{r}, {64*i}, v0'); A(f'v_mul_u32_u24 v216, 6554, v{r}'); A('v_lshrrev_b32 v216, 16, v216'); A(f'v_lshlrev_b32 v{r}, 4, v{r}')
        A(f'v_mul_u32_u24 v216, {1280-160}, v216'); A(f'v_add_u32 v{r}, v216, v{r}')
    A('v_lshlrev_b32 v216, 26, v0'); A('v_and_b32 v216, 0x80000000, v216'); A('v_or_b32 v207, v216, v207')
    A(f's_mul_i32 s60, s{S_W}, 3072'); A(f's_add_u32 s60, s60, {L_XR}')
    for i in range(3): w2dma.append(f's_add_u32 m0, s60, {1024*i}\nbuffer_load_dwordx4 v{205+i}, s[{S_X}:{S_X+3}], s49 offen lds')
    w2dma += ['v_mul_u32_u24 v39, 160, v1', 'v_lshl_add_u32 v39, v2, 3, v39', 'v_add_u32 v39, s60, v39']
    s3_ = []; A = s3_.append
    A(f's_mov_b32 s56, {fl(1/640)}')
    A(f's_lshl_b32 s55, s{S_W}, 4'); A('v_add_u32 v38, s55, v1')
    A(f's_mul_i32 s55, s{S_W}, 60'); A('v_min_u32 v252, 59, v0'); A('v_add_u32 v252, s55, v252'); A(f'v_lshlrev_b32 v249, 2, v252'); A(f'v_add_u32 v249, {L_OWN}, v249')
    A('v_mul_u32_u24 v203, 820, v252'); A('v_lshrrev_b32 v203, 16, v203')
    A('v_cmp_eq_u32 vcc, 1, v203\nv_cndmask_b32 v251, 0, 1.0, vcc')
    A('v_min_u32 v202, 1, v203'); A('v_add_u32 v202, v202, v203')
    A('v_mul_u32_u24 v202, 640, v202'); A('v_mul_u32_u24 v203, 80, v203'); A('v_sub_u32 v252, v252, v203'); A('v_add_u32 v252, v252, v202')
    A(f's_mul_i32 s55, s{S_J}, 80'); A('v_add_lshl_u32 v252, v252, s55, 4'); A(f's_mov_b32 s63, {WS_MODP + 1280 * 16}')
    A('v_lshrrev_b32 v203, 5, v0'); A('v_and_b32 v202, 1, v2'); A('v_mul_u32_u24 v254, 160, v203'); A('v_add_u32 v254, v254, v1')
    A(f's_mul_i32 s55, s{S_W}, 320'); A('s_add_u32 s55, s55, 640'); A('v_add_u32 v254, s55, v254')
    A('v_mul_u32_u24 v255, 80, v202'); A('v_add_lshl_u32 v255, v255, v254, 4'); A('v_lshl_add_u32 v254, v202, 4, v254'); A('v_lshlrev_b32 v254, 4, v254')
    MLD = [f'buffer_load_dwordx4 v[{M3}:{M3+3}], v252, {WSR}, s63 offen sc1'] + [f'buffer_load_dwordx4 v[{M2+4*i}:{M2+4*i+3}], v{254 if i < 4 else 255}, {WSR}, s63 offen offset:{256*t} sc1' for i, t in enumerate((0, 2, 5, 7, 4))]
    s4 = []; A = s4.append
    A(f's_and_b32 s55, s{S_W}, 1'); A('s_mul_i32 s55, s55, 1280')
    A(f's_cmp_ge_u32 s{S_W}, 2\ns_cselect_b32 s49, 0, 64'); A('s_add_u32 s49, s49, s55'); A(f's_add_u32 s49, s49, {L_GS}')
    A('v_mul_u32_u24 v250, 640, v203'); A('v_lshl_add_u32 v250, v202, 3, v250'); A('v_lshrrev_b32 v203, 2, v1'); A('v_lshl_add_u32 v250, v203, 4, v250')
    A('v_and_b32 v203, 3, v1'); A('v_lshl_add_u32 v250, v203, 1, v250'); A('v_add_u32 v250, s49, v250')
    def mod2_fin():
        a(f's_lshr_b32 s3, s{S_E}, 4')
        chk = mchk(M2, 24, 232, 3)
        for t in chk: a(t)
        a(f's_cmp_ge_u32 s{S_W}, 2'); a('s_cselect_b32 s58, 1.0, 0'); a('s_nop 1')
        spin('M2', MLD, chk)
        for t in msum(M2, 6, ['s58'] * 5 + ['v251'], [0] * 5 + [1]): a(t)
        for i in range(5): a(f'ds_write_b16 v250, v{M2+4*i} offset:{128*i}')
        a(f'ds_write_b32 v249, v{M3}')
    FBL = f'buffer_load_dword v232, v233, {WSR}, s51 offen sc1' + PM
    fbc = [f'v_subrev_u32 v232, s{S_E}, v232', 'v_cmp_gt_u32 vcc, 16, v232']
    def fb_issue(): a(f's_lshl_b32 s51, s{S_W}, 8'); a(f's_add_u32 s51, s51, {WS_FB}'); a('v_lshlrev_b32 v233, 2, v0'); a(FBL)
    def fb_check():
        for t in fbc: a(t)
        a(f's_or_b32 s49, s2, s{S_W}'); a('s_cmp_eq_u32 s49, 0'); a('s_cselect_b32 s3, 0, 0x80000000'); a('s_nop 0')
        spin('FB', [FBL], fbc)
        a('s_and_b32 s51, s50, -32')
        a(f'v_mov_b32 v236, s{S_E}'); a('v_mov_b32 v237, s3'); a(f's_mov_b32 s3, {WS_EP}')
    def fb_after():
        a(f'buffer_load_dword v232, v9, {WSR}, s51 offen sc1' + PM)
        a(f'buffer_store_dword v236, v237, {WSR}, s3 offen sc1')
    def fb_fast():
        a('v_cmp_eq_u32 vcc, s25, v232'); a('s_nop 3'); a('s_cmp_eq_u64 vcc, -1'); a(f's_cselect_b32 s{S_FAST}, {0 if "slow" in OPT else 1}, 0')
    wos = [wo_ld(t, i) for i in range(5) for t in range(5)]
    FBI = opt('fbi', 17); M1 = opt('m1', 0); MB = opt('mb', 10); WPS = opt('wps', 4); WO0 = opt('wo0', 12)
    for s in range(20):
        main = []
        for mt in range(5):
            for sl in range(4):
                if sl == 3 and mt == 0: continue
                ac = ACC + 4 * (sl * 5 + mt - (1 if sl == 3 else 0))
                c = '0' if s == 0 else q4('v', ac)
                main.append(f'{MF} {q4("v", ac)}, {wq_reg(s, sl)}, {q4("v", XF + 20 * (s % 2) + 4 * mt)}, {c}')
        fill = xread(s + 1) if s < 19 else []
        n = 0
        while wq_rest and n < WPS + (1 if 80 - len(wq_rest) < 4 * (s - 1 + RING) else 0):
            t = wq_rest[0]
            if not callable(t):
                if wqs.index(t) // 4 > s - 1 + RING: break
                n += 1
            fill.append(wq_rest.pop(0))
        if not wq_rest and s >= WO0:
            while wos and n < WPS: fill.append(wos.pop(0)); n += 1
        def part(l, lo, hi): n = -(-len(l) // (hi - lo)); return l[(s - lo) * n:(s - lo + 1) * n] if lo <= s < hi else []
        oth = part(ust + upr, M1, M1 + opt('un', 3)) + part(early, opt('e0', 3), opt('e1', 6)) + part(modw, opt('m0', 2), MB) + part(s2, 9, 12)
        if s == MB: oth += lm.fin()
        oth += part(so, 8, 12) + part(w2dma, opt('xr', 12), opt('xr', 12) + 1) + part(s3_ + s4 + side, 13, 20)
        if s == FBI: oth += [fb_issue]
        if s == opt('mli', 19): oth += MLD
        if s == opt('wop', 3): oth += WOP
        fill = mix(oth, fill) if len(oth) > len(fill) else mix(fill, oth)
        if s == MB:
            def mid(): a(woc[0]); a.wait_id(H['v']); a.wait(lg=0); a('s_nop 2'); spin('WO', WOP, woc); a.barrier(); tn(a, 'mid'); a(f'buffer_store_dword v248, v249, {WSR}, s50 offen sc1')
            fill = [mid] + fill
        tn(a, f's{s}')
        spread(a, main, fill, hi=18)
    assert not wq_rest
    tn(a, 'p1e')
    w1q = [w1_ld(f) for f in range(60)]
    def w1n(n):
        l = w1q[:n]; del w1q[:n]; return l
    st = []
    for sl in range(4):
        for mt in range(5):
            if sl == 3 and mt == 0: continue
            ac = ACC + 4 * (sl * 5 + mt - (1 if sl == 3 else 0))
            st += [f'v_cvt_pk_bf16_f32 v{ac}, v{ac}, v{ac+1}', f'v_cvt_pk_bf16_f32 v{ac+1}, v{ac+2}, v{ac+3}',
                   f'ds_write_b64 v{24+sl}, v[{ac}:{ac+1}] offset:{512*mt}']
    if FBI == 20: fb_issue()
    spread(a, st, wos)
    fb_check()
    a.wait(lg=0); a.barrier()
    tn(a, 'db')
    fb_after()
    K0, K1, VR, SR = 120, 130, 140, 176
    st = []; A = st.append
    def sx(m): A(f's_mov_b32 exec_lo, {hex(m & 0xffffffff)}'); A(f's_mov_b32 exec_hi, {hex(m >> 32)}')
    for t in w1n(opt('n1', 6)): a(t)
    for t in range(5):
        a(f'ds_read_b64 v[{K0+2*t}:{K0+2*t+1}], v28 offset:{(5+t)*2560}')
        a(f'ds_read_b64 v[{K1+2*t}:{K1+2*t+1}], v28 offset:{(5+t)*2560+512}')
    for h in range(4):
        k.setexec((FULL << (16 * h)) & FULL)
        a(f'ds_read_b64 v[{QR+4*h}:{QR+4*h+1}], v28 offset:{h*2560+512}')
        k.setexec((1 << (16 * (h + 1))) - 1)
        a(f'ds_read_b64 v[{QR+4*h+2}:{QR+4*h+3}], v28 offset:{(h+1)*2560+512}')
    for t in range(5):
        a(f'ds_read_b64_tr_b16 v[{VR+4*t}:{VR+4*t+1}], v29 offset:{(10+t)*2560}')
        a(f'ds_read_b64_tr_b16 v[{VR+4*t+2}:{VR+4*t+3}], v29 offset:{(10+t)*2560+512}')
    H = range(4)
    for h in H:
        A(f'{MF} v[{SR+8*h}:{SR+8*h+3}], v[{K0+2*h}:{K0+2*h+3}], v[{QR+4*h}:{QR+4*h+3}], v[34:37]')
        A(f'{MF} v[{SR+8*h+4}:{SR+8*h+7}], v[{K1+2*h}:{K1+2*h+3}], v[{QR+4*h}:{QR+4*h+3}], 0')
    for h in H:
        b = SR + 8 * h
        for e in (0, 2, 4, 6): A(f'v_cndmask_b32 v{b+e}, v{b+e}, v{b+e+1}, s[74:75]')
        A(f'v_cndmask_b32 v{b}, v{b}, v{b+4}, s[76:77]'); A(f'v_cndmask_b32 v{b+1}, v{b+2}, v{b+6}, s[78:79]')
    def bfly(op, r):
        for sw in ('v_permlane16_swap_b32', 'v_permlane32_swap_b32'):
            for h in H: A(f'v_mov_b32 v{SR+8*h+r+1}, v{SR+8*h+r}')
            for h in H: A(f'{sw} v{SR+8*h+r}, v{SR+8*h+r+1}')
            for h in H: A(f'{op} v{SR+8*h+r}, v{SR+8*h+r}, v{SR+8*h+r+1}')
    for h in H: A(f'v_max_f32 v{SR+8*h+2}, v{SR+8*h}, v{SR+8*h+1}')
    bfly('v_max_f32', 2)
    CS = LOG2E * 20 ** -0.5
    A(f's_mov_b32 s57, {fl(CS)}')
    for h in H: A(f'v_mul_f32 v{SR+8*h+2}, {fl(-CS)}, v{SR+8*h+2}')
    for h in H:
        b = SR + 8 * h
        A(f'v_fma_f32 v{b}, v{b}, s57, v{b+2}'); A(f'v_fma_f32 v{b+1}, v{b+1}, s57, v{b+2}')
    for h in H:
        b = SR + 8 * h
        A(f'v_exp_f32 v{b}, v{b}'); A(f'v_exp_f32 v{b+1}, v{b+1}')
    for h in H: A(f'v_add_f32 v{SR+8*h+2}, v{SR+8*h}, v{SR+8*h+1}')
    bfly('v_add_f32', 2)
    for h in H: A(f'v_rcp_f32 v{SR+8*h+2}, v{SR+8*h+2}')
    for h in H:
        b = SR + 8 * h
        A(f'v_mul_f32 v{b}, v{b}, v{b+2}'); A(f'v_mul_f32 v{b+1}, v{b+1}, v{b+2}')
    for h in H: A(f'v_cvt_pk_bf16_f32 v{SR+8*h}, v{SR+8*h}, v{SR+8*h+1}')
    for h in H:
        b = SR + 8 * h
        for q in range(4): A(f'v_perm_b32 v{b+4+q}, v{b}, v{b}, v{30+q}')
    OR = 40
    for h in H:
        b = SR + 8 * h + 4
        A(f'{MF} v[{OR+8*h}:{OR+8*h+3}], v[{VR+4*h}:{VR+4*h+3}], v[{b}:{b+3}], 0')
        A(f'{MF} v[{OR+8*h+4}:{OR+8*h+7}], v[{VR+4*h+4}:{VR+4*h+7}], v[{b}:{b+3}], 0')
    spread(a, st, w1n(opt('n2', 22)), lo=opt('n2lo', 8), hi=opt('n2hi', 110))
    a(f's_mul_i32 s28, s{S_RB}, {RSZ}'); a(f's_add_u32 s28, s28, {WS_OF}'); a(f's_mul_i32 s57, s{S_W}, 20480'); a('s_add_u32 s57, s57, s28')
    frag_offsets(a, 57, 58, 3)
    F = 80
    a(f'v_cvt_pk_bf16_f32 v{F}, v{OR}, v{OR+1}'); a(f'v_cvt_pk_bf16_f32 v{F+1}, v{OR+2}, v{OR+3}')
    for t in (1, 2, 3, 4):
        s_ = OR + 8 * (t - 1) + 4
        a(f'v_cvt_pk_bf16_f32 v{F+2*t}, v{s_}, v{s_+1}'); a(f'v_cvt_pk_bf16_f32 v{F+2*t+1}, v{s_+2}, v{s_+3}')
    for t in (1, 2, 3):
        k.setexec((FULL << (16 * t)) & FULL)
        s_ = OR + 8 * t
        a(f'v_cvt_pk_bf16_f32 v{F+2*t}, v{s_}, v{s_+1}'); a(f'v_cvt_pk_bf16_f32 v{F+2*t+1}, v{s_+2}, v{s_+3}')
    a('s_mov_b64 exec, -1')
    fb_fast()
    h = k.stores(frag_store80(F, 57, 58))
    tn(a, 'att')
    XR, ACC = 64 + 28, 40
    GA, GG = 152, 40; X1 = 92
    a(f's_mul_i32 s3, s{S_W}, 5120')
    a('s_add_u32 s57, s28, s3')
    for q in range(4):
        a(f's_add_u32 s3, s{S_W}, {q+1}'); a('s_and_b32 s3, s3, 3')
        a(f's_mul_i32 s58, s3, 20480'); a(f's_add_u32 s{32+q}, s58, s57')
        if q < 3:
            a('s_mul_i32 s58, s3, 15360'); a(f's_add_u32 s58, s58, {q*5120}'); a(f'v_add_u32 v{20+q}, s58, v4')
    a(f's_mul_i32 s58, s{S_W}, 15360'); a('v_add_u32 v23, s58, v4')
    a(f'v_lshlrev_b32 v24, 4, v2'); a(f'v_add_u32 v24, {L_OWN}, v24')
    mod2_fin()
    for t in range(5): a(f'ds_read_b64 v[{10+2*t}:{11+2*t}], v39 offset:{32*t}')
    k.publish(h, 1, 3)
    tn(a, 'pb1')
    for t in w1n(opt('n3', 0)): a(t)
    k.poll(1, 3)
    tn(a, 'p2')
    for q in range(4):
        for i in range(5): a(ld(q4('v', XR + (q * 5 + i) * 4), i, 32 + q, sc1=True))
    prev = []
    for q in range(4):
        ac = ACC + 20 * (q & 1)
        main = []
        for i in range(5):
            for t in range(5):
                c = '0' if i == 0 else q4('v', ac + 4 * t)
                main.append(f'{MF} {q4("v", ac + 4*t)}, {wo_reg(t, i)}, {q4("v", XR + (q*5+i)*4)}, {c}')
        spread(a, main, prev + (w1n(opt('n4', 8)) if q >= 1 else []), lo=4, hi=22)
        prev = [f'ds_write_b128 v{20+q}, {q4("v", ac+4*t)} offset:{1024*t}' for t in range(5)] if q < 3 else []
    tn(a, 'p2m')
    a(f's_add_u32 s31, s28, {WS_X1G - WS_OF}'); a(f's_mul_i32 s57, s{S_W}, 20480'); a('s_add_u32 s57, s57, s31')
    frag_offsets(a, 57, 58, 3)
    a('v_lshlrev_b32 v38, 6, v38'); a(f's_lshl3_add_u32 s59, s{S_J}, s31'); a('s_add_u32 s59, s59, 81920')
    a.wait(lg=0); a.barrier()
    tn(a, 'p2b')
    R = ACC + 20
    for q in range(3):
        for t in range(5): a(f'ds_read_b128 {q4("v", XR + (q*5+t)*4)}, v23 offset:{q*5120+t*1024}')
    for v, b in enumerate((GA, GG)):
        for t in range(5): a(f'ds_read_b128 v[{b+4*t}:{b+4*t+3}], v24 offset:{(20*v+4*t)*16}')
    w2s = [w2_ld(f) for f in range(60)]
    st = []; A = st.append
    for q in range(3):
        for t in range(5):
            r = XR + (q * 5 + t) * 4
            for e in (0, 2): A(f'v_pk_add_f32 v[{R+4*t+e}:{R+4*t+e+1}], v[{R+4*t+e}:{R+4*t+e+1}], v[{r+e}:{r+e+1}]')
        if q == 0:
            for e in range(10): st += unpack(X1 + 2 * e, X1 + 2 * e + 1, 10 + e)
    for e in range(10): A(f'v_pk_fma_f32 v[{X1+2*e}:{X1+2*e+1}], v[{R+2*e}:{R+2*e+1}], v[{GA+2*e}:{GA+2*e+1}], v[{X1+2*e}:{X1+2*e+1}]')
    for e in range(10): A(f'v_cvt_pk_bf16_f32 v{10+e}, v{X1+2*e}, v{X1+2*e+1}')
    for e in range(10): st += unpack(X1 + 2 * e, X1 + 2 * e + 1, 10 + e)
    for e in range(10): A(f'v_pk_mul_f32 v[{R+2*e}:{R+2*e+1}], v[{X1+2*e}:{X1+2*e+1}], v[{GG+2*e}:{GG+2*e+1}]')
    F = 80
    for e in range(10): A(f'v_cvt_pk_bf16_f32 v{F+e}, v{R+2*e}, v{R+2*e+1}')
    spread(a, st, w1n(opt('n5', 8)), hi=opt('n5hi', 60))
    k.stores(frag_store80(F, 57, 58))
    a(f'v_pk_add_f32 v[24:25], v[{X1}:{X1+1}], v[{X1+2}:{X1+3}]'); a(f'v_pk_mul_f32 v[26:27], v[{X1}:{X1+1}], v[{X1}:{X1+1}]')
    for e in range(1, 10):
        p = f'v[{X1+2*e}:{X1+2*e+1}]'
        if e > 1: a(f'v_pk_add_f32 v[24:25], v[24:25], {p}')
        a(f'v_pk_fma_f32 v[26:27], {p}, {p}, v[26:27]')
    a('v_add_f32 v24, v24, v25'); a('v_add_f32 v25, v26, v27')
    for sw in ('v_permlane16_swap_b32', 'v_permlane32_swap_b32'):
        a('v_mov_b32 v26, v24'); a('v_mov_b32 v27, v25')
        a(f'{sw} v24, v26'); a(f'{sw} v25, v27')
        a('v_add_f32 v24, v24, v26'); a('v_add_f32 v25, v25, v27')
    h = k.stores(['s_mov_b64 exec, 0xffff', f'buffer_store_dwordx2 v[24:25], v38, {WSR}, s59 offen', 's_mov_b64 exec, -1'])
    hst = a.vm[-1][0]
    tn(a, 'p2e')
    if opt('ot', 0) == 2: a(OTCH.format(23))
    for t in w1n(99): a(t)
    XF = 40; NB = 6; ACC = 64; U1, T1, T = 88, 100, 112
    a('v_and_b32 v3, 1, v1'); a('v_lshlrev_b32 v3, 6, v3'); a('v_lshl_add_u32 v20, v2, 4, v3'); a(f'v_add_u32 v20, {L_GS}, v20')
    a(f'v_add_u32 v21, {L_X3}, v4'); a(f'v_add_u32 v22, {L_X3 + 40960}, v4')
    def xr(mt, s, slot):
        if mt == 4: return f'ds_read_b128 {q4("v", XF + 4*slot)}, v20 offset:{128*s}'
        return f'ds_read_b128 {q4("v", XF + 4*slot)}, v{21 + mt//2} offset:{((mt%2)*20+s)*1024}'
    PF = NB - 1
    def p3pass(mt, acb, fill, nxt=None, pre=True, lo=6, hi=56, base=0):
        if pre:
            for p in range(PF): a(xr(mt, p, (base + p) % NB))
        main = []
        for s in range(20):
            if s + PF < 20: main.append(xr(mt, s + PF, (base + s + PF) % NB))
            elif nxt is not None: main.append(xr(nxt, s + PF - 20, (base + s + PF) % NB))
            for t in range(3):
                c = '0' if s == 0 else q4('v', acb + 4 * t)
                main.append(f'{MF} {q4("v", acb + 4*t)}, {w1_reg(s*3+t)}, {q4("v", XF + 4*((base + s) % NB))}, {c}')
        spread(a, main, fill, lo=lo * 4 // 3, hi=hi * 4 // 3)
    a(f's_mul_i32 s55, s{S_W}, 5120'); a('s_add_u32 s29, s31, s55'); a(f's_add_u32 s55, s55, {L_X3}')
    def xdma(mt):
        a(f's_add_u32 s30, s29, {mt*20480}'); a(f's_add_u32 m0, s55, {mt*20480}')
        for i in range(4): a(f'buffer_load_dwordx4 v4, {WSR}, s30 offen offset:{1024*i} sc1 lds')
        a(f's_add_u32 m0, s55, {mt*20480 + 4096}')
        return a(f'buffer_load_dwordx4 v5, {WSR}, s30 offen sc1 lds')
    W2E = opt('w2e', 6)
    p3pass(4, ACC + 12, [lambda: k.publish(hst, 2, 3)] + w2s[:W2E], lo=opt('pb2', 18), hi=opt('pb2', 18) + 1 + 2 * W2E)
    for t in w2s[W2E:W2E + opt('w2f', 0)]: a(t)
    W2E += opt('w2f', 0)
    tn(a, 'u1')
    k.poll(2, 3)
    hx = [xdma(0)]
    hx += [xdma(mt) for mt in range(1, 4)]
    C = -LOG2E
    for e in range(12):
        a(f'v_mov_b32_dpp v{U1+e}, v{ACC+12+e} quad_perm:[0,0,2,2] row_mask:0xf bank_mask:0xf')
        a(f'v_mov_b32_dpp v{T1+e}, v{ACC+12+e} quad_perm:[1,1,3,3] row_mask:0xf bank_mask:0xf')
    for e in range(12): a(f'v_mul_f32 v{T1+e}, {fl(C)}, v{T1+e}')
    a(f's_mul_i32 s53, s{S_J}, 6144'); a('s_add_u32 s52, s28, s53')
    a(f's_lshr_b32 s53, s{S_W}, 1'); a('s_lshl_b32 s53, s53, 10'); a('s_add_u32 s53, s53, s52'); a('s_add_u32 s53, s53, 4096')
    a(f's_and_b32 s3, s{S_W}, 1'); a('s_lshl3_add_u32 s53, s3, s53')
    a(f's_lshl_b32 s3, s{S_W}, 10'); a('s_add_u32 s52, s52, s3')
    a(f's_mov_b32 s54, {fl(C)}')
    a('s_add_u32 s30, s31, 81920')
    a('v_lshlrev_b32 v3, 6, v1'); a('v_lshl_add_u32 v3, v2, 4, v3')
    a.wait_id(hx[0]); a.barrier()
    tn(a, 'p3')
    for mt in range(4): a(f'buffer_load_dwordx4 v[{24+4*mt}:{27+4*mt}], v3, {WSR}, s30 offen offset:{1024*mt} sc1')
    M = range(4); st = []; A = st.append
    for m in M: A(f'v_add_f32 v{24+4*m}, v{24+4*m}, v{26+4*m}'); A(f'v_add_f32 v{25+4*m}, v{25+4*m}, v{27+4*m}')
    for sw in ('v_permlane16_swap_b32', 'v_permlane32_swap_b32'):
        for m in M: A(f'v_mov_b32 v{26+4*m}, v{24+4*m}'); A(f'v_mov_b32 v{27+4*m}, v{25+4*m}')
        for m in M: A(f'{sw} v{24+4*m}, v{26+4*m}'); A(f'{sw} v{25+4*m}, v{27+4*m}')
        for m in M: A(f'v_add_f32 v{24+4*m}, v{24+4*m}, v{26+4*m}'); A(f'v_add_f32 v{25+4*m}, v{25+4*m}, v{27+4*m}')
    A(f'v_mov_b32 v3, {fl(1e-5)}')
    for m in M: A(f'v_mul_f32 v{26+4*m}, s56, v{24+4*m}')
    for m in M: A(f'v_fma_f32 v{25+4*m}, v{25+4*m}, s56, v3')
    for m in M: A(f'v_fma_f32 v{25+4*m}, -v{26+4*m}, v{26+4*m}, v{25+4*m}')
    for m in M: A(f'v_max_f32 v{25+4*m}, v{25+4*m}, v3')
    for m in M: A(f'v_rsq_f32 v{24+4*m}, v{25+4*m}')
    for m in M: A(f'v_mul_f32 v{24+4*m}, s54, v{24+4*m}')
    for m in M: A(f'v_mul_f32 v{25+4*m}, -v{26+4*m}, v{24+4*m}')
    hs = {}
    def epi_ops(mt):
        ac = ACC + 12 * (mt & 1); P = 24 + 4 * mt; o = {}
        for e in range(12):
            o['A', e] = ([], f'v_fma_f32 v{T+e}, v{U1+e}, v{P+1}, v{T1+e}')
            o['B', e] = ([('A', e)], f'v_fma_f32 v{ac+e}, v{ac+e}, v{P}, v{T+e}')
            o['X', e] = ([('B', e)], f'v_exp_f32 v{T+e}, v{ac+e}')
            o['C', e] = ([('X', e)], f'v_fma_f32 v{T+e}, v{T+e}, s54, s54')
            o['R', e] = ([('C', e)], f'v_rcp_f32 v{T+e}, v{T+e}')
            o['M', e] = ([('R', e)], f'v_mul_f32 v{ac+e}, v{ac+e}, v{T+e}')
        for e in range(6): o['V', e] = ([('M', 2 * e), ('M', 2 * e + 1)], f'v_cvt_pk_bf16_f32 v{T+e}, v{ac+2*e}, v{ac+2*e+1}')
        return o
    def sto(mt):
        def f():
            hs[mt] = k.stores([f'buffer_store_dwordx4 v[{T}:{T+3}], v4, {WSR}, s52 offen', f'buffer_store_dwordx2 v[{T+4}:{T+5}], v4, {WSR}, s53 offen'])
            d = 49152 if mt != 1 else WS_X1G - WS_OF - 49152
            a(f's_add_u32 s52, s52, {d}'); a(f's_add_u32 s53, s53, {d}')
        return f
    def epi_slots(mt, p0=1):
        o = epi_ops(mt); done = {}; sl = {}; p = p0
        def ready(x, n): return all(d in done and done[d] + (2 if o_k(d) else 0) < n for d in o[x][0])
        def o_k(x): return x[0] in 'XR'
        while len(done) < len(o):
            n = 2 * p
            c = [x for kk in 'RX' for x in o if x[0] == kk and x not in done and ready(x, n)]
            if c: sl.setdefault(n, []).append(o[c[0]][1]); done[c[0]] = n
            n += 1
            for _ in range(opt('npl', 3) if c else 5):
                c2 = [x for kk in 'CBVMA' for x in o if x[0] == kk and x not in done and ready(x, n)]
                if not c2: break
                sl.setdefault(n, []).append(o[c2[0]][1]); done[c2[0]] = n
            p += 1
        sl.setdefault(2 * p, []).append(sto(mt))
        return sl
    def emit(mf, *plans):
        sl = {}
        for pl in plans:
            if isinstance(pl, dict):
                for n, v in pl.items(): sl.setdefault(n, []).extend(v)
            else:
                it, lo, hi = pl
                for i, t in enumerate(it): sl.setdefault((lo + (hi - lo) * i // max(1, len(it))) // 2 * 2, []).append(t)
        assert max(sl) < len(mf), (max(sl), len(mf))
        for n, m_ in enumerate(mf):
            a(m_)
            for t in sl.get(n, []):
                if callable(t): t()
                else: a(t)
    def p3mf(mt, base): return [f'{MF} {q4("v", ACC + 12 * (mt & 1) + 4*t)}, {w1_reg(s*3+t)}, {q4("v", XF + 4*((base + s) % NB))}, {"0" if s == 0 else q4("v", ACC + 12 * (mt & 1) + 4*t)}' for s in range(20) for t in range(3)]
    def p3rd(mt, base, nxt):
        d = {}
        for s in range(20):
            n = (3 * s + 1) // 2 * 2 if s else 0
            n = max(n, 3 * s - 1); n += n & 1
            if s + PF < 20: d.setdefault(min(n, 58), []).append(xr(mt, s + PF, (base + s + PF) % NB))
            elif nxt is not None: d.setdefault(min(n, 58), []).append(xr(nxt, s + PF - 20, (base + s + PF) % NB))
        return d
    def x4reg(q, i):
        if q == 0: return q4('v', 124 + 4 * i)
        if q == 1: return q4('v', 172 + 4 * i)
        if q == 2: return q4('v', 80 + 4 * i) if i < 11 else q4('v', 220)
        return q4('v', 224 + 4 * i) if i < 8 else q4('a', 140 + 4 * (i - 8))
    def x4ld(q): return [ld(x4reg(q, i), i, 32 + q, sc1=True) for i in range(12)]
    SQ = {8: 0, 5: 20480, 6: 40960, 7: 61440}
    def stg(f):
        i, t = divmod(f, 5)
        b, o = (57, SQ[i] + 1024 * t) if i < 9 else (58, 1024 * t)
        return f's_add_u32 m0, s{b}, {o - 1024 * (i % 4)}\nbuffer_load_dwordx4 v{4 + i // 4}, {WSR}, s{44 + t} offen offset:{1024 * (i % 4)}{WB} lds'
    def stg_rd(f):
        i, t = divmod(f, 5)
        if i == 9: return f'ds_read_b128 {w2_reg(f)}, v23 offset:{1024 * t}'
        return f'ds_read_b128 {w2_reg(f)}, v21 offset:{SQ[i] + 1024 * t}' if SQ[i] + 1024 * t < 65536 else f'ds_read_b128 {w2_reg(f)}, v23 offset:{1024 * t}'
    a(f's_mul_i32 s57, s{S_W}, 5120'); a(f's_mul_i32 s58, s{S_W}, 3072'); a(f's_add_u32 s58, s58, {L_XR}')
    HS = {}
    wl = w2s[W2E:25] + [stg(f) for f in list(range(25, 35)) + list(range(40, 48))] + [stg(f) for f in range(35, 40)] + [lambda: HS.update(s=a.vm[-1][0])]
    L0 = opt('l0', 13); L1 = opt('l1', 14)
    assert len(wl) - L0 >= 6
    for p in range(PF): a(xr(0, p, p % NB))
    emit(p3mf(0, 0), p3rd(0, 0, None), (wl[:L0], 2, opt('l0hi', 56)), {n: st[4 * ((n - 15) // 2):4 * ((n - 15) // 2) + 4] for n in range(15, 59, 2)})
    assert len(st) <= 88
    a(f's_mul_i32 s3, s{S_W}, 12288'); a('s_add_u32 s32, s28, s3'); a('s_add_u32 s33, s32, 49152'); a('s_add_u32 s34, s31, s3'); a('s_add_u32 s35, s34, 49152')
    a('v_bfe_u32 v20, v0, 3, 2'); a('v_lshl_add_u32 v20, v20, 7, v9'); a('s_and_b32 s29, s27, 0xfffffe00')
    a.wait_id(hx[3]); a.barrier()
    tn(a, 'a0')
    for p in range(PF): a(xr(1, p, p % NB))
    PB = opt('pb', 14)
    emit(p3mf(1, 0), p3rd(1, 0, 2), epi_slots(0), (wl[L0:L0 + L1], 0, 54))
    tn(a, 'a1')
    emit(p3mf(2, 20), p3rd(2, 20, 3), epi_slots(1), {PB: [lambda: k.publish(hs[0], 3, 3)]}, (wl[L0 + L1:], 0, 54), {58: [k.poll_issue(3, 20, 29), 'v_add_u32 v21, s57, v4']})
    tn(a, 'a2')
    x0, x1, x2, x3 = (x4ld(q) for q in range(4))
    late = w2s[48:]
    rd = {}
    for f in list(range(25, 39)) + list(range(40, 45)): rd.setdefault(max(f - 25 + 3, 8 + 2 * (f - 25)) // 2 * 2, []).append(stg_rd(f))
    rd[6] = [lambda: a.wait_id(HS['s'])]
    rd.setdefault(48, []).extend(['v_add_u32 v23, 61440, v21', stg_rd(39)]); rd.setdefault(50, []).extend(['v_add_u32 v23, s58, v4', stg_rd(45)])
    rd.setdefault(52, []).append(stg_rd(46)); rd.setdefault(54, []).append(stg_rd(47))
    NL = opt('nl', 4); PC = opt('pc', 8)
    emit(p3mf(3, 40), p3rd(3, 40, None), epi_slots(2), {PC: [lambda: k.poll_check(3, 3, 20, 29)], PB: [lambda: k.publish(hs[1], 4, 3)]}, rd,
         (x0[:9], PC + 2, 40), (late[:NL], 42, 56), {58: [k.poll_issue(3)]})
    tn(a, 'p4')
    def ac4(q, t): return q4('v', 40 + 4 * t) if q % 2 == 0 else q4('v', 60 + 4 * t if t < 4 else 24)
    def p4mf(q, i0, i1): return [f'{MF} {ac4(q, t)}, {w2_reg(i*5+t)}, {x4reg(q, i)}, {"0" if i == 0 else ac4(q, t)}' for i in range(i0, i1) for t in range(5)]
    def red(q): return [f'ds_write_b128 v{21 if q < 3 else 23}, {ac4(q, t)} offset:{(q%3)*20480 + 1024*t}' for t in range(5)]
    mf = p4mf(0, 0, 9) + p4mf(1, 0, 9) + p4mf(0, 9, 12) + p4mf(1, 9, 12) + p4mf(2, 0, 12) + p4mf(3, 0, 12)
    def wb():
        n = opt('wb2', 1)
        if not n: return
        a(f's_lshl2_add_u32 s3, s2, s{S_W}'); a(f's_and_b32 s3, s3, {hex({1: 0x3e3, 2: 0x383, 3: 3}[n])}'); a('s_cbranch_scc0 WBL')
        a(k.poll_issue(20)); a.label('WBR')
        k.tail.append('WBL:\n  buffer_wbl2 sc1\n  s_branch WBR')
    VA, VB, VC, VX, VG, VO, VO4 = range(176, 183)
    OB = ['', ' sc1', ' nt', ' sc0 sc1', ' sc1 nt'][opt('ob', 0)]
    adr = [f's_lshl_b32 s3, s{S_W}, 10', f'v_add_u32 v{VA}, s3, v4', f'v_add_u32 v{VB}, 61440, v{VA}', f's_mul_i32 s49, s{S_W}, 20480', 's_add_u32 s3, s49, 4096', f'v_add_u32 v{VC}, s3, v4',
           f's_lshl_b32 s3, s{S_W}, 9', f's_add_u32 s3, s3, {L_XR}', f'v_lshl_add_u32 v{VX}, v0, 3, s3', f's_lshl_b32 s3, s{S_W}, 6', f'v_lshl_add_u32 v{VG}, v2, 4, s3', f'v_add_u32 v{VG}, {L_OWN + 640}, v{VG}',
           f'v_mul_u32_u24 v{VO}, 1280, v1', f'v_lshl_add_u32 v{VO}, v2, 3, v{VO}', f'v_add_u32 v{VO4}, s49, v{VO}', f's_lshl_b32 s3, s{S_W}, 5', f'v_add_u32 v{VO}, s3, v{VO}',
           f's_mul_i32 s49, s{S_RB}, 81920', 's_add_u32 s61, s61, s49', f'v_lshlrev_b32 v183, 4, v2', f'v_add_u32 v183, {L_OWN + 640 + 256}, v183']
    rdc = [f'ds_read_b128 v[168:171], v{VG}', 'ds_read_b128 v[172:175], v183'] + [f'ds_read_b64 v[{156+2*q}:{157+2*q}], v{VX} offset:{3072*q}' for q in range(4)]
    def unit(q, b):
        P = 124 + 16 * b; X = 164 if q < 4 else 184; G = 168 if q < 4 else 172
        rd = [f'ds_read_b128 {q4("v", P + 4*s_)}, v{VC if q == 4 else VB if q == 3 else VA} offset:{(q*20480 if q < 3 else 0) + 5120*s_}' for s_ in range(4)]
        l = []
        if q < 4: l += unpack(X, X + 1, 156 + 2 * q) + unpack(X + 2, X + 3, 157 + 2 * q)
        l += [f'v_add_f32 v{P+e}, v{P+e}, v{P+4+e}' for e in range(4)] + [f'v_add_f32 v{P+8+e}, v{P+8+e}, v{P+12+e}' for e in range(4)] + [f'v_add_f32 v{P+e}, v{P+e}, v{P+8+e}' for e in range(4)]
        l += [f'v_fma_f32 v{P+e}, v{P+e}, v{G+e}, v{X+e}' for e in range(4)] + [f'v_cvt_pk_bf16_f32 v{188+2*q+e}, v{P+2*e}, v{P+2*e+1}' for e in range(2)]
        if not (q < 3 and q >= DS): l.append(ost(q))
        return rd, l
    DS = opt('ds', 0)
    def ost(q):
        if q < 4: return f's_add_u32 s3, s61, {20480*q}\nbuffer_store_dwordx2 v[{188+2*q}:{189+2*q}], v{VO}, s[{S_O}:{S_O+3}], s3 offen{OB}'
        return f'buffer_store_dwordx2 v[196:197], v{VO4}, s[{S_O}:{S_O+3}], s61 offen offset:128{OB}'
    u4a = unpack(184, 185, 18) + unpack(186, 187, 19)
    def odd(l, n0): return {n0 + 2 * (i // 3): l[i // 3 * 3:i // 3 * 3 + 3] for i in range(0, len(l), 3)}
    def bar(): a.wait(lg=0); a.barrier()
    B1, B2_ = opt('rb1', 144), opt('rb2', 204)
    e3 = epi_slots(3); E3 = max(e3)
    o = lambda n, d: opt(n, d)
    emit(mf, e3, {o('c4', 6): [lambda: k.poll_check(4, 3)], PB: [lambda: k.publish(hs[2], 5, 3)], o('i5', 48): [k.poll_issue(3)], E3 + 2: [lambda: k.poll_check(5, 3)],
                  E3 + PB: [lambda: k.publish(hs[3], 6, 3)], o('i6', 104): [k.poll_issue(3)], o('c6', 116): [lambda: k.poll_check(6, 3)],
                  45: [lambda: tn(a, 'e3')], 90: [lambda: tn(a, 'q0')], 120: [lambda: tn(a, 'q1')], 180: [lambda: tn(a, 'q2')],
                  o('wbp', 162): [wb], 2: ['v_add_u32 v23, 61440, v21', 'v_lshl_add_u32 v22, v0, 3, s58'], B1: [bar], B2_: [bar]},
         ([f'ds_write_b64 v22, v[{10+2*t}:{11+2*t}] offset:{512*t}' for t in range(4)], 4, 12), odd(adr, 121), (rdc + unit(0, 0)[0] + unit(1, 1)[0], B1 + 2, B1 + 14),
         odd(unit(0, 0)[1] + unit(1, 1)[1], B1 + 13), (unit(2, 0)[0], B2_ + 2, B2_ + 6), odd(unit(2, 0)[1] + u4a, B2_ + 9),
         (x1[:9], o('c4', 6) + 2, o('x1hi', 30)), (late[NL:] + x0[9:] + x1[9:], o('x1hi', 30), o('lhi', 72)), (x2, max(E3 + 4, o('lhi', 72)), o('x2hi', 110)), (x3, o('c6', 116) + 2, o('x3hi', 160)),
         (red(0), 108, 118), (red(1), 124, 140), (red(2), 184, 200))
    prev = red(3)
    for t in prev: a(t)
    for q in range(DS, 3): a(ost(q))
    tn(a, 'p4e')
    bar()
    r3, c3 = unit(3, 1); r4, c4 = unit(4, 0)
    for t in r3 + r4 + c3 + c4: a(t)
    gen1.epilogue(a, 'p0')
    for t in k.tail: a.raw(t)
    a.raw('CODE_END:')
    return LDS_SIZE
if __name__ == '__main__':
    t, d, lds = gen1.kernel_text(gen1.NAME + '_kernel', main_kernel)
    open(sys.argv[1], 'w').write(f'; @launch grid=(256,1,1) block=(256,1,1) lds={lds}\n.amdgcn_target "amdgcn-amd-amdhsa--gfx950"\n.text\n' + t + '.section .rodata,"a"\n.p2align 6\n' + d)
```

```python
import sys, struct
from asmfw import *
import gen1
from gen1 import WS_MODP, WS_STATS, WS_WQ, WS_WO, WS_W1, WS_W2, WS_OF, WS_X1G, WS_H1, MF, LOG2E, fl, unpack, srd, S_WS, S_X, S_O, S_RB, S_J, S_W, ts, tsc, ts_flush
WSR = f's[{S_WS}:{S_WS+3}]'
WS_FL = 0x40000
WS_XID = 0x44000
S_FAST = 23
S_E = 24
FULL = (1 << 64) - 1
OPT = sys.argv[2] if len(sys.argv) > 2 else ''
L_DUMP = 102400; L_PERM = 147456
L_MODL = L_PERM; L_XR = L_PERM; L_GS = 159744; L_OWN = L_GS + 2560
L_X3 = 65536
LDS_SIZE = 163840
class K:
    def __init__(s, a): s.a = a; s.tail = []; s.nl = 0
    def setexec(s, m):
        s.a(f's_mov_b32 exec_lo, {hex(m & 0xffffffff)}'); s.a(f's_mov_b32 exec_hi, {hex(m >> 32)}')
    def stores(s, lst):
        a = s.a; s.nl += 1; n = s.nl
        a(f's_cmp_eq_u32 s{S_FAST}, 0'); a(f's_cbranch_scc1 SLOW{n}')
        h = None; n0 = len(a.out)
        for t in lst: h = a(t)
        assert len(a.out) - n0 == len(lst), a.out[n0:]
        a.label(f'RET{n}')
        s.tail.append(f'SLOW{n}:\n' + ''.join(f'  {t}{" sc1" if t.startswith("buffer") else ""}\n' for t in lst) + f'  s_branch RET{n}')
        return h
    def publish(s, h, val, vt):
        s.a(f's_add_u32 s72, s{S_E}, {val}'); s.a(f'v_mov_b32 v{vt}, s72')
        s.a.wait_id(h)
        s.stores([f'buffer_store_dword v{vt}, off, {WSR}, s26'])
    def spin_tail(s, n, val, vt, va=9, so=27):
        s.tail.append(f'''SPIN{n}:
  s_mov_b32 s72, 0x8000
SPINL{n}:
  buffer_load_dword v{vt}, v{va}, {WSR}, s{so} offen sc1
  s_waitcnt vmcnt(0)
  v_subrev_u32 v{vt}, s{S_E}, v{vt}
  v_add_u32 v{vt}, {-val}, v{vt}
  v_cmp_gt_u32 vcc, 8, v{vt}
  s_sub_u32 s72, s72, 1
  s_cbranch_scc1 PDONE{n}
  s_cmp_eq_u64 vcc, -1
  s_cbranch_scc0 SPINL{n}
  s_branch PDONE{n}''')
    def poll(s, val, vt):
        a = s.a; s.nl += 1; n = s.nl
        a.wait(lg=0)
        if not opt('sp', 0):
            a(f's_branch SPIN{n}')
        else:
            a(f's_cmp_eq_u32 s{S_FAST}, 0'); a(f's_cbranch_scc1 SPIN{n}')
            a('s_mov_b32 s72, 0x8000'); a(f's_add_u32 s73, s{S_E}, {val}')
            a.label(f'POLL{n}')
            a(f's_load_dwordx8 s[64:71], s[{S_WS}:{S_WS+1}], s27 glc')
            a('s_sub_u32 s72, s72, 1'); a(f's_cbranch_scc1 PDONE{n}')
            a.wait(lg=0)
            for q in range(8): a(f's_sub_u32 s{64+q}, s{64+q}, s73')
            for q in range(1, 8): a(f's_max_u32 s64, s64, s{64+q}')
            a('s_cmp_lt_u32 s64, 8'); a(f's_cbranch_scc0 POLL{n}')
        a.label(f'PDONE{n}')
        a.fwait('lgkmcnt(0)')
        s.spin_tail(n, val, vt)
    def poll_issue(s, vt, va=9, so=27): return f'buffer_load_dword v{vt}, v{va}, {WSR}, s{so} offen sc1'
    def poll_check(s, val, vt, va=9, so=27):
        a = s.a; s.nl += 1; n = s.nl
        a(f's_add_u32 s72, s{S_E}, {val}'); a(f'v_subrev_u32 v{vt}, s72, v{vt}'); a(f'v_cmp_gt_u32 vcc, 8, v{vt}'); a('s_nop 3')
        a('s_cmp_eq_u64 vcc, -1'); a(f's_cbranch_scc0 SPIN{n}')
        a.label(f'PDONE{n}')
        s.spin_tail(n, val, vt, va, so)
def spread(a, main, fill, lo=0, hi=None):
    n = len(main); hi = n if hi is None else hi
    fi = 0; m = len(fill)
    def em(x):
        if callable(x): x()
        else: a(x)
    for i, t in enumerate(main):
        em(t)
        if i >= lo:
            tgt = min(m, -(-m * (i - lo + 1) // max(1, hi - lo)))
            while fi < tgt: em(fill[fi]); fi += 1
    while fi < m: em(fill[fi]); fi += 1
def mix(x, y):
    out = []; j = 0
    for i, t in enumerate(x):
        out.append(t)
        while j < len(y) and j * len(x) < (i + 1) * len(y): out.append(y[j]); j += 1
    return out + y[j:]
def frag_offsets(a, sb, s2, st):
    a(f's_lshr_b32 s{st}, s{S_J}, 1'); a(f's_mul_i32 s{st}, s{st}, 5120'); a(f's_add_u32 s{sb}, s{sb}, s{st}')
    a(f's_and_b32 s{st}, s{S_J}, 1')
    a(f's_lshl3_add_u32 s{s2}, s{st}, s{sb}'); a(f's_add_u32 s{s2}, s{s2}, 4096')
    a(f's_lshl_b32 s{st}, s{st}, 11'); a(f's_add_u32 s{sb}, s{sb}, s{st}')
def frag_store80(F, sb, s2):
    return [f'buffer_store_dwordx4 v[{F}:{F+3}], v4, {WSR}, s{sb} offen',
            f'buffer_store_dwordx4 v[{F+4}:{F+7}], v4, {WSR}, s{sb} offen offset:1024',
            f'buffer_store_dwordx2 v[{F+8}:{F+9}], v4, {WSR}, s{s2} offen']
def ld(reg, s, soff, srd_=WSR, sc1=False):
    return f'buffer_load_dwordx4 {reg}, v{4 + s // 4}, {srd_}, s{soff} offen offset:{1024 * (s % 4)}' + (sc1 if isinstance(sc1, str) else ' sc1' if sc1 else '')
def q4(k, b): return f'{k}[{b}:{b+3}]'
RING = 9
def wq_reg(s, sl): return q4('a', 16 * (s % RING) + 4 * sl)
def wo_reg(t, i): return q4('a', 156 + 4 * (i * 5 + t))
def w1_reg(f): return q4('a', 4 * f) if f < 39 else q4('v', 172 + 4 * (f - 39))
def w2_reg(f): return q4('a', 156 + 4 * f) if f < 25 else q4('a', 4 * (f - 25))
WB = [' sc1', '', ' nt', ' sc1 nt', ' sc0', ' sc0 nt'][int(([o[3:] for o in OPT.split(',') if o.startswith('wb=')] + ['0'])[0])]
def wq_ld(s, sl): return ld(wq_reg(s, sl), s, 32 + sl, 's[12:15]' if sl == 2 else WSR, WB)
def wo_ld(t, i): return ld(wo_reg(t, i), i, 36 + t, WSR, WB)
def w1_ld(f): return ld(w1_reg(f), f // 3, 41 + f % 3, WSR, WB)
def w2_ld(f): return ld(w2_reg(f), f // 5, 44 + f % 5, WSR, WB)


WS_EP = 0x48000; WS_FA = 0x49000; WS_FB = 0x4A000
S_E = 24
L_ST = L_DUMP; L_MR = 143360; RSZ = 98304
def opt(name, d):
    for o in OPT.split(','):
        if o.startswith(name + '='): return int(o.split('=')[1])
    return d
NT = ' nt' if opt('nt', 1) else ''; NTM = ' nt' if opt('ntm', 1) else ''; NTX = ' nt' if opt('ntx', 0) else ''; NTT = ' nt' if opt('ntt', 0) else ''
NXE = opt('nxe', 3); PUBE = opt('pube', 1)
TS = {n: i for i, n in enumerate(('p3', 'a0', 'a1', 'a2', 'p4', 'e3', 'q0', 'q1', 'q2', 'p4e') if 'traceQ' in OPT else ('p1e', 'db', 'att', 'pb1', 'p2', 'p2m', 'p2b', 'p2e', 'u1', 'p3') if 'traceR' in OPT else ('p1', 's2', 's4', 's6', 's8', 's10', 's13', 's15', 's17', 'p1e') if 'traceP' in OPT else ('s', 'dec', 'ka', 'b1', 'st', 'pub', 'xi', 'x0', 'x4', 'ln') if 'traceG' in OPT else ('s', 'ln', 'b2', 'pi', 'mf', 'vp', 'pw', 'fa', 'poll', 'bar') if 'traceH' in OPT else ('s', 'pub', 'pi', 'pw', 'poll', 'bar', 'ln', 'p1', 'p1e', 'att') if 'traceF' in OPT else ('s', 'bar', 'p1', 'p1e', 'att', 'p2', 'p2e', 'p3', 'p4', 'p4e'))}
def tn(a, n):
    if n in TS: ts(a, TS[n])
XN = 40
def pairs(a, st, n, dA, dB, t):
    mg, ta, tb = (13108, 0x47520, 0x98631) if n == 5 else (10923, 0x829630, 0xb5a741)
    a(f's_mul_i32 s{dA}, s{st}, {mg}'); a(f's_lshr_b32 s{dA}, s{dA}, 16'); a(f's_mul_i32 s{dB}, s{dA}, {n}')
    a(f's_sub_u32 s{t}, s{st}, s{dB}'); a(f's_lshl_b32 s{t}, s{t}, 2')
    a(f's_lshr_b32 s{dA}, {hex(ta)}, s{t}'); a(f's_and_b32 s{dA}, s{dA}, 15'); a(f's_lshl1_add_u32 s{dA}, s{dB}, s{dA}')
    a(f's_lshr_b32 s{t}, {hex(tb)}, s{t}'); a(f's_and_b32 s{t}, s{t}, 15'); a(f's_lshl1_add_u32 s{dB}, s{dB}, s{t}')
def perm_src(x, st, n, stride, vd, so, colb, A=30, B=31, T=3, v7=5, vt=3):
    pairs(x, st, n, A, B, T)
    x(f's_sub_u32 s{B}, s{B}, s{A}'); x(f's_mul_i32 s{B}, s{B}, {16*stride}'); x(f's_lshl2_add_u32 s{A}, s{A}, s{S_W}')
    x(f's_mul_i32 s{A}, s{A}, {4*stride}'); x(f's_add_u32 s{so}, s{A}, s{colb}')
    x(f'v_bfe_u32 v{vt}, v0, 3, 2'); x(f's_movk_i32 s{T}, {stride}'); x(f'v_mad_u32_u24 v{vd}, v{vt}, s{T}, v{v7}')
    x(f'v_lshrrev_b32 v{vt}, 5, v0'); x(f'v_mad_u32_u24 v{vd}, v{vt}, s{B}, v{vd}')
def tr_addr(x, vd, blk, base, vt=3, T=3):
    x(f's_movk_i32 s{T}, {blk}'); x(f'v_and_b32 v{vt}, 3, v1'); x(f'v_lshlrev_b32 v{vt}, 3, v{vt}'); x(f'v_mad_u32_u24 v{vd}, v2, s{T}, v{vt}')
    x(f'v_lshrrev_b32 v{vt}, 2, v1'); x(f'v_lshl_add_u32 v{vd}, v{vt}, 7, v{vd}')
    x(f's_lshl_b32 s{T}, s{S_W}, 5'); x(f's_add_u32 s{T}, s{T}, {base}'); x(f'v_add_u32 v{vd}, s{T}, v{vd}')
def uproc(n, R, sd, tst, va, vo, k='a'):
    l = []
    for t in range(n):
        l += [f'ds_read_b64_tr_b16 {k}[{R+4*t}:{R+4*t+1}], v{va} offset:{1024*t}', f'ds_read_b64_tr_b16 {k}[{R+4*t+2}:{R+4*t+3}], v{va} offset:{1024*t + 512}']
    for t in range(n):
        l.append((f's_add_u32 s{sd}, s{sd}, {4*tst}\n' if t else '') + f'buffer_store_dwordx4 {k}[{R+4*t}:{R+4*t+3}], v{vo}, {WSR}, s{sd} offen sc1')
    return l
LM = dict(W=176, C=196, AC=208, T=201)
class Mod:
    def __init__(m, late, W, C, AC, VW, VC, T, SC, SW, SR, SG): m.__dict__.update(locals())
    def dec(m):
        G, D, R = m.SG, m.SG + 1, m.SR
        l = [f'v_lshrrev_b32 v{m.VC}, 3, v0', f'v_and_b32 v{m.T}, 7, v0', f'v_lshlrev_b32 v{m.T}, 4, v{m.T}',
             f's_and_b32 s{G}, s2, 7', f's_lshl3_add_u32 s{G}, s{S_J}, s{G}']
        l += [f's_add_u32 s{G}, s{G}, 24', f's_min_u32 s{G}, s{G}, 59'] if m.late else [f's_sub_u32 s{G}, s{G}, 40']
        l += [f's_bfe_u32 s{D}, s2, 0x20003', f's_lshl2_add_u32 s{R}, s{D}, s{S_W}', f's_mul_i32 s{R}, s{R}, 40', f'v_add_u32 v{m.VC}, s{R}, v{m.VC}', f's_movk_i32 s{R}, 7680',
              f'v_mad_u32_u24 v{m.VW}, v{m.VC}, s{R}, v{m.T}', f's_lshl_b32 s{R}, s{G}, 7', f'v_lshlrev_b32 v{m.VC}, 1, v{m.VC}',
              f's_movk_i32 s{m.SC+2}, 1280', f's_mov_b32 s{m.SC+3}, 0x20000', f's_mov_b32 s{m.SW+3}, 0x20000', f's_mov_b32 s{m.SW+2}, {640*7680}']
        return l
    def dec2(m):
        G, D = m.SG, m.SG + 1
        return [f's_lshl_b32 s{G}, s{G}, 10', f's_lshl2_add_u32 s{D}, s{D}, s{G}', f's_add_u32 s{D}, s{D}, {WS_MODP}']
    def load(m, k='v', vw=None):
        vw = m.VW if vw is None else vw
        l = [f's_and_b32 s{m.SC+1}, s{m.SC+1}, 0xffff\ns_and_b32 s{m.SW+1}, s{m.SW+1}, 0xffff']
        for i in range(5): l.append(f'buffer_load_ushort {k}{m.C+i}, v{m.VC}, s[{m.SC}:{m.SC+3}], 0 offen offset:{16*i} sc1')
        for i in range(5): l.append((f's_add_u32 s{m.SR}, s{m.SR}, {8*7680}\n' if i else '') + f'buffer_load_dwordx4 {k}[{m.W+4*i}:{m.W+3+4*i}], v{vw}, s[{m.SW}:{m.SW+3}], s{m.SR} offen{NTM}')
        return l
    def silu(m):
        C, AC = m.C, m.AC; l = []
        for f in ('v_lshlrev_b32 v{c}, 16, v{c}', 'v_mul_f32 v{t}, ' + fl(-LOG2E) + ', v{c}', 'v_exp_f32 v{t}, v{t}', 'v_add_f32 v{t}, 1.0, v{t}', 'v_rcp_f32 v{t}, v{t}',
                  'v_mul_f32 v{c}, v{c}, v{t}', 'v_cvt_pk_bf16_f32 v{c}, v{c}, 0'):
            l += [f.format(c=C + i, t=AC + i) for i in range(5)]
        return l
    def dot(m):
        AC, T = m.AC, m.T; l = []
        for i in range(5):
            l.append(f'v_lshlrev_b32 v{T}, 16, v{m.C+i}')
            if m.late and opt('sdot', 1):
                op = 'v_mul_f32' if i == 0 else 'v_fmac_f32'
                for q in range(4):
                    w = m.W + 4 * i + q
                    l += [f'v_lshlrev_b32 v{T+1}, 16, v{w}', f'v_and_b32 v{w}, 0xffff0000, v{w}', f'{op} v{AC+2*q}, v{T+1}, v{T}', f'{op} v{AC+2*q+1}, v{w}, v{T}']
                continue
            for q in range(4):
                for e, sv in ((0, m.C + i), (1, T)):
                    r = AC + 2 * q + e
                    l.append(f'v_dot2_f32_bf16 v{r}, v{m.W+4*i+q}, v{sv}, {"0" if i == 0 else f"v{r}"}')
        G = m.SG
        l += [f'v_and_b32 v{T}, 7, v0', f'v_lshlrev_b32 v{T}, 5, v{T}', f'v_lshl_add_u32 v{T}, v2, 3, v{T}']
        l += [f'v_permlane32_swap_b32 v{AC+q}, v{AC+4+q}' for q in range(4)] + [f'v_add_f32 v{AC+q}, v{AC+q}, v{AC+4+q}' for q in range(4)]
        l += [f's_lshl_b32 s{G}, s{S_W}, 8', f's_add_u32 s{G}, s{G}, {L_MR}']
        l += [f'v_permlane16_swap_b32 v{AC+q}, v{AC+2+q}' for q in range(2)] + [f'v_add_f32 v{AC+q}, v{AC+q}, v{AC+2+q}' for q in range(2)]
        l += [f'v_add_u32 v{T}, s{G}, v{T}', f'v_lshlrev_b32 v{AC+6}, 2, v0']
        l += [f'v_add_f32_dpp v{AC+q}, v{AC+q}, v{AC+q} row_ror:8 row_mask:0xf bank_mask:0xf' for q in range(2)]
        return l + [f'v_add_u32 v{AC+6}, {L_MR}, v{AC+6}', f'ds_write_b64 v{T}, v[{AC}:{AC+1}]']
    def fin(m):
        AC, G = m.AC, m.SG
        l = [f'ds_read2st64_b32 v[{AC}:{AC+1}], v{AC+6} offset0:0 offset1:1', f'ds_read2st64_b32 v[{AC+2}:{AC+3}], v{AC+6} offset0:2 offset1:3',
             f's_cmp_eq_u32 s{S_W}, 0\ns_cselect_b32 s{G}, 0, 0x80000000' + (f'\ns_cmp_lt_u32 s2, 160\ns_cselect_b32 s{G}, s{G}, 0x80000000' if m.late else ''),
             f'v_or_b32 v{AC+7}, s{G}, v4', f's_bfe_u32 s{G}, s{S_E}, 0xa0000', f's_movk_i32 s{G+2}, 0xfc00',
             f'v_add_f32 v{AC}, v{AC}, v{AC+1}', f'v_add_f32 v{AC+2}, v{AC+2}, v{AC+3}', f'v_mov_b32 v{AC+5}, s{G}', f'v_add_f32 v{AC}, v{AC}, v{AC+2}',
             f'v_add_u32 v{AC}, 0x200, v{AC}', f'v_and_or_b32 v{AC}, v{AC}, s{G+2}, v{AC+5}',
             f'buffer_store_dword v{AC}, v{AC+7}, {WSR}, s{G+1} offen sc1']
        return l
def mchk(r0, n, vt, st):
    return [f'v_xor_b32 v{vt}, s{st}, v{r0}'] + [f'v_bitop3_b32 v{vt}, v{vt}, s{st}, v{r0+e} bitop3:0xf6' for e in range(1, n)] + [f'v_lshlrev_b32 v{vt}, 22, v{vt}', f'v_cmp_eq_u32 vcc, 0, v{vt}']
def msum(r0, n, one, hi=True):
    l = []
    for e in range(4 * n): l.append(f'v_and_b32 v{r0+e}, 0xfffffc00, v{r0+e}')
    for i in range(n): l.append(f'v_pk_add_f32 v[{r0+4*i}:{r0+4*i+1}], v[{r0+4*i}:{r0+4*i+1}], v[{r0+4*i+2}:{r0+4*i+3}]')
    for i in range(n): l.append(f'v_add_f32 v{r0+4*i}, v{r0+4*i}, v{r0+4*i+1}')
    for i in range(n): l.append(f'v_cvt_pk_bf16_f32 v{r0+4*i}, 0, v{r0+4*i}')
    for i in range(n): l.append(f'v_add_f32 v{r0+4*i}, {one[i]}, v{r0+4*i}')
    for i in range(n): l.append(f'v_cvt_pk_bf16_f32 v{r0+4*i}, 0, v{r0+4*i}' if hi[i] else f'v_cvt_pk_bf16_f32 v{r0+4*i}, v{r0+4*i}, 0')
    return l
def slice_addr(A, sd, st):
    A(f's_lshl3_add_u32 s{sd}, s{S_RB}, s{S_J}'); A(f's_and_b32 s{st}, s{S_W}, 1'); A(f's_lshl1_add_u32 s{sd}, s{sd}, s{st}'); A(f's_mul_i32 s{sd}, s{sd}, 6144')
    A(f's_lshr_b32 s{st}, s{S_W}, 1'); A(f's_mul_i32 s{st}, s{st}, {WS_X1G - WS_OF}'); A(f's_add_u32 s{sd}, s{sd}, s{st}'); A(f's_add_u32 s{sd}, s{sd}, {WS_OF}')
def prew(sd): return [f'buffer_store_dwordx4 v[4:7], v{4 + q // 4}, {WSR}, s{sd} offen offset:{1024 * (q % 4)} sc1' for q in range(6)]
PW = opt('prew', 1)
L_W2S = 135168
def stats(i):
    S, Q = 250, 252; l = []
    for u in range(5):
        b = XN + (i * 5 + u) * 8
        for e in range(4): l += unpack(b + 2 * e, b + 2 * e + 1, b + 4 + e)
        for e in range(4):
            p = f'v[{b+2*e}:{b+2*e+1}]'
            l.append(f'v_pk_mul_f32 v[{Q}:{Q+1}], {p}, {p}' if u == 0 and e == 0 else f'v_pk_fma_f32 v[{Q}:{Q+1}], {p}, {p}, v[{Q}:{Q+1}]')
            if u == 0 and e == 1: l.append(f'v_pk_add_f32 v[{S}:{S+1}], v[{b}:{b+1}], {p}')
            elif not (u == 0 and e == 0): l.append(f'v_pk_add_f32 v[{S}:{S+1}], v[{S}:{S+1}], {p}')
    return l + [f'v_add_f32 v{240+2*i}, v{S}, v{S+1}', f'v_add_f32 v{241+2*i}, v{Q}, v{Q+1}']
JS = 2
def front(a, k, var):
    TST = 20480 if var == 'A' else 49152
    def dec_u():
        a(f's_lshl_b32 s47, s{S_W}, 13'); a(f's_add_u32 s47, s47, {L_ST}'); a('s_mov_b32 s71, 0x20000')
        a('v_and_b32 v5, 7, v0'); a('v_lshlrev_b32 v5, 4, v5')
        if var == 'A':
            a('s_cmp_ge_u32 s2, 120'); a('s_cbranch_scc1 DEC_WO')
            a('s_mul_i32 s28, s2, 10923'); a('s_lshr_b32 s28, s28, 16'); a('s_mul_i32 s29, s28, 6'); a('s_sub_u32 s29, s2, s29')
            a(f's_lshl2_add_u32 s33, s28, s{S_W}')
            a(f's_mul_i32 s33, s33, {8*3840}'); a('s_mul_i32 s3, s29, 640'); a('s_add_u32 s33, s33, s3')
            a('v_lshrrev_b32 v3, 3, v0'); a('s_movk_i32 s3, 3840'); a('v_mad_u32_u24 v33, v3, s3, v5'); a(f's_mov_b32 s70, {640*3840}')
            a.label('DEC_WO_RET')
            x = Asm()
            x('s_sub_u32 s28, s2, 120'); x('s_and_b32 s29, s28, 1'); x('s_lshr_b32 s28, s28, 1')
            x('s_mul_i32 s48, s29, 640'); perm_src(x, 28, 5, 1280, 33, 33, 48); x(f's_mov_b32 s70, {640*1280}')
            k.tail.append('DEC_WO:\n' + x.text() + '  s_branch DEC_WO_RET')
        else:
            a('s_sub_u32 s28, s2, 160'); a('s_min_u32 s28, s28, 79'); a('s_and_b32 s29, s28, 3'); a('s_lshr_b32 s28, s28, 2')
            a('s_mul_i32 s62, s29, 24'); a(f's_add_u32 s62, s62, s{S_W}')
            a('s_mul_i32 s62, s62, 20480'); a('s_lshl_b32 s3, s28, 10'); a('s_add_u32 s62, s62, s3'); a(f's_add_u32 s62, s62, {WS_W1}')
            a('s_mul_i32 s48, s29, 768'); perm_src(a, 28, 5, 3072, 33, 33, 48); a(f's_mov_b32 s70, {640*3072}')
    def dec_u2():
        tr_addr(a, 245, 8192, L_ST)
        a('s_cmp_ge_u32 s2, 120')
        a(f's_mov_b32 s34, {WS_WQ}'); a(f's_cselect_b32 s34, {WS_WO}, s34')
        a(f's_mov_b32 s35, {WS_FA}'); a(f's_cselect_b32 s35, {WS_FA + 2048}, s35')
        a('s_and_b32 s3, s29, 1'); a('s_mul_i32 s3, s3, 3'); a('s_lshr_b32 s48, s29, 1'); a('s_add_u32 s3, s3, s48')
        a('s_mul_i32 s3, s3, 20'); a('s_add_u32 s3, s3, s28'); a(f's_lshl2_add_u32 s3, s3, s{S_W}'); a('s_lshl2_add_u32 s35, s3, s35')
        a('s_mul_i32 s3, s29, 20'); a(f's_add_u32 s3, s3, s{S_W}')
        a('s_mul_i32 s3, s3, 20480'); a('s_add_u32 s34, s34, s3'); a('s_lshl_b32 s3, s28, 10'); a('s_add_u32 s34, s34, s3')
    def dec_x(rng):
        if 0 in rng:
            a(f's_lshl_b32 s3, s{S_J}, 2'); a('s_mov_b32 s50, 0x21043210'); a('s_movk_i32 s51, 0x1043'); a('s_lshr_b64 s[50:51], s[50:51], s3'); a('s_mov_b32 s73, s50')
            a(f's_lshl_b32 s3, s{S_RB}, 6'); a(f's_mul_i32 s79, s{S_W}, 20'); a('s_add_u32 s3, s3, s79'); a('s_sub_u32 s3, s3, 16')
            a('s_movk_i32 s51, 1280'); a('v_add_u32 v244, s3, v2'); a('v_lshlrev_b32 v39, 4, v1')
            a(f's_mov_b32 s{S_X+2}, {2048*1280}'); a(f's_mov_b32 s{S_X+3}, 0x20000')
        for i in rng:
            a(f's_bfe_u32 s3, s73, {hex(0x40000 + 4*i)}'); a('v_lshl_add_u32 v3, s3, 2, v244'); a('v_max_i32 v3, 0, v3'); a(f'v_mad_u32_u24 v{240+i}, v3, s51, v39')
    H = {}
    def uload(v=33, so=33):
        l = [('s_cmp_ge_u32 s2, 120\ns_cselect_b64 s[68:69], s[38:39], s[36:37]\n' if var == 'A' else '') + 's_and_b32 s69, s69, 0xffff']
        for t in range(5 if var == 'A' else 6): l.append(f's_add_u32 m0, s47, {t*896}\nbuffer_load_dwordx4 v{v}, s[68:71], s{so} offen offset:{128*t}{NT} lds')
        return l + [lambda: H.update(u=a.vm[-1][0])]
    def xload(i):
        return [f'buffer_load_dwordx4 v[{XN+(i*5+u)*8+4}:{XN+(i*5+u)*8+7}], v{240+i}, s[{S_X}:{S_X+3}], 0 offen offset:{256*u}{NTX}' for u in range(5)]
    def em(l): spread(a, l, [])
    def eload(): a(f's_and_b32 s{S_WS+1}, s{S_WS+1}, 0xffff'); a(f's_mov_b32 s3, {WS_EP}'); a(f'buffer_load_dword v38, off, {WSR}, s3 sc1')
    def cpf():
        if not opt('cpf', 1): return
        a('s_getpc_b64 s[50:51]'); a.label(f'PC{var}')
        a('s_lshr_b32 s3, s2, 3'); a(f's_lshl2_add_u32 s3, s3, s{S_W}'); a('s_mul_i32 s3, s3, 3'); a('v_min_u32 v237, 2, v0'); a('v_add_u32 v237, s3, v237')
        a(f'v_min_u32 v237, (CODE_END-FRONT_A2-4)/128, v237'); a('v_lshlrev_b32 v237, 7, v237')
        a(f's_add_u32 s50, s50, FRONT_A2-PC{var}'); a('s_addc_u32 s51, s51, -1')
        a('v_mov_b32 v239, s51'); a('v_add_co_u32 v238, vcc, s50, v237'); a('v_addc_co_u32 v239, vcc, 0, v239, vcc')
        a('global_load_dword v237, v[238:239], off sc1')
    def getE(): a(f'v_readfirstlane_b32 s{S_E}, v38'); a(f's_add_u32 s{S_E}, s{S_E}, 0x9E3779B1')
    def pubA(): getE(); a(f'v_mov_b32 v3, s{S_E}'); a.wait_id(H['st']); a(f'buffer_store_dword v3, off, {WSR}, s35 sc1'); tn(a, 'pub')
    def misc():
        a(f's_mov_b32 s{S_O+2}, {2048*1280}'); a(f's_mov_b32 s{S_O+3}, 0x20000'); a(f's_and_b32 s{S_O+1}, s{S_O+1}, 0xffff')
        a('v_lshlrev_b32 v4, 4, v0')
        for q in range(1, 4): a(f'v_add_u32 v{4+q}, {4096*q}, v4')
    XE = opt('xe', 0); XB = opt('xb', 0)
    if var == 'A':
        m = Mod(True, 176, 196, 0, 35, 36, 37, 52, 56, 74, 29)
        dec_u(); tn(a, 'dec'); a.wait(lg=0); tn(a, 'ka')
        em(uload()); eload()
        a.raw('@SPLIT')
        dec_x([0, 1, 2, 3, 4]); a(f's_and_b32 s{S_X+1}, s{S_X+1}, 0xffff')
        if XE: em(xload(0))
        cpf(); dec_u2(); misc(); em(m.dec() + m.dec2())
        for i in range(1, XE): em(xload(i))
        a.wait_id(H['u']); tn(a, 'b1'); a.barrier()
        em(uproc(5, 156, 34, 20480, 245, 4)); H['st'] = a.vm[-1][0]; tn(a, 'st')
        ml = m.load('a'); b2 = ml[6:]
        xl = sum([xload(i) for i in range(XE, 5)], []) + ml[:6]
        a('s_mov_b32 s62, 0')
        n_ = opt('xp', 0) + (5 if XE == 0 else 0)
        em(xl[:n_]); xl = xl[n_:]
        if PUBE: pubA()
    else:
        m = Mod(False, 8, 28, 246, 35, 36, 37, 52, 56, 74, 44)
        em(m.dec()); tn(a, 'dec'); a.wait(lg=0); tn(a, 'ka')
        em(m.load()); eload()
        a.raw('@SPLIT')
        em(m.dec2()); dec_x([0, 1, 2, 3, 4]); a(f's_and_b32 s{S_X+1}, s{S_X+1}, 0xffff')
        cpf(); dec_u(); misc()
        for i in range(XB): em(xload(i))
        em(m.silu()); tn(a, 'b1')
        d = m.dot(); em(d[:27]); em(xload(XB)); em(d[27:45]); tn(a, 'st'); em(xload(XB + 1)); em(d[45:]); getE()
        a.wait(lg=0); a.barrier(); em(m.fin()); tn(a, 'pub')
        b2 = uload()[:-1]
        xl = sum([xload(i) for i in range(XB + 2, 5)], [])
    nx = opt('nx', 10)
    spread(a, stats(0), xl[:nx], lo=0, hi=opt('xhi', 60))
    tn(a, 'x0')
    if var == 'A' and not PUBE: pubA()
    spread(a, stats(1), xl[nx:], hi=40)
    tn(a, 'xi')
    a('v_min_u32 v31, 59, v0'); a(f's_mul_i32 s3, s{S_W}, 240'); a('v_lshl_add_u32 v31, v31, 2, s3')
    a(f's_lshr_b32 s50, s{S_J}, 2'); a('s_mul_i32 s50, s50, 960'); a(f's_add_u32 s50, s50, {WS_FA}'); a(f's_mul_i32 s49, s{S_W}, 5120'); a(f's_add_u32 s49, s49, {WS_MODP}')
    A = a
    A('s_min_u32 s52, s2, 239'); A('s_mul_i32 s28, s52, 13108'); A('s_lshr_b32 s28, s28, 16'); A('s_mul_i32 s53, s28, 5'); A('s_sub_u32 s52, s52, s53')
    A(f's_lshl3_add_u32 s63, s52, s{S_W}'); A('s_mul_i32 s63, s63, 49152'); A('s_lshl_b32 s53, s28, 10'); A('s_add_u32 s63, s63, s53'); A(f's_add_u32 s63, s63, {WS_W2}')
    A('s_lshl_b32 s52, s52, 8'); A('v_and_b32 v34, 7, v0'); A('v_lshlrev_b32 v34, 4, v34')
    perm_src(A, 28, 6, 1280, 34, 52, 52, 53, 55, 3, 34, 3)
    A(f's_mov_b32 s66, {1536*1280}'); A('s_mov_b32 s67, 0x20000'); A('s_and_b32 s65, s65, 0xffff'); A(f's_lshl_b32 s53, s{S_W}, 11'); A(f's_add_u32 s53, s53, {L_W2S}')
    b2 += [f's_add_u32 m0, s53, {t*896}\nbuffer_load_dwordx4 v34, s[64:67], s52 offen offset:{128*t}{NT} lds' for t in range(2)]
    slice_addr(a, 61, 3)
    if opt('ot', 0) == 1: b2 += [OTCH.format(29)]
    a(f's_mul_i32 s3, s{S_W}, 1280'); a(f's_add_u32 s3, s3, {L_MODL}'); a('v_lshl_add_u32 v30, v0, 2, s3')
    a(f's_cmp_ge_u32 s{S_W}, 2'); a('s_cselect_b32 s51, 1.0, 0'); a(f's_mov_b32 s48, s{S_E}')
    pl = POLLS + [lambda: (H.update(p=a.vm[-1][0]), tn(a, 'pi'))]
    st = lnorm(a); PP = opt('pp', 240)
    b2 += [lambda: B2H.update({var: a.vm[-1][0]})]
    assert opt('b2hi', 80) < 400
    spread(a, st[:PP] + pl + st[PP:], b2, lo=opt('b2lo', 0), hi=opt('b2hi', 80))
    a(f's_mul_i32 s52, s{S_J}, 5'); a(f's_add_u32 s53, s52, s{S_W}')
    a('s_add_u32 s32, s53, 40'); a('s_add_u32 s33, s53, 80'); a('s_mov_b32 s35, s53')
    a(f's_lshl_b32 s54, s{S_W}, 3'); a('s_lshr_b32 s34, 0x04542c, s54'); a('s_and_b32 s34, s34, 0xff'); a('s_add_u32 s34, s34, s52')
    for q in range(4):
        a(f's_mul_i32 s{32+q}, s{32+q}, 20480'); a(f's_add_u32 s{32+q}, s{32+q}, {WS_WQ}')
    a(f's_mov_b64 s[12:13], s[{S_WS}:{S_WS+1}]'); a(f's_cmp_eq_u32 s{S_W}, 3'); a(f's_cselect_b32 s14, 0, s{S_WS+2}'); a('s_mov_b32 s15, 0x20000')
    tn(a, 'vp')
    a.wait_id(H['p']); tn(a, 'pw'); a.wait(lg=0)
B2H = {}
OTCH = f's_mul_i32 s3, s{S_RB}, 81920\nbuffer_load_dword v{{}}, off, s[{S_O}:{S_O+3}], s3'
def lnorm(a):
    st = sum([stats(i) for i in range(JS, 5)], []); A = st.append
    A(lambda: tn(a, 'x4'))
    for ror in (8, 4, 2, 1):
        for c in range(240, 250): A(f'v_add_f32_dpp v{c}, v{c}, v{c} row_ror:{ror} row_mask:0xf bank_mask:0xf')
    A(f's_mov_b32 s60, {fl(1/640)}'); A(f'v_mov_b32 v3, {fl(1e-5)}')
    for i in range(5): A(f'v_mul_f32 v{250+i}, s60, v{240+2*i}')
    for i in range(5): A(f'v_fma_f32 v{241+2*i}, v{241+2*i}, s60, v3')
    for i in range(5): A(f'v_fma_f32 v{241+2*i}, -v{250+i}, v{250+i}, v{241+2*i}')
    for i in range(5): A(f'v_max_f32 v{241+2*i}, v{241+2*i}, v3')
    for i in range(5): A(f'v_rsq_f32 v{240+2*i}, v{241+2*i}')
    for i in range(5): A(f'v_mul_f32 v{241+2*i}, -v{250+i}, v{240+2*i}')
    for i in range(5):
        P = 240 + 2 * i
        for u in range(5):
            b = XN + (i * 5 + u) * 8
            for e in range(4):
                p = f'v[{b+2*e}:{b+2*e+1}]'
                A(f'v_pk_fma_f32 {p}, {p}, v[{P}:{P+1}], v[{P}:{P+1}] op_sel:[0,0,1] op_sel_hi:[1,0,1]')
    A('v_lshrrev_b32 v3, 2, v1'); A('v_lshlrev_b32 v3, 10, v3'); A('v_and_b32 v33, 3, v1'); A('v_lshl_add_u32 v3, v33, 8, v3')
    A('v_and_b32 v33, 7, v1'); A('s_movk_i32 s52, 20480'); A('v_add_u32 v35, s79, v2')
    for i in range(5):
        A(f's_bfe_u32 s3, s73, {hex(0x40000 + 4*i)}'); A('v_lshl_add_u32 v36, s3, 2, v35')
        A('v_and_b32 v37, 15, v36'); A('v_xor_b32 v37, v37, v33'); A('v_lshrrev_b32 v36, 4, v36')
        A('v_mad_u32_u24 v36, v36, s52, v3'); A(f'v_lshl_add_u32 v{250+i}, v37, 4, v36')
    A('v_lshlrev_b32 v255, 5, v1'); A(f'v_add_u32 v255, {L_MODL}, v255')
    A(lambda: tn(a, 'ln'))
    return st
PM = {0: '', 1: ' sc0', 2: ' nt', 3: ' sc0 nt'}[opt('pm', 1)]
FAP = [f'buffer_load_dword v28, v31, {WSR}, s50 offen sc1{PM}']
MP = [ld(q4('v', 8 + 4 * i), i, 49, WSR, True) for i in range(5)]
POLLS = MP + FAP
def main_kernel(a):
    k = K(a)
    tn(a, 's')
    a('s_cmp_ge_u32 s2, 256'); a('s_cbranch_scc1 EXIT_p0')
    for r, o in ((64 - 28, None), (S_WS, 80), (52, 48), (56, 56), (S_X, 0), (64, 40), (68, 32), (S_O, 64)):
        a('s_load_dwordx4 s[36:39], s[0:1], 8' if o is None else f's_load_dwordx2 s[{r}:{r+1}], s[0:1], {o}')
    a('v_lshrrev_b32 v2, 6, v0'); a('v_and_b32 v0, 63, v0'); a(f'v_readfirstlane_b32 s{S_W}, v2')
    a('v_and_b32 v1, 15, v0'); a('v_lshrrev_b32 v2, 4, v0')
    a('s_and_b32 s3, s2, 7'); a(f's_lshr_b32 s{S_J}, s2, 5'); a(f's_bfe_u32 s{S_RB}, s2, 0x20003')
    a(f's_lshl2_add_u32 s{S_RB}, s3, s{S_RB}')
    a(f's_mov_b32 s{S_WS+2}, 0x10000000'); a(f's_mov_b32 s{S_WS+3}, 0x20000')
    a('s_cmp_ge_u32 s2, 160'); a('s_cbranch_scc1 FRONT_B')
    import copy
    b = Asm(); b.vm = copy.deepcopy(a.vm); b.lg = copy.deepcopy(a.lg); b.n = a.n; b.hist = list(a.hist)
    kb = K(b); kb.nl = 500
    front(b, kb, 'B'); b.wait(lg=0)
    front(a, k, 'A'); a.wait(lg=0)
    b1, b2 = b.text().split('@SPLIT\n')
    a.out[a.out.index('@SPLIT')] = '  s_branch FRONT_A2\nFRONT_B:\n' + b1 + '  s_branch FRONT_B2\nFRONT_A2:'
    k.tail.append('FRONT_B2:\n' + b2 + '  s_branch JOIN')
    a.label('JOIN')
    wqs = [wq_ld(s, sl) for s in range(20) for sl in range(4)]
    def spin(nm, lds_, chk_):
        a('s_cmp_eq_u64 vcc, -1'); a(f's_cbranch_scc0 {nm}SPIN')
        a.label(f'{nm}DONE')
        k.tail.append(f'{nm}SPIN:\n  s_mov_b32 s72, 0x8000\n{nm}SPINL:\n  s_andn2_b64 exec, exec, vcc\n' + ''.join(f'  {t}\n' for t in lds_ + ['s_waitcnt vmcnt(0)'] + chk_) +
                      f'  s_sub_u32 s72, s72, 1\n  s_cbranch_scc1 {nm}OUT\n  s_nop 1\n  s_cmp_eq_u64 vcc, exec\n  s_cbranch_scc0 {nm}SPINL\n{nm}OUT:\n  s_mov_b64 exec, -1\n  s_branch {nm}DONE')
    NW0 = opt('nw0', 8)
    chk = mchk(8, 20, 29, 48)
    for t in chk: a(t)
    a('s_nop 3')
    spin('M', MP, chk)
    tn(a, 'fa')
    for t in msum(8, 5, ['s51'] * 5, [1] * 5): a(t)
    fac = [f'v_cmp_eq_u32 vcc, s{S_E}, v28']
    a(fac[0])
    for i in range(5): a(f'ds_write_b32 v30, v{8+4*i} offset:{256*i}')
    spin('FA', FAP, fac)
    tn(a, 'poll')
    a(f's_mul_i32 s36, s{S_J}, {5*20480}'); a(f's_mul_i32 s3, s{S_W}, 5120'); a('s_add_u32 s36, s36, s3'); a(f's_add_u32 s36, s36, {WS_WO}')
    a.wait(lg=0); a.barrier()
    tn(a, 'bar')
    def gs_read(u):
        b = 8 + 16 * (u % 2); l = []
        for q in range(2):
            l.append(f'ds_read_b128 v[{b+4*q}:{b+4*q+3}], v255 offset:{512*u + 16*q}')
            l.append(f'ds_read_b128 v[{b+8+4*q}:{b+8+4*q+3}], v255 offset:{2560 + 512*u + 16*q}')
        return l
    st = gs_read(0) + wqs[:NW0]
    for u in range(5):
        if u < 4: st += gs_read(u + 1)
        gb = 8 + 16 * (u % 2)
        for i in range(5):
            b = XN + (i * 5 + u) * 8
            for e in range(4):
                p = f'v[{b+2*e}:{b+2*e+1}]'
                st.append(f'v_pk_fma_f32 {p}, {p}, v[{gb+8+2*e}:{gb+9+2*e}], v[{gb+2*e}:{gb+2*e+1}]')
            for e in range(4): st.append(f'v_cvt_pk_bf16_f32 v{b+e}, v{b+2*e}, v{b+2*e+1}')
            st.append(f'ds_write_b128 v{250+i}, v[{b}:{b+3}] offset:{4096*u}')
    so = []; A = so.append
    for t in range(1, 5): A(f's_add_u32 s{36+t}, s{35+t}, 20480')
    A(f's_lshl2_add_u32 s41, s{S_J}, s{S_W}'); A(f's_mul_i32 s41, s41, {3*20480}'); A(f's_add_u32 s41, s41, {WS_W1}')
    A('s_add_u32 s42, s41, 20480'); A('s_add_u32 s43, s42, 20480')
    A(f's_mul_i32 s44, s{S_J}, {5*49152}'); A(f's_mul_i32 s3, s{S_W}, 12288'); A('s_add_u32 s44, s44, s3'); A(f's_add_u32 s44, s44, {WS_W2}')
    for t in range(1, 5): A(f's_add_u32 s{44+t}, s{43+t}, 49152')
    A(f's_lshl_b32 s27, s{S_RB}, 9'); A(f's_add_u32 s27, s27, {WS_FL}')
    A(f's_lshr_b32 s3, s{S_J}, 1'); A('s_lshl_b32 s3, s3, 7'); A('s_add_u32 s26, s27, s3')
    A(f's_and_b32 s3, s{S_J}, 1'); A(f's_lshl2_add_u32 s3, s3, s{S_W}'); A('s_lshl2_add_u32 s26, s3, s26')
    A(f's_lshl_b32 s3, s{S_W}, 7'); A('s_add_u32 s27, s27, s3')
    H = {}
    NWA = opt('nwa', 24)
    wq_all = wqs[NW0:]; napp = NWA - NW0
    spread(a, st, wq_all[:napp], lo=opt('alo', 0), hi=opt('ahi', len(st) - 20)); wq_rest = wq_all[napp:]
    a('v_min_u32 v250, 19, v0'); a(f's_mul_i32 s3, s{S_W}, 80'); a('s_add_u32 s3, s3, s50'); a('v_lshl_add_u32 v250, v250, 2, s3')
    WOP = [f'buffer_load_dword v247, v250, {WSR}, 0 offen offset:2048 sc1{PM}']; woc = [f'v_cmp_eq_u32 vcc, s{S_E}, v247']
    a('s_getreg_b32 s3, hwreg(HW_REG_XCC_ID)'); a('s_and_b32 s3, s3, 15'); a(f's_add_u32 s25, s{S_E}, s3')
    a(f's_lshl3_add_u32 s50, s{S_RB}, s{S_J}'); a(f's_lshl2_add_u32 s50, s50, {WS_FB}')
    a(f's_cmp_eq_u32 s{S_W}, 0'); a('s_cselect_b32 s3, 0, 0x80000000'); a('v_mov_b32 v248, s25'); a('v_mov_b32 v249, s3')
    a('v_add_u32 v8, 16384, v4')
    a('v_and_b32 v9, 7, v0'); a('v_lshlrev_b32 v9, 2, v9')
    a('v_xor_b32 v3, v1, v2'); a('v_lshlrev_b32 v20, 8, v2'); a('v_lshl_add_u32 v20, v3, 4, v20')
    a('v_xor_b32 v21, 64, v20'); a('v_add_u32 v22, 61440, v20'); a('v_add_u32 v23, 61440, v21')
    a.wait_id(B2H['A']); a.wait(lg=0); a.barrier()
    tn(a, 'p1')
    ACC = 40; XF = 116; QR = 160
    def xread(s):
        l = []
        for mt in range(5):
            r = XF + 20 * (s % 2) + 4 * mt
            off = (mt * 20 + s) * 1024; ad = 20 + (s & 1)
            if off >= 61440: off -= 61440; ad += 2
            l.append(f'ds_read_b128 v[{r}:{r+3}], v{ad} offset:{off}')
        return l
    for t in xread(0): a(t)
    side = []
    A = side.append
    A('v_lshrrev_b32 v3, 2, v1'); A('v_xor_b32 v3, v3, v2'); A('v_lshlrev_b32 v3, 3, v3'); A('v_lshl_add_u32 v3, v1, 5, v3')
    A(f's_add_u32 s57, s{S_W}, 5'); A(f's_add_u32 s58, s{S_W}, 10'); A(f's_mov_b32 s60, s{S_W}')
    A('s_lshr_b32 s59, 0x0f040e09, s54'); A('s_and_b32 s59, s59, 0xff')
    for q in range(4):
        A(f's_mul_i32 s{57+q}, s{57+q}, 2560'); A(f's_add_u32 s{57+q}, s{57+q}, {L_DUMP}'); A(f'v_add_u32 v{24+q}, s{57+q}, v3')
    A(f's_lshl_b32 s57, s{S_W}, 9'); A(f's_add_u32 s57, s57, {L_DUMP}')
    A('v_add_u32 v28, s57, v3')
    A('v_and_b32 v3, 3, v1'); A('v_xor_b32 v3, v3, v2'); A('v_lshlrev_b32 v3, 3, v3')
    A('v_and_b32 v10, 60, v0'); A('v_lshl_add_u32 v3, v10, 3, v3'); A('v_add_u32 v29, s57, v3')
    A('v_and_b32 v3, 1, v1'); A('v_cmp_eq_u32 s[74:75], 1, v3')
    A('v_lshl_add_u32 v10, v2, 2, v3'); A('v_cmp_le_u32 s[76:77], v10, v1')
    A('v_add_u32 v10, 2, v10'); A('v_cmp_le_u32 s[78:79], v10, v1')
    A('v_mov_b32 v10, 0x0c0c0100'); A('v_mov_b32 v11, 0x01000c0c'); A('v_cndmask_b32 v10, v10, v11, s[74:75]')
    A('v_mov_b32 v11, 0x0c0c0302'); A('v_mov_b32 v12, 0x03020c0c'); A('v_cndmask_b32 v11, v11, v12, s[74:75]')
    A('v_mov_b32 v12, 0x0c0c0c0c')
    A('v_cndmask_b32 v30, v10, v12, s[76:77]'); A('v_cndmask_b32 v31, v11, v12, s[78:79]')
    A('v_cndmask_b32 v32, v12, v10, s[76:77]'); A('v_cndmask_b32 v33, v12, v11, s[78:79]')
    A(f's_or_b32 s57, s{S_RB}, s{S_W}'); A('s_cmp_eq_u32 s57, 0'); A(f's_cselect_b32 s57, {fl(-1e30)}, 0')
    for q in range(4): A(f'v_mov_b32 v{34+q}, s57')
    for q in range(16): A(f'v_mov_b32 v{QR+q}, 0')
    M2 = 208; M3 = 228
    lm = Mod(True, LM['W'], LM['C'], LM['AC'], 0, 0, LM['T'], 0, 0, 0, 29)
    ust = []; A = ust.append
    tr_addr(A, 253, 8192, L_ST, 203, 55)
    tr_addr(A, 246, 2048, L_W2S, 203, 55)
    A('s_cmp_lt_u32 s2, 160\ns_cselect_b32 s55, 0x80000000, 0'); A('v_or_b32 v245, s55, v4')
    u1 = uproc(6, 204, 62, 20480, 253, 245); u2 = uproc(2, 228, 63, 49152, 246, 4)
    upr = u2[:4] + u1[:12] + u2[4:] + u1[12:] + [lambda: H.update(v=a.vm[-1][0])]
    early = []; A = early.append
    if PW == 1: early += prew(61) + [lambda: H.update(v=a.vm[-1][0])]
    modw = [f'v_accvgpr_read_b32 v{r}, a{r}' for r in list(range(196, 201)) + list(range(176, 196))] + lm.silu() + lm.dot()
    s2 = []; A = s2.append
    w2dma = []
    if opt('ot', 0) == 3: w2dma.append(OTCH.format(157))
    w2dma.append(k.poll_issue(156))
    A(f's_lshl2_add_u32 s49, s{S_RB}, s{S_W}'); A(f's_mul_i32 s49, s49, {16*1280}'); A(f's_mul_i32 s61, s{S_J}, 160'); A('s_add_u32 s49, s49, s61')
    for i in range(3):
        r = 205 + i
        A(f'v_add_u32 v{r}, {64*i}, v0'); A(f'v_mul_u32_u24 v216, 6554, v{r}'); A('v_lshrrev_b32 v216, 16, v216'); A(f'v_lshlrev_b32 v{r}, 4, v{r}')
        A(f'v_mul_u32_u24 v216, {1280-160}, v216'); A(f'v_add_u32 v{r}, v216, v{r}')
    A('v_lshlrev_b32 v216, 26, v0'); A('v_and_b32 v216, 0x80000000, v216'); A('v_or_b32 v207, v216, v207')
    A(f's_mul_i32 s60, s{S_W}, 3072'); A(f's_add_u32 s60, s60, {L_XR}')
    for i in range(3): w2dma.append(f's_add_u32 m0, s60, {1024*i}\nbuffer_load_dwordx4 v{205+i}, s[{S_X}:{S_X+3}], s49 offen lds')
    w2dma += ['v_mul_u32_u24 v39, 160, v1', 'v_lshl_add_u32 v39, v2, 3, v39', 'v_add_u32 v39, s60, v39']
    s3_ = []; A = s3_.append
    A(f's_mov_b32 s56, {fl(1/640)}')
    A(f's_lshl_b32 s55, s{S_W}, 4'); A('v_add_u32 v38, s55, v1')
    A(f's_mul_i32 s55, s{S_W}, 60'); A('v_min_u32 v252, 59, v0'); A('v_add_u32 v252, s55, v252'); A(f'v_lshlrev_b32 v249, 2, v252'); A(f'v_add_u32 v249, {L_OWN}, v249')
    A('v_mul_u32_u24 v203, 820, v252'); A('v_lshrrev_b32 v203, 16, v203')
    A('v_cmp_eq_u32 vcc, 1, v203\nv_cndmask_b32 v251, 0, 1.0, vcc')
    A('v_min_u32 v202, 1, v203'); A('v_add_u32 v202, v202, v203')
    A('v_mul_u32_u24 v202, 640, v202'); A('v_mul_u32_u24 v203, 80, v203'); A('v_sub_u32 v252, v252, v203'); A('v_add_u32 v252, v252, v202')
    A(f's_mul_i32 s55, s{S_J}, 80'); A('v_add_lshl_u32 v252, v252, s55, 4'); A(f's_mov_b32 s63, {WS_MODP + 1280 * 16}')
    A('v_lshrrev_b32 v203, 5, v0'); A('v_and_b32 v202, 1, v2'); A('v_mul_u32_u24 v254, 160, v203'); A('v_add_u32 v254, v254, v1')
    A(f's_mul_i32 s55, s{S_W}, 320'); A('s_add_u32 s55, s55, 640'); A('v_add_u32 v254, s55, v254')
    A('v_mul_u32_u24 v255, 80, v202'); A('v_add_lshl_u32 v255, v255, v254, 4'); A('v_lshl_add_u32 v254, v202, 4, v254'); A('v_lshlrev_b32 v254, 4, v254')
    MLD = [f'buffer_load_dwordx4 v[{M3}:{M3+3}], v252, {WSR}, s63 offen sc1'] + [f'buffer_load_dwordx4 v[{M2+4*i}:{M2+4*i+3}], v{254 if i < 4 else 255}, {WSR}, s63 offen offset:{256*t} sc1' for i, t in enumerate((0, 2, 5, 7, 4))]
    s4 = []; A = s4.append
    A(f's_and_b32 s55, s{S_W}, 1'); A('s_mul_i32 s55, s55, 1280')
    A(f's_cmp_ge_u32 s{S_W}, 2\ns_cselect_b32 s49, 0, 64'); A('s_add_u32 s49, s49, s55'); A(f's_add_u32 s49, s49, {L_GS}')
    A('v_mul_u32_u24 v250, 640, v203'); A('v_lshl_add_u32 v250, v202, 3, v250'); A('v_lshrrev_b32 v203, 2, v1'); A('v_lshl_add_u32 v250, v203, 4, v250')
    A('v_and_b32 v203, 3, v1'); A('v_lshl_add_u32 v250, v203, 1, v250'); A('v_add_u32 v250, s49, v250')
    def mod2_fin():
        a(f's_mov_b32 s3, s{S_E}')
        chk = mchk(M2, 24, 232, 3)
        for t in chk: a(t)
        a(f's_cmp_ge_u32 s{S_W}, 2'); a('s_cselect_b32 s58, 1.0, 0'); a('s_nop 1')
        spin('M2', MLD, chk)
        for t in msum(M2, 6, ['s58'] * 5 + ['v251'], [0] * 5 + [1]): a(t)
        for i in range(5): a(f'ds_write_b16 v250, v{M2+4*i} offset:{128*i}')
        a(f'ds_write_b32 v249, v{M3}')
    FBL = f'buffer_load_dword v232, v233, {WSR}, s51 offen sc1' + PM
    fbc = [f'v_subrev_u32 v232, s{S_E}, v232', 'v_cmp_gt_u32 vcc, 16, v232']
    def fb_issue(): a(f's_lshl_b32 s51, s{S_W}, 8'); a(f's_add_u32 s51, s51, {WS_FB}'); a('v_lshlrev_b32 v233, 2, v0'); a(FBL)
    def fb_check():
        for t in fbc: a(t)
        a(f's_or_b32 s49, s2, s{S_W}'); a('s_cmp_eq_u32 s49, 0'); a('s_cselect_b32 s3, 0, 0x80000000'); a('s_nop 0')
        spin('FB', [FBL], fbc)
        a('s_and_b32 s51, s50, -32')
        a(f'v_mov_b32 v236, s{S_E}'); a('v_mov_b32 v237, s3'); a(f's_mov_b32 s3, {WS_EP}')
    def fb_after():
        a(f'buffer_load_dword v232, v9, {WSR}, s51 offen sc1' + PM)
        a(f'buffer_store_dword v236, v237, {WSR}, s3 offen sc1')
    def fb_fast():
        a('v_cmp_eq_u32 vcc, s25, v232'); a('s_nop 3'); a('s_cmp_eq_u64 vcc, -1'); a(f's_cselect_b32 s{S_FAST}, {0 if "slow" in OPT else 1}, 0')
    wos = [wo_ld(t, i) for i in range(5) for t in range(5)]
    FBI = opt('fbi', 17); M1 = opt('m1', 0); MB = opt('mb', 10); WPS = opt('wps', 4); WO0 = opt('wo0', 12)
    for s in range(20):
        main = []
        for mt in range(5):
            for sl in range(4):
                if sl == 3 and mt == 0: continue
                ac = ACC + 4 * (sl * 5 + mt - (1 if sl == 3 else 0))
                c = '0' if s == 0 else q4('v', ac)
                main.append(f'{MF} {q4("v", ac)}, {wq_reg(s, sl)}, {q4("v", XF + 20 * (s % 2) + 4 * mt)}, {c}')
        fill = xread(s + 1) if s < 19 else []
        n = 0
        while wq_rest and n < WPS + (1 if 80 - len(wq_rest) < 4 * (s - 1 + RING) else 0):
            t = wq_rest[0]
            if not callable(t):
                if wqs.index(t) // 4 > s - 1 + RING: break
                n += 1
            fill.append(wq_rest.pop(0))
        if not wq_rest and s >= WO0:
            while wos and n < WPS: fill.append(wos.pop(0)); n += 1
        def part(l, lo, hi): n = -(-len(l) // (hi - lo)); return l[(s - lo) * n:(s - lo + 1) * n] if lo <= s < hi else []
        oth = part(ust + upr, M1, M1 + opt('un', 3)) + part(early, opt('e0', 3), opt('e1', 6)) + part(modw, opt('m0', 2), MB) + part(s2, 9, 12)
        if s == MB: oth += lm.fin()
        oth += part(so, 8, 12) + part(w2dma, opt('xr', 12), opt('xr', 12) + 1) + part(s3_ + s4 + side, 13, 20)
        if s == FBI: oth += [fb_issue]
        if s == opt('mli', 19): oth += MLD
        if s == opt('wop', 3): oth += WOP
        fill = mix(oth, fill) if len(oth) > len(fill) else mix(fill, oth)
        if s == MB:
            def mid(): a(woc[0]); a.wait_id(H['v']); a.wait(lg=0); a('s_nop 2'); spin('WO', WOP, woc); a.barrier(); tn(a, 'mid'); a(f'buffer_store_dword v248, v249, {WSR}, s50 offen sc1')
            fill = [mid] + fill
        tn(a, f's{s}')
        spread(a, main, fill, hi=18)
    assert not wq_rest
    tn(a, 'p1e')
    w1q = [w1_ld(f) for f in range(60)]
    def w1n(n):
        l = w1q[:n]; del w1q[:n]; return l
    st = []
    for sl in range(4):
        for mt in range(5):
            if sl == 3 and mt == 0: continue
            ac = ACC + 4 * (sl * 5 + mt - (1 if sl == 3 else 0))
            st += [f'v_cvt_pk_bf16_f32 v{ac}, v{ac}, v{ac+1}', f'v_cvt_pk_bf16_f32 v{ac+1}, v{ac+2}, v{ac+3}',
                   f'ds_write_b64 v{24+sl}, v[{ac}:{ac+1}] offset:{512*mt}']
    if FBI == 20: fb_issue()
    spread(a, st, wos)
    fb_check()
    a.wait(lg=0); a.barrier()
    tn(a, 'db')
    fb_after()
    K0, K1, VR, SR = 120, 130, 140, 176
    st = []; A = st.append
    def sx(m): A(f's_mov_b32 exec_lo, {hex(m & 0xffffffff)}'); A(f's_mov_b32 exec_hi, {hex(m >> 32)}')
    for t in w1n(opt('n1', 6)): a(t)
    for t in range(5):
        a(f'ds_read_b64 v[{K0+2*t}:{K0+2*t+1}], v28 offset:{(5+t)*2560}')
        a(f'ds_read_b64 v[{K1+2*t}:{K1+2*t+1}], v28 offset:{(5+t)*2560+512}')
    for h in range(4):
        k.setexec((FULL << (16 * h)) & FULL)
        a(f'ds_read_b64 v[{QR+4*h}:{QR+4*h+1}], v28 offset:{h*2560+512}')
        k.setexec((1 << (16 * (h + 1))) - 1)
        a(f'ds_read_b64 v[{QR+4*h+2}:{QR+4*h+3}], v28 offset:{(h+1)*2560+512}')
    for t in range(5):
        a(f'ds_read_b64_tr_b16 v[{VR+4*t}:{VR+4*t+1}], v29 offset:{(10+t)*2560}')
        a(f'ds_read_b64_tr_b16 v[{VR+4*t+2}:{VR+4*t+3}], v29 offset:{(10+t)*2560+512}')
    H = range(4)
    for h in H:
        A(f'{MF} v[{SR+8*h}:{SR+8*h+3}], v[{K0+2*h}:{K0+2*h+3}], v[{QR+4*h}:{QR+4*h+3}], v[34:37]')
        A(f'{MF} v[{SR+8*h+4}:{SR+8*h+7}], v[{K1+2*h}:{K1+2*h+3}], v[{QR+4*h}:{QR+4*h+3}], 0')
    for h in H:
        b = SR + 8 * h
        for e in (0, 2, 4, 6): A(f'v_cndmask_b32 v{b+e}, v{b+e}, v{b+e+1}, s[74:75]')
        A(f'v_cndmask_b32 v{b}, v{b}, v{b+4}, s[76:77]'); A(f'v_cndmask_b32 v{b+1}, v{b+2}, v{b+6}, s[78:79]')
    def bfly(op, r):
        for sw in ('v_permlane16_swap_b32', 'v_permlane32_swap_b32'):
            for h in H: A(f'v_mov_b32 v{SR+8*h+r+1}, v{SR+8*h+r}')
            for h in H: A(f'{sw} v{SR+8*h+r}, v{SR+8*h+r+1}')
            for h in H: A(f'{op} v{SR+8*h+r}, v{SR+8*h+r}, v{SR+8*h+r+1}')
    for h in H: A(f'v_max_f32 v{SR+8*h+2}, v{SR+8*h}, v{SR+8*h+1}')
    bfly('v_max_f32', 2)
    CS = LOG2E * 20 ** -0.5
    A(f's_mov_b32 s57, {fl(CS)}')
    for h in H: A(f'v_mul_f32 v{SR+8*h+2}, {fl(-CS)}, v{SR+8*h+2}')
    for h in H:
        b = SR + 8 * h
        A(f'v_fma_f32 v{b}, v{b}, s57, v{b+2}'); A(f'v_fma_f32 v{b+1}, v{b+1}, s57, v{b+2}')
    for h in H:
        b = SR + 8 * h
        A(f'v_exp_f32 v{b}, v{b}'); A(f'v_exp_f32 v{b+1}, v{b+1}')
    for h in H: A(f'v_add_f32 v{SR+8*h+2}, v{SR+8*h}, v{SR+8*h+1}')
    bfly('v_add_f32', 2)
    for h in H: A(f'v_rcp_f32 v{SR+8*h+2}, v{SR+8*h+2}')
    for h in H:
        b = SR + 8 * h
        A(f'v_mul_f32 v{b}, v{b}, v{b+2}'); A(f'v_mul_f32 v{b+1}, v{b+1}, v{b+2}')
    for h in H: A(f'v_cvt_pk_bf16_f32 v{SR+8*h}, v{SR+8*h}, v{SR+8*h+1}')
    for h in H:
        b = SR + 8 * h
        for q in range(4): A(f'v_perm_b32 v{b+4+q}, v{b}, v{b}, v{30+q}')
    OR = 40
    for h in H:
        b = SR + 8 * h + 4
        A(f'{MF} v[{OR+8*h}:{OR+8*h+3}], v[{VR+4*h}:{VR+4*h+3}], v[{b}:{b+3}], 0')
        A(f'{MF} v[{OR+8*h+4}:{OR+8*h+7}], v[{VR+4*h+4}:{VR+4*h+7}], v[{b}:{b+3}], 0')
    spread(a, st, w1n(opt('n2', 22)), lo=opt('n2lo', 8), hi=opt('n2hi', 110))
    a(f's_mul_i32 s28, s{S_RB}, {RSZ}'); a(f's_add_u32 s28, s28, {WS_OF}'); a(f's_mul_i32 s57, s{S_W}, 20480'); a('s_add_u32 s57, s57, s28')
    frag_offsets(a, 57, 58, 3)
    F = 80
    a(f'v_cvt_pk_bf16_f32 v{F}, v{OR}, v{OR+1}'); a(f'v_cvt_pk_bf16_f32 v{F+1}, v{OR+2}, v{OR+3}')
    for t in (1, 2, 3, 4):
        s_ = OR + 8 * (t - 1) + 4
        a(f'v_cvt_pk_bf16_f32 v{F+2*t}, v{s_}, v{s_+1}'); a(f'v_cvt_pk_bf16_f32 v{F+2*t+1}, v{s_+2}, v{s_+3}')
    for t in (1, 2, 3):
        k.setexec((FULL << (16 * t)) & FULL)
        s_ = OR + 8 * t
        a(f'v_cvt_pk_bf16_f32 v{F+2*t}, v{s_}, v{s_+1}'); a(f'v_cvt_pk_bf16_f32 v{F+2*t+1}, v{s_+2}, v{s_+3}')
    a('s_mov_b64 exec, -1')
    fb_fast()
    h = k.stores(frag_store80(F, 57, 58))
    tn(a, 'att')
    XR, ACC = 64 + 28, 40
    GA, GG = 152, 40; X1 = 92
    a(f's_mul_i32 s3, s{S_W}, 5120')
    a('s_add_u32 s57, s28, s3')
    for q in range(4):
        a(f's_add_u32 s3, s{S_W}, {q+1}'); a('s_and_b32 s3, s3, 3')
        a(f's_mul_i32 s58, s3, 20480'); a(f's_add_u32 s{32+q}, s58, s57')
        if q < 3:
            a('s_mul_i32 s58, s3, 15360'); a(f's_add_u32 s58, s58, {q*5120}'); a(f'v_add_u32 v{20+q}, s58, v4')
    a(f's_mul_i32 s58, s{S_W}, 15360'); a('v_add_u32 v23, s58, v4')
    a(f'v_lshlrev_b32 v24, 4, v2'); a(f'v_add_u32 v24, {L_OWN}, v24')
    mod2_fin()
    for t in range(5): a(f'ds_read_b64 v[{10+2*t}:{11+2*t}], v39 offset:{32*t}')
    k.publish(h, 1, 3)
    tn(a, 'pb1')
    for t in w1n(opt('n3', 0)): a(t)
    k.poll(1, 3)
    tn(a, 'p2')
    for q in range(4):
        for i in range(5): a(ld(q4('v', XR + (q * 5 + i) * 4), i, 32 + q, sc1=True))
    prev = []
    for q in range(4):
        ac = ACC + 20 * (q & 1)
        main = []
        for i in range(5):
            for t in range(5):
                c = '0' if i == 0 else q4('v', ac + 4 * t)
                main.append(f'{MF} {q4("v", ac + 4*t)}, {wo_reg(t, i)}, {q4("v", XR + (q*5+i)*4)}, {c}')
        spread(a, main, prev + (w1n(opt('n4', 8)) if q >= 1 else []), lo=4, hi=22)
        prev = [f'ds_write_b128 v{20+q}, {q4("v", ac+4*t)} offset:{1024*t}' for t in range(5)] if q < 3 else []
    tn(a, 'p2m')
    a(f's_add_u32 s31, s28, {WS_X1G - WS_OF}'); a(f's_mul_i32 s57, s{S_W}, 20480'); a('s_add_u32 s57, s57, s31')
    frag_offsets(a, 57, 58, 3)
    a('v_lshlrev_b32 v38, 6, v38'); a(f's_lshl3_add_u32 s59, s{S_J}, s31'); a('s_add_u32 s59, s59, 81920')
    a.wait(lg=0); a.barrier()
    tn(a, 'p2b')
    R = ACC + 20
    for q in range(3):
        for t in range(5): a(f'ds_read_b128 {q4("v", XR + (q*5+t)*4)}, v23 offset:{q*5120+t*1024}')
    for v, b in enumerate((GA, GG)):
        for t in range(5): a(f'ds_read_b128 v[{b+4*t}:{b+4*t+3}], v24 offset:{(20*v+4*t)*16}')
    w2s = [w2_ld(f) for f in range(60)]
    st = []; A = st.append
    for q in range(3):
        for t in range(5):
            r = XR + (q * 5 + t) * 4
            for e in (0, 2): A(f'v_pk_add_f32 v[{R+4*t+e}:{R+4*t+e+1}], v[{R+4*t+e}:{R+4*t+e+1}], v[{r+e}:{r+e+1}]')
        if q == 0:
            for e in range(10): st += unpack(X1 + 2 * e, X1 + 2 * e + 1, 10 + e)
    for e in range(10): A(f'v_pk_fma_f32 v[{X1+2*e}:{X1+2*e+1}], v[{R+2*e}:{R+2*e+1}], v[{GA+2*e}:{GA+2*e+1}], v[{X1+2*e}:{X1+2*e+1}]')
    for e in range(10): A(f'v_cvt_pk_bf16_f32 v{10+e}, v{X1+2*e}, v{X1+2*e+1}')
    for e in range(10): st += unpack(X1 + 2 * e, X1 + 2 * e + 1, 10 + e)
    for e in range(10): A(f'v_pk_mul_f32 v[{R+2*e}:{R+2*e+1}], v[{X1+2*e}:{X1+2*e+1}], v[{GG+2*e}:{GG+2*e+1}]')
    F = 80
    for e in range(10): A(f'v_cvt_pk_bf16_f32 v{F+e}, v{R+2*e}, v{R+2*e+1}')
    spread(a, st, w1n(opt('n5', 8)), hi=opt('n5hi', 60))
    k.stores(frag_store80(F, 57, 58))
    a(f'v_pk_add_f32 v[24:25], v[{X1}:{X1+1}], v[{X1+2}:{X1+3}]'); a(f'v_pk_mul_f32 v[26:27], v[{X1}:{X1+1}], v[{X1}:{X1+1}]')
    for e in range(1, 10):
        p = f'v[{X1+2*e}:{X1+2*e+1}]'
        if e > 1: a(f'v_pk_add_f32 v[24:25], v[24:25], {p}')
        a(f'v_pk_fma_f32 v[26:27], {p}, {p}, v[26:27]')
    a('v_add_f32 v24, v24, v25'); a('v_add_f32 v25, v26, v27')
    for sw in ('v_permlane16_swap_b32', 'v_permlane32_swap_b32'):
        a('v_mov_b32 v26, v24'); a('v_mov_b32 v27, v25')
        a(f'{sw} v24, v26'); a(f'{sw} v25, v27')
        a('v_add_f32 v24, v24, v26'); a('v_add_f32 v25, v25, v27')
    h = k.stores(['s_mov_b64 exec, 0xffff', f'buffer_store_dwordx2 v[24:25], v38, {WSR}, s59 offen', 's_mov_b64 exec, -1'])
    hst = a.vm[-1][0]
    tn(a, 'p2e')
    if opt('ot', 0) == 2: a(OTCH.format(23))
    for t in w1n(99): a(t)
    XF = 40; NB = 6; ACC = 64; U1, T1, T = 88, 100, 112
    a('v_and_b32 v3, 1, v1'); a('v_lshlrev_b32 v3, 6, v3'); a('v_lshl_add_u32 v20, v2, 4, v3'); a(f'v_add_u32 v20, {L_GS}, v20')
    a(f'v_add_u32 v21, {L_X3}, v4'); a(f'v_add_u32 v22, {L_X3 + 40960}, v4')
    def xr(mt, s, slot):
        if mt == 4: return f'ds_read_b128 {q4("v", XF + 4*slot)}, v20 offset:{128*s}'
        return f'ds_read_b128 {q4("v", XF + 4*slot)}, v{21 + mt//2} offset:{((mt%2)*20+s)*1024}'
    PF = NB - 1
    def p3pass(mt, acb, fill, nxt=None, pre=True, lo=6, hi=56, base=0):
        if pre:
            for p in range(PF): a(xr(mt, p, (base + p) % NB))
        main = []
        for s in range(20):
            if s + PF < 20: main.append(xr(mt, s + PF, (base + s + PF) % NB))
            elif nxt is not None: main.append(xr(nxt, s + PF - 20, (base + s + PF) % NB))
            for t in range(3):
                c = '0' if s == 0 else q4('v', acb + 4 * t)
                main.append(f'{MF} {q4("v", acb + 4*t)}, {w1_reg(s*3+t)}, {q4("v", XF + 4*((base + s) % NB))}, {c}')
        spread(a, main, fill, lo=lo * 4 // 3, hi=hi * 4 // 3)
    a(f's_mul_i32 s55, s{S_W}, 5120'); a('s_add_u32 s29, s31, s55'); a(f's_add_u32 s55, s55, {L_X3}')
    def xdma(mt):
        a(f's_add_u32 s30, s29, {mt*20480}'); a(f's_add_u32 m0, s55, {mt*20480}')
        for i in range(4): a(f'buffer_load_dwordx4 v4, {WSR}, s30 offen offset:{1024*i} sc1 lds')
        a(f's_add_u32 m0, s55, {mt*20480 + 4096}')
        return a(f'buffer_load_dwordx4 v5, {WSR}, s30 offen sc1 lds')
    W2E = opt('w2e', 6)
    p3pass(4, ACC + 12, [lambda: k.publish(hst, 2, 3)] + w2s[:W2E], lo=opt('pb2', 18), hi=opt('pb2', 18) + 1 + 2 * W2E)
    for t in w2s[W2E:W2E + opt('w2f', 0)]: a(t)
    W2E += opt('w2f', 0)
    tn(a, 'u1')
    k.poll(2, 3)
    hx = [xdma(0)]
    hx += [xdma(mt) for mt in range(1, 4)]
    C = -LOG2E
    for e in range(12):
        a(f'v_mov_b32_dpp v{U1+e}, v{ACC+12+e} quad_perm:[0,0,2,2] row_mask:0xf bank_mask:0xf')
        a(f'v_mov_b32_dpp v{T1+e}, v{ACC+12+e} quad_perm:[1,1,3,3] row_mask:0xf bank_mask:0xf')
    for e in range(12): a(f'v_mul_f32 v{T1+e}, {fl(C)}, v{T1+e}')
    a(f's_mul_i32 s53, s{S_J}, 6144'); a('s_add_u32 s52, s28, s53')
    a(f's_lshr_b32 s53, s{S_W}, 1'); a('s_lshl_b32 s53, s53, 10'); a('s_add_u32 s53, s53, s52'); a('s_add_u32 s53, s53, 4096')
    a(f's_and_b32 s3, s{S_W}, 1'); a('s_lshl3_add_u32 s53, s3, s53')
    a(f's_lshl_b32 s3, s{S_W}, 10'); a('s_add_u32 s52, s52, s3')
    a(f's_mov_b32 s54, {fl(C)}')
    a('s_add_u32 s30, s31, 81920')
    a('v_lshlrev_b32 v3, 6, v1'); a('v_lshl_add_u32 v3, v2, 4, v3')
    a.wait_id(hx[0]); a.barrier()
    tn(a, 'p3')
    for mt in range(4): a(f'buffer_load_dwordx4 v[{24+4*mt}:{27+4*mt}], v3, {WSR}, s30 offen offset:{1024*mt} sc1')
    M = range(4); st = []; A = st.append
    for m in M: A(f'v_add_f32 v{24+4*m}, v{24+4*m}, v{26+4*m}'); A(f'v_add_f32 v{25+4*m}, v{25+4*m}, v{27+4*m}')
    for sw in ('v_permlane16_swap_b32', 'v_permlane32_swap_b32'):
        for m in M: A(f'v_mov_b32 v{26+4*m}, v{24+4*m}'); A(f'v_mov_b32 v{27+4*m}, v{25+4*m}')
        for m in M: A(f'{sw} v{24+4*m}, v{26+4*m}'); A(f'{sw} v{25+4*m}, v{27+4*m}')
        for m in M: A(f'v_add_f32 v{24+4*m}, v{24+4*m}, v{26+4*m}'); A(f'v_add_f32 v{25+4*m}, v{25+4*m}, v{27+4*m}')
    A(f'v_mov_b32 v3, {fl(1e-5)}')
    for m in M: A(f'v_mul_f32 v{26+4*m}, s56, v{24+4*m}')
    for m in M: A(f'v_fma_f32 v{25+4*m}, v{25+4*m}, s56, v3')
    for m in M: A(f'v_fma_f32 v{25+4*m}, -v{26+4*m}, v{26+4*m}, v{25+4*m}')
    for m in M: A(f'v_max_f32 v{25+4*m}, v{25+4*m}, v3')
    for m in M: A(f'v_rsq_f32 v{24+4*m}, v{25+4*m}')
    for m in M: A(f'v_mul_f32 v{24+4*m}, s54, v{24+4*m}')
    for m in M: A(f'v_mul_f32 v{25+4*m}, -v{26+4*m}, v{24+4*m}')
    hs = {}
    def epi_ops(mt):
        ac = ACC + 12 * (mt & 1); P = 24 + 4 * mt; o = {}
        for e in range(12):
            o['A', e] = ([], f'v_fma_f32 v{T+e}, v{U1+e}, v{P+1}, v{T1+e}')
            o['B', e] = ([('A', e)], f'v_fma_f32 v{ac+e}, v{ac+e}, v{P}, v{T+e}')
            o['X', e] = ([('B', e)], f'v_exp_f32 v{T+e}, v{ac+e}')
            o['C', e] = ([('X', e)], f'v_fma_f32 v{T+e}, v{T+e}, s54, s54')
            o['R', e] = ([('C', e)], f'v_rcp_f32 v{T+e}, v{T+e}')
            o['M', e] = ([('R', e)], f'v_mul_f32 v{ac+e}, v{ac+e}, v{T+e}')
        for e in range(6): o['V', e] = ([('M', 2 * e), ('M', 2 * e + 1)], f'v_cvt_pk_bf16_f32 v{T+e}, v{ac+2*e}, v{ac+2*e+1}')
        return o
    def sto(mt):
        def f():
            hs[mt] = k.stores([f'buffer_store_dwordx4 v[{T}:{T+3}], v4, {WSR}, s52 offen', f'buffer_store_dwordx2 v[{T+4}:{T+5}], v4, {WSR}, s53 offen'])
            d = 49152 if mt != 1 else WS_X1G - WS_OF - 49152
            a(f's_add_u32 s52, s52, {d}'); a(f's_add_u32 s53, s53, {d}')
        return f
    def epi_slots(mt, p0=1):
        o = epi_ops(mt); done = {}; sl = {}; p = p0
        def ready(x, n): return all(d in done and done[d] + (2 if o_k(d) else 0) < n for d in o[x][0])
        def o_k(x): return x[0] in 'XR'
        while len(done) < len(o):
            n = 2 * p
            c = [x for kk in 'RX' for x in o if x[0] == kk and x not in done and ready(x, n)]
            if c: sl.setdefault(n, []).append(o[c[0]][1]); done[c[0]] = n
            n += 1
            for _ in range(opt('npl', 3) if c else 5):
                c2 = [x for kk in 'CBVMA' for x in o if x[0] == kk and x not in done and ready(x, n)]
                if not c2: break
                sl.setdefault(n, []).append(o[c2[0]][1]); done[c2[0]] = n
            p += 1
        sl.setdefault(2 * p, []).append(sto(mt))
        return sl
    def emit(mf, *plans):
        sl = {}
        for pl in plans:
            if isinstance(pl, dict):
                for n, v in pl.items(): sl.setdefault(n, []).extend(v)
            else:
                it, lo, hi = pl
                for i, t in enumerate(it): sl.setdefault((lo + (hi - lo) * i // max(1, len(it))) // 2 * 2, []).append(t)
        assert max(sl) < len(mf), (max(sl), len(mf))
        for n, m_ in enumerate(mf):
            a(m_)
            for t in sl.get(n, []):
                if callable(t): t()
                else: a(t)
    def p3mf(mt, base): return [f'{MF} {q4("v", ACC + 12 * (mt & 1) + 4*t)}, {w1_reg(s*3+t)}, {q4("v", XF + 4*((base + s) % NB))}, {"0" if s == 0 else q4("v", ACC + 12 * (mt & 1) + 4*t)}' for s in range(20) for t in range(3)]
    def p3rd(mt, base, nxt):
        d = {}
        for s in range(20):
            n = (3 * s + 1) // 2 * 2 if s else 0
            n = max(n, 3 * s - 1); n += n & 1
            if s + PF < 20: d.setdefault(min(n, 58), []).append(xr(mt, s + PF, (base + s + PF) % NB))
            elif nxt is not None: d.setdefault(min(n, 58), []).append(xr(nxt, s + PF - 20, (base + s + PF) % NB))
        return d
    def x4reg(q, i):
        if q == 0: return q4('v', 124 + 4 * i)
        if q == 1: return q4('v', 172 + 4 * i)
        if q == 2: return q4('v', 80 + 4 * i) if i < 11 else q4('v', 220)
        return q4('v', 224 + 4 * i) if i < 8 else q4('a', 140 + 4 * (i - 8))
    def x4ld(q): return [ld(x4reg(q, i), i, 32 + q, sc1=True) for i in range(12)]
    SQ = {8: 0, 5: 20480, 6: 40960, 7: 61440}
    def stg(f):
        i, t = divmod(f, 5)
        b, o = (57, SQ[i] + 1024 * t) if i < 9 else (58, 1024 * t)
        return f's_add_u32 m0, s{b}, {o - 1024 * (i % 4)}\nbuffer_load_dwordx4 v{4 + i // 4}, {WSR}, s{44 + t} offen offset:{1024 * (i % 4)}{WB} lds'
    def stg_rd(f):
        i, t = divmod(f, 5)
        if i == 9: return f'ds_read_b128 {w2_reg(f)}, v23 offset:{1024 * t}'
        return f'ds_read_b128 {w2_reg(f)}, v21 offset:{SQ[i] + 1024 * t}' if SQ[i] + 1024 * t < 65536 else f'ds_read_b128 {w2_reg(f)}, v23 offset:{1024 * t}'
    a(f's_mul_i32 s57, s{S_W}, 5120'); a(f's_mul_i32 s58, s{S_W}, 3072'); a(f's_add_u32 s58, s58, {L_XR}')
    HS = {}
    wl = w2s[W2E:25] + [stg(f) for f in list(range(25, 35)) + list(range(40, 48))] + [stg(f) for f in range(35, 40)] + [lambda: HS.update(s=a.vm[-1][0])]
    L0 = opt('l0', 13); L1 = opt('l1', 14)
    assert len(wl) - L0 >= 6
    for p in range(PF): a(xr(0, p, p % NB))
    emit(p3mf(0, 0), p3rd(0, 0, None), (wl[:L0], 2, opt('l0hi', 56)), {n: st[4 * ((n - 15) // 2):4 * ((n - 15) // 2) + 4] for n in range(15, 59, 2)})
    assert len(st) <= 88
    a(f's_mul_i32 s3, s{S_W}, 12288'); a('s_add_u32 s32, s28, s3'); a('s_add_u32 s33, s32, 49152'); a('s_add_u32 s34, s31, s3'); a('s_add_u32 s35, s34, 49152')
    a('v_bfe_u32 v20, v0, 3, 2'); a('v_lshl_add_u32 v20, v20, 7, v9'); a('s_and_b32 s29, s27, 0xfffffe00')
    a.wait_id(hx[3]); a.barrier()
    tn(a, 'a0')
    for p in range(PF): a(xr(1, p, p % NB))
    PB = opt('pb', 14)
    emit(p3mf(1, 0), p3rd(1, 0, 2), epi_slots(0), (wl[L0:L0 + L1], 0, 54))
    tn(a, 'a1')
    emit(p3mf(2, 20), p3rd(2, 20, 3), epi_slots(1), {PB: [lambda: k.publish(hs[0], 3, 3)]}, (wl[L0 + L1:], 0, 54), {58: [k.poll_issue(3, 20, 29), 'v_add_u32 v21, s57, v4']})
    tn(a, 'a2')
    x0, x1, x2, x3 = (x4ld(q) for q in range(4))
    late = w2s[48:]
    rd = {}
    for f in list(range(25, 39)) + list(range(40, 45)): rd.setdefault(max(f - 25 + 3, 8 + 2 * (f - 25)) // 2 * 2, []).append(stg_rd(f))
    rd[6] = [lambda: a.wait_id(HS['s'])]
    rd.setdefault(48, []).extend(['v_add_u32 v23, 61440, v21', stg_rd(39)]); rd.setdefault(50, []).extend(['v_add_u32 v23, s58, v4', stg_rd(45)])
    rd.setdefault(52, []).append(stg_rd(46)); rd.setdefault(54, []).append(stg_rd(47))
    NL = opt('nl', 4); PC = opt('pc', 8)
    emit(p3mf(3, 40), p3rd(3, 40, None), epi_slots(2), {PC: [lambda: k.poll_check(3, 3, 20, 29)], PB: [lambda: k.publish(hs[1], 4, 3)]}, rd,
         (x0[:9], PC + 2, 40), (late[:NL], 42, 56), {58: [k.poll_issue(3)]})
    tn(a, 'p4')
    def ac4(q, t): return q4('v', 40 + 4 * t) if q % 2 == 0 else q4('v', 60 + 4 * t if t < 4 else 24)
    def p4mf(q, i0, i1): return [f'{MF} {ac4(q, t)}, {w2_reg(i*5+t)}, {x4reg(q, i)}, {"0" if i == 0 else ac4(q, t)}' for i in range(i0, i1) for t in range(5)]
    def red(q): return [f'ds_write_b128 v{21 if q < 3 else 23}, {ac4(q, t)} offset:{(q%3)*20480 + 1024*t}' for t in range(5)]
    mf = p4mf(0, 0, 9) + p4mf(1, 0, 9) + p4mf(0, 9, 12) + p4mf(1, 9, 12) + p4mf(2, 0, 12) + p4mf(3, 0, 12)
    def wb():
        n = opt('wb2', 1)
        if not n: return
        a(f's_lshl2_add_u32 s3, s2, s{S_W}'); a(f's_and_b32 s3, s3, {hex({1: 0x3e3, 2: 0x383, 3: 3}[n])}'); a('s_cbranch_scc0 WBL')
        a(k.poll_issue(20)); a.label('WBR')
        k.tail.append('WBL:\n  buffer_wbl2 sc1\n  s_branch WBR')
    VA, VB, VC, VX, VG, VO, VO4 = range(176, 183)
    OB = ['', ' sc1', ' nt', ' sc0 sc1', ' sc1 nt'][opt('ob', 0)]
    adr = [f's_lshl_b32 s3, s{S_W}, 10', f'v_add_u32 v{VA}, s3, v4', f'v_add_u32 v{VB}, 61440, v{VA}', f's_mul_i32 s49, s{S_W}, 20480', 's_add_u32 s3, s49, 4096', f'v_add_u32 v{VC}, s3, v4',
           f's_lshl_b32 s3, s{S_W}, 9', f's_add_u32 s3, s3, {L_XR}', f'v_lshl_add_u32 v{VX}, v0, 3, s3', f's_lshl_b32 s3, s{S_W}, 6', f'v_lshl_add_u32 v{VG}, v2, 4, s3', f'v_add_u32 v{VG}, {L_OWN + 640}, v{VG}',
           f'v_mul_u32_u24 v{VO}, 1280, v1', f'v_lshl_add_u32 v{VO}, v2, 3, v{VO}', f'v_add_u32 v{VO4}, s49, v{VO}', f's_lshl_b32 s3, s{S_W}, 5', f'v_add_u32 v{VO}, s3, v{VO}',
           f's_mul_i32 s49, s{S_RB}, 81920', 's_add_u32 s61, s61, s49', f'v_lshlrev_b32 v183, 4, v2', f'v_add_u32 v183, {L_OWN + 640 + 256}, v183']
    rdc = [f'ds_read_b128 v[168:171], v{VG}', 'ds_read_b128 v[172:175], v183'] + [f'ds_read_b64 v[{156+2*q}:{157+2*q}], v{VX} offset:{3072*q}' for q in range(4)]
    def unit(q, b):
        P = 124 + 16 * b; X = 164 if q < 4 else 184; G = 168 if q < 4 else 172
        rd = [f'ds_read_b128 {q4("v", P + 4*s_)}, v{VC if q == 4 else VB if q == 3 else VA} offset:{(q*20480 if q < 3 else 0) + 5120*s_}' for s_ in range(4)]
        l = []
        if q < 4: l += unpack(X, X + 1, 156 + 2 * q) + unpack(X + 2, X + 3, 157 + 2 * q)
        l += [f'v_add_f32 v{P+e}, v{P+e}, v{P+4+e}' for e in range(4)] + [f'v_add_f32 v{P+8+e}, v{P+8+e}, v{P+12+e}' for e in range(4)] + [f'v_add_f32 v{P+e}, v{P+e}, v{P+8+e}' for e in range(4)]
        l += [f'v_fma_f32 v{P+e}, v{P+e}, v{G+e}, v{X+e}' for e in range(4)] + [f'v_cvt_pk_bf16_f32 v{188+2*q+e}, v{P+2*e}, v{P+2*e+1}' for e in range(2)]
        if not (q < 3 and q >= DS): l.append(ost(q))
        return rd, l
    DS = opt('ds', 0)
    def ost(q):
        if q < 4: return f's_add_u32 s3, s61, {20480*q}\nbuffer_store_dwordx2 v[{188+2*q}:{189+2*q}], v{VO}, s[{S_O}:{S_O+3}], s3 offen{OB}'
        return f'buffer_store_dwordx2 v[196:197], v{VO4}, s[{S_O}:{S_O+3}], s61 offen offset:128{OB}'
    u4a = unpack(184, 185, 18) + unpack(186, 187, 19)
    def odd(l, n0): return {n0 + 2 * (i // 3): l[i // 3 * 3:i // 3 * 3 + 3] for i in range(0, len(l), 3)}
    def bar(): a.wait(lg=0); a.barrier()
    B1, B2_ = opt('rb1', 144), opt('rb2', 204)
    e3 = epi_slots(3); E3 = max(e3)
    o = lambda n, d: opt(n, d)
    emit(mf, e3, {o('c4', 6): [lambda: k.poll_check(4, 3)], PB: [lambda: k.publish(hs[2], 5, 3)], o('i5', 48): [k.poll_issue(3)], E3 + 2: [lambda: k.poll_check(5, 3)],
                  E3 + PB: [lambda: k.publish(hs[3], 6, 3)], o('i6', 96): [k.poll_issue(3)], o('c6', 108): [lambda: k.poll_check(6, 3)],
                  45: [lambda: tn(a, 'e3')], 90: [lambda: tn(a, 'q0')], 120: [lambda: tn(a, 'q1')], 180: [lambda: tn(a, 'q2')],
                  o('wbp', 130): [wb], 2: ['v_add_u32 v23, 61440, v21', 'v_lshl_add_u32 v22, v0, 3, s58'], B1: [bar], B2_: [bar]},
         ([f'ds_write_b64 v22, v[{10+2*t}:{11+2*t}] offset:{512*t}' for t in range(4)], 4, 12), odd(adr, 121), (rdc + unit(0, 0)[0] + unit(1, 1)[0], B1 + 2, B1 + 14),
         odd(unit(0, 0)[1] + unit(1, 1)[1], B1 + 13), (unit(2, 0)[0], B2_ + 2, B2_ + 6), odd(unit(2, 0)[1] + u4a, B2_ + 9),
         (x1[:9], o('c4', 6) + 2, o('x1hi', 30)), (late[NL:] + x0[9:] + x1[9:], o('x1hi', 30), o('lhi', 72)), (x2, max(E3 + 4, o('lhi', 72)), o('x2hi', 104)), (x3, o('c6', 108) + 2, o('x3hi', 128)),
         (red(0), 108, 118), (red(1), 124, 140), (red(2), 184, 200))
    prev = red(3)
    for t in prev: a(t)
    for q in range(DS, 3): a(ost(q))
    tn(a, 'p4e')
    bar()
    r3, c3 = unit(3, 1); r4, c4 = unit(4, 0)
    for t in r3 + r4 + c3 + c4: a(t)
    gen1.epilogue(a, 'p0')
    for t in k.tail: a.raw(t)
    a.raw('CODE_END:')
    return LDS_SIZE
if __name__ == '__main__':
    t, d, lds = gen1.kernel_text(gen1.NAME + '_kernel', main_kernel)
    open(sys.argv[1], 'w').write(f'; @launch grid=(256,1,1) block=(256,1,1) lds={lds}\n.amdgcn_target "amdgcn-amd-amdhsa--gfx950"\n.text\n' + t + '.section .rodata,"a"\n.p2align 6\n' + d)
```

```python
import sys, struct
from asmfw import *
import gen1
from gen1 import WS_MODP, WS_STATS, WS_WQ, WS_WO, WS_W1, WS_W2, WS_OF, WS_X1G, WS_H1, MF, LOG2E, fl, unpack, srd, S_WS, S_X, S_O, S_RB, S_J, S_W, ts, tsc, ts_flush
WSR = f's[{S_WS}:{S_WS+3}]'
WS_FL = 0x40000
WS_XID = 0x44000
S_FAST = 23
S_E = 24
FULL = (1 << 64) - 1
OPT = sys.argv[2] if len(sys.argv) > 2 else ''
L_DUMP = 102400; L_PERM = 147456
L_MODL = L_PERM; L_XR = L_PERM; L_GS = 159744; L_OWN = L_GS + 2560
L_X3 = 65536
LDS_SIZE = 163840
class K:
    def __init__(s, a): s.a = a; s.tail = []; s.nl = 0
    def setexec(s, m):
        s.a(f's_mov_b32 exec_lo, {hex(m & 0xffffffff)}'); s.a(f's_mov_b32 exec_hi, {hex(m >> 32)}')
    def stores(s, lst):
        a = s.a; s.nl += 1; n = s.nl
        a(f's_cmp_eq_u32 s{S_FAST}, 0'); a(f's_cbranch_scc1 SLOW{n}')
        h = None; n0 = len(a.out)
        for t in lst: h = a(t)
        assert len(a.out) - n0 == len(lst), a.out[n0:]
        a.label(f'RET{n}')
        s.tail.append(f'SLOW{n}:\n' + ''.join(f'  {t}{" sc1" if t.startswith("buffer") else ""}\n' for t in lst) + f'  s_branch RET{n}')
        return h
    def publish(s, h, val, vt):
        s.a(f's_add_u32 s72, s{S_E}, {val}'); s.a(f'v_mov_b32 v{vt}, s72')
        s.a.wait_id(h)
        s.stores([f'buffer_store_dword v{vt}, off, {WSR}, s26'])
    def spin_tail(s, n, val, vt, va=9, so=27):
        s.tail.append(f'''SPIN{n}:
  s_mov_b32 s72, 0x8000
SPINL{n}:
  buffer_load_dword v{vt}, v{va}, {WSR}, s{so} offen sc1
  s_waitcnt vmcnt(0)
  v_subrev_u32 v{vt}, s{S_E}, v{vt}
  v_add_u32 v{vt}, {-val}, v{vt}
  v_cmp_gt_u32 vcc, 8, v{vt}
  s_sub_u32 s72, s72, 1
  s_cbranch_scc1 PDONE{n}
  s_cmp_eq_u64 vcc, -1
  s_cbranch_scc0 SPINL{n}
  s_branch PDONE{n}''')
    def poll(s, val, vt):
        a = s.a; s.nl += 1; n = s.nl
        a.wait(lg=0)
        if not opt('sp', 0):
            a(f's_branch SPIN{n}')
        else:
            a(f's_cmp_eq_u32 s{S_FAST}, 0'); a(f's_cbranch_scc1 SPIN{n}')
            a('s_mov_b32 s72, 0x8000'); a(f's_add_u32 s73, s{S_E}, {val}')
            a.label(f'POLL{n}')
            a(f's_load_dwordx8 s[64:71], s[{S_WS}:{S_WS+1}], s27 glc')
            a('s_sub_u32 s72, s72, 1'); a(f's_cbranch_scc1 PDONE{n}')
            a.wait(lg=0)
            for q in range(8): a(f's_sub_u32 s{64+q}, s{64+q}, s73')
            for q in range(1, 8): a(f's_max_u32 s64, s64, s{64+q}')
            a('s_cmp_lt_u32 s64, 8'); a(f's_cbranch_scc0 POLL{n}')
        a.label(f'PDONE{n}')
        a.fwait('lgkmcnt(0)')
        s.spin_tail(n, val, vt)
    def poll_issue(s, vt, va=9, so=27): return f'buffer_load_dword v{vt}, v{va}, {WSR}, s{so} offen sc1'
    def poll_check(s, val, vt, va=9, so=27):
        a = s.a; s.nl += 1; n = s.nl
        a(f's_add_u32 s72, s{S_E}, {val}'); a(f'v_subrev_u32 v{vt}, s72, v{vt}'); a(f'v_cmp_gt_u32 vcc, 8, v{vt}'); a('s_nop 3')
        a('s_cmp_eq_u64 vcc, -1'); a(f's_cbranch_scc0 SPIN{n}')
        a.label(f'PDONE{n}')
        s.spin_tail(n, val, vt, va, so)
def spread(a, main, fill, lo=0, hi=None):
    n = len(main); hi = n if hi is None else hi
    fi = 0; m = len(fill)
    def em(x):
        if callable(x): x()
        else: a(x)
    for i, t in enumerate(main):
        em(t)
        if i >= lo:
            tgt = min(m, -(-m * (i - lo + 1) // max(1, hi - lo)))
            while fi < tgt: em(fill[fi]); fi += 1
    while fi < m: em(fill[fi]); fi += 1
def mix(x, y):
    out = []; j = 0
    for i, t in enumerate(x):
        out.append(t)
        while j < len(y) and j * len(x) < (i + 1) * len(y): out.append(y[j]); j += 1
    return out + y[j:]
def frag_offsets(a, sb, s2, st):
    a(f's_lshr_b32 s{st}, s{S_J}, 1'); a(f's_mul_i32 s{st}, s{st}, 5120'); a(f's_add_u32 s{sb}, s{sb}, s{st}')
    a(f's_and_b32 s{st}, s{S_J}, 1')
    a(f's_lshl3_add_u32 s{s2}, s{st}, s{sb}'); a(f's_add_u32 s{s2}, s{s2}, 4096')
    a(f's_lshl_b32 s{st}, s{st}, 11'); a(f's_add_u32 s{sb}, s{sb}, s{st}')
def frag_store80(F, sb, s2):
    return [f'buffer_store_dwordx4 v[{F}:{F+3}], v4, {WSR}, s{sb} offen',
            f'buffer_store_dwordx4 v[{F+4}:{F+7}], v4, {WSR}, s{sb} offen offset:1024',
            f'buffer_store_dwordx2 v[{F+8}:{F+9}], v4, {WSR}, s{s2} offen']
def ld(reg, s, soff, srd_=WSR, sc1=False):
    return f'buffer_load_dwordx4 {reg}, v{4 + s // 4}, {srd_}, s{soff} offen offset:{1024 * (s % 4)}' + (sc1 if isinstance(sc1, str) else ' sc1' if sc1 else '')
def q4(k, b): return f'{k}[{b}:{b+3}]'
RING = 9
def wq_reg(s, sl): return q4('a', 16 * (s % RING) + 4 * sl)
def wo_reg(t, i): return q4('a', 156 + 4 * (i * 5 + t))
def w1_reg(f): return q4('a', 4 * f) if f < 39 else q4('v', 172 + 4 * (f - 39))
def w2_reg(f): return q4('a', 156 + 4 * f) if f < 25 else q4('a', 4 * (f - 25))
WB = [' sc1', '', ' nt', ' sc1 nt', ' sc0', ' sc0 nt'][int(([o[3:] for o in OPT.split(',') if o.startswith('wb=')] + ['0'])[0])]
def wq_ld(s, sl): return ld(wq_reg(s, sl), s, 32 + sl, 's[12:15]' if sl == 2 else WSR, WB)
def wo_ld(t, i): return ld(wo_reg(t, i), i, 36 + t, WSR, WB)
def w1_ld(f): return ld(w1_reg(f), f // 3, 41 + f % 3, WSR, WB)
def w2_ld(f): return ld(w2_reg(f), f // 5, 44 + f % 5, WSR, WB)


WS_EP = 0x48000; WS_FA = 0x49000; WS_FB = 0x4A000
S_E = 24
L_ST = L_DUMP; L_MR = 143360; RSZ = 98304
def opt(name, d):
    for o in OPT.split(','):
        if o.startswith(name + '='): return int(o.split('=')[1])
    return d
NT = ' nt' if opt('nt', 1) else ''; NTM = ' nt' if opt('ntm', 1) else ''; NTX = ' nt' if opt('ntx', 0) else ''; NTT = ' nt' if opt('ntt', 0) else ''
NXE = opt('nxe', 3); PUBE = opt('pube', 1)
TS = {n: i for i, n in enumerate(('p3', 'a0', 'a1', 'a2', 'p4', 'e3', 'q0', 'q1', 'q2', 'p4e') if 'traceQ' in OPT else ('p1e', 'db', 'att', 'pb1', 'p2', 'p2m', 'p2b', 'p2e', 'u1', 'p3') if 'traceR' in OPT else ('p1', 's2', 's4', 's6', 's8', 's10', 's13', 's15', 's17', 'p1e') if 'traceP' in OPT else ('s', 'dec', 'ka', 'b1', 'st', 'pub', 'xi', 'x0', 'x4', 'ln') if 'traceG' in OPT else ('s', 'ln', 'b2', 'pi', 'mf', 'vp', 'pw', 'fa', 'poll', 'bar') if 'traceH' in OPT else ('s', 'pub', 'pi', 'pw', 'poll', 'bar', 'ln', 'p1', 'p1e', 'att') if 'traceF' in OPT else ('s', 'bar', 'p1', 'p1e', 'att', 'p2', 'p2e', 'p3', 'p4', 'p4e'))}
def tn(a, n):
    if n in TS: ts(a, TS[n])
XN = 40
def pairs(a, st, n, dA, dB, t):
    mg, ta, tb = (13108, 0x47520, 0x98631) if n == 5 else (10923, 0x829630, 0xb5a741)
    a(f's_mul_i32 s{dA}, s{st}, {mg}'); a(f's_lshr_b32 s{dA}, s{dA}, 16'); a(f's_mul_i32 s{dB}, s{dA}, {n}')
    a(f's_sub_u32 s{t}, s{st}, s{dB}'); a(f's_lshl_b32 s{t}, s{t}, 2')
    a(f's_lshr_b32 s{dA}, {hex(ta)}, s{t}'); a(f's_and_b32 s{dA}, s{dA}, 15'); a(f's_lshl1_add_u32 s{dA}, s{dB}, s{dA}')
    a(f's_lshr_b32 s{t}, {hex(tb)}, s{t}'); a(f's_and_b32 s{t}, s{t}, 15'); a(f's_lshl1_add_u32 s{dB}, s{dB}, s{t}')
def perm_src(x, st, n, stride, vd, so, colb, A=30, B=31, T=3, v7=5, vt=3):
    pairs(x, st, n, A, B, T)
    x(f's_sub_u32 s{B}, s{B}, s{A}'); x(f's_mul_i32 s{B}, s{B}, {16*stride}'); x(f's_lshl2_add_u32 s{A}, s{A}, s{S_W}')
    x(f's_mul_i32 s{A}, s{A}, {4*stride}'); x(f's_add_u32 s{so}, s{A}, s{colb}')
    x(f'v_bfe_u32 v{vt}, v0, 3, 2'); x(f's_movk_i32 s{T}, {stride}'); x(f'v_mad_u32_u24 v{vd}, v{vt}, s{T}, v{v7}')
    x(f'v_lshrrev_b32 v{vt}, 5, v0'); x(f'v_mad_u32_u24 v{vd}, v{vt}, s{B}, v{vd}')
def tr_addr(x, vd, blk, base, vt=3, T=3):
    x(f's_movk_i32 s{T}, {blk}'); x(f'v_and_b32 v{vt}, 3, v1'); x(f'v_lshlrev_b32 v{vt}, 3, v{vt}'); x(f'v_mad_u32_u24 v{vd}, v2, s{T}, v{vt}')
    x(f'v_lshrrev_b32 v{vt}, 2, v1'); x(f'v_lshl_add_u32 v{vd}, v{vt}, 7, v{vd}')
    x(f's_lshl_b32 s{T}, s{S_W}, 5'); x(f's_add_u32 s{T}, s{T}, {base}'); x(f'v_add_u32 v{vd}, s{T}, v{vd}')
def uproc(n, R, sd, tst, va, vo, k='a'):
    l = []
    for t in range(n):
        l += [f'ds_read_b64_tr_b16 {k}[{R+4*t}:{R+4*t+1}], v{va} offset:{1024*t}', f'ds_read_b64_tr_b16 {k}[{R+4*t+2}:{R+4*t+3}], v{va} offset:{1024*t + 512}']
    for t in range(n):
        l.append((f's_add_u32 s{sd}, s{sd}, {4*tst}\n' if t else '') + f'buffer_store_dwordx4 {k}[{R+4*t}:{R+4*t+3}], v{vo}, {WSR}, s{sd} offen sc1')
    return l
LM = dict(W=176, C=196, AC=208, T=201)
class Mod:
    def __init__(m, late, W, C, AC, VW, VC, T, SC, SW, SR, SG): m.__dict__.update(locals())
    def dec(m):
        G, D, R = m.SG, m.SG + 1, m.SR
        l = [f'v_lshrrev_b32 v{m.VC}, 3, v0', f'v_and_b32 v{m.T}, 7, v0', f'v_lshlrev_b32 v{m.T}, 4, v{m.T}',
             f's_and_b32 s{G}, s2, 7', f's_lshl3_add_u32 s{G}, s{S_J}, s{G}']
        l += [f's_add_u32 s{G}, s{G}, 24', f's_min_u32 s{G}, s{G}, 59'] if m.late else [f's_sub_u32 s{G}, s{G}, 40']
        l += [f's_bfe_u32 s{D}, s2, 0x20003', f's_lshl2_add_u32 s{R}, s{D}, s{S_W}', f's_mul_i32 s{R}, s{R}, 40', f'v_add_u32 v{m.VC}, s{R}, v{m.VC}', f's_movk_i32 s{R}, 7680',
              f'v_mad_u32_u24 v{m.VW}, v{m.VC}, s{R}, v{m.T}', f's_lshl_b32 s{R}, s{G}, 7', f'v_lshlrev_b32 v{m.VC}, 1, v{m.VC}',
              f's_movk_i32 s{m.SC+2}, 1280', f's_mov_b32 s{m.SC+3}, 0x20000', f's_mov_b32 s{m.SW+3}, 0x20000', f's_mov_b32 s{m.SW+2}, {640*7680}']
        return l
    def dec2(m):
        G, D = m.SG, m.SG + 1
        return [f's_lshl_b32 s{G}, s{G}, 10', f's_lshl2_add_u32 s{D}, s{D}, s{G}', f's_add_u32 s{D}, s{D}, {WS_MODP}']
    def load(m, k='v', vw=None):
        vw = m.VW if vw is None else vw
        l = [f's_and_b32 s{m.SC+1}, s{m.SC+1}, 0xffff\ns_and_b32 s{m.SW+1}, s{m.SW+1}, 0xffff']
        for i in range(5): l.append(f'buffer_load_ushort {k}{m.C+i}, v{m.VC}, s[{m.SC}:{m.SC+3}], 0 offen offset:{16*i} sc1')
        for i in range(5): l.append((f's_add_u32 s{m.SR}, s{m.SR}, {8*7680}\n' if i else '') + f'buffer_load_dwordx4 {k}[{m.W+4*i}:{m.W+3+4*i}], v{vw}, s[{m.SW}:{m.SW+3}], s{m.SR} offen{NTM}')
        return l
    def silu(m):
        C, AC = m.C, m.AC; l = []
        for f in ('v_lshlrev_b32 v{c}, 16, v{c}', 'v_mul_f32 v{t}, ' + fl(-LOG2E) + ', v{c}', 'v_exp_f32 v{t}, v{t}', 'v_add_f32 v{t}, 1.0, v{t}', 'v_rcp_f32 v{t}, v{t}',
                  'v_mul_f32 v{c}, v{c}, v{t}', 'v_cvt_pk_bf16_f32 v{c}, v{c}, 0'):
            l += [f.format(c=C + i, t=AC + i) for i in range(5)]
        return l
    def dot(m):
        AC, T = m.AC, m.T; l = []
        for i in range(5):
            l.append(f'v_lshlrev_b32 v{T}, 16, v{m.C+i}')
            if m.late and opt('sdot', 1):
                op = 'v_mul_f32' if i == 0 else 'v_fmac_f32'
                for q in range(4):
                    w = m.W + 4 * i + q
                    l += [f'v_lshlrev_b32 v{T+1}, 16, v{w}', f'v_and_b32 v{w}, 0xffff0000, v{w}', f'{op} v{AC+2*q}, v{T+1}, v{T}', f'{op} v{AC+2*q+1}, v{w}, v{T}']
                continue
            for q in range(4):
                for e, sv in ((0, m.C + i), (1, T)):
                    r = AC + 2 * q + e
                    l.append(f'v_dot2_f32_bf16 v{r}, v{m.W+4*i+q}, v{sv}, {"0" if i == 0 else f"v{r}"}')
        G = m.SG
        l += [f'v_and_b32 v{T}, 7, v0', f'v_lshlrev_b32 v{T}, 5, v{T}', f'v_lshl_add_u32 v{T}, v2, 3, v{T}']
        l += [f'v_permlane32_swap_b32 v{AC+q}, v{AC+4+q}' for q in range(4)] + [f'v_add_f32 v{AC+q}, v{AC+q}, v{AC+4+q}' for q in range(4)]
        l += [f's_lshl_b32 s{G}, s{S_W}, 8', f's_add_u32 s{G}, s{G}, {L_MR}']
        l += [f'v_permlane16_swap_b32 v{AC+q}, v{AC+2+q}' for q in range(2)] + [f'v_add_f32 v{AC+q}, v{AC+q}, v{AC+2+q}' for q in range(2)]
        l += [f'v_add_u32 v{T}, s{G}, v{T}', f'v_lshlrev_b32 v{AC+6}, 2, v0']
        l += [f'v_add_f32_dpp v{AC+q}, v{AC+q}, v{AC+q} row_ror:8 row_mask:0xf bank_mask:0xf' for q in range(2)]
        return l + [f'v_add_u32 v{AC+6}, {L_MR}, v{AC+6}', f'ds_write_b64 v{T}, v[{AC}:{AC+1}]']
    def fin(m):
        AC, G = m.AC, m.SG
        l = [f'ds_read2st64_b32 v[{AC}:{AC+1}], v{AC+6} offset0:0 offset1:1', f'ds_read2st64_b32 v[{AC+2}:{AC+3}], v{AC+6} offset0:2 offset1:3',
             f's_cmp_eq_u32 s{S_W}, 0\ns_cselect_b32 s{G}, 0, 0x80000000' + (f'\ns_cmp_lt_u32 s2, 160\ns_cselect_b32 s{G}, s{G}, 0x80000000' if m.late else ''),
             f'v_or_b32 v{AC+7}, s{G}, v4', f's_bfe_u32 s{G}, s{S_E}, 0xa0000', f's_movk_i32 s{G+2}, 0xfc00',
             f'v_add_f32 v{AC}, v{AC}, v{AC+1}', f'v_add_f32 v{AC+2}, v{AC+2}, v{AC+3}', f'v_mov_b32 v{AC+5}, s{G}', f'v_add_f32 v{AC}, v{AC}, v{AC+2}',
             f'v_add_u32 v{AC}, 0x200, v{AC}', f'v_and_or_b32 v{AC}, v{AC}, s{G+2}, v{AC+5}',
             f'buffer_store_dword v{AC}, v{AC+7}, {WSR}, s{G+1} offen sc1']
        return l
def mchk(r0, n, vt, st):
    return [f'v_xor_b32 v{vt}, s{st}, v{r0}'] + [f'v_bitop3_b32 v{vt}, v{vt}, s{st}, v{r0+e} bitop3:0xf6' for e in range(1, n)] + [f'v_lshlrev_b32 v{vt}, 22, v{vt}', f'v_cmp_eq_u32 vcc, 0, v{vt}']
def msum(r0, n, one, hi=True):
    l = []
    for e in range(4 * n): l.append(f'v_and_b32 v{r0+e}, 0xfffffc00, v{r0+e}')
    for i in range(n): l.append(f'v_pk_add_f32 v[{r0+4*i}:{r0+4*i+1}], v[{r0+4*i}:{r0+4*i+1}], v[{r0+4*i+2}:{r0+4*i+3}]')
    for i in range(n): l.append(f'v_add_f32 v{r0+4*i}, v{r0+4*i}, v{r0+4*i+1}')
    for i in range(n): l.append(f'v_cvt_pk_bf16_f32 v{r0+4*i}, 0, v{r0+4*i}')
    for i in range(n): l.append(f'v_add_f32 v{r0+4*i}, {one[i]}, v{r0+4*i}')
    for i in range(n): l.append(f'v_cvt_pk_bf16_f32 v{r0+4*i}, 0, v{r0+4*i}' if hi[i] else f'v_cvt_pk_bf16_f32 v{r0+4*i}, v{r0+4*i}, 0')
    return l
def slice_addr(A, sd, st):
    A(f's_lshl3_add_u32 s{sd}, s{S_RB}, s{S_J}'); A(f's_and_b32 s{st}, s{S_W}, 1'); A(f's_lshl1_add_u32 s{sd}, s{sd}, s{st}'); A(f's_mul_i32 s{sd}, s{sd}, 6144')
    A(f's_lshr_b32 s{st}, s{S_W}, 1'); A(f's_mul_i32 s{st}, s{st}, {WS_X1G - WS_OF}'); A(f's_add_u32 s{sd}, s{sd}, s{st}'); A(f's_add_u32 s{sd}, s{sd}, {WS_OF}')
def prew(sd): return [f'buffer_store_dwordx4 v[4:7], v{4 + q // 4}, {WSR}, s{sd} offen offset:{1024 * (q % 4)} sc1' for q in range(6)]
PW = opt('prew', 1)
L_W2S = 135168
def stats(i):
    S, Q = 250, 252; l = []
    for u in range(5):
        b = XN + (i * 5 + u) * 8
        for e in range(4): l += unpack(b + 2 * e, b + 2 * e + 1, b + 4 + e)
        for e in range(4):
            p = f'v[{b+2*e}:{b+2*e+1}]'
            l.append(f'v_pk_mul_f32 v[{Q}:{Q+1}], {p}, {p}' if u == 0 and e == 0 else f'v_pk_fma_f32 v[{Q}:{Q+1}], {p}, {p}, v[{Q}:{Q+1}]')
            if u == 0 and e == 1: l.append(f'v_pk_add_f32 v[{S}:{S+1}], v[{b}:{b+1}], {p}')
            elif not (u == 0 and e == 0): l.append(f'v_pk_add_f32 v[{S}:{S+1}], v[{S}:{S+1}], {p}')
    return l + [f'v_add_f32 v{240+2*i}, v{S}, v{S+1}', f'v_add_f32 v{241+2*i}, v{Q}, v{Q+1}']
JS = 2
def front(a, k, var):
    TST = 20480 if var == 'A' else 49152
    def dec_u():
        a(f's_lshl_b32 s47, s{S_W}, 13'); a(f's_add_u32 s47, s47, {L_ST}'); a('s_mov_b32 s71, 0x20000')
        a('v_and_b32 v5, 7, v0'); a('v_lshlrev_b32 v5, 4, v5')
        if var == 'A':
            a('s_cmp_ge_u32 s2, 120'); a('s_cbranch_scc1 DEC_WO')
            a('s_mul_i32 s28, s2, 10923'); a('s_lshr_b32 s28, s28, 16'); a('s_mul_i32 s29, s28, 6'); a('s_sub_u32 s29, s2, s29')
            a(f's_lshl2_add_u32 s33, s28, s{S_W}')
            a(f's_mul_i32 s33, s33, {8*3840}'); a('s_mul_i32 s3, s29, 640'); a('s_add_u32 s33, s33, s3')
            a('v_lshrrev_b32 v3, 3, v0'); a('s_movk_i32 s3, 3840'); a('v_mad_u32_u24 v33, v3, s3, v5'); a(f's_mov_b32 s70, {640*3840}')
            a.label('DEC_WO_RET')
            x = Asm()
            x('s_sub_u32 s28, s2, 120'); x('s_and_b32 s29, s28, 1'); x('s_lshr_b32 s28, s28, 1')
            x('s_mul_i32 s48, s29, 640'); perm_src(x, 28, 5, 1280, 33, 33, 48); x(f's_mov_b32 s70, {640*1280}')
            k.tail.append('DEC_WO:\n' + x.text() + '  s_branch DEC_WO_RET')
        else:
            a('s_sub_u32 s28, s2, 160'); a('s_min_u32 s28, s28, 79'); a('s_and_b32 s29, s28, 3'); a('s_lshr_b32 s28, s28, 2')
            a('s_mul_i32 s62, s29, 24'); a(f's_add_u32 s62, s62, s{S_W}')
            a('s_mul_i32 s62, s62, 20480'); a('s_lshl_b32 s3, s28, 10'); a('s_add_u32 s62, s62, s3'); a(f's_add_u32 s62, s62, {WS_W1}')
            a('s_mul_i32 s48, s29, 768'); perm_src(a, 28, 5, 3072, 33, 33, 48); a(f's_mov_b32 s70, {640*3072}')
    def dec_u2():
        tr_addr(a, 245, 8192, L_ST)
        a('s_cmp_ge_u32 s2, 120')
        a(f's_mov_b32 s34, {WS_WQ}'); a(f's_cselect_b32 s34, {WS_WO}, s34')
        a(f's_mov_b32 s35, {WS_FA}'); a(f's_cselect_b32 s35, {WS_FA + 2048}, s35')
        a('s_and_b32 s3, s29, 1'); a('s_mul_i32 s3, s3, 3'); a('s_lshr_b32 s48, s29, 1'); a('s_add_u32 s3, s3, s48')
        a('s_mul_i32 s3, s3, 20'); a('s_add_u32 s3, s3, s28'); a(f's_lshl2_add_u32 s3, s3, s{S_W}'); a('s_lshl2_add_u32 s35, s3, s35')
        a('s_mul_i32 s3, s29, 20'); a(f's_add_u32 s3, s3, s{S_W}')
        a('s_mul_i32 s3, s3, 20480'); a('s_add_u32 s34, s34, s3'); a('s_lshl_b32 s3, s28, 10'); a('s_add_u32 s34, s34, s3')
    def dec_x(rng):
        if 0 in rng:
            a(f's_lshl_b32 s3, s{S_J}, 2'); a('s_mov_b32 s50, 0x21043210'); a('s_movk_i32 s51, 0x1043'); a('s_lshr_b64 s[50:51], s[50:51], s3'); a('s_mov_b32 s73, s50')
            a(f's_lshl_b32 s3, s{S_RB}, 6'); a(f's_mul_i32 s79, s{S_W}, 20'); a('s_add_u32 s3, s3, s79'); a('s_sub_u32 s3, s3, 16')
            a('s_movk_i32 s51, 1280'); a('v_add_u32 v244, s3, v2'); a('v_lshlrev_b32 v39, 4, v1')
            a(f's_mov_b32 s{S_X+2}, {2048*1280}'); a(f's_mov_b32 s{S_X+3}, 0x20000')
        for i in rng:
            a(f's_bfe_u32 s3, s73, {hex(0x40000 + 4*i)}'); a('v_lshl_add_u32 v3, s3, 2, v244'); a('v_max_i32 v3, 0, v3'); a(f'v_mad_u32_u24 v{240+i}, v3, s51, v39')
    H = {}
    def uload(v=33, so=33):
        l = [('s_cmp_ge_u32 s2, 120\ns_cselect_b64 s[68:69], s[38:39], s[36:37]\n' if var == 'A' else '') + 's_and_b32 s69, s69, 0xffff']
        for t in range(5 if var == 'A' else 6): l.append(f's_add_u32 m0, s47, {t*896}\nbuffer_load_dwordx4 v{v}, s[68:71], s{so} offen offset:{128*t}{NT} lds')
        return l + [lambda: H.update(u=a.vm[-1][0])]
    def xload(i):
        return [f'buffer_load_dwordx4 v[{XN+(i*5+u)*8+4}:{XN+(i*5+u)*8+7}], v{240+i}, s[{S_X}:{S_X+3}], 0 offen offset:{256*u}{NTX}' for u in range(5)]
    def em(l): spread(a, l, [])
    def eload(): a(f's_and_b32 s{S_WS+1}, s{S_WS+1}, 0xffff'); a(f's_mov_b32 s3, {WS_EP}'); a(f'buffer_load_dword v38, off, {WSR}, s3 sc1')
    def cpf():
        if not opt('cpf', 1): return
        a('s_getpc_b64 s[50:51]'); a.label(f'PC{var}')
        a('s_lshr_b32 s3, s2, 3'); a(f's_lshl2_add_u32 s3, s3, s{S_W}'); a('s_mul_i32 s3, s3, 3'); a('v_min_u32 v237, 2, v0'); a('v_add_u32 v237, s3, v237')
        a(f'v_min_u32 v237, (CODE_END-FRONT_A2-4)/128, v237'); a('v_lshlrev_b32 v237, 7, v237')
        a(f's_add_u32 s50, s50, FRONT_A2-PC{var}'); a('s_addc_u32 s51, s51, -1')
        a('v_mov_b32 v239, s51'); a('v_add_co_u32 v238, vcc, s50, v237'); a('v_addc_co_u32 v239, vcc, 0, v239, vcc')
        a('global_load_dword v237, v[238:239], off sc1')
    def getE(): a(f'v_readfirstlane_b32 s{S_E}, v38'); a(f's_add_u32 s{S_E}, s{S_E}, 0x9E3779B1')
    def pubA(): getE(); a(f'v_mov_b32 v3, s{S_E}'); a.wait_id(H['st']); a(f'buffer_store_dword v3, off, {WSR}, s35 sc1'); tn(a, 'pub')
    def misc():
        a(f's_mov_b32 s{S_O+2}, {2048*1280}'); a(f's_mov_b32 s{S_O+3}, 0x20000'); a(f's_and_b32 s{S_O+1}, s{S_O+1}, 0xffff')
        a('v_lshlrev_b32 v4, 4, v0')
        for q in range(1, 4): a(f'v_add_u32 v{4+q}, {4096*q}, v4')
    XE = opt('xe', 0); XB = opt('xb', 0)
    if var == 'A':
        m = Mod(True, 176, 196, 0, 35, 36, 37, 52, 56, 74, 29)
        dec_u(); tn(a, 'dec'); a.wait(lg=0); tn(a, 'ka')
        em(uload()); eload()
        a.raw('@SPLIT')
        dec_x([0, 1, 2, 3, 4]); a(f's_and_b32 s{S_X+1}, s{S_X+1}, 0xffff')
        if XE: em(xload(0))
        cpf(); dec_u2(); misc(); em(m.dec() + m.dec2())
        for i in range(1, XE): em(xload(i))
        a.wait_id(H['u']); tn(a, 'b1'); a.barrier()
        em(uproc(5, 156, 34, 20480, 245, 4)); H['st'] = a.vm[-1][0]; tn(a, 'st')
        ml = m.load('a'); b2 = ml[6:]
        xl = sum([xload(i) for i in range(XE, 5)], []) + ml[:6]
        a('s_mov_b32 s62, 0')
        n_ = opt('xp', 0) + (5 if XE == 0 else 0)
        em(xl[:n_]); xl = xl[n_:]
        if PUBE: pubA()
    else:
        m = Mod(False, 8, 28, 246, 35, 36, 37, 52, 56, 74, 44)
        em(m.dec()); tn(a, 'dec'); a.wait(lg=0); tn(a, 'ka')
        em(m.load()); eload()
        a.raw('@SPLIT')
        em(m.dec2()); dec_x([0, 1, 2, 3, 4]); a(f's_and_b32 s{S_X+1}, s{S_X+1}, 0xffff')
        cpf(); dec_u(); misc()
        for i in range(XB): em(xload(i))
        em(m.silu()); tn(a, 'b1')
        d = m.dot(); em(d[:27]); em(xload(XB)); em(d[27:45]); tn(a, 'st'); em(xload(XB + 1)); em(d[45:]); getE()
        a.wait(lg=0); a.barrier(); em(m.fin()); tn(a, 'pub')
        b2 = uload()[:-1]
        xl = sum([xload(i) for i in range(XB + 2, 5)], [])
    nx = opt('nx', 10)
    spread(a, stats(0), xl[:nx], lo=0, hi=opt('xhi', 60))
    tn(a, 'x0')
    if var == 'A' and not PUBE: pubA()
    spread(a, stats(1), xl[nx:], hi=40)
    tn(a, 'xi')
    a('v_min_u32 v31, 59, v0'); a(f's_mul_i32 s3, s{S_W}, 240'); a('v_lshl_add_u32 v31, v31, 2, s3')
    a(f's_lshr_b32 s50, s{S_J}, 2'); a('s_mul_i32 s50, s50, 960'); a(f's_add_u32 s50, s50, {WS_FA}'); a(f's_mul_i32 s49, s{S_W}, 5120'); a(f's_add_u32 s49, s49, {WS_MODP}')
    A = a
    A('s_min_u32 s52, s2, 239'); A('s_mul_i32 s28, s52, 13108'); A('s_lshr_b32 s28, s28, 16'); A('s_mul_i32 s53, s28, 5'); A('s_sub_u32 s52, s52, s53')
    A(f's_lshl3_add_u32 s63, s52, s{S_W}'); A('s_mul_i32 s63, s63, 49152'); A('s_lshl_b32 s53, s28, 10'); A('s_add_u32 s63, s63, s53'); A(f's_add_u32 s63, s63, {WS_W2}')
    A('s_lshl_b32 s52, s52, 8'); A('v_and_b32 v34, 7, v0'); A('v_lshlrev_b32 v34, 4, v34')
    perm_src(A, 28, 6, 1280, 34, 52, 52, 53, 55, 3, 34, 3)
    A(f's_mov_b32 s66, {1536*1280}'); A('s_mov_b32 s67, 0x20000'); A('s_and_b32 s65, s65, 0xffff'); A(f's_lshl_b32 s53, s{S_W}, 11'); A(f's_add_u32 s53, s53, {L_W2S}')
    b2 += [f's_add_u32 m0, s53, {t*896}\nbuffer_load_dwordx4 v34, s[64:67], s52 offen offset:{128*t}{NT} lds' for t in range(2)]
    slice_addr(a, 61, 3)
    if opt('ot', 0) == 1: b2 += [OTCH.format(29)]
    a(f's_mul_i32 s3, s{S_W}, 1280'); a(f's_add_u32 s3, s3, {L_MODL}'); a('v_lshl_add_u32 v30, v0, 2, s3')
    a(f's_cmp_ge_u32 s{S_W}, 2'); a('s_cselect_b32 s51, 1.0, 0'); a(f's_mov_b32 s48, s{S_E}')
    pl = POLLS + [lambda: (H.update(p=a.vm[-1][0]), tn(a, 'pi'))]
    st = lnorm(a); PP = opt('pp', 240)
    b2 += [lambda: B2H.update({var: a.vm[-1][0]})]
    assert opt('b2hi', 80) < 400
    spread(a, st[:PP] + pl + st[PP:], b2, lo=opt('b2lo', 0), hi=opt('b2hi', 80))
    a(f's_mul_i32 s52, s{S_J}, 5'); a(f's_add_u32 s53, s52, s{S_W}')
    a('s_add_u32 s32, s53, 40'); a('s_add_u32 s33, s53, 80'); a('s_mov_b32 s35, s53')
    a(f's_lshl_b32 s54, s{S_W}, 3'); a('s_lshr_b32 s34, 0x04542c, s54'); a('s_and_b32 s34, s34, 0xff'); a('s_add_u32 s34, s34, s52')
    for q in range(4):
        a(f's_mul_i32 s{32+q}, s{32+q}, 20480'); a(f's_add_u32 s{32+q}, s{32+q}, {WS_WQ}')
    a(f's_mov_b64 s[12:13], s[{S_WS}:{S_WS+1}]'); a(f's_cmp_eq_u32 s{S_W}, 3'); a(f's_cselect_b32 s14, 0, s{S_WS+2}'); a('s_mov_b32 s15, 0x20000')
    tn(a, 'vp')
    a.wait_id(H['p']); tn(a, 'pw'); a.wait(lg=0)
B2H = {}
OTCH = f's_mul_i32 s3, s{S_RB}, 81920\nbuffer_load_dword v{{}}, off, s[{S_O}:{S_O+3}], s3'
def lnorm(a):
    st = sum([stats(i) for i in range(JS, 5)], []); A = st.append
    A(lambda: tn(a, 'x4'))
    for ror in (8, 4, 2, 1):
        for c in range(240, 250): A(f'v_add_f32_dpp v{c}, v{c}, v{c} row_ror:{ror} row_mask:0xf bank_mask:0xf')
    A(f's_mov_b32 s60, {fl(1/640)}'); A(f'v_mov_b32 v3, {fl(1e-5)}')
    for i in range(5): A(f'v_mul_f32 v{250+i}, s60, v{240+2*i}')
    for i in range(5): A(f'v_fma_f32 v{241+2*i}, v{241+2*i}, s60, v3')
    for i in range(5): A(f'v_fma_f32 v{241+2*i}, -v{250+i}, v{250+i}, v{241+2*i}')
    for i in range(5): A(f'v_max_f32 v{241+2*i}, v{241+2*i}, v3')
    for i in range(5): A(f'v_rsq_f32 v{240+2*i}, v{241+2*i}')
    for i in range(5): A(f'v_mul_f32 v{241+2*i}, -v{250+i}, v{240+2*i}')
    for i in range(5):
        P = 240 + 2 * i
        for u in range(5):
            b = XN + (i * 5 + u) * 8
            for e in range(4):
                p = f'v[{b+2*e}:{b+2*e+1}]'
                A(f'v_pk_fma_f32 {p}, {p}, v[{P}:{P+1}], v[{P}:{P+1}] op_sel:[0,0,1] op_sel_hi:[1,0,1]')
    A('v_lshrrev_b32 v3, 2, v1'); A('v_lshlrev_b32 v3, 10, v3'); A('v_and_b32 v33, 3, v1'); A('v_lshl_add_u32 v3, v33, 8, v3')
    A('v_and_b32 v33, 7, v1'); A('s_movk_i32 s52, 20480'); A('v_add_u32 v35, s79, v2')
    for i in range(5):
        A(f's_bfe_u32 s3, s73, {hex(0x40000 + 4*i)}'); A('v_lshl_add_u32 v36, s3, 2, v35')
        A('v_and_b32 v37, 15, v36'); A('v_xor_b32 v37, v37, v33'); A('v_lshrrev_b32 v36, 4, v36')
        A('v_mad_u32_u24 v36, v36, s52, v3'); A(f'v_lshl_add_u32 v{250+i}, v37, 4, v36')
    A('v_lshlrev_b32 v255, 5, v1'); A(f'v_add_u32 v255, {L_MODL}, v255')
    A(lambda: tn(a, 'ln'))
    return st
PM = {0: '', 1: ' sc0', 2: ' nt', 3: ' sc0 nt'}[opt('pm', 1)]
FAP = [f'buffer_load_dword v28, v31, {WSR}, s50 offen sc1{PM}']
MP = [ld(q4('v', 8 + 4 * i), i, 49, WSR, True) for i in range(5)]
POLLS = MP + FAP
def main_kernel(a):
    k = K(a)
    tn(a, 's')
    a('s_cmp_ge_u32 s2, 256'); a('s_cbranch_scc1 EXIT_p0')
    for r, o in ((64 - 28, None), (S_WS, 80), (52, 48), (56, 56), (S_X, 0), (64, 40), (68, 32), (S_O, 64)):
        a('s_load_dwordx4 s[36:39], s[0:1], 8' if o is None else f's_load_dwordx2 s[{r}:{r+1}], s[0:1], {o}')
    a('v_lshrrev_b32 v2, 6, v0'); a('v_and_b32 v0, 63, v0'); a(f'v_readfirstlane_b32 s{S_W}, v2')
    a('v_and_b32 v1, 15, v0'); a('v_lshrrev_b32 v2, 4, v0')
    a('s_and_b32 s3, s2, 7'); a(f's_lshr_b32 s{S_J}, s2, 5'); a(f's_bfe_u32 s{S_RB}, s2, 0x20003')
    a(f's_lshl2_add_u32 s{S_RB}, s3, s{S_RB}')
    a(f's_mov_b32 s{S_WS+2}, 0x10000000'); a(f's_mov_b32 s{S_WS+3}, 0x20000')
    a('s_cmp_ge_u32 s2, 160'); a('s_cbranch_scc1 FRONT_B')
    import copy
    b = Asm(); b.vm = copy.deepcopy(a.vm); b.lg = copy.deepcopy(a.lg); b.n = a.n; b.hist = list(a.hist)
    kb = K(b); kb.nl = 500
    front(b, kb, 'B'); b.wait(lg=0)
    front(a, k, 'A'); a.wait(lg=0)
    b1, b2 = b.text().split('@SPLIT\n')
    a.out[a.out.index('@SPLIT')] = '  s_branch FRONT_A2\nFRONT_B:\n' + b1 + '  s_branch FRONT_B2\nFRONT_A2:'
    k.tail.append('FRONT_B2:\n' + b2 + '  s_branch JOIN')
    a.label('JOIN')
    wqs = [wq_ld(s, sl) for s in range(20) for sl in range(4)]
    def spin(nm, lds_, chk_):
        a('s_cmp_eq_u64 vcc, -1'); a(f's_cbranch_scc0 {nm}SPIN')
        a.label(f'{nm}DONE')
        k.tail.append(f'{nm}SPIN:\n  s_mov_b32 s72, 0x8000\n{nm}SPINL:\n  s_andn2_b64 exec, exec, vcc\n' + ''.join(f'  {t}\n' for t in lds_ + ['s_waitcnt vmcnt(0)'] + chk_) +
                      f'  s_sub_u32 s72, s72, 1\n  s_cbranch_scc1 {nm}OUT\n  s_nop 1\n  s_cmp_eq_u64 vcc, exec\n  s_cbranch_scc0 {nm}SPINL\n' + (('  s_mov_b64 exec, -1\n' + ''.join(f'  {t}\n' for t in lds_ + ['s_waitcnt vmcnt(0)'] + chk_) + f'  s_nop 3\n  s_cmp_eq_u64 vcc, -1\n  s_cbranch_scc0 {nm}SPINL\n') if nm.startswith('M') else '') + f'{nm}OUT:\n  s_mov_b64 exec, -1\n  s_branch {nm}DONE')
    NW0 = opt('nw0', 8)
    chk = mchk(8, 20, 29, 48)
    for t in chk: a(t)
    a('s_nop 3')
    spin('M', MP, chk)
    tn(a, 'fa')
    for t in msum(8, 5, ['s51'] * 5, [1] * 5): a(t)
    fac = [f'v_cmp_eq_u32 vcc, s{S_E}, v28']
    a(fac[0])
    for i in range(5): a(f'ds_write_b32 v30, v{8+4*i} offset:{256*i}')
    spin('FA', FAP, fac)
    tn(a, 'poll')
    a(f's_mul_i32 s36, s{S_J}, {5*20480}'); a(f's_mul_i32 s3, s{S_W}, 5120'); a('s_add_u32 s36, s36, s3'); a(f's_add_u32 s36, s36, {WS_WO}')
    a.wait(lg=0); a.barrier()
    tn(a, 'bar')
    def gs_read(u):
        b = 8 + 16 * (u % 2); l = []
        for q in range(2):
            l.append(f'ds_read_b128 v[{b+4*q}:{b+4*q+3}], v255 offset:{512*u + 16*q}')
            l.append(f'ds_read_b128 v[{b+8+4*q}:{b+8+4*q+3}], v255 offset:{2560 + 512*u + 16*q}')
        return l
    st = gs_read(0) + wqs[:NW0]
    for u in range(5):
        if u < 4: st += gs_read(u + 1)
        gb = 8 + 16 * (u % 2)
        for i in range(5):
            b = XN + (i * 5 + u) * 8
            for e in range(4):
                p = f'v[{b+2*e}:{b+2*e+1}]'
                st.append(f'v_pk_fma_f32 {p}, {p}, v[{gb+8+2*e}:{gb+9+2*e}], v[{gb+2*e}:{gb+2*e+1}]')
            for e in range(4): st.append(f'v_cvt_pk_bf16_f32 v{b+e}, v{b+2*e}, v{b+2*e+1}')
            st.append(f'ds_write_b128 v{250+i}, v[{b}:{b+3}] offset:{4096*u}')
    so = []; A = so.append
    for t in range(1, 5): A(f's_add_u32 s{36+t}, s{35+t}, 20480')
    A(f's_lshl2_add_u32 s41, s{S_J}, s{S_W}'); A(f's_mul_i32 s41, s41, {3*20480}'); A(f's_add_u32 s41, s41, {WS_W1}')
    A('s_add_u32 s42, s41, 20480'); A('s_add_u32 s43, s42, 20480')
    A(f's_mul_i32 s44, s{S_J}, {5*49152}'); A(f's_mul_i32 s3, s{S_W}, 12288'); A('s_add_u32 s44, s44, s3'); A(f's_add_u32 s44, s44, {WS_W2}')
    for t in range(1, 5): A(f's_add_u32 s{44+t}, s{43+t}, 49152')
    A(f's_lshl_b32 s27, s{S_RB}, 9'); A(f's_add_u32 s27, s27, {WS_FL}')
    A(f's_lshr_b32 s3, s{S_J}, 1'); A('s_lshl_b32 s3, s3, 7'); A('s_add_u32 s26, s27, s3')
    A(f's_and_b32 s3, s{S_J}, 1'); A(f's_lshl2_add_u32 s3, s3, s{S_W}'); A('s_lshl2_add_u32 s26, s3, s26')
    A(f's_lshl_b32 s3, s{S_W}, 7'); A('s_add_u32 s27, s27, s3')
    H = {}
    NWA = opt('nwa', 24)
    wq_all = wqs[NW0:]; napp = NWA - NW0
    spread(a, st, wq_all[:napp], lo=opt('alo', 0), hi=opt('ahi', len(st) - 20)); wq_rest = wq_all[napp:]
    a('v_min_u32 v250, 19, v0'); a(f's_mul_i32 s3, s{S_W}, 80'); a('s_add_u32 s3, s3, s50'); a('v_lshl_add_u32 v250, v250, 2, s3')
    WOP = [f'buffer_load_dword v247, v250, {WSR}, 0 offen offset:2048 sc1{PM}']; woc = [f'v_cmp_eq_u32 vcc, s{S_E}, v247']
    a('s_getreg_b32 s3, hwreg(HW_REG_XCC_ID)'); a('s_and_b32 s3, s3, 15'); a(f's_add_u32 s25, s{S_E}, s3')
    a(f's_lshl3_add_u32 s50, s{S_RB}, s{S_J}'); a(f's_lshl2_add_u32 s50, s50, {WS_FB}')
    a(f's_cmp_eq_u32 s{S_W}, 0'); a('s_cselect_b32 s3, 0, 0x80000000'); a('v_mov_b32 v248, s25'); a('v_mov_b32 v249, s3')
    a('v_add_u32 v8, 16384, v4')
    a('v_and_b32 v9, 7, v0'); a('v_lshlrev_b32 v9, 2, v9')
    a('v_xor_b32 v3, v1, v2'); a('v_lshlrev_b32 v20, 8, v2'); a('v_lshl_add_u32 v20, v3, 4, v20')
    a('v_xor_b32 v21, 64, v20'); a('v_add_u32 v22, 61440, v20'); a('v_add_u32 v23, 61440, v21')
    a.wait_id(B2H['A']); a.wait(lg=0); a.barrier()
    tn(a, 'p1')
    ACC = 40; XF = 116; QR = 160
    def xread(s):
        l = []
        for mt in range(5):
            r = XF + 20 * (s % 2) + 4 * mt
            off = (mt * 20 + s) * 1024; ad = 20 + (s & 1)
            if off >= 61440: off -= 61440; ad += 2
            l.append(f'ds_read_b128 v[{r}:{r+3}], v{ad} offset:{off}')
        return l
    for t in xread(0): a(t)
    side = []
    A = side.append
    A('v_lshrrev_b32 v3, 2, v1'); A('v_xor_b32 v3, v3, v2'); A('v_lshlrev_b32 v3, 3, v3'); A('v_lshl_add_u32 v3, v1, 5, v3')
    A(f's_add_u32 s57, s{S_W}, 5'); A(f's_add_u32 s58, s{S_W}, 10'); A(f's_mov_b32 s60, s{S_W}')
    A('s_lshr_b32 s59, 0x0f040e09, s54'); A('s_and_b32 s59, s59, 0xff')
    for q in range(4):
        A(f's_mul_i32 s{57+q}, s{57+q}, 2560'); A(f's_add_u32 s{57+q}, s{57+q}, {L_DUMP}'); A(f'v_add_u32 v{24+q}, s{57+q}, v3')
    A(f's_lshl_b32 s57, s{S_W}, 9'); A(f's_add_u32 s57, s57, {L_DUMP}')
    A('v_add_u32 v28, s57, v3')
    A('v_and_b32 v3, 3, v1'); A('v_xor_b32 v3, v3, v2'); A('v_lshlrev_b32 v3, 3, v3')
    A('v_and_b32 v10, 60, v0'); A('v_lshl_add_u32 v3, v10, 3, v3'); A('v_add_u32 v29, s57, v3')
    A('v_and_b32 v3, 1, v1'); A('v_cmp_eq_u32 s[74:75], 1, v3')
    A('v_lshl_add_u32 v10, v2, 2, v3'); A('v_cmp_le_u32 s[76:77], v10, v1')
    A('v_add_u32 v10, 2, v10'); A('v_cmp_le_u32 s[78:79], v10, v1')
    A('v_mov_b32 v10, 0x0c0c0100'); A('v_mov_b32 v11, 0x01000c0c'); A('v_cndmask_b32 v10, v10, v11, s[74:75]')
    A('v_mov_b32 v11, 0x0c0c0302'); A('v_mov_b32 v12, 0x03020c0c'); A('v_cndmask_b32 v11, v11, v12, s[74:75]')
    A('v_mov_b32 v12, 0x0c0c0c0c')
    A('v_cndmask_b32 v30, v10, v12, s[76:77]'); A('v_cndmask_b32 v31, v11, v12, s[78:79]')
    A('v_cndmask_b32 v32, v12, v10, s[76:77]'); A('v_cndmask_b32 v33, v12, v11, s[78:79]')
    A(f's_or_b32 s57, s{S_RB}, s{S_W}'); A('s_cmp_eq_u32 s57, 0'); A(f's_cselect_b32 s57, {fl(-1e30)}, 0')
    for q in range(4): A(f'v_mov_b32 v{34+q}, s57')
    for q in range(16): A(f'v_mov_b32 v{QR+q}, 0')
    M2 = 208; M3 = 228
    lm = Mod(True, LM['W'], LM['C'], LM['AC'], 0, 0, LM['T'], 0, 0, 0, 29)
    ust = []; A = ust.append
    tr_addr(A, 253, 8192, L_ST, 203, 55)
    tr_addr(A, 246, 2048, L_W2S, 203, 55)
    A('s_cmp_lt_u32 s2, 160\ns_cselect_b32 s55, 0x80000000, 0'); A('v_or_b32 v245, s55, v4')
    u1 = uproc(6, 204, 62, 20480, 253, 245); u2 = uproc(2, 228, 63, 49152, 246, 4)
    upr = u2[:4] + u1[:12] + u2[4:] + u1[12:] + [lambda: H.update(v=a.vm[-1][0])]
    early = []; A = early.append
    if PW == 1: early += prew(61) + [lambda: H.update(v=a.vm[-1][0])]
    modw = [f'v_accvgpr_read_b32 v{r}, a{r}' for r in list(range(196, 201)) + list(range(176, 196))] + lm.silu() + lm.dot()
    s2 = []; A = s2.append
    w2dma = []
    if opt('ot', 0) == 3: w2dma.append(OTCH.format(157))
    w2dma.append(k.poll_issue(156))
    A(f's_lshl2_add_u32 s49, s{S_RB}, s{S_W}'); A(f's_mul_i32 s49, s49, {16*1280}'); A(f's_mul_i32 s61, s{S_J}, 160'); A('s_add_u32 s49, s49, s61')
    for i in range(3):
        r = 205 + i
        A(f'v_add_u32 v{r}, {64*i}, v0'); A(f'v_mul_u32_u24 v216, 6554, v{r}'); A('v_lshrrev_b32 v216, 16, v216'); A(f'v_lshlrev_b32 v{r}, 4, v{r}')
        A(f'v_mul_u32_u24 v216, {1280-160}, v216'); A(f'v_add_u32 v{r}, v216, v{r}')
    A('v_lshlrev_b32 v216, 26, v0'); A('v_and_b32 v216, 0x80000000, v216'); A('v_or_b32 v207, v216, v207')
    A(f's_mul_i32 s60, s{S_W}, 3072'); A(f's_add_u32 s60, s60, {L_XR}')
    for i in range(3): w2dma.append(f's_add_u32 m0, s60, {1024*i}\nbuffer_load_dwordx4 v{205+i}, s[{S_X}:{S_X+3}], s49 offen lds')
    w2dma += ['v_mul_u32_u24 v39, 160, v1', 'v_lshl_add_u32 v39, v2, 3, v39', 'v_add_u32 v39, s60, v39']
    s3_ = []; A = s3_.append
    A(f's_mov_b32 s56, {fl(1/640)}')
    A(f's_lshl_b32 s55, s{S_W}, 4'); A('v_add_u32 v38, s55, v1')
    A(f's_mul_i32 s55, s{S_W}, 60'); A('v_min_u32 v252, 59, v0'); A('v_add_u32 v252, s55, v252'); A(f'v_lshlrev_b32 v249, 2, v252'); A(f'v_add_u32 v249, {L_OWN}, v249')
    A('v_mul_u32_u24 v203, 820, v252'); A('v_lshrrev_b32 v203, 16, v203')
    A('v_cmp_eq_u32 vcc, 1, v203\nv_cndmask_b32 v251, 0, 1.0, vcc')
    A('v_min_u32 v202, 1, v203'); A('v_add_u32 v202, v202, v203')
    A('v_mul_u32_u24 v202, 640, v202'); A('v_mul_u32_u24 v203, 80, v203'); A('v_sub_u32 v252, v252, v203'); A('v_add_u32 v252, v252, v202')
    A(f's_mul_i32 s55, s{S_J}, 80'); A('v_add_lshl_u32 v252, v252, s55, 4'); A(f's_mov_b32 s63, {WS_MODP + 1280 * 16}')
    A('v_lshrrev_b32 v203, 5, v0'); A('v_and_b32 v202, 1, v2'); A('v_mul_u32_u24 v254, 160, v203'); A('v_add_u32 v254, v254, v1')
    A(f's_mul_i32 s55, s{S_W}, 320'); A('s_add_u32 s55, s55, 640'); A('v_add_u32 v254, s55, v254')
    A('v_mul_u32_u24 v255, 80, v202'); A('v_add_lshl_u32 v255, v255, v254, 4'); A('v_lshl_add_u32 v254, v202, 4, v254'); A('v_lshlrev_b32 v254, 4, v254')
    MLD = [f'buffer_load_dwordx4 v[{M3}:{M3+3}], v252, {WSR}, s63 offen sc1'] + [f'buffer_load_dwordx4 v[{M2+4*i}:{M2+4*i+3}], v{254 if i < 4 else 255}, {WSR}, s63 offen offset:{256*t} sc1' for i, t in enumerate((0, 2, 5, 7, 4))]
    s4 = []; A = s4.append
    A(f's_and_b32 s55, s{S_W}, 1'); A('s_mul_i32 s55, s55, 1280')
    A(f's_cmp_ge_u32 s{S_W}, 2\ns_cselect_b32 s49, 0, 64'); A('s_add_u32 s49, s49, s55'); A(f's_add_u32 s49, s49, {L_GS}')
    A('v_mul_u32_u24 v250, 640, v203'); A('v_lshl_add_u32 v250, v202, 3, v250'); A('v_lshrrev_b32 v203, 2, v1'); A('v_lshl_add_u32 v250, v203, 4, v250')
    A('v_and_b32 v203, 3, v1'); A('v_lshl_add_u32 v250, v203, 1, v250'); A('v_add_u32 v250, s49, v250')
    def mod2_fin():
        a(f's_mov_b32 s3, s{S_E}')
        chk = mchk(M2, 24, 232, 3)
        for t in chk: a(t)
        a(f's_cmp_ge_u32 s{S_W}, 2'); a('s_cselect_b32 s58, 1.0, 0'); a('s_nop 1')
        spin('M2', MLD, chk)
        for t in msum(M2, 6, ['s58'] * 5 + ['v251'], [0] * 5 + [1]): a(t)
        for i in range(5): a(f'ds_write_b16 v250, v{M2+4*i} offset:{128*i}')
        a(f'ds_write_b32 v249, v{M3}')
    FBL = f'buffer_load_dword v232, v233, {WSR}, s51 offen sc1' + PM
    fbc = [f'v_subrev_u32 v232, s{S_E}, v232', 'v_cmp_gt_u32 vcc, 16, v232']
    def fb_issue(): a(f's_lshl_b32 s51, s{S_W}, 8'); a(f's_add_u32 s51, s51, {WS_FB}'); a('v_lshlrev_b32 v233, 2, v0'); a(FBL)
    def fb_check():
        for t in fbc: a(t)
        a(f's_or_b32 s49, s2, s{S_W}'); a('s_cmp_eq_u32 s49, 0'); a('s_cselect_b32 s3, 0, 0x80000000'); a('s_nop 0')
        spin('FB', [FBL], fbc)
        a('s_and_b32 s51, s50, -32')
        a(f'v_mov_b32 v236, s{S_E}'); a('v_mov_b32 v237, s3'); a(f's_mov_b32 s3, {WS_EP}')
    def fb_after():
        a(f'buffer_load_dword v232, v9, {WSR}, s51 offen sc1' + PM)
        a(f'buffer_store_dword v236, v237, {WSR}, s3 offen sc1')
    def fb_fast():
        a('v_cmp_eq_u32 vcc, s25, v232'); a('s_nop 3'); a('s_cmp_eq_u64 vcc, -1'); a(f's_cselect_b32 s{S_FAST}, {0 if "slow" in OPT else 1}, 0')
    wos = [wo_ld(t, i) for i in range(5) for t in range(5)]
    FBI = opt('fbi', 17); M1 = opt('m1', 0); MB = opt('mb', 10); WPS = opt('wps', 4); WO0 = opt('wo0', 12)
    for s in range(20):
        main = []
        for mt in range(5):
            for sl in range(4):
                if sl == 3 and mt == 0: continue
                ac = ACC + 4 * (sl * 5 + mt - (1 if sl == 3 else 0))
                c = '0' if s == 0 else q4('v', ac)
                main.append(f'{MF} {q4("v", ac)}, {wq_reg(s, sl)}, {q4("v", XF + 20 * (s % 2) + 4 * mt)}, {c}')
        fill = xread(s + 1) if s < 19 else []
        n = 0
        while wq_rest and n < WPS + (1 if 80 - len(wq_rest) < 4 * (s - 1 + RING) else 0):
            t = wq_rest[0]
            if not callable(t):
                if wqs.index(t) // 4 > s - 1 + RING: break
                n += 1
            fill.append(wq_rest.pop(0))
        if not wq_rest and s >= WO0:
            while wos and n < WPS: fill.append(wos.pop(0)); n += 1
        def part(l, lo, hi): n = -(-len(l) // (hi - lo)); return l[(s - lo) * n:(s - lo + 1) * n] if lo <= s < hi else []
        oth = part(ust + upr, M1, M1 + opt('un', 3)) + part(early, opt('e0', 3), opt('e1', 6)) + part(modw, opt('m0', 2), MB) + part(s2, 9, 12)
        if s == MB: oth += lm.fin()
        oth += part(so, 8, 12) + part(w2dma, opt('xr', 12), opt('xr', 12) + 1) + part(s3_ + s4 + side, 13, 20)
        if s == FBI: oth += [fb_issue]
        if s == opt('mli', 19): oth += MLD
        if s == opt('wop', 3): oth += WOP
        fill = mix(oth, fill) if len(oth) > len(fill) else mix(fill, oth)
        if s == MB:
            def mid(): a(woc[0]); a.wait_id(H['v']); a.wait(lg=0); a('s_nop 2'); spin('WO', WOP, woc); a.barrier(); tn(a, 'mid'); a(f'buffer_store_dword v248, v249, {WSR}, s50 offen sc1')
            fill = [mid] + fill
        tn(a, f's{s}')
        spread(a, main, fill, hi=18)
    assert not wq_rest
    tn(a, 'p1e')
    w1q = [w1_ld(f) for f in range(60)]
    def w1n(n):
        l = w1q[:n]; del w1q[:n]; return l
    st = []
    for sl in range(4):
        for mt in range(5):
            if sl == 3 and mt == 0: continue
            ac = ACC + 4 * (sl * 5 + mt - (1 if sl == 3 else 0))
            st += [f'v_cvt_pk_bf16_f32 v{ac}, v{ac}, v{ac+1}', f'v_cvt_pk_bf16_f32 v{ac+1}, v{ac+2}, v{ac+3}',
                   f'ds_write_b64 v{24+sl}, v[{ac}:{ac+1}] offset:{512*mt}']
    if FBI == 20: fb_issue()
    spread(a, st, wos)
    fb_check()
    a.wait(lg=0); a.barrier()
    tn(a, 'db')
    fb_after()
    K0, K1, VR, SR = 120, 130, 140, 176
    st = []; A = st.append
    def sx(m): A(f's_mov_b32 exec_lo, {hex(m & 0xffffffff)}'); A(f's_mov_b32 exec_hi, {hex(m >> 32)}')
    for t in w1n(opt('n1', 6)): a(t)
    for t in range(5):
        a(f'ds_read_b64 v[{K0+2*t}:{K0+2*t+1}], v28 offset:{(5+t)*2560}')
        a(f'ds_read_b64 v[{K1+2*t}:{K1+2*t+1}], v28 offset:{(5+t)*2560+512}')
    for h in range(4):
        k.setexec((FULL << (16 * h)) & FULL)
        a(f'ds_read_b64 v[{QR+4*h}:{QR+4*h+1}], v28 offset:{h*2560+512}')
        k.setexec((1 << (16 * (h + 1))) - 1)
        a(f'ds_read_b64 v[{QR+4*h+2}:{QR+4*h+3}], v28 offset:{(h+1)*2560+512}')
    for t in range(5):
        a(f'ds_read_b64_tr_b16 v[{VR+4*t}:{VR+4*t+1}], v29 offset:{(10+t)*2560}')
        a(f'ds_read_b64_tr_b16 v[{VR+4*t+2}:{VR+4*t+3}], v29 offset:{(10+t)*2560+512}')
    H = range(4)
    for h in H:
        A(f'{MF} v[{SR+8*h}:{SR+8*h+3}], v[{K0+2*h}:{K0+2*h+3}], v[{QR+4*h}:{QR+4*h+3}], v[34:37]')
        A(f'{MF} v[{SR+8*h+4}:{SR+8*h+7}], v[{K1+2*h}:{K1+2*h+3}], v[{QR+4*h}:{QR+4*h+3}], 0')
    for h in H:
        b = SR + 8 * h
        for e in (0, 2, 4, 6): A(f'v_cndmask_b32 v{b+e}, v{b+e}, v{b+e+1}, s[74:75]')
        A(f'v_cndmask_b32 v{b}, v{b}, v{b+4}, s[76:77]'); A(f'v_cndmask_b32 v{b+1}, v{b+2}, v{b+6}, s[78:79]')
    def bfly(op, r):
        for sw in ('v_permlane16_swap_b32', 'v_permlane32_swap_b32'):
            for h in H: A(f'v_mov_b32 v{SR+8*h+r+1}, v{SR+8*h+r}')
            for h in H: A(f'{sw} v{SR+8*h+r}, v{SR+8*h+r+1}')
            for h in H: A(f'{op} v{SR+8*h+r}, v{SR+8*h+r}, v{SR+8*h+r+1}')
    for h in H: A(f'v_max_f32 v{SR+8*h+2}, v{SR+8*h}, v{SR+8*h+1}')
    bfly('v_max_f32', 2)
    CS = LOG2E * 20 ** -0.5
    A(f's_mov_b32 s57, {fl(CS)}')
    for h in H: A(f'v_mul_f32 v{SR+8*h+2}, {fl(-CS)}, v{SR+8*h+2}')
    for h in H:
        b = SR + 8 * h
        A(f'v_fma_f32 v{b}, v{b}, s57, v{b+2}'); A(f'v_fma_f32 v{b+1}, v{b+1}, s57, v{b+2}')
    for h in H:
        b = SR + 8 * h
        A(f'v_exp_f32 v{b}, v{b}'); A(f'v_exp_f32 v{b+1}, v{b+1}')
    for h in H: A(f'v_add_f32 v{SR+8*h+2}, v{SR+8*h}, v{SR+8*h+1}')
    bfly('v_add_f32', 2)
    for h in H: A(f'v_rcp_f32 v{SR+8*h+2}, v{SR+8*h+2}')
    for h in H:
        b = SR + 8 * h
        A(f'v_mul_f32 v{b}, v{b}, v{b+2}'); A(f'v_mul_f32 v{b+1}, v{b+1}, v{b+2}')
    for h in H: A(f'v_cvt_pk_bf16_f32 v{SR+8*h}, v{SR+8*h}, v{SR+8*h+1}')
    for h in H:
        b = SR + 8 * h
        for q in range(4): A(f'v_perm_b32 v{b+4+q}, v{b}, v{b}, v{30+q}')
    OR = 40
    for h in H:
        b = SR + 8 * h + 4
        A(f'{MF} v[{OR+8*h}:{OR+8*h+3}], v[{VR+4*h}:{VR+4*h+3}], v[{b}:{b+3}], 0')
        A(f'{MF} v[{OR+8*h+4}:{OR+8*h+7}], v[{VR+4*h+4}:{VR+4*h+7}], v[{b}:{b+3}], 0')
    spread(a, st, w1n(opt('n2', 22)), lo=opt('n2lo', 8), hi=opt('n2hi', 110))
    a(f's_mul_i32 s28, s{S_RB}, {RSZ}'); a(f's_add_u32 s28, s28, {WS_OF}'); a(f's_mul_i32 s57, s{S_W}, 20480'); a('s_add_u32 s57, s57, s28')
    frag_offsets(a, 57, 58, 3)
    F = 80
    a(f'v_cvt_pk_bf16_f32 v{F}, v{OR}, v{OR+1}'); a(f'v_cvt_pk_bf16_f32 v{F+1}, v{OR+2}, v{OR+3}')
    for t in (1, 2, 3, 4):
        s_ = OR + 8 * (t - 1) + 4
        a(f'v_cvt_pk_bf16_f32 v{F+2*t}, v{s_}, v{s_+1}'); a(f'v_cvt_pk_bf16_f32 v{F+2*t+1}, v{s_+2}, v{s_+3}')
    for t in (1, 2, 3):
        k.setexec((FULL << (16 * t)) & FULL)
        s_ = OR + 8 * t
        a(f'v_cvt_pk_bf16_f32 v{F+2*t}, v{s_}, v{s_+1}'); a(f'v_cvt_pk_bf16_f32 v{F+2*t+1}, v{s_+2}, v{s_+3}')
    a('s_mov_b64 exec, -1')
    fb_fast()
    h = k.stores(frag_store80(F, 57, 58))
    tn(a, 'att')
    XR, ACC = 64 + 28, 40
    GA, GG = 152, 40; X1 = 92
    a(f's_mul_i32 s3, s{S_W}, 5120')
    a('s_add_u32 s57, s28, s3')
    for q in range(4):
        a(f's_add_u32 s3, s{S_W}, {q+1}'); a('s_and_b32 s3, s3, 3')
        a(f's_mul_i32 s58, s3, 20480'); a(f's_add_u32 s{32+q}, s58, s57')
        if q < 3:
            a('s_mul_i32 s58, s3, 15360'); a(f's_add_u32 s58, s58, {q*5120}'); a(f'v_add_u32 v{20+q}, s58, v4')
    a(f's_mul_i32 s58, s{S_W}, 15360'); a('v_add_u32 v23, s58, v4')
    a(f'v_lshlrev_b32 v24, 4, v2'); a(f'v_add_u32 v24, {L_OWN}, v24')
    mod2_fin()
    for t in range(5): a(f'ds_read_b64 v[{10+2*t}:{11+2*t}], v39 offset:{32*t}')
    k.publish(h, 1, 3)
    tn(a, 'pb1')
    for t in w1n(opt('n3', 0)): a(t)
    k.poll(1, 3)
    tn(a, 'p2')
    for q in range(4):
        for i in range(5): a(ld(q4('v', XR + (q * 5 + i) * 4), i, 32 + q, sc1=True))
    prev = []
    for q in range(4):
        ac = ACC + 20 * (q & 1)
        main = []
        for i in range(5):
            for t in range(5):
                c = '0' if i == 0 else q4('v', ac + 4 * t)
                main.append(f'{MF} {q4("v", ac + 4*t)}, {wo_reg(t, i)}, {q4("v", XR + (q*5+i)*4)}, {c}')
        spread(a, main, prev + (w1n(opt('n4', 8)) if q >= 1 else []), lo=4, hi=22)
        prev = [f'ds_write_b128 v{20+q}, {q4("v", ac+4*t)} offset:{1024*t}' for t in range(5)] if q < 3 else []
    tn(a, 'p2m')
    a(f's_add_u32 s31, s28, {WS_X1G - WS_OF}'); a(f's_mul_i32 s57, s{S_W}, 20480'); a('s_add_u32 s57, s57, s31')
    frag_offsets(a, 57, 58, 3)
    a('v_lshlrev_b32 v38, 6, v38'); a(f's_lshl3_add_u32 s59, s{S_J}, s31'); a('s_add_u32 s59, s59, 81920')
    a.wait(lg=0); a.barrier()
    tn(a, 'p2b')
    R = ACC + 20
    for q in range(3):
        for t in range(5): a(f'ds_read_b128 {q4("v", XR + (q*5+t)*4)}, v23 offset:{q*5120+t*1024}')
    for v, b in enumerate((GA, GG)):
        for t in range(5): a(f'ds_read_b128 v[{b+4*t}:{b+4*t+3}], v24 offset:{(20*v+4*t)*16}')
    w2s = [w2_ld(f) for f in range(60)]
    st = []; A = st.append
    for q in range(3):
        for t in range(5):
            r = XR + (q * 5 + t) * 4
            for e in (0, 2): A(f'v_pk_add_f32 v[{R+4*t+e}:{R+4*t+e+1}], v[{R+4*t+e}:{R+4*t+e+1}], v[{r+e}:{r+e+1}]')
        if q == 0:
            for e in range(10): st += unpack(X1 + 2 * e, X1 + 2 * e + 1, 10 + e)
    for e in range(10): A(f'v_pk_fma_f32 v[{X1+2*e}:{X1+2*e+1}], v[{R+2*e}:{R+2*e+1}], v[{GA+2*e}:{GA+2*e+1}], v[{X1+2*e}:{X1+2*e+1}]')
    for e in range(10): A(f'v_cvt_pk_bf16_f32 v{10+e}, v{X1+2*e}, v{X1+2*e+1}')
    for e in range(10): st += unpack(X1 + 2 * e, X1 + 2 * e + 1, 10 + e)
    for e in range(10): A(f'v_pk_mul_f32 v[{R+2*e}:{R+2*e+1}], v[{X1+2*e}:{X1+2*e+1}], v[{GG+2*e}:{GG+2*e+1}]')
    F = 80
    for e in range(10): A(f'v_cvt_pk_bf16_f32 v{F+e}, v{R+2*e}, v{R+2*e+1}')
    spread(a, st, w1n(opt('n5', 8)), hi=opt('n5hi', 60))
    k.stores(frag_store80(F, 57, 58))
    a(f'v_pk_add_f32 v[24:25], v[{X1}:{X1+1}], v[{X1+2}:{X1+3}]'); a(f'v_pk_mul_f32 v[26:27], v[{X1}:{X1+1}], v[{X1}:{X1+1}]')
    for e in range(1, 10):
        p = f'v[{X1+2*e}:{X1+2*e+1}]'
        if e > 1: a(f'v_pk_add_f32 v[24:25], v[24:25], {p}')
        a(f'v_pk_fma_f32 v[26:27], {p}, {p}, v[26:27]')
    a('v_add_f32 v24, v24, v25'); a('v_add_f32 v25, v26, v27')
    for sw in ('v_permlane16_swap_b32', 'v_permlane32_swap_b32'):
        a('v_mov_b32 v26, v24'); a('v_mov_b32 v27, v25')
        a(f'{sw} v24, v26'); a(f'{sw} v25, v27')
        a('v_add_f32 v24, v24, v26'); a('v_add_f32 v25, v25, v27')
    h = k.stores(['s_mov_b64 exec, 0xffff', f'buffer_store_dwordx2 v[24:25], v38, {WSR}, s59 offen', 's_mov_b64 exec, -1'])
    hst = a.vm[-1][0]
    tn(a, 'p2e')
    if opt('ot', 0) == 2: a(OTCH.format(23))
    for t in w1n(99): a(t)
    XF = 40; NB = 6; ACC = 64; U1, T1, T = 88, 100, 112
    a('v_and_b32 v3, 1, v1'); a('v_lshlrev_b32 v3, 6, v3'); a('v_lshl_add_u32 v20, v2, 4, v3'); a(f'v_add_u32 v20, {L_GS}, v20')
    a(f'v_add_u32 v21, {L_X3}, v4'); a(f'v_add_u32 v22, {L_X3 + 40960}, v4')
    def xr(mt, s, slot):
        if mt == 4: return f'ds_read_b128 {q4("v", XF + 4*slot)}, v20 offset:{128*s}'
        return f'ds_read_b128 {q4("v", XF + 4*slot)}, v{21 + mt//2} offset:{((mt%2)*20+s)*1024}'
    PF = NB - 1
    def p3pass(mt, acb, fill, nxt=None, pre=True, lo=6, hi=56, base=0):
        if pre:
            for p in range(PF): a(xr(mt, p, (base + p) % NB))
        main = []
        for s in range(20):
            if s + PF < 20: main.append(xr(mt, s + PF, (base + s + PF) % NB))
            elif nxt is not None: main.append(xr(nxt, s + PF - 20, (base + s + PF) % NB))
            for t in range(3):
                c = '0' if s == 0 else q4('v', acb + 4 * t)
                main.append(f'{MF} {q4("v", acb + 4*t)}, {w1_reg(s*3+t)}, {q4("v", XF + 4*((base + s) % NB))}, {c}')
        spread(a, main, fill, lo=lo * 4 // 3, hi=hi * 4 // 3)
    a(f's_mul_i32 s55, s{S_W}, 5120'); a('s_add_u32 s29, s31, s55'); a(f's_add_u32 s55, s55, {L_X3}')
    def xdma(mt):
        a(f's_add_u32 s30, s29, {mt*20480}'); a(f's_add_u32 m0, s55, {mt*20480}')
        for i in range(4): a(f'buffer_load_dwordx4 v4, {WSR}, s30 offen offset:{1024*i} sc1 lds')
        a(f's_add_u32 m0, s55, {mt*20480 + 4096}')
        return a(f'buffer_load_dwordx4 v5, {WSR}, s30 offen sc1 lds')
    W2E = opt('w2e', 6)
    p3pass(4, ACC + 12, [lambda: k.publish(hst, 2, 3)] + w2s[:W2E], lo=opt('pb2', 18), hi=opt('pb2', 18) + 1 + 2 * W2E)
    for t in w2s[W2E:W2E + opt('w2f', 0)]: a(t)
    W2E += opt('w2f', 0)
    tn(a, 'u1')
    k.poll(2, 3)
    hx = [xdma(0)]
    hx += [xdma(mt) for mt in range(1, 4)]
    C = -LOG2E
    for e in range(12):
        a(f'v_mov_b32_dpp v{U1+e}, v{ACC+12+e} quad_perm:[0,0,2,2] row_mask:0xf bank_mask:0xf')
        a(f'v_mov_b32_dpp v{T1+e}, v{ACC+12+e} quad_perm:[1,1,3,3] row_mask:0xf bank_mask:0xf')
    for e in range(12): a(f'v_mul_f32 v{T1+e}, {fl(C)}, v{T1+e}')
    a(f's_mul_i32 s53, s{S_J}, 6144'); a('s_add_u32 s52, s28, s53')
    a(f's_lshr_b32 s53, s{S_W}, 1'); a('s_lshl_b32 s53, s53, 10'); a('s_add_u32 s53, s53, s52'); a('s_add_u32 s53, s53, 4096')
    a(f's_and_b32 s3, s{S_W}, 1'); a('s_lshl3_add_u32 s53, s3, s53')
    a(f's_lshl_b32 s3, s{S_W}, 10'); a('s_add_u32 s52, s52, s3')
    a(f's_mov_b32 s54, {fl(C)}')
    a('s_add_u32 s30, s31, 81920')
    a('v_lshlrev_b32 v3, 6, v1'); a('v_lshl_add_u32 v3, v2, 4, v3')
    a.wait_id(hx[0]); a.barrier()
    tn(a, 'p3')
    for mt in range(4): a(f'buffer_load_dwordx4 v[{24+4*mt}:{27+4*mt}], v3, {WSR}, s30 offen offset:{1024*mt} sc1')
    M = range(4); st = []; A = st.append
    for m in M: A(f'v_add_f32 v{24+4*m}, v{24+4*m}, v{26+4*m}'); A(f'v_add_f32 v{25+4*m}, v{25+4*m}, v{27+4*m}')
    for sw in ('v_permlane16_swap_b32', 'v_permlane32_swap_b32'):
        for m in M: A(f'v_mov_b32 v{26+4*m}, v{24+4*m}'); A(f'v_mov_b32 v{27+4*m}, v{25+4*m}')
        for m in M: A(f'{sw} v{24+4*m}, v{26+4*m}'); A(f'{sw} v{25+4*m}, v{27+4*m}')
        for m in M: A(f'v_add_f32 v{24+4*m}, v{24+4*m}, v{26+4*m}'); A(f'v_add_f32 v{25+4*m}, v{25+4*m}, v{27+4*m}')
    A(f'v_mov_b32 v3, {fl(1e-5)}')
    for m in M: A(f'v_mul_f32 v{26+4*m}, s56, v{24+4*m}')
    for m in M: A(f'v_fma_f32 v{25+4*m}, v{25+4*m}, s56, v3')
    for m in M: A(f'v_fma_f32 v{25+4*m}, -v{26+4*m}, v{26+4*m}, v{25+4*m}')
    for m in M: A(f'v_max_f32 v{25+4*m}, v{25+4*m}, v3')
    for m in M: A(f'v_rsq_f32 v{24+4*m}, v{25+4*m}')
    for m in M: A(f'v_mul_f32 v{24+4*m}, s54, v{24+4*m}')
    for m in M: A(f'v_mul_f32 v{25+4*m}, -v{26+4*m}, v{24+4*m}')
    hs = {}
    def epi_ops(mt):
        ac = ACC + 12 * (mt & 1); P = 24 + 4 * mt; o = {}
        for e in range(12):
            o['A', e] = ([], f'v_fma_f32 v{T+e}, v{U1+e}, v{P+1}, v{T1+e}')
            o['B', e] = ([('A', e)], f'v_fma_f32 v{ac+e}, v{ac+e}, v{P}, v{T+e}')
            o['X', e] = ([('B', e)], f'v_exp_f32 v{T+e}, v{ac+e}')
            o['C', e] = ([('X', e)], f'v_fma_f32 v{T+e}, v{T+e}, s54, s54')
            o['R', e] = ([('C', e)], f'v_rcp_f32 v{T+e}, v{T+e}')
            o['M', e] = ([('R', e)], f'v_mul_f32 v{ac+e}, v{ac+e}, v{T+e}')
        for e in range(6): o['V', e] = ([('M', 2 * e), ('M', 2 * e + 1)], f'v_cvt_pk_bf16_f32 v{T+e}, v{ac+2*e}, v{ac+2*e+1}')
        return o
    def sto(mt):
        def f():
            hs[mt] = k.stores([f'buffer_store_dwordx4 v[{T}:{T+3}], v4, {WSR}, s52 offen', f'buffer_store_dwordx2 v[{T+4}:{T+5}], v4, {WSR}, s53 offen'])
            d = 49152 if mt != 1 else WS_X1G - WS_OF - 49152
            a(f's_add_u32 s52, s52, {d}'); a(f's_add_u32 s53, s53, {d}')
        return f
    def epi_slots(mt, p0=1):
        o = epi_ops(mt); done = {}; sl = {}; p = p0
        def ready(x, n): return all(d in done and done[d] + (2 if o_k(d) else 0) < n for d in o[x][0])
        def o_k(x): return x[0] in 'XR'
        while len(done) < len(o):
            n = 2 * p
            c = [x for kk in 'RX' for x in o if x[0] == kk and x not in done and ready(x, n)]
            if c: sl.setdefault(n, []).append(o[c[0]][1]); done[c[0]] = n
            n += 1
            for _ in range(opt('npl', 3) if c else 5):
                c2 = [x for kk in 'CBVMA' for x in o if x[0] == kk and x not in done and ready(x, n)]
                if not c2: break
                sl.setdefault(n, []).append(o[c2[0]][1]); done[c2[0]] = n
            p += 1
        sl.setdefault(2 * p, []).append(sto(mt))
        return sl
    def emit(mf, *plans):
        sl = {}
        for pl in plans:
            if isinstance(pl, dict):
                for n, v in pl.items(): sl.setdefault(n, []).extend(v)
            else:
                it, lo, hi = pl
                for i, t in enumerate(it): sl.setdefault((lo + (hi - lo) * i // max(1, len(it))) // 2 * 2, []).append(t)
        assert max(sl) < len(mf), (max(sl), len(mf))
        for n, m_ in enumerate(mf):
            a(m_)
            for t in sl.get(n, []):
                if callable(t): t()
                else: a(t)
    def p3mf(mt, base): return [f'{MF} {q4("v", ACC + 12 * (mt & 1) + 4*t)}, {w1_reg(s*3+t)}, {q4("v", XF + 4*((base + s) % NB))}, {"0" if s == 0 else q4("v", ACC + 12 * (mt & 1) + 4*t)}' for s in range(20) for t in range(3)]
    def p3rd(mt, base, nxt):
        d = {}
        for s in range(20):
            n = (3 * s + 1) // 2 * 2 if s else 0
            n = max(n, 3 * s - 1); n += n & 1
            if s + PF < 20: d.setdefault(min(n, 58), []).append(xr(mt, s + PF, (base + s + PF) % NB))
            elif nxt is not None: d.setdefault(min(n, 58), []).append(xr(nxt, s + PF - 20, (base + s + PF) % NB))
        return d
    def x4reg(q, i):
        if q == 0: return q4('v', 124 + 4 * i)
        if q == 1: return q4('v', 172 + 4 * i)
        if q == 2: return q4('v', 80 + 4 * i) if i < 11 else q4('v', 220)
        return q4('v', 224 + 4 * i) if i < 8 else q4('a', 140 + 4 * (i - 8))
    def x4ld(q): return [ld(x4reg(q, i), i, 32 + q, sc1=True) for i in range(12)]
    SQ = {8: 0, 5: 20480, 6: 40960, 7: 61440}
    def stg(f):
        i, t = divmod(f, 5)
        b, o = (57, SQ[i] + 1024 * t) if i < 9 else (58, 1024 * t)
        return f's_add_u32 m0, s{b}, {o - 1024 * (i % 4)}\nbuffer_load_dwordx4 v{4 + i // 4}, {WSR}, s{44 + t} offen offset:{1024 * (i % 4)}{WB} lds'
    def stg_rd(f):
        i, t = divmod(f, 5)
        if i == 9: return f'ds_read_b128 {w2_reg(f)}, v23 offset:{1024 * t}'
        return f'ds_read_b128 {w2_reg(f)}, v21 offset:{SQ[i] + 1024 * t}' if SQ[i] + 1024 * t < 65536 else f'ds_read_b128 {w2_reg(f)}, v23 offset:{1024 * t}'
    a(f's_mul_i32 s57, s{S_W}, 5120'); a(f's_mul_i32 s58, s{S_W}, 3072'); a(f's_add_u32 s58, s58, {L_XR}')
    HS = {}
    wl = w2s[W2E:25] + [stg(f) for f in list(range(25, 35)) + list(range(40, 48))] + [stg(f) for f in range(35, 40)] + [lambda: HS.update(s=a.vm[-1][0])]
    L0 = opt('l0', 13); L1 = opt('l1', 14)
    def wbe():
        a(f's_lshl2_add_u32 s3, s2, s{S_W}'); a('s_and_b32 s3, s3, 0x3e3'); a('s_cbranch_scc0 WBL1')
        a(k.poll_issue(23)); a.label('WBR1')
        k.tail.append('WBL1:\n  buffer_wbl2 sc1\n  s_branch WBR1')
    WB1 = opt('wb1', -1); wbd = lambda p: {WB1 - 60 * p: [wbe]} if 60 * p <= WB1 < 60 * p + 60 else {}
    assert len(wl) - L0 >= 6
    for p in range(PF): a(xr(0, p, p % NB))
    emit(p3mf(0, 0), p3rd(0, 0, None), (wl[:L0], 2, opt('l0hi', 56)), {n: st[4 * ((n - 15) // 2):4 * ((n - 15) // 2) + 4] for n in range(15, 59, 2)}, wbd(0))
    assert len(st) <= 88
    a(f's_mul_i32 s3, s{S_W}, 12288'); a('s_add_u32 s32, s28, s3'); a('s_add_u32 s33, s32, 49152'); a('s_add_u32 s34, s31, s3'); a('s_add_u32 s35, s34, 49152')
    a('v_bfe_u32 v20, v0, 3, 2'); a('v_lshl_add_u32 v20, v20, 7, v9'); a('s_and_b32 s29, s27, 0xfffffe00')
    a.wait_id(hx[3]); a.barrier()
    tn(a, 'a0')
    for p in range(PF): a(xr(1, p, p % NB))
    PB = opt('pb', 14)
    emit(p3mf(1, 0), p3rd(1, 0, 2), epi_slots(0), (wl[L0:L0 + L1], 0, 54), wbd(1))
    tn(a, 'a1')
    emit(p3mf(2, 20), p3rd(2, 20, 3), epi_slots(1), {PB: [lambda: k.publish(hs[0], 3, 3)]}, (wl[L0 + L1:], 0, 54), {58: [k.poll_issue(3, 20, 29), 'v_add_u32 v21, s57, v4']})
    tn(a, 'a2')
    x0, x1, x2, x3 = (x4ld(q) for q in range(4))
    late = w2s[48:]
    rd = {}
    for f in list(range(25, 39)) + list(range(40, 45)): rd.setdefault(max(f - 25 + 3, 8 + 2 * (f - 25)) // 2 * 2, []).append(stg_rd(f))
    rd[6] = [lambda: a.wait_id(HS['s'])]
    rd.setdefault(48, []).extend(['v_add_u32 v23, 61440, v21', stg_rd(39)]); rd.setdefault(50, []).extend(['v_add_u32 v23, s58, v4', stg_rd(45)])
    rd.setdefault(52, []).append(stg_rd(46)); rd.setdefault(54, []).append(stg_rd(47))
    NL = opt('nl', 4); PC = opt('pc', 8)
    emit(p3mf(3, 40), p3rd(3, 40, None), epi_slots(2), {PC: [lambda: k.poll_check(3, 3, 20, 29)], PB: [lambda: k.publish(hs[1], 4, 3)]}, rd,
         (x0[:9], PC + 2, 40), (late[:NL], 42, 56), {58: [k.poll_issue(3)]})
    tn(a, 'p4')
    def ac4(q, t): return q4('v', 40 + 4 * t) if q % 2 == 0 else q4('v', 60 + 4 * t if t < 4 else 24)
    def p4mf(q, i0, i1): return [f'{MF} {ac4(q, t)}, {w2_reg(i*5+t)}, {x4reg(q, i)}, {"0" if i == 0 else ac4(q, t)}' for i in range(i0, i1) for t in range(5)]
    def red(q): return [f'ds_write_b128 v{21 if q < 3 else 23}, {ac4(q, t)} offset:{(q%3)*20480 + 1024*t}' for t in range(5)]
    mf = p4mf(0, 0, 9) + p4mf(1, 0, 9) + p4mf(0, 9, 12) + p4mf(1, 9, 12) + p4mf(2, 0, 12) + p4mf(3, 0, 12)
    def wb():
        n = opt('wb2', 1)
        if not n: return
        a(f's_lshl2_add_u32 s3, s2, s{S_W}'); a(f's_and_b32 s3, s3, {hex({1: 0x3e3, 2: 0x383, 3: 3}[n])}'); a('s_cbranch_scc0 WBL')
        a(k.poll_issue(20)); a.label('WBR')
        k.tail.append('WBL:\n  buffer_wbl2 sc1\n  s_branch WBR')
    VA, VB, VC, VX, VG, VO, VO4 = range(176, 183)
    OB = ['', ' sc1', ' nt', ' sc0 sc1', ' sc1 nt'][opt('ob', 0)]
    adr = [f's_lshl_b32 s3, s{S_W}, 10', f'v_add_u32 v{VA}, s3, v4', f'v_add_u32 v{VB}, 61440, v{VA}', f's_mul_i32 s49, s{S_W}, 20480', 's_add_u32 s3, s49, 4096', f'v_add_u32 v{VC}, s3, v4',
           f's_lshl_b32 s3, s{S_W}, 9', f's_add_u32 s3, s3, {L_XR}', f'v_lshl_add_u32 v{VX}, v0, 3, s3', f's_lshl_b32 s3, s{S_W}, 6', f'v_lshl_add_u32 v{VG}, v2, 4, s3', f'v_add_u32 v{VG}, {L_OWN + 640}, v{VG}',
           f'v_mul_u32_u24 v{VO}, 1280, v1', f'v_lshl_add_u32 v{VO}, v2, 3, v{VO}', f'v_add_u32 v{VO4}, s49, v{VO}', f's_lshl_b32 s3, s{S_W}, 5', f'v_add_u32 v{VO}, s3, v{VO}',
           f's_mul_i32 s49, s{S_RB}, 81920', 's_add_u32 s61, s61, s49', f'v_lshlrev_b32 v183, 4, v2', f'v_add_u32 v183, {L_OWN + 640 + 256}, v183']
    rdc = [f'ds_read_b128 v[168:171], v{VG}', 'ds_read_b128 v[172:175], v183'] + [f'ds_read_b64 v[{156+2*q}:{157+2*q}], v{VX} offset:{3072*q}' for q in range(4)]
    def unit(q, b):
        P = 124 + 16 * b; X = 164 if q < 4 else 184; G = 168 if q < 4 else 172
        rd = [f'ds_read_b128 {q4("v", P + 4*s_)}, v{VC if q == 4 else VB if q == 3 else VA} offset:{(q*20480 if q < 3 else 0) + 5120*s_}' for s_ in range(4)]
        l = []
        if q < 4: l += unpack(X, X + 1, 156 + 2 * q) + unpack(X + 2, X + 3, 157 + 2 * q)
        l += [f'v_add_f32 v{P+e}, v{P+e}, v{P+4+e}' for e in range(4)] + [f'v_add_f32 v{P+8+e}, v{P+8+e}, v{P+12+e}' for e in range(4)] + [f'v_add_f32 v{P+e}, v{P+e}, v{P+8+e}' for e in range(4)]
        l += [f'v_fma_f32 v{P+e}, v{P+e}, v{G+e}, v{X+e}' for e in range(4)] + [f'v_cvt_pk_bf16_f32 v{188+2*q+e}, v{P+2*e}, v{P+2*e+1}' for e in range(2)]
        if not (q < 3 and q >= DS): l.append(ost(q))
        return rd, l
    DS = opt('ds', 0)
    def ost(q):
        if q < 4: return f's_add_u32 s3, s61, {20480*q}\nbuffer_store_dwordx2 v[{188+2*q}:{189+2*q}], v{VO}, s[{S_O}:{S_O+3}], s3 offen{OB}'
        return f'buffer_store_dwordx2 v[196:197], v{VO4}, s[{S_O}:{S_O+3}], s61 offen offset:128{OB}'
    u4a = unpack(184, 185, 18) + unpack(186, 187, 19)
    def odd(l, n0): return {n0 + 2 * (i // 3): l[i // 3 * 3:i // 3 * 3 + 3] for i in range(0, len(l), 3)}
    def bar(): a.wait(lg=0); a.barrier()
    B1, B2_ = opt('rb1', 144), opt('rb2', 204)
    e3 = epi_slots(3); E3 = max(e3)
    o = lambda n, d: opt(n, d)
    ky = [o('c4', 6), PB, o('i5', 48), E3 + 2, E3 + PB, o('i6', 96), o('c6', 108), 45, 90, 120, 180, o('wbp', 130), 2, B1, B2_]
    assert len(set(ky)) == len(ky), ky
    assert len({PB, PC, 58}) == 3
    emit(mf, e3, {o('c4', 6): [lambda: k.poll_check(4, 3)], PB: [lambda: k.publish(hs[2], 5, 3)], o('i5', 48): [k.poll_issue(3)], E3 + 2: [lambda: k.poll_check(5, 3)],
                  E3 + PB: [lambda: k.publish(hs[3], 6, 3)], o('i6', 96): [k.poll_issue(3)], o('c6', 108): [lambda: k.poll_check(6, 3)],
                  45: [lambda: tn(a, 'e3')], 90: [lambda: tn(a, 'q0')], 120: [lambda: tn(a, 'q1')], 180: [lambda: tn(a, 'q2')],
                  o('wbp', 130): [wb], 2: ['v_add_u32 v23, 61440, v21', 'v_lshl_add_u32 v22, v0, 3, s58'], B1: [bar], B2_: [bar]},
         ([f'ds_write_b64 v22, v[{10+2*t}:{11+2*t}] offset:{512*t}' for t in range(4)], 4, 12), odd(adr, 121), (rdc + unit(0, 0)[0] + unit(1, 1)[0], B1 + 2, B1 + 14),
         odd(unit(0, 0)[1] + unit(1, 1)[1], B1 + 13), (unit(2, 0)[0], B2_ + 2, B2_ + 6), odd(unit(2, 0)[1] + u4a, B2_ + 9),
         (x1[:9], o('c4', 6) + 2, o('x1hi', 30)), (late[NL:] + x0[9:] + x1[9:], o('x1hi', 30), o('lhi', 72)), (x2, max(E3 + 4, o('lhi', 72)), o('x2hi', 104)), (x3, o('c6', 108) + 2, o('x3hi', 128)),
         (red(0), 108, 118), (red(1), 124, 140), (red(2), 184, 200))
    prev = red(3)
    for t in prev: a(t)
    for q in range(DS, 3): a(ost(q))
    tn(a, 'p4e')
    bar()
    r3, c3 = unit(3, 1); r4, c4 = unit(4, 0)
    for t in r3 + r4 + c3 + c4: a(t)
    gen1.epilogue(a, 'p0')
    for t in k.tail: a.raw(t)
    a.raw('CODE_END:')
    return LDS_SIZE
if __name__ == '__main__':
    t, d, lds = gen1.kernel_text(gen1.NAME + '_kernel', main_kernel)
    open(sys.argv[1], 'w').write(f'; @launch grid=(256,1,1) block=(256,1,1) lds={lds}\n.amdgcn_target "amdgcn-amd-amdhsa--gfx950"\n.text\n' + t + '.section .rodata,"a"\n.p2align 6\n' + d)
```

```python
import sys, struct
from asmfw import *
import gen1
from gen1 import WS_MODP, WS_STATS, WS_WQ, WS_WO, WS_W1, WS_W2, WS_OF, WS_X1G, WS_H1, MF, LOG2E, fl, unpack, srd, S_WS, S_X, S_O, S_RB, S_J, S_W, ts, tsc, ts_flush
WSR = f's[{S_WS}:{S_WS+3}]'
WS_FL = 0x40000
WS_XID = 0x44000
S_FAST = 23
S_E = 24
FULL = (1 << 64) - 1
OPT = sys.argv[2] if len(sys.argv) > 2 else ''
L_DUMP = 102400; L_PERM = 147456
L_MODL = L_PERM; L_XR = L_PERM; L_GS = 159744; L_OWN = L_GS + 2560
L_X3 = 65536
LDS_SIZE = 163840
class K:
    def __init__(s, a): s.a = a; s.tail = []; s.nl = 0
    def setexec(s, m):
        s.a(f's_mov_b32 exec_lo, {hex(m & 0xffffffff)}'); s.a(f's_mov_b32 exec_hi, {hex(m >> 32)}')
    def stores(s, lst):
        a = s.a; s.nl += 1; n = s.nl
        a(f's_cmp_eq_u32 s{S_FAST}, 0'); a(f's_cbranch_scc1 SLOW{n}')
        h = None; n0 = len(a.out)
        for t in lst: h = a(t)
        assert len(a.out) - n0 == len(lst), a.out[n0:]
        a.label(f'RET{n}')
        s.tail.append(f'SLOW{n}:\n' + ''.join(f'  {t}{" sc1" if t.startswith("buffer") else ""}\n' for t in lst) + f'  s_branch RET{n}')
        return h
    def publish(s, h, val, vt):
        s.a(f's_add_u32 s72, s{S_E}, {val}'); s.a(f'v_mov_b32 v{vt}, s72')
        s.a.wait_id(h)
        s.stores([f'buffer_store_dword v{vt}, off, {WSR}, s26'])
    def spin_tail(s, n, val, vt, va=9, so=27):
        s.tail.append(f'''SPIN{n}:
  s_mov_b32 s72, 0x8000
SPINL{n}:
  buffer_load_dword v{vt}, v{va}, {WSR}, s{so} offen sc1
  s_waitcnt vmcnt(0)
  v_subrev_u32 v{vt}, s{S_E}, v{vt}
  v_add_u32 v{vt}, {-val}, v{vt}
  v_cmp_gt_u32 vcc, 8, v{vt}
  s_sub_u32 s72, s72, 1
  s_cbranch_scc1 PDONE{n}
  s_cmp_eq_u64 vcc, -1
  s_cbranch_scc0 SPINL{n}
  s_branch PDONE{n}''')
    def poll(s, val, vt):
        a = s.a; s.nl += 1; n = s.nl
        a.wait(lg=0)
        if not opt('sp', 0):
            a(f's_branch SPIN{n}')
        else:
            a(f's_cmp_eq_u32 s{S_FAST}, 0'); a(f's_cbranch_scc1 SPIN{n}')
            a('s_mov_b32 s72, 0x8000'); a(f's_add_u32 s73, s{S_E}, {val}')
            a.label(f'POLL{n}')
            a(f's_load_dwordx8 s[64:71], s[{S_WS}:{S_WS+1}], s27 glc')
            a('s_sub_u32 s72, s72, 1'); a(f's_cbranch_scc1 PDONE{n}')
            a.wait(lg=0)
            for q in range(8): a(f's_sub_u32 s{64+q}, s{64+q}, s73')
            for q in range(1, 8): a(f's_max_u32 s64, s64, s{64+q}')
            a('s_cmp_lt_u32 s64, 8'); a(f's_cbranch_scc0 POLL{n}')
        a.label(f'PDONE{n}')
        a.fwait('lgkmcnt(0)')
        s.spin_tail(n, val, vt)
    def poll_issue(s, vt, va=9, so=27): return f'buffer_load_dword v{vt}, v{va}, {WSR}, s{so} offen sc1'
    def poll_check(s, val, vt, va=9, so=27):
        a = s.a; s.nl += 1; n = s.nl
        a(f's_add_u32 s72, s{S_E}, {val}'); a(f'v_subrev_u32 v{vt}, s72, v{vt}'); a(f'v_cmp_gt_u32 vcc, 8, v{vt}'); a('s_nop 3')
        a('s_cmp_eq_u64 vcc, -1'); a(f's_cbranch_scc0 SPIN{n}')
        a.label(f'PDONE{n}')
        s.spin_tail(n, val, vt, va, so)
def spread(a, main, fill, lo=0, hi=None):
    n = len(main); hi = n if hi is None else hi
    fi = 0; m = len(fill)
    def em(x):
        if callable(x): x()
        else: a(x)
    for i, t in enumerate(main):
        em(t)
        if i >= lo:
            tgt = min(m, -(-m * (i - lo + 1) // max(1, hi - lo)))
            while fi < tgt: em(fill[fi]); fi += 1
    while fi < m: em(fill[fi]); fi += 1
def mix(x, y):
    out = []; j = 0
    for i, t in enumerate(x):
        out.append(t)
        while j < len(y) and j * len(x) < (i + 1) * len(y): out.append(y[j]); j += 1
    return out + y[j:]
def frag_offsets(a, sb, s2, st):
    a(f's_lshr_b32 s{st}, s{S_J}, 1'); a(f's_mul_i32 s{st}, s{st}, 5120'); a(f's_add_u32 s{sb}, s{sb}, s{st}')
    a(f's_and_b32 s{st}, s{S_J}, 1')
    a(f's_lshl3_add_u32 s{s2}, s{st}, s{sb}'); a(f's_add_u32 s{s2}, s{s2}, 4096')
    a(f's_lshl_b32 s{st}, s{st}, 11'); a(f's_add_u32 s{sb}, s{sb}, s{st}')
def frag_store80(F, sb, s2):
    return [f'buffer_store_dwordx4 v[{F}:{F+3}], v4, {WSR}, s{sb} offen',
            f'buffer_store_dwordx4 v[{F+4}:{F+7}], v4, {WSR}, s{sb} offen offset:1024',
            f'buffer_store_dwordx2 v[{F+8}:{F+9}], v4, {WSR}, s{s2} offen']
def ld(reg, s, soff, srd_=WSR, sc1=False):
    return f'buffer_load_dwordx4 {reg}, v{4 + s // 4}, {srd_}, s{soff} offen offset:{1024 * (s % 4)}' + (sc1 if isinstance(sc1, str) else ' sc1' if sc1 else '')
def q4(k, b): return f'{k}[{b}:{b+3}]'
RING = 9
def wq_reg(s, sl): return q4('a', 16 * (s % RING) + 4 * sl)
def wo_reg(t, i): return q4('a', 156 + 4 * (i * 5 + t))
def w1_reg(f): return q4('a', 4 * f) if f < 39 else q4('v', 172 + 4 * (f - 39))
def w2_reg(f): return q4('a', 156 + 4 * f) if f < 25 else q4('a', 4 * (f - 25))
WB = [' sc1', '', ' nt', ' sc1 nt', ' sc0', ' sc0 nt'][int(([o[3:] for o in OPT.split(',') if o.startswith('wb=')] + ['0'])[0])]
def wq_ld(s, sl): return ld(wq_reg(s, sl), s, 32 + sl, 's[12:15]' if sl == 2 else WSR, WB)
def wo_ld(t, i): return ld(wo_reg(t, i), i, 36 + t, WSR, WB)
def w1_ld(f): return ld(w1_reg(f), f // 3, 41 + f % 3, WSR, WB)
def w2_ld(f): return ld(w2_reg(f), f // 5, 44 + f % 5, WSR, WB)


WS_EP = 0x48000; WS_FA = 0x49000; WS_FB = 0x4A000
S_E = 24
L_ST = L_DUMP; L_MR = 143360; RSZ = 98304
def opt(name, d):
    for o in OPT.split(','):
        if o.startswith(name + '='): return int(o.split('=')[1])
    return d
NT = ' nt' if opt('nt', 1) else ''; NTM = ' nt' if opt('ntm', 1) else ''; NTX = ' nt' if opt('ntx', 0) else ''; NTT = ' nt' if opt('ntt', 0) else ''
NXE = opt('nxe', 3); PUBE = opt('pube', 1)
TS = {n: i for i, n in enumerate(('p3', 'a0', 'a1', 'a2', 'p4', 'e3', 'q0', 'q1', 'q2', 'p4e') if 'traceQ' in OPT else ('p1e', 'db', 'att', 'pb1', 'p2', 'p2m', 'p2b', 'p2e', 'u1', 'p3') if 'traceR' in OPT else ('p1', 's2', 's4', 's6', 's8', 's10', 's13', 's15', 's17', 'p1e') if 'traceP' in OPT else ('s', 'dec', 'ka', 'b1', 'st', 'pub', 'xi', 'x0', 'x4', 'ln') if 'traceG' in OPT else ('s', 'ln', 'b2', 'pi', 'mf', 'vp', 'pw', 'fa', 'poll', 'bar') if 'traceH' in OPT else ('s', 'pub', 'pi', 'pw', 'poll', 'bar', 'ln', 'p1', 'p1e', 'att') if 'traceF' in OPT else ('s', 'bar', 'p1', 'p1e', 'att', 'p2', 'p2e', 'p3', 'p4', 'p4e'))}
def tn(a, n):
    if n in TS: ts(a, TS[n])
XN = 40
def pairs(a, st, n, dA, dB, t):
    mg, ta, tb = (13108, 0x47520, 0x98631) if n == 5 else (10923, 0x829630, 0xb5a741)
    a(f's_mul_i32 s{dA}, s{st}, {mg}'); a(f's_lshr_b32 s{dA}, s{dA}, 16'); a(f's_mul_i32 s{dB}, s{dA}, {n}')
    a(f's_sub_u32 s{t}, s{st}, s{dB}'); a(f's_lshl_b32 s{t}, s{t}, 2')
    a(f's_lshr_b32 s{dA}, {hex(ta)}, s{t}'); a(f's_and_b32 s{dA}, s{dA}, 15'); a(f's_lshl1_add_u32 s{dA}, s{dB}, s{dA}')
    a(f's_lshr_b32 s{t}, {hex(tb)}, s{t}'); a(f's_and_b32 s{t}, s{t}, 15'); a(f's_lshl1_add_u32 s{dB}, s{dB}, s{t}')
def perm_src(x, st, n, stride, vd, so, colb, A=30, B=31, T=3, v7=5, vt=3):
    pairs(x, st, n, A, B, T)
    x(f's_sub_u32 s{B}, s{B}, s{A}'); x(f's_mul_i32 s{B}, s{B}, {16*stride}'); x(f's_lshl2_add_u32 s{A}, s{A}, s{S_W}')
    x(f's_mul_i32 s{A}, s{A}, {4*stride}'); x(f's_add_u32 s{so}, s{A}, s{colb}')
    x(f'v_bfe_u32 v{vt}, v0, 3, 2'); x(f's_movk_i32 s{T}, {stride}'); x(f'v_mad_u32_u24 v{vd}, v{vt}, s{T}, v{v7}')
    x(f'v_lshrrev_b32 v{vt}, 5, v0'); x(f'v_mad_u32_u24 v{vd}, v{vt}, s{B}, v{vd}')
def tr_addr(x, vd, blk, base, vt=3, T=3):
    x(f's_movk_i32 s{T}, {blk}'); x(f'v_and_b32 v{vt}, 3, v1'); x(f'v_lshlrev_b32 v{vt}, 3, v{vt}'); x(f'v_mad_u32_u24 v{vd}, v2, s{T}, v{vt}')
    x(f'v_lshrrev_b32 v{vt}, 2, v1'); x(f'v_lshl_add_u32 v{vd}, v{vt}, 7, v{vd}')
    x(f's_lshl_b32 s{T}, s{S_W}, 5'); x(f's_add_u32 s{T}, s{T}, {base}'); x(f'v_add_u32 v{vd}, s{T}, v{vd}')
def uproc(n, R, sd, tst, va, vo, k='a'):
    l = []
    for t in range(n):
        l += [f'ds_read_b64_tr_b16 {k}[{R+4*t}:{R+4*t+1}], v{va} offset:{1024*t}', f'ds_read_b64_tr_b16 {k}[{R+4*t+2}:{R+4*t+3}], v{va} offset:{1024*t + 512}']
    for t in range(n):
        l.append((f's_add_u32 s{sd}, s{sd}, {4*tst}\n' if t else '') + f'buffer_store_dwordx4 {k}[{R+4*t}:{R+4*t+3}], v{vo}, {WSR}, s{sd} offen sc1')
    return l
LM = dict(W=176, C=196, AC=208, T=201)
class Mod:
    def __init__(m, late, W, C, AC, VW, VC, T, SC, SW, SR, SG): m.__dict__.update(locals())
    def dec(m):
        G, D, R = m.SG, m.SG + 1, m.SR
        l = [f'v_lshrrev_b32 v{m.VC}, 3, v0', f'v_and_b32 v{m.T}, 7, v0', f'v_lshlrev_b32 v{m.T}, 4, v{m.T}',
             f's_and_b32 s{G}, s2, 7', f's_lshl3_add_u32 s{G}, s{S_J}, s{G}']
        l += [f's_add_u32 s{G}, s{G}, 24', f's_min_u32 s{G}, s{G}, 59'] if m.late else [f's_sub_u32 s{G}, s{G}, 40']
        l += [f's_bfe_u32 s{D}, s2, 0x20003', f's_lshl2_add_u32 s{R}, s{D}, s{S_W}', f's_mul_i32 s{R}, s{R}, 40', f'v_add_u32 v{m.VC}, s{R}, v{m.VC}', f's_movk_i32 s{R}, 7680',
              f'v_mad_u32_u24 v{m.VW}, v{m.VC}, s{R}, v{m.T}', f's_lshl_b32 s{R}, s{G}, 7', f'v_lshlrev_b32 v{m.VC}, 1, v{m.VC}',
              f's_movk_i32 s{m.SC+2}, 1280', f's_mov_b32 s{m.SC+3}, 0x20000', f's_mov_b32 s{m.SW+3}, 0x20000', f's_mov_b32 s{m.SW+2}, {640*7680}']
        return l
    def dec2(m):
        G, D = m.SG, m.SG + 1
        return [f's_lshl_b32 s{G}, s{G}, 10', f's_lshl2_add_u32 s{D}, s{D}, s{G}', f's_add_u32 s{D}, s{D}, {WS_MODP}']
    def load(m, k='v', vw=None):
        vw = m.VW if vw is None else vw
        l = [f's_and_b32 s{m.SC+1}, s{m.SC+1}, 0xffff\ns_and_b32 s{m.SW+1}, s{m.SW+1}, 0xffff']
        for i in range(5): l.append(f'buffer_load_ushort {k}{m.C+i}, v{m.VC}, s[{m.SC}:{m.SC+3}], 0 offen offset:{16*i} sc1')
        for i in range(5): l.append((f's_add_u32 s{m.SR}, s{m.SR}, {8*7680}\n' if i else '') + f'buffer_load_dwordx4 {k}[{m.W+4*i}:{m.W+3+4*i}], v{vw}, s[{m.SW}:{m.SW+3}], s{m.SR} offen{NTM}')
        return l
    def silu(m):
        C, AC = m.C, m.AC; l = []
        for f in ('v_lshlrev_b32 v{c}, 16, v{c}', 'v_mul_f32 v{t}, ' + fl(-LOG2E) + ', v{c}', 'v_exp_f32 v{t}, v{t}', 'v_add_f32 v{t}, 1.0, v{t}', 'v_rcp_f32 v{t}, v{t}',
                  'v_mul_f32 v{c}, v{c}, v{t}', 'v_cvt_pk_bf16_f32 v{c}, v{c}, 0'):
            l += [f.format(c=C + i, t=AC + i) for i in range(5)]
        return l
    def dot(m):
        AC, T = m.AC, m.T; l = []
        for i in range(5):
            l.append(f'v_lshlrev_b32 v{T}, 16, v{m.C+i}')
            if m.late and opt('sdot', 1):
                op = 'v_mul_f32' if i == 0 else 'v_fmac_f32'
                for q in range(4):
                    w = m.W + 4 * i + q
                    l += [f'v_lshlrev_b32 v{T+1}, 16, v{w}', f'v_and_b32 v{w}, 0xffff0000, v{w}', f'{op} v{AC+2*q}, v{T+1}, v{T}', f'{op} v{AC+2*q+1}, v{w}, v{T}']
                continue
            for q in range(4):
                for e, sv in ((0, m.C + i), (1, T)):
                    r = AC + 2 * q + e
                    l.append(f'v_dot2_f32_bf16 v{r}, v{m.W+4*i+q}, v{sv}, {"0" if i == 0 else f"v{r}"}')
        G = m.SG
        l += [f'v_and_b32 v{T}, 7, v0', f'v_lshlrev_b32 v{T}, 5, v{T}', f'v_lshl_add_u32 v{T}, v2, 3, v{T}']
        l += [f'v_permlane32_swap_b32 v{AC+q}, v{AC+4+q}' for q in range(4)] + [f'v_add_f32 v{AC+q}, v{AC+q}, v{AC+4+q}' for q in range(4)]
        l += [f's_lshl_b32 s{G}, s{S_W}, 8', f's_add_u32 s{G}, s{G}, {L_MR}']
        l += [f'v_permlane16_swap_b32 v{AC+q}, v{AC+2+q}' for q in range(2)] + [f'v_add_f32 v{AC+q}, v{AC+q}, v{AC+2+q}' for q in range(2)]
        l += [f'v_add_u32 v{T}, s{G}, v{T}', f'v_lshlrev_b32 v{AC+6}, 2, v0']
        l += [f'v_add_f32_dpp v{AC+q}, v{AC+q}, v{AC+q} row_ror:8 row_mask:0xf bank_mask:0xf' for q in range(2)]
        return l + [f'v_add_u32 v{AC+6}, {L_MR}, v{AC+6}', f'ds_write_b64 v{T}, v[{AC}:{AC+1}]']
    def fin(m):
        AC, G = m.AC, m.SG
        l = [f'ds_read2st64_b32 v[{AC}:{AC+1}], v{AC+6} offset0:0 offset1:1', f'ds_read2st64_b32 v[{AC+2}:{AC+3}], v{AC+6} offset0:2 offset1:3',
             f's_cmp_eq_u32 s{S_W}, 0\ns_cselect_b32 s{G}, 0, 0x80000000' + (f'\ns_cmp_lt_u32 s2, 160\ns_cselect_b32 s{G}, s{G}, 0x80000000' if m.late else ''),
             f'v_or_b32 v{AC+7}, s{G}, v4', f's_bfe_u32 s{G}, s{S_E}, 0xa0000', f's_movk_i32 s{G+2}, 0xfc00',
             f'v_add_f32 v{AC}, v{AC}, v{AC+1}', f'v_add_f32 v{AC+2}, v{AC+2}, v{AC+3}', f'v_mov_b32 v{AC+5}, s{G}', f'v_add_f32 v{AC}, v{AC}, v{AC+2}',
             f'v_add_u32 v{AC}, 0x200, v{AC}', f'v_and_or_b32 v{AC}, v{AC}, s{G+2}, v{AC+5}',
             f'buffer_store_dword v{AC}, v{AC+7}, {WSR}, s{G+1} offen sc1']
        return l
def mchk(r0, n, vt, st):
    return [f'v_xor_b32 v{vt}, s{st}, v{r0}'] + [f'v_bitop3_b32 v{vt}, v{vt}, s{st}, v{r0+e} bitop3:0xf6' for e in range(1, n)] + [f'v_lshlrev_b32 v{vt}, 22, v{vt}', f'v_cmp_eq_u32 vcc, 0, v{vt}']
def msum(r0, n, one, hi=True):
    l = []
    for e in range(4 * n): l.append(f'v_and_b32 v{r0+e}, 0xfffffc00, v{r0+e}')
    for i in range(n): l.append(f'v_pk_add_f32 v[{r0+4*i}:{r0+4*i+1}], v[{r0+4*i}:{r0+4*i+1}], v[{r0+4*i+2}:{r0+4*i+3}]')
    for i in range(n): l.append(f'v_add_f32 v{r0+4*i}, v{r0+4*i}, v{r0+4*i+1}')
    for i in range(n): l.append(f'v_cvt_pk_bf16_f32 v{r0+4*i}, 0, v{r0+4*i}')
    for i in range(n): l.append(f'v_add_f32 v{r0+4*i}, {one[i]}, v{r0+4*i}')
    for i in range(n): l.append(f'v_cvt_pk_bf16_f32 v{r0+4*i}, 0, v{r0+4*i}' if hi[i] else f'v_cvt_pk_bf16_f32 v{r0+4*i}, v{r0+4*i}, 0')
    return l
def slice_addr(A, sd, st):
    A(f's_lshl3_add_u32 s{sd}, s{S_RB}, s{S_J}'); A(f's_and_b32 s{st}, s{S_W}, 1'); A(f's_lshl1_add_u32 s{sd}, s{sd}, s{st}'); A(f's_mul_i32 s{sd}, s{sd}, 6144')
    A(f's_lshr_b32 s{st}, s{S_W}, 1'); A(f's_mul_i32 s{st}, s{st}, {WS_X1G - WS_OF}'); A(f's_add_u32 s{sd}, s{sd}, s{st}'); A(f's_add_u32 s{sd}, s{sd}, {WS_OF}')
def prew(sd): return [f'buffer_store_dwordx4 v[4:7], v{4 + q // 4}, {WSR}, s{sd} offen offset:{1024 * (q % 4)} sc1' for q in range(6)]
PW = opt('prew', 1)
L_W2S = 135168
def stats(i):
    S, Q = 250, 252; l = []
    for u in range(5):
        b = XN + (i * 5 + u) * 8
        for e in range(4): l += unpack(b + 2 * e, b + 2 * e + 1, b + 4 + e)
        for e in range(4):
            p = f'v[{b+2*e}:{b+2*e+1}]'
            l.append(f'v_pk_mul_f32 v[{Q}:{Q+1}], {p}, {p}' if u == 0 and e == 0 else f'v_pk_fma_f32 v[{Q}:{Q+1}], {p}, {p}, v[{Q}:{Q+1}]')
            if u == 0 and e == 1: l.append(f'v_pk_add_f32 v[{S}:{S+1}], v[{b}:{b+1}], {p}')
            elif not (u == 0 and e == 0): l.append(f'v_pk_add_f32 v[{S}:{S+1}], v[{S}:{S+1}], {p}')
    return l + [f'v_add_f32 v{240+2*i}, v{S}, v{S+1}', f'v_add_f32 v{241+2*i}, v{Q}, v{Q+1}']
JS = 2
def front(a, k, var):
    TST = 20480 if var == 'A' else 49152
    def dec_u():
        a(f's_lshl_b32 s47, s{S_W}, 13'); a(f's_add_u32 s47, s47, {L_ST}'); a('s_mov_b32 s71, 0x20000')
        a('v_and_b32 v5, 7, v0'); a('v_lshlrev_b32 v5, 4, v5')
        if var == 'A':
            a('s_cmp_ge_u32 s2, 120'); a('s_cbranch_scc1 DEC_WO')
            a('s_mul_i32 s28, s2, 10923'); a('s_lshr_b32 s28, s28, 16'); a('s_mul_i32 s29, s28, 6'); a('s_sub_u32 s29, s2, s29')
            a(f's_lshl2_add_u32 s33, s28, s{S_W}')
            a(f's_mul_i32 s33, s33, {8*3840}'); a('s_mul_i32 s3, s29, 640'); a('s_add_u32 s33, s33, s3')
            a('v_lshrrev_b32 v3, 3, v0'); a('s_movk_i32 s3, 3840'); a('v_mad_u32_u24 v33, v3, s3, v5'); a(f's_mov_b32 s70, {640*3840}')
            a.label('DEC_WO_RET')
            x = Asm()
            x('s_sub_u32 s28, s2, 120'); x('s_and_b32 s29, s28, 1'); x('s_lshr_b32 s28, s28, 1')
            x('s_mul_i32 s48, s29, 640'); perm_src(x, 28, 5, 1280, 33, 33, 48); x(f's_mov_b32 s70, {640*1280}')
            k.tail.append('DEC_WO:\n' + x.text() + '  s_branch DEC_WO_RET')
        else:
            a('s_sub_u32 s28, s2, 160'); a('s_min_u32 s28, s28, 79'); a('s_and_b32 s29, s28, 3'); a('s_lshr_b32 s28, s28, 2')
            a('s_mul_i32 s62, s29, 24'); a(f's_add_u32 s62, s62, s{S_W}')
            a('s_mul_i32 s62, s62, 20480'); a('s_lshl_b32 s3, s28, 10'); a('s_add_u32 s62, s62, s3'); a(f's_add_u32 s62, s62, {WS_W1}')
            a('s_mul_i32 s48, s29, 768'); perm_src(a, 28, 5, 3072, 33, 33, 48); a(f's_mov_b32 s70, {640*3072}')
    def dec_u2():
        tr_addr(a, 245, 8192, L_ST)
        a('s_cmp_ge_u32 s2, 120')
        a(f's_mov_b32 s34, {WS_WQ}'); a(f's_cselect_b32 s34, {WS_WO}, s34')
        a(f's_mov_b32 s35, {WS_FA}'); a(f's_cselect_b32 s35, {WS_FA + 2048}, s35')
        a('s_and_b32 s3, s29, 1'); a('s_mul_i32 s3, s3, 3'); a('s_lshr_b32 s48, s29, 1'); a('s_add_u32 s3, s3, s48')
        a('s_mul_i32 s3, s3, 20'); a('s_add_u32 s3, s3, s28'); a(f's_lshl2_add_u32 s3, s3, s{S_W}'); a('s_lshl2_add_u32 s35, s3, s35')
        a('s_mul_i32 s3, s29, 20'); a(f's_add_u32 s3, s3, s{S_W}')
        a('s_mul_i32 s3, s3, 20480'); a('s_add_u32 s34, s34, s3'); a('s_lshl_b32 s3, s28, 10'); a('s_add_u32 s34, s34, s3')
    def dec_x(rng):
        if 0 in rng:
            a(f's_lshl_b32 s3, s{S_J}, 2'); a('s_mov_b32 s50, 0x21043210'); a('s_movk_i32 s51, 0x1043'); a('s_lshr_b64 s[50:51], s[50:51], s3'); a('s_mov_b32 s73, s50')
            a(f's_lshl_b32 s3, s{S_RB}, 6'); a(f's_mul_i32 s79, s{S_W}, 20'); a('s_add_u32 s3, s3, s79'); a('s_sub_u32 s3, s3, 16')
            a('s_movk_i32 s51, 1280'); a('v_add_u32 v244, s3, v2'); a('v_lshlrev_b32 v39, 4, v1')
            a(f's_mov_b32 s{S_X+2}, {2048*1280}'); a(f's_mov_b32 s{S_X+3}, 0x20000')
        for i in rng:
            a(f's_bfe_u32 s3, s73, {hex(0x40000 + 4*i)}'); a('v_lshl_add_u32 v3, s3, 2, v244'); a('v_max_i32 v3, 0, v3'); a(f'v_mad_u32_u24 v{240+i}, v3, s51, v39')
    H = {}
    def uload(v=33, so=33):
        l = [('s_cmp_ge_u32 s2, 120\ns_cselect_b64 s[68:69], s[38:39], s[36:37]\n' if var == 'A' else '') + 's_and_b32 s69, s69, 0xffff']
        for t in range(5 if var == 'A' else 6): l.append(f's_add_u32 m0, s47, {t*896}\nbuffer_load_dwordx4 v{v}, s[68:71], s{so} offen offset:{128*t}{NT} lds')
        return l + [lambda: H.update(u=a.vm[-1][0])]
    def xload(i):
        return [f'buffer_load_dwordx4 v[{XN+(i*5+u)*8+4}:{XN+(i*5+u)*8+7}], v{240+i}, s[{S_X}:{S_X+3}], 0 offen offset:{256*u}{NTX}' for u in range(5)]
    def em(l): spread(a, l, [])
    def eload(): a(f's_and_b32 s{S_WS+1}, s{S_WS+1}, 0xffff'); a(f's_mov_b32 s3, {WS_EP}'); a(f'buffer_load_dword v38, off, {WSR}, s3 sc1')
    def cpf():
        if not opt('cpf', 1): return
        a('s_getpc_b64 s[50:51]'); a.label(f'PC{var}')
        a('s_lshr_b32 s3, s2, 3'); a(f's_lshl2_add_u32 s3, s3, s{S_W}'); a('s_mul_i32 s3, s3, 3'); a('v_min_u32 v237, 2, v0'); a('v_add_u32 v237, s3, v237')
        a(f'v_min_u32 v237, (CODE_END-FRONT_A2-4)/128, v237'); a('v_lshlrev_b32 v237, 7, v237')
        a(f's_add_u32 s50, s50, FRONT_A2-PC{var}'); a('s_addc_u32 s51, s51, -1')
        a('v_mov_b32 v239, s51'); a('v_add_co_u32 v238, vcc, s50, v237'); a('v_addc_co_u32 v239, vcc, 0, v239, vcc')
        a('global_load_dword v237, v[238:239], off sc1')
    def getE(): a(f'v_readfirstlane_b32 s{S_E}, v38'); a(f's_add_u32 s{S_E}, s{S_E}, 0x9E3779B1')
    def pubA(): getE(); a(f'v_mov_b32 v3, s{S_E}'); a.wait_id(H['st']); a(f'buffer_store_dword v3, off, {WSR}, s35 sc1'); tn(a, 'pub')
    def misc():
        a(f's_mov_b32 s{S_O+2}, {2048*1280}'); a(f's_mov_b32 s{S_O+3}, 0x20000'); a(f's_and_b32 s{S_O+1}, s{S_O+1}, 0xffff')
        a('v_lshlrev_b32 v4, 4, v0')
        for q in range(1, 4): a(f'v_add_u32 v{4+q}, {4096*q}, v4')
    XE = opt('xe', 0); XB = opt('xb', 0)
    if var == 'A':
        m = Mod(True, 176, 196, 0, 35, 36, 37, 52, 56, 74, 29)
        dec_u(); tn(a, 'dec'); a.wait(lg=0); tn(a, 'ka')
        em(uload()); eload()
        a.raw('@SPLIT')
        dec_x([0, 1, 2, 3, 4]); a(f's_and_b32 s{S_X+1}, s{S_X+1}, 0xffff')
        if XE: em(xload(0))
        cpf(); dec_u2(); misc(); em(m.dec() + m.dec2())
        for i in range(1, XE): em(xload(i))
        a.wait_id(H['u']); tn(a, 'b1'); a.barrier()
        em(uproc(5, 156, 34, 20480, 245, 4)); H['st'] = a.vm[-1][0]; tn(a, 'st')
        ml = m.load('a'); b2 = ml[6:]
        xl = sum([xload(i) for i in range(XE, 5)], []) + ml[:6]
        a('s_mov_b32 s62, 0')
        n_ = opt('xp', 0) + (5 if XE == 0 else 0)
        em(xl[:n_]); xl = xl[n_:]
        if PUBE: pubA()
    else:
        m = Mod(False, 8, 28, 246, 35, 36, 37, 52, 56, 74, 44)
        em(m.dec()); tn(a, 'dec'); a.wait(lg=0); tn(a, 'ka')
        em(m.load()); eload()
        a.raw('@SPLIT')
        em(m.dec2()); dec_x([0, 1, 2, 3, 4]); a(f's_and_b32 s{S_X+1}, s{S_X+1}, 0xffff')
        cpf(); dec_u(); misc()
        for i in range(XB): em(xload(i))
        em(m.silu()); tn(a, 'b1')
        d = m.dot(); em(d[:27]); em(xload(XB)); em(d[27:45]); tn(a, 'st'); em(xload(XB + 1)); em(d[45:]); getE()
        a.wait(lg=0); a.barrier(); em(m.fin()); tn(a, 'pub')
        b2 = uload()[:-1]
        xl = sum([xload(i) for i in range(XB + 2, 5)], [])
    nx = opt('nx', 10)
    spread(a, stats(0), xl[:nx], lo=0, hi=opt('xhi', 60))
    tn(a, 'x0')
    if var == 'A' and not PUBE: pubA()
    spread(a, stats(1), xl[nx:], hi=40)
    tn(a, 'xi')
    a('v_min_u32 v31, 59, v0'); a(f's_mul_i32 s3, s{S_W}, 240'); a('v_lshl_add_u32 v31, v31, 2, s3')
    a(f's_lshr_b32 s50, s{S_J}, 2'); a('s_mul_i32 s50, s50, 960'); a(f's_add_u32 s50, s50, {WS_FA}'); a(f's_mul_i32 s49, s{S_W}, 5120'); a(f's_add_u32 s49, s49, {WS_MODP}')
    A = a
    A('s_min_u32 s52, s2, 239'); A('s_mul_i32 s28, s52, 13108'); A('s_lshr_b32 s28, s28, 16'); A('s_mul_i32 s53, s28, 5'); A('s_sub_u32 s52, s52, s53')
    A(f's_lshl3_add_u32 s63, s52, s{S_W}'); A('s_mul_i32 s63, s63, 49152'); A('s_lshl_b32 s53, s28, 10'); A('s_add_u32 s63, s63, s53'); A(f's_add_u32 s63, s63, {WS_W2}')
    A('s_lshl_b32 s52, s52, 8'); A('v_and_b32 v34, 7, v0'); A('v_lshlrev_b32 v34, 4, v34')
    perm_src(A, 28, 6, 1280, 34, 52, 52, 53, 55, 3, 34, 3)
    A(f's_mov_b32 s66, {1536*1280}'); A('s_mov_b32 s67, 0x20000'); A('s_and_b32 s65, s65, 0xffff'); A(f's_lshl_b32 s53, s{S_W}, 11'); A(f's_add_u32 s53, s53, {L_W2S}')
    b2 += [f's_add_u32 m0, s53, {t*896}\nbuffer_load_dwordx4 v34, s[64:67], s52 offen offset:{128*t}{NT} lds' for t in range(2)]
    slice_addr(a, 61, 3)
    if opt('ot', 0) == 1: b2 += [OTCH.format(29)]
    a(f's_mul_i32 s3, s{S_W}, 1280'); a(f's_add_u32 s3, s3, {L_MODL}'); a('v_lshl_add_u32 v30, v0, 2, s3')
    a(f's_cmp_ge_u32 s{S_W}, 2'); a('s_cselect_b32 s51, 1.0, 0'); a(f's_mov_b32 s48, s{S_E}')
    pl = POLLS + [lambda: (H.update(p=a.vm[-1][0]), tn(a, 'pi'))]
    st = lnorm(a); PP = opt('pp', 240)
    b2 += [lambda: B2H.update({var: a.vm[-1][0]})]
    assert opt('b2hi', 80) < 400
    spread(a, st[:PP] + pl + st[PP:], b2, lo=opt('b2lo', 0), hi=opt('b2hi', 80))
    a(f's_mul_i32 s52, s{S_J}, 5'); a(f's_add_u32 s53, s52, s{S_W}')
    a('s_add_u32 s32, s53, 40'); a('s_add_u32 s33, s53, 80'); a('s_mov_b32 s35, s53')
    a(f's_lshl_b32 s54, s{S_W}, 3'); a('s_lshr_b32 s34, 0x04542c, s54'); a('s_and_b32 s34, s34, 0xff'); a('s_add_u32 s34, s34, s52')
    for q in range(4):
        a(f's_mul_i32 s{32+q}, s{32+q}, 20480'); a(f's_add_u32 s{32+q}, s{32+q}, {WS_WQ}')
    a(f's_mov_b64 s[12:13], s[{S_WS}:{S_WS+1}]'); a(f's_cmp_eq_u32 s{S_W}, 3'); a(f's_cselect_b32 s14, 0, s{S_WS+2}'); a('s_mov_b32 s15, 0x20000')
    tn(a, 'vp')
    a.wait_id(H['p']); tn(a, 'pw'); a.wait(lg=0)
B2H = {}
OTCH = f's_mul_i32 s3, s{S_RB}, 81920\nbuffer_load_dword v{{}}, off, s[{S_O}:{S_O+3}], s3'
def lnorm(a):
    st = sum([stats(i) for i in range(JS, 5)], []); A = st.append
    A(lambda: tn(a, 'x4'))
    for ror in (8, 4, 2, 1):
        for c in range(240, 250): A(f'v_add_f32_dpp v{c}, v{c}, v{c} row_ror:{ror} row_mask:0xf bank_mask:0xf')
    A(f's_mov_b32 s60, {fl(1/640)}'); A(f'v_mov_b32 v3, {fl(1e-5)}')
    for i in range(5): A(f'v_mul_f32 v{250+i}, s60, v{240+2*i}')
    for i in range(5): A(f'v_fma_f32 v{241+2*i}, v{241+2*i}, s60, v3')
    for i in range(5): A(f'v_fma_f32 v{241+2*i}, -v{250+i}, v{250+i}, v{241+2*i}')
    for i in range(5): A(f'v_max_f32 v{241+2*i}, v{241+2*i}, v3')
    for i in range(5): A(f'v_rsq_f32 v{240+2*i}, v{241+2*i}')
    for i in range(5): A(f'v_mul_f32 v{241+2*i}, -v{250+i}, v{240+2*i}')
    for i in range(5):
        P = 240 + 2 * i
        for u in range(5):
            b = XN + (i * 5 + u) * 8
            for e in range(4):
                p = f'v[{b+2*e}:{b+2*e+1}]'
                A(f'v_pk_fma_f32 {p}, {p}, v[{P}:{P+1}], v[{P}:{P+1}] op_sel:[0,0,1] op_sel_hi:[1,0,1]')
    A('v_lshrrev_b32 v3, 2, v1'); A('v_lshlrev_b32 v3, 10, v3'); A('v_and_b32 v33, 3, v1'); A('v_lshl_add_u32 v3, v33, 8, v3')
    A('v_and_b32 v33, 7, v1'); A('s_movk_i32 s52, 20480'); A('v_add_u32 v35, s79, v2')
    for i in range(5):
        A(f's_bfe_u32 s3, s73, {hex(0x40000 + 4*i)}'); A('v_lshl_add_u32 v36, s3, 2, v35')
        A('v_and_b32 v37, 15, v36'); A('v_xor_b32 v37, v37, v33'); A('v_lshrrev_b32 v36, 4, v36')
        A('v_mad_u32_u24 v36, v36, s52, v3'); A(f'v_lshl_add_u32 v{250+i}, v37, 4, v36')
    A('v_lshlrev_b32 v255, 5, v1'); A(f'v_add_u32 v255, {L_MODL}, v255')
    A(lambda: tn(a, 'ln'))
    return st
PM = {0: '', 1: ' sc0', 2: ' nt', 3: ' sc0 nt'}[opt('pm', 1)]
FAP = [f'buffer_load_dword v28, v31, {WSR}, s50 offen sc1{PM}']
MP = [ld(q4('v', 8 + 4 * i), i, 49, WSR, True) for i in range(5)]
POLLS = MP + FAP
def main_kernel(a):
    k = K(a)
    tn(a, 's')
    a('s_cmp_ge_u32 s2, 256'); a('s_cbranch_scc1 EXIT_p0')
    for r, o in ((64 - 28, None), (S_WS, 80), (52, 48), (56, 56), (S_X, 0), (64, 40), (68, 32), (S_O, 64)):
        a('s_load_dwordx4 s[36:39], s[0:1], 8' if o is None else f's_load_dwordx2 s[{r}:{r+1}], s[0:1], {o}')
    a('v_lshrrev_b32 v2, 6, v0'); a('v_and_b32 v0, 63, v0'); a(f'v_readfirstlane_b32 s{S_W}, v2')
    a('v_and_b32 v1, 15, v0'); a('v_lshrrev_b32 v2, 4, v0')
    a('s_and_b32 s3, s2, 7'); a(f's_lshr_b32 s{S_J}, s2, 5'); a(f's_bfe_u32 s{S_RB}, s2, 0x20003')
    a(f's_lshl2_add_u32 s{S_RB}, s3, s{S_RB}')
    a(f's_mov_b32 s{S_WS+2}, 0x10000000'); a(f's_mov_b32 s{S_WS+3}, 0x20000')
    a('s_cmp_ge_u32 s2, 160'); a('s_cbranch_scc1 FRONT_B')
    import copy
    b = Asm(); b.vm = copy.deepcopy(a.vm); b.lg = copy.deepcopy(a.lg); b.n = a.n; b.hist = list(a.hist)
    kb = K(b); kb.nl = 500
    front(b, kb, 'B'); b.wait(lg=0)
    front(a, k, 'A'); a.wait(lg=0)
    b1, b2 = b.text().split('@SPLIT\n')
    a.out[a.out.index('@SPLIT')] = '  s_branch FRONT_A2\nFRONT_B:\n' + b1 + '  s_branch FRONT_B2\nFRONT_A2:'
    k.tail.append('FRONT_B2:\n' + b2 + '  s_branch JOIN')
    a.label('JOIN')
    wqs = [wq_ld(s, sl) for s in range(20) for sl in range(4)]
    def spin(nm, lds_, chk_):
        a('s_cmp_eq_u64 vcc, -1'); a(f's_cbranch_scc0 {nm}SPIN')
        a.label(f'{nm}DONE')
        k.tail.append(f'{nm}SPIN:\n  s_mov_b32 s72, 0x8000\n{nm}SPINL:\n  s_andn2_b64 exec, exec, vcc\n' + ''.join(f'  {t}\n' for t in lds_ + ['s_waitcnt vmcnt(0)'] + chk_) +
                      f'  s_sub_u32 s72, s72, 1\n  s_cbranch_scc1 {nm}OUT\n  s_nop 1\n  s_cmp_eq_u64 vcc, exec\n  s_cbranch_scc0 {nm}SPINL\n' + (('  s_mov_b64 exec, -1\n' + ''.join(f'  {t}\n' for t in lds_ + ['s_waitcnt vmcnt(0)'] + chk_) + f'  s_nop 3\n  s_cmp_eq_u64 vcc, -1\n  s_cbranch_scc0 {nm}SPINL\n') if False else '') + f'{nm}OUT:\n  s_mov_b64 exec, -1\n  s_branch {nm}DONE')
    NW0 = opt('nw0', 8)
    chk = mchk(8, 20, 29, 48)
    for t in chk: a(t)
    a('s_nop 3')
    spin('M', MP, chk)
    tn(a, 'fa')
    for t in msum(8, 5, ['s51'] * 5, [1] * 5): a(t)
    fac = [f'v_cmp_eq_u32 vcc, s{S_E}, v28']
    a(fac[0])
    for i in range(5): a(f'ds_write_b32 v30, v{8+4*i} offset:{256*i}')
    spin('FA', FAP, fac)
    tn(a, 'poll')
    a(f's_mul_i32 s36, s{S_J}, {5*20480}'); a(f's_mul_i32 s3, s{S_W}, 5120'); a('s_add_u32 s36, s36, s3'); a(f's_add_u32 s36, s36, {WS_WO}')
    a.wait(lg=0); a.barrier()
    tn(a, 'bar')
    def gs_read(u):
        b = 8 + 16 * (u % 2); l = []
        for q in range(2):
            l.append(f'ds_read_b128 v[{b+4*q}:{b+4*q+3}], v255 offset:{512*u + 16*q}')
            l.append(f'ds_read_b128 v[{b+8+4*q}:{b+8+4*q+3}], v255 offset:{2560 + 512*u + 16*q}')
        return l
    st = gs_read(0) + wqs[:NW0]
    for u in range(5):
        if u < 4: st += gs_read(u + 1)
        gb = 8 + 16 * (u % 2)
        for i in range(5):
            b = XN + (i * 5 + u) * 8
            for e in range(4):
                p = f'v[{b+2*e}:{b+2*e+1}]'
                st.append(f'v_pk_fma_f32 {p}, {p}, v[{gb+8+2*e}:{gb+9+2*e}], v[{gb+2*e}:{gb+2*e+1}]')
            for e in range(4): st.append(f'v_cvt_pk_bf16_f32 v{b+e}, v{b+2*e}, v{b+2*e+1}')
            st.append(f'ds_write_b128 v{250+i}, v[{b}:{b+3}] offset:{4096*u}')
    so = []; A = so.append
    for t in range(1, 5): A(f's_add_u32 s{36+t}, s{35+t}, 20480')
    A(f's_lshl2_add_u32 s41, s{S_J}, s{S_W}'); A(f's_mul_i32 s41, s41, {3*20480}'); A(f's_add_u32 s41, s41, {WS_W1}')
    A('s_add_u32 s42, s41, 20480'); A('s_add_u32 s43, s42, 20480')
    A(f's_mul_i32 s44, s{S_J}, {5*49152}'); A(f's_mul_i32 s3, s{S_W}, 12288'); A('s_add_u32 s44, s44, s3'); A(f's_add_u32 s44, s44, {WS_W2}')
    for t in range(1, 5): A(f's_add_u32 s{44+t}, s{43+t}, 49152')
    A(f's_lshl_b32 s27, s{S_RB}, 9'); A(f's_add_u32 s27, s27, {WS_FL}')
    A(f's_lshr_b32 s3, s{S_J}, 1'); A('s_lshl_b32 s3, s3, 7'); A('s_add_u32 s26, s27, s3')
    A(f's_and_b32 s3, s{S_J}, 1'); A(f's_lshl2_add_u32 s3, s3, s{S_W}'); A('s_lshl2_add_u32 s26, s3, s26')
    A(f's_lshl_b32 s3, s{S_W}, 7'); A('s_add_u32 s27, s27, s3')
    H = {}
    NWA = opt('nwa', 24)
    wq_all = wqs[NW0:]; napp = NWA - NW0
    spread(a, st, wq_all[:napp], lo=opt('alo', 0), hi=opt('ahi', len(st) - 20)); wq_rest = wq_all[napp:]
    a('v_min_u32 v250, 19, v0'); a(f's_mul_i32 s3, s{S_W}, 80'); a('s_add_u32 s3, s3, s50'); a('v_lshl_add_u32 v250, v250, 2, s3')
    WOP = [f'buffer_load_dword v247, v250, {WSR}, 0 offen offset:2048 sc1{PM}']; woc = [f'v_cmp_eq_u32 vcc, s{S_E}, v247']
    a('s_getreg_b32 s3, hwreg(HW_REG_XCC_ID)'); a('s_and_b32 s3, s3, 15'); a(f's_add_u32 s25, s{S_E}, s3')
    a(f's_lshl3_add_u32 s50, s{S_RB}, s{S_J}'); a(f's_lshl2_add_u32 s50, s50, {WS_FB}')
    a(f's_cmp_eq_u32 s{S_W}, 0'); a('s_cselect_b32 s3, 0, 0x80000000'); a('v_mov_b32 v248, s25'); a('v_mov_b32 v249, s3')
    a('v_add_u32 v8, 16384, v4')
    a('v_and_b32 v9, 7, v0'); a('v_lshlrev_b32 v9, 2, v9')
    a('v_xor_b32 v3, v1, v2'); a('v_lshlrev_b32 v20, 8, v2'); a('v_lshl_add_u32 v20, v3, 4, v20')
    a('v_xor_b32 v21, 64, v20'); a('v_add_u32 v22, 61440, v20'); a('v_add_u32 v23, 61440, v21')
    a.wait_id(B2H['A']); a.wait(lg=0); a.barrier()
    tn(a, 'p1')
    ACC = 40; XF = 116; QR = 160
    def xread(s):
        l = []
        for mt in range(5):
            r = XF + 20 * (s % 2) + 4 * mt
            off = (mt * 20 + s) * 1024; ad = 20 + (s & 1)
            if off >= 61440: off -= 61440; ad += 2
            l.append(f'ds_read_b128 v[{r}:{r+3}], v{ad} offset:{off}')
        return l
    for t in xread(0): a(t)
    side = []
    A = side.append
    A('v_lshrrev_b32 v3, 2, v1'); A('v_xor_b32 v3, v3, v2'); A('v_lshlrev_b32 v3, 3, v3'); A('v_lshl_add_u32 v3, v1, 5, v3')
    A(f's_add_u32 s57, s{S_W}, 5'); A(f's_add_u32 s58, s{S_W}, 10'); A(f's_mov_b32 s60, s{S_W}')
    A('s_lshr_b32 s59, 0x0f040e09, s54'); A('s_and_b32 s59, s59, 0xff')
    for q in range(4):
        A(f's_mul_i32 s{57+q}, s{57+q}, 2560'); A(f's_add_u32 s{57+q}, s{57+q}, {L_DUMP}'); A(f'v_add_u32 v{24+q}, s{57+q}, v3')
    A(f's_lshl_b32 s57, s{S_W}, 9'); A(f's_add_u32 s57, s57, {L_DUMP}')
    A('v_add_u32 v28, s57, v3')
    A('v_and_b32 v3, 3, v1'); A('v_xor_b32 v3, v3, v2'); A('v_lshlrev_b32 v3, 3, v3')
    A('v_and_b32 v10, 60, v0'); A('v_lshl_add_u32 v3, v10, 3, v3'); A('v_add_u32 v29, s57, v3')
    A('v_and_b32 v3, 1, v1'); A('v_cmp_eq_u32 s[74:75], 1, v3')
    A('v_lshl_add_u32 v10, v2, 2, v3'); A('v_cmp_le_u32 s[76:77], v10, v1')
    A('v_add_u32 v10, 2, v10'); A('v_cmp_le_u32 s[78:79], v10, v1')
    A('v_mov_b32 v10, 0x0c0c0100'); A('v_mov_b32 v11, 0x01000c0c'); A('v_cndmask_b32 v10, v10, v11, s[74:75]')
    A('v_mov_b32 v11, 0x0c0c0302'); A('v_mov_b32 v12, 0x03020c0c'); A('v_cndmask_b32 v11, v11, v12, s[74:75]')
    A('v_mov_b32 v12, 0x0c0c0c0c')
    A('v_cndmask_b32 v30, v10, v12, s[76:77]'); A('v_cndmask_b32 v31, v11, v12, s[78:79]')
    A('v_cndmask_b32 v32, v12, v10, s[76:77]'); A('v_cndmask_b32 v33, v12, v11, s[78:79]')
    A(f's_or_b32 s57, s{S_RB}, s{S_W}'); A('s_cmp_eq_u32 s57, 0'); A(f's_cselect_b32 s57, {fl(-1e30)}, 0')
    for q in range(4): A(f'v_mov_b32 v{34+q}, s57')
    for q in range(16): A(f'v_mov_b32 v{QR+q}, 0')
    M2 = 208; M3 = 228
    lm = Mod(True, LM['W'], LM['C'], LM['AC'], 0, 0, LM['T'], 0, 0, 0, 29)
    ust = []; A = ust.append
    tr_addr(A, 253, 8192, L_ST, 203, 55)
    tr_addr(A, 246, 2048, L_W2S, 203, 55)
    A('s_cmp_lt_u32 s2, 160\ns_cselect_b32 s55, 0x80000000, 0'); A('v_or_b32 v245, s55, v4')
    u1 = uproc(6, 204, 62, 20480, 253, 245); u2 = uproc(2, 228, 63, 49152, 246, 4)
    upr = u2[:4] + u1[:12] + u2[4:] + u1[12:] + [lambda: H.update(v=a.vm[-1][0])]
    early = []; A = early.append
    if PW == 1: early += prew(61) + [lambda: H.update(v=a.vm[-1][0])]
    modw = [f'v_accvgpr_read_b32 v{r}, a{r}' for r in list(range(196, 201)) + list(range(176, 196))] + lm.silu() + lm.dot()
    s2 = []; A = s2.append
    w2dma = []
    if opt('ot', 0) == 3: w2dma.append(OTCH.format(157))
    w2dma.append(k.poll_issue(156))
    A(f's_lshl2_add_u32 s49, s{S_RB}, s{S_W}'); A(f's_mul_i32 s49, s49, {16*1280}'); A(f's_mul_i32 s61, s{S_J}, 160'); A('s_add_u32 s49, s49, s61')
    for i in range(3):
        r = 205 + i
        A(f'v_add_u32 v{r}, {64*i}, v0'); A(f'v_mul_u32_u24 v216, 6554, v{r}'); A('v_lshrrev_b32 v216, 16, v216'); A(f'v_lshlrev_b32 v{r}, 4, v{r}')
        A(f'v_mul_u32_u24 v216, {1280-160}, v216'); A(f'v_add_u32 v{r}, v216, v{r}')
    A('v_lshlrev_b32 v216, 26, v0'); A('v_and_b32 v216, 0x80000000, v216'); A('v_or_b32 v207, v216, v207')
    A(f's_mul_i32 s60, s{S_W}, 3072'); A(f's_add_u32 s60, s60, {L_XR}')
    for i in range(3): w2dma.append(f's_add_u32 m0, s60, {1024*i}\nbuffer_load_dwordx4 v{205+i}, s[{S_X}:{S_X+3}], s49 offen lds')
    w2dma += ['v_mul_u32_u24 v39, 160, v1', 'v_lshl_add_u32 v39, v2, 3, v39', 'v_add_u32 v39, s60, v39']
    s3_ = []; A = s3_.append
    A(f's_mov_b32 s56, {fl(1/640)}')
    A(f's_lshl_b32 s55, s{S_W}, 4'); A('v_add_u32 v38, s55, v1')
    A(f's_mul_i32 s55, s{S_W}, 60'); A('v_min_u32 v252, 59, v0'); A('v_add_u32 v252, s55, v252'); A(f'v_lshlrev_b32 v249, 2, v252'); A(f'v_add_u32 v249, {L_OWN}, v249')
    A('v_mul_u32_u24 v203, 820, v252'); A('v_lshrrev_b32 v203, 16, v203')
    A('v_cmp_eq_u32 vcc, 1, v203\nv_cndmask_b32 v251, 0, 1.0, vcc')
    A('v_min_u32 v202, 1, v203'); A('v_add_u32 v202, v202, v203')
    A('v_mul_u32_u24 v202, 640, v202'); A('v_mul_u32_u24 v203, 80, v203'); A('v_sub_u32 v252, v252, v203'); A('v_add_u32 v252, v252, v202')
    A(f's_mul_i32 s55, s{S_J}, 80'); A('v_add_lshl_u32 v252, v252, s55, 4'); A(f's_mov_b32 s63, {WS_MODP + 1280 * 16}')
    A('v_lshrrev_b32 v203, 5, v0'); A('v_and_b32 v202, 1, v2'); A('v_mul_u32_u24 v254, 160, v203'); A('v_add_u32 v254, v254, v1')
    A(f's_mul_i32 s55, s{S_W}, 320'); A('s_add_u32 s55, s55, 640'); A('v_add_u32 v254, s55, v254')
    A('v_mul_u32_u24 v255, 80, v202'); A('v_add_lshl_u32 v255, v255, v254, 4'); A('v_lshl_add_u32 v254, v202, 4, v254'); A('v_lshlrev_b32 v254, 4, v254')
    MLD = [f'buffer_load_dwordx4 v[{M3}:{M3+3}], v252, {WSR}, s63 offen sc1'] + [f'buffer_load_dwordx4 v[{M2+4*i}:{M2+4*i+3}], v{254 if i < 4 else 255}, {WSR}, s63 offen offset:{256*t} sc1' for i, t in enumerate((0, 2, 5, 7, 4))]
    s4 = []; A = s4.append
    A(f's_and_b32 s55, s{S_W}, 1'); A('s_mul_i32 s55, s55, 1280')
    A(f's_cmp_ge_u32 s{S_W}, 2\ns_cselect_b32 s49, 0, 64'); A('s_add_u32 s49, s49, s55'); A(f's_add_u32 s49, s49, {L_GS}')
    A('v_mul_u32_u24 v250, 640, v203'); A('v_lshl_add_u32 v250, v202, 3, v250'); A('v_lshrrev_b32 v203, 2, v1'); A('v_lshl_add_u32 v250, v203, 4, v250')
    A('v_and_b32 v203, 3, v1'); A('v_lshl_add_u32 v250, v203, 1, v250'); A('v_add_u32 v250, s49, v250')
    def mod2_fin():
        a(f's_mov_b32 s3, s{S_E}')
        chk = mchk(M2, 24, 232, 3)
        for t in chk: a(t)
        a(f's_cmp_ge_u32 s{S_W}, 2'); a('s_cselect_b32 s58, 1.0, 0'); a('s_nop 1')
        spin('M2', MLD, chk)
        for t in msum(M2, 6, ['s58'] * 5 + ['v251'], [0] * 5 + [1]): a(t)
        for i in range(5): a(f'ds_write_b16 v250, v{M2+4*i} offset:{128*i}')
        a(f'ds_write_b32 v249, v{M3}')
    FBL = f'buffer_load_dword v232, v233, {WSR}, s51 offen sc1' + PM
    fbc = [f'v_subrev_u32 v232, s{S_E}, v232', 'v_cmp_gt_u32 vcc, 16, v232']
    def fb_issue(): a(f's_lshl_b32 s51, s{S_W}, 8'); a(f's_add_u32 s51, s51, {WS_FB}'); a('v_lshlrev_b32 v233, 2, v0'); a(FBL)
    def fb_check():
        for t in fbc: a(t)
        a(f's_or_b32 s49, s2, s{S_W}'); a('s_cmp_eq_u32 s49, 0'); a('s_cselect_b32 s3, 0, 0x80000000'); a('s_nop 0')
        spin('FB', [FBL], fbc)
        a('s_and_b32 s51, s50, -32')
        a(f'v_mov_b32 v236, s{S_E}'); a('v_mov_b32 v237, s3'); a(f's_mov_b32 s3, {WS_EP}')
    def fb_after():
        a(f'buffer_load_dword v232, v9, {WSR}, s51 offen sc1' + PM)
        a(f'buffer_store_dword v236, v237, {WSR}, s3 offen sc1')
    def fb_fast():
        a('v_cmp_eq_u32 vcc, s25, v232'); a('s_nop 3'); a('s_cmp_eq_u64 vcc, -1'); a(f's_cselect_b32 s{S_FAST}, {0 if "slow" in OPT else 1}, 0')
    wos = [wo_ld(t, i) for i in range(5) for t in range(5)]
    FBI = opt('fbi', 17); M1 = opt('m1', 0); MB = opt('mb', 10); WPS = opt('wps', 4); WO0 = opt('wo0', 12)
    for s in range(20):
        main = []
        for mt in range(5):
            for sl in range(4):
                if sl == 3 and mt == 0: continue
                ac = ACC + 4 * (sl * 5 + mt - (1 if sl == 3 else 0))
                c = '0' if s == 0 else q4('v', ac)
                main.append(f'{MF} {q4("v", ac)}, {wq_reg(s, sl)}, {q4("v", XF + 20 * (s % 2) + 4 * mt)}, {c}')
        fill = xread(s + 1) if s < 19 else []
        n = 0
        while wq_rest and n < WPS + (1 if 80 - len(wq_rest) < 4 * (s - 1 + RING) else 0):
            t = wq_rest[0]
            if not callable(t):
                if wqs.index(t) // 4 > s - 1 + RING: break
                n += 1
            fill.append(wq_rest.pop(0))
        if not wq_rest and s >= WO0:
            while wos and n < WPS: fill.append(wos.pop(0)); n += 1
        def part(l, lo, hi): n = -(-len(l) // (hi - lo)); return l[(s - lo) * n:(s - lo + 1) * n] if lo <= s < hi else []
        oth = part(ust + upr, M1, M1 + opt('un', 3)) + part(early, opt('e0', 3), opt('e1', 6)) + part(modw, opt('m0', 2), MB) + part(s2, 9, 12)
        if s == MB: oth += lm.fin()
        oth += part(so, 8, 12) + part(w2dma, opt('xr', 12), opt('xr', 12) + 1) + part(s3_ + s4 + side, 13, 20)
        if s == FBI: oth += [fb_issue]
        if s == opt('mli', 19): oth += MLD
        if s == opt('wop', 3): oth += WOP
        fill = mix(oth, fill) if len(oth) > len(fill) else mix(fill, oth)
        if s == MB:
            def mid(): a(woc[0]); a.wait_id(H['v']); a.wait(lg=0); a('s_nop 2'); spin('WO', WOP, woc); a.barrier(); tn(a, 'mid'); a(f'buffer_store_dword v248, v249, {WSR}, s50 offen sc1')
            fill = [mid] + fill
        tn(a, f's{s}')
        spread(a, main, fill, hi=18)
    assert not wq_rest
    tn(a, 'p1e')
    w1q = [w1_ld(f) for f in range(60)]
    def w1n(n):
        l = w1q[:n]; del w1q[:n]; return l
    st = []
    for sl in range(4):
        for mt in range(5):
            if sl == 3 and mt == 0: continue
            ac = ACC + 4 * (sl * 5 + mt - (1 if sl == 3 else 0))
            st += [f'v_cvt_pk_bf16_f32 v{ac}, v{ac}, v{ac+1}', f'v_cvt_pk_bf16_f32 v{ac+1}, v{ac+2}, v{ac+3}',
                   f'ds_write_b64 v{24+sl}, v[{ac}:{ac+1}] offset:{512*mt}']
    if FBI == 20: fb_issue()
    spread(a, st, wos)
    fb_check()
    a.wait(lg=0); a.barrier()
    tn(a, 'db')
    fb_after()
    K0, K1, VR, SR = 120, 130, 140, 176
    st = []; A = st.append
    def sx(m): A(f's_mov_b32 exec_lo, {hex(m & 0xffffffff)}'); A(f's_mov_b32 exec_hi, {hex(m >> 32)}')
    for t in w1n(opt('n1', 6)): a(t)
    for t in range(5):
        a(f'ds_read_b64 v[{K0+2*t}:{K0+2*t+1}], v28 offset:{(5+t)*2560}')
        a(f'ds_read_b64 v[{K1+2*t}:{K1+2*t+1}], v28 offset:{(5+t)*2560+512}')
    for h in range(4):
        k.setexec((FULL << (16 * h)) & FULL)
        a(f'ds_read_b64 v[{QR+4*h}:{QR+4*h+1}], v28 offset:{h*2560+512}')
        k.setexec((1 << (16 * (h + 1))) - 1)
        a(f'ds_read_b64 v[{QR+4*h+2}:{QR+4*h+3}], v28 offset:{(h+1)*2560+512}')
    for t in range(5):
        a(f'ds_read_b64_tr_b16 v[{VR+4*t}:{VR+4*t+1}], v29 offset:{(10+t)*2560}')
        a(f'ds_read_b64_tr_b16 v[{VR+4*t+2}:{VR+4*t+3}], v29 offset:{(10+t)*2560+512}')
    H = range(4)
    for h in H:
        A(f'{MF} v[{SR+8*h}:{SR+8*h+3}], v[{K0+2*h}:{K0+2*h+3}], v[{QR+4*h}:{QR+4*h+3}], v[34:37]')
        A(f'{MF} v[{SR+8*h+4}:{SR+8*h+7}], v[{K1+2*h}:{K1+2*h+3}], v[{QR+4*h}:{QR+4*h+3}], 0')
    for h in H:
        b = SR + 8 * h
        for e in (0, 2, 4, 6): A(f'v_cndmask_b32 v{b+e}, v{b+e}, v{b+e+1}, s[74:75]')
        A(f'v_cndmask_b32 v{b}, v{b}, v{b+4}, s[76:77]'); A(f'v_cndmask_b32 v{b+1}, v{b+2}, v{b+6}, s[78:79]')
    def bfly(op, r):
        for sw in ('v_permlane16_swap_b32', 'v_permlane32_swap_b32'):
            for h in H: A(f'v_mov_b32 v{SR+8*h+r+1}, v{SR+8*h+r}')
            for h in H: A(f'{sw} v{SR+8*h+r}, v{SR+8*h+r+1}')
            for h in H: A(f'{op} v{SR+8*h+r}, v{SR+8*h+r}, v{SR+8*h+r+1}')
    for h in H: A(f'v_max_f32 v{SR+8*h+2}, v{SR+8*h}, v{SR+8*h+1}')
    bfly('v_max_f32', 2)
    CS = LOG2E * 20 ** -0.5
    A(f's_mov_b32 s57, {fl(CS)}')
    for h in H: A(f'v_mul_f32 v{SR+8*h+2}, {fl(-CS)}, v{SR+8*h+2}')
    for h in H:
        b = SR + 8 * h
        A(f'v_fma_f32 v{b}, v{b}, s57, v{b+2}'); A(f'v_fma_f32 v{b+1}, v{b+1}, s57, v{b+2}')
    for h in H:
        b = SR + 8 * h
        A(f'v_exp_f32 v{b}, v{b}'); A(f'v_exp_f32 v{b+1}, v{b+1}')
    for h in H: A(f'v_add_f32 v{SR+8*h+2}, v{SR+8*h}, v{SR+8*h+1}')
    bfly('v_add_f32', 2)
    for h in H: A(f'v_rcp_f32 v{SR+8*h+2}, v{SR+8*h+2}')
    for h in H:
        b = SR + 8 * h
        A(f'v_mul_f32 v{b}, v{b}, v{b+2}'); A(f'v_mul_f32 v{b+1}, v{b+1}, v{b+2}')
    for h in H: A(f'v_cvt_pk_bf16_f32 v{SR+8*h}, v{SR+8*h}, v{SR+8*h+1}')
    for h in H:
        b = SR + 8 * h
        for q in range(4): A(f'v_perm_b32 v{b+4+q}, v{b}, v{b}, v{30+q}')
    OR = 40
    for h in H:
        b = SR + 8 * h + 4
        A(f'{MF} v[{OR+8*h}:{OR+8*h+3}], v[{VR+4*h}:{VR+4*h+3}], v[{b}:{b+3}], 0')
        A(f'{MF} v[{OR+8*h+4}:{OR+8*h+7}], v[{VR+4*h+4}:{VR+4*h+7}], v[{b}:{b+3}], 0')
    spread(a, st, w1n(opt('n2', 22)), lo=opt('n2lo', 8), hi=opt('n2hi', 110))
    a(f's_mul_i32 s28, s{S_RB}, {RSZ}'); a(f's_add_u32 s28, s28, {WS_OF}'); a(f's_mul_i32 s57, s{S_W}, 20480'); a('s_add_u32 s57, s57, s28')
    frag_offsets(a, 57, 58, 3)
    F = 80
    a(f'v_cvt_pk_bf16_f32 v{F}, v{OR}, v{OR+1}'); a(f'v_cvt_pk_bf16_f32 v{F+1}, v{OR+2}, v{OR+3}')
    for t in (1, 2, 3, 4):
        s_ = OR + 8 * (t - 1) + 4
        a(f'v_cvt_pk_bf16_f32 v{F+2*t}, v{s_}, v{s_+1}'); a(f'v_cvt_pk_bf16_f32 v{F+2*t+1}, v{s_+2}, v{s_+3}')
    for t in (1, 2, 3):
        k.setexec((FULL << (16 * t)) & FULL)
        s_ = OR + 8 * t
        a(f'v_cvt_pk_bf16_f32 v{F+2*t}, v{s_}, v{s_+1}'); a(f'v_cvt_pk_bf16_f32 v{F+2*t+1}, v{s_+2}, v{s_+3}')
    a('s_mov_b64 exec, -1')
    fb_fast()
    h = k.stores(frag_store80(F, 57, 58))
    tn(a, 'att')
    XR, ACC = 64 + 28, 40
    GA, GG = 152, 40; X1 = 92
    a(f's_mul_i32 s3, s{S_W}, 5120')
    a('s_add_u32 s57, s28, s3')
    for q in range(4):
        a(f's_add_u32 s3, s{S_W}, {q+1}'); a('s_and_b32 s3, s3, 3')
        a(f's_mul_i32 s58, s3, 20480'); a(f's_add_u32 s{32+q}, s58, s57')
        if q < 3:
            a('s_mul_i32 s58, s3, 15360'); a(f's_add_u32 s58, s58, {q*5120}'); a(f'v_add_u32 v{20+q}, s58, v4')
    a(f's_mul_i32 s58, s{S_W}, 15360'); a('v_add_u32 v23, s58, v4')
    a(f'v_lshlrev_b32 v24, 4, v2'); a(f'v_add_u32 v24, {L_OWN}, v24')
    mod2_fin()
    for t in range(5): a(f'ds_read_b64 v[{10+2*t}:{11+2*t}], v39 offset:{32*t}')
    k.publish(h, 1, 3)
    tn(a, 'pb1')
    for t in w1n(opt('n3', 0)): a(t)
    k.poll(1, 3)
    tn(a, 'p2')
    for q in range(4):
        for i in range(5): a(ld(q4('v', XR + (q * 5 + i) * 4), i, 32 + q, sc1=True))
    prev = []
    for q in range(4):
        ac = ACC + 20 * (q & 1)
        main = []
        for i in range(5):
            for t in range(5):
                c = '0' if i == 0 else q4('v', ac + 4 * t)
                main.append(f'{MF} {q4("v", ac + 4*t)}, {wo_reg(t, i)}, {q4("v", XR + (q*5+i)*4)}, {c}')
        spread(a, main, prev + (w1n(opt('n4', 8)) if q >= 1 else []), lo=4, hi=22)
        prev = [f'ds_write_b128 v{20+q}, {q4("v", ac+4*t)} offset:{1024*t}' for t in range(5)] if q < 3 else []
    tn(a, 'p2m')
    a(f's_add_u32 s31, s28, {WS_X1G - WS_OF}'); a(f's_mul_i32 s57, s{S_W}, 20480'); a('s_add_u32 s57, s57, s31')
    frag_offsets(a, 57, 58, 3)
    a('v_lshlrev_b32 v38, 6, v38'); a(f's_lshl3_add_u32 s59, s{S_J}, s31'); a('s_add_u32 s59, s59, 81920')
    a.wait(lg=0); a.barrier()
    tn(a, 'p2b')
    R = ACC + 20
    for q in range(3):
        for t in range(5): a(f'ds_read_b128 {q4("v", XR + (q*5+t)*4)}, v23 offset:{q*5120+t*1024}')
    for v, b in enumerate((GA, GG)):
        for t in range(5): a(f'ds_read_b128 v[{b+4*t}:{b+4*t+3}], v24 offset:{(20*v+4*t)*16}')
    w2s = [w2_ld(f) for f in range(60)]
    st = []; A = st.append
    for q in range(3):
        for t in range(5):
            r = XR + (q * 5 + t) * 4
            for e in (0, 2): A(f'v_pk_add_f32 v[{R+4*t+e}:{R+4*t+e+1}], v[{R+4*t+e}:{R+4*t+e+1}], v[{r+e}:{r+e+1}]')
        if q == 0:
            for e in range(10): st += unpack(X1 + 2 * e, X1 + 2 * e + 1, 10 + e)
    for e in range(10): A(f'v_pk_fma_f32 v[{X1+2*e}:{X1+2*e+1}], v[{R+2*e}:{R+2*e+1}], v[{GA+2*e}:{GA+2*e+1}], v[{X1+2*e}:{X1+2*e+1}]')
    for e in range(10): A(f'v_cvt_pk_bf16_f32 v{10+e}, v{X1+2*e}, v{X1+2*e+1}')
    for e in range(10): st += unpack(X1 + 2 * e, X1 + 2 * e + 1, 10 + e)
    for e in range(10): A(f'v_pk_mul_f32 v[{R+2*e}:{R+2*e+1}], v[{X1+2*e}:{X1+2*e+1}], v[{GG+2*e}:{GG+2*e+1}]')
    F = 80
    for e in range(10): A(f'v_cvt_pk_bf16_f32 v{F+e}, v{R+2*e}, v{R+2*e+1}')
    spread(a, st, w1n(opt('n5', 8)), hi=opt('n5hi', 60))
    k.stores(frag_store80(F, 57, 58))
    a(f'v_pk_add_f32 v[24:25], v[{X1}:{X1+1}], v[{X1+2}:{X1+3}]'); a(f'v_pk_mul_f32 v[26:27], v[{X1}:{X1+1}], v[{X1}:{X1+1}]')
    for e in range(1, 10):
        p = f'v[{X1+2*e}:{X1+2*e+1}]'
        if e > 1: a(f'v_pk_add_f32 v[24:25], v[24:25], {p}')
        a(f'v_pk_fma_f32 v[26:27], {p}, {p}, v[26:27]')
    a('v_add_f32 v24, v24, v25'); a('v_add_f32 v25, v26, v27')
    for sw in ('v_permlane16_swap_b32', 'v_permlane32_swap_b32'):
        a('v_mov_b32 v26, v24'); a('v_mov_b32 v27, v25')
        a(f'{sw} v24, v26'); a(f'{sw} v25, v27')
        a('v_add_f32 v24, v24, v26'); a('v_add_f32 v25, v25, v27')
    h = k.stores(['s_mov_b64 exec, 0xffff', f'buffer_store_dwordx2 v[24:25], v38, {WSR}, s59 offen', 's_mov_b64 exec, -1'])
    hst = a.vm[-1][0]
    tn(a, 'p2e')
    if opt('ot', 0) == 2: a(OTCH.format(23))
    for t in w1n(99): a(t)
    XF = 40; NB = 6; ACC = 64; U1, T1, T = 88, 100, 112
    a('v_and_b32 v3, 1, v1'); a('v_lshlrev_b32 v3, 6, v3'); a('v_lshl_add_u32 v20, v2, 4, v3'); a(f'v_add_u32 v20, {L_GS}, v20')
    a(f'v_add_u32 v21, {L_X3}, v4'); a(f'v_add_u32 v22, {L_X3 + 40960}, v4')
    def xr(mt, s, slot):
        if mt == 4: return f'ds_read_b128 {q4("v", XF + 4*slot)}, v20 offset:{128*s}'
        return f'ds_read_b128 {q4("v", XF + 4*slot)}, v{21 + mt//2} offset:{((mt%2)*20+s)*1024}'
    PF = NB - 1
    def p3pass(mt, acb, fill, nxt=None, pre=True, lo=6, hi=56, base=0):
        if pre:
            for p in range(PF): a(xr(mt, p, (base + p) % NB))
        main = []
        for s in range(20):
            if s + PF < 20: main.append(xr(mt, s + PF, (base + s + PF) % NB))
            elif nxt is not None: main.append(xr(nxt, s + PF - 20, (base + s + PF) % NB))
            for t in range(3):
                c = '0' if s == 0 else q4('v', acb + 4 * t)
                main.append(f'{MF} {q4("v", acb + 4*t)}, {w1_reg(s*3+t)}, {q4("v", XF + 4*((base + s) % NB))}, {c}')
        spread(a, main, fill, lo=lo * 4 // 3, hi=hi * 4 // 3)
    a(f's_mul_i32 s55, s{S_W}, 5120'); a('s_add_u32 s29, s31, s55'); a(f's_add_u32 s55, s55, {L_X3}')
    def xdma(mt):
        a(f's_add_u32 s30, s29, {mt*20480}'); a(f's_add_u32 m0, s55, {mt*20480}')
        for i in range(4): a(f'buffer_load_dwordx4 v4, {WSR}, s30 offen offset:{1024*i} sc1 lds')
        a(f's_add_u32 m0, s55, {mt*20480 + 4096}')
        return a(f'buffer_load_dwordx4 v5, {WSR}, s30 offen sc1 lds')
    W2E = opt('w2e', 6)
    p3pass(4, ACC + 12, [lambda: k.publish(hst, 2, 3)] + w2s[:W2E], lo=opt('pb2', 18), hi=opt('pb2', 18) + 1 + 2 * W2E)
    for t in w2s[W2E:W2E + opt('w2f', 0)]: a(t)
    W2E += opt('w2f', 0)
    tn(a, 'u1')
    k.poll(2, 3)
    hx = [xdma(0)]
    hx += [xdma(mt) for mt in range(1, 4)]
    C = -LOG2E
    for e in range(12):
        a(f'v_mov_b32_dpp v{U1+e}, v{ACC+12+e} quad_perm:[0,0,2,2] row_mask:0xf bank_mask:0xf')
        a(f'v_mov_b32_dpp v{T1+e}, v{ACC+12+e} quad_perm:[1,1,3,3] row_mask:0xf bank_mask:0xf')
    for e in range(12): a(f'v_mul_f32 v{T1+e}, {fl(C)}, v{T1+e}')
    a(f's_mul_i32 s53, s{S_J}, 6144'); a('s_add_u32 s52, s28, s53')
    a(f's_lshr_b32 s53, s{S_W}, 1'); a('s_lshl_b32 s53, s53, 10'); a('s_add_u32 s53, s53, s52'); a('s_add_u32 s53, s53, 4096')
    a(f's_and_b32 s3, s{S_W}, 1'); a('s_lshl3_add_u32 s53, s3, s53')
    a(f's_lshl_b32 s3, s{S_W}, 10'); a('s_add_u32 s52, s52, s3')
    a(f's_mov_b32 s54, {fl(C)}')
    a('s_add_u32 s30, s31, 81920')
    a('v_lshlrev_b32 v3, 6, v1'); a('v_lshl_add_u32 v3, v2, 4, v3')
    a.wait_id(hx[0]); a.barrier()
    tn(a, 'p3')
    for mt in range(4): a(f'buffer_load_dwordx4 v[{24+4*mt}:{27+4*mt}], v3, {WSR}, s30 offen offset:{1024*mt} sc1')
    M = range(4); st = []; A = st.append
    for m in M: A(f'v_add_f32 v{24+4*m}, v{24+4*m}, v{26+4*m}'); A(f'v_add_f32 v{25+4*m}, v{25+4*m}, v{27+4*m}')
    for sw in ('v_permlane16_swap_b32', 'v_permlane32_swap_b32'):
        for m in M: A(f'v_mov_b32 v{26+4*m}, v{24+4*m}'); A(f'v_mov_b32 v{27+4*m}, v{25+4*m}')
        for m in M: A(f'{sw} v{24+4*m}, v{26+4*m}'); A(f'{sw} v{25+4*m}, v{27+4*m}')
        for m in M: A(f'v_add_f32 v{24+4*m}, v{24+4*m}, v{26+4*m}'); A(f'v_add_f32 v{25+4*m}, v{25+4*m}, v{27+4*m}')
    A(f'v_mov_b32 v3, {fl(1e-5)}')
    for m in M: A(f'v_mul_f32 v{26+4*m}, s56, v{24+4*m}')
    for m in M: A(f'v_fma_f32 v{25+4*m}, v{25+4*m}, s56, v3')
    for m in M: A(f'v_fma_f32 v{25+4*m}, -v{26+4*m}, v{26+4*m}, v{25+4*m}')
    for m in M: A(f'v_max_f32 v{25+4*m}, v{25+4*m}, v3')
    for m in M: A(f'v_rsq_f32 v{24+4*m}, v{25+4*m}')
    for m in M: A(f'v_mul_f32 v{24+4*m}, s54, v{24+4*m}')
    for m in M: A(f'v_mul_f32 v{25+4*m}, -v{26+4*m}, v{24+4*m}')
    hs = {}
    def epi_ops(mt):
        ac = ACC + 12 * (mt & 1); P = 24 + 4 * mt; o = {}
        for e in range(12):
            o['A', e] = ([], f'v_fma_f32 v{T+e}, v{U1+e}, v{P+1}, v{T1+e}')
            o['B', e] = ([('A', e)], f'v_fma_f32 v{ac+e}, v{ac+e}, v{P}, v{T+e}')
            o['X', e] = ([('B', e)], f'v_exp_f32 v{T+e}, v{ac+e}')
            o['C', e] = ([('X', e)], f'v_fma_f32 v{T+e}, v{T+e}, s54, s54')
            o['R', e] = ([('C', e)], f'v_rcp_f32 v{T+e}, v{T+e}')
            o['M', e] = ([('R', e)], f'v_mul_f32 v{ac+e}, v{ac+e}, v{T+e}')
        for e in range(6): o['V', e] = ([('M', 2 * e), ('M', 2 * e + 1)], f'v_cvt_pk_bf16_f32 v{T+e}, v{ac+2*e}, v{ac+2*e+1}')
        return o
    def sto(mt):
        def f():
            hs[mt] = k.stores([f'buffer_store_dwordx4 v[{T}:{T+3}], v4, {WSR}, s52 offen', f'buffer_store_dwordx2 v[{T+4}:{T+5}], v4, {WSR}, s53 offen'])
            d = 49152 if mt != 1 else WS_X1G - WS_OF - 49152
            a(f's_add_u32 s52, s52, {d}'); a(f's_add_u32 s53, s53, {d}')
        return f
    def epi_slots(mt, p0=1):
        o = epi_ops(mt); done = {}; sl = {}; p = p0
        def ready(x, n): return all(d in done and done[d] + (2 if o_k(d) else 0) < n for d in o[x][0])
        def o_k(x): return x[0] in 'XR'
        while len(done) < len(o):
            n = 2 * p
            c = [x for kk in 'RX' for x in o if x[0] == kk and x not in done and ready(x, n)]
            if c: sl.setdefault(n, []).append(o[c[0]][1]); done[c[0]] = n
            n += 1
            for _ in range(opt('npl', 3) if c else 5):
                c2 = [x for kk in 'CBVMA' for x in o if x[0] == kk and x not in done and ready(x, n)]
                if not c2: break
                sl.setdefault(n, []).append(o[c2[0]][1]); done[c2[0]] = n
            p += 1
        sl.setdefault(2 * p, []).append(sto(mt))
        return sl
    def emit(mf, *plans):
        sl = {}
        for pl in plans:
            if isinstance(pl, dict):
                for n, v in pl.items(): sl.setdefault(n, []).extend(v)
            else:
                it, lo, hi = pl
                for i, t in enumerate(it): sl.setdefault((lo + (hi - lo) * i // max(1, len(it))) // 2 * 2, []).append(t)
        assert max(sl) < len(mf), (max(sl), len(mf))
        for n, m_ in enumerate(mf):
            a(m_)
            for t in sl.get(n, []):
                if callable(t): t()
                else: a(t)
    def p3mf(mt, base): return [f'{MF} {q4("v", ACC + 12 * (mt & 1) + 4*t)}, {w1_reg(s*3+t)}, {q4("v", XF + 4*((base + s) % NB))}, {"0" if s == 0 else q4("v", ACC + 12 * (mt & 1) + 4*t)}' for s in range(20) for t in range(3)]
    def p3rd(mt, base, nxt):
        d = {}
        for s in range(20):
            n = (3 * s + 1) // 2 * 2 if s else 0
            n = max(n, 3 * s - 1); n += n & 1
            if s + PF < 20: d.setdefault(min(n, 58), []).append(xr(mt, s + PF, (base + s + PF) % NB))
            elif nxt is not None: d.setdefault(min(n, 58), []).append(xr(nxt, s + PF - 20, (base + s + PF) % NB))
        return d
    def x4reg(q, i):
        if q == 0: return q4('v', 124 + 4 * i)
        if q == 1: return q4('v', 172 + 4 * i)
        if q == 2: return q4('v', 80 + 4 * i) if i < 11 else q4('v', 220)
        return q4('v', 224 + 4 * i) if i < 8 else q4('a', 140 + 4 * (i - 8))
    def x4ld(q): return [ld(x4reg(q, i), i, 32 + q, sc1=True) for i in range(12)]
    SQ = {8: 0, 5: 20480, 6: 40960, 7: 61440}
    def stg(f):
        i, t = divmod(f, 5)
        b, o = (57, SQ[i] + 1024 * t) if i < 9 else (58, 1024 * t)
        return f's_add_u32 m0, s{b}, {o - 1024 * (i % 4)}\nbuffer_load_dwordx4 v{4 + i // 4}, {WSR}, s{44 + t} offen offset:{1024 * (i % 4)}{WB} lds'
    def stg_rd(f):
        i, t = divmod(f, 5)
        if i == 9: return f'ds_read_b128 {w2_reg(f)}, v23 offset:{1024 * t}'
        return f'ds_read_b128 {w2_reg(f)}, v21 offset:{SQ[i] + 1024 * t}' if SQ[i] + 1024 * t < 65536 else f'ds_read_b128 {w2_reg(f)}, v23 offset:{1024 * t}'
    a(f's_mul_i32 s57, s{S_W}, 5120'); a(f's_mul_i32 s58, s{S_W}, 3072'); a(f's_add_u32 s58, s58, {L_XR}')
    HS = {}
    wl = w2s[W2E:25] + [stg(f) for f in list(range(25, 35)) + list(range(40, 48))] + [stg(f) for f in range(35, 40)] + [lambda: HS.update(s=a.vm[-1][0])]
    L0 = opt('l0', 13); L1 = opt('l1', 14)
    def wbe():
        a(f's_lshl2_add_u32 s3, s2, s{S_W}'); a('s_and_b32 s3, s3, 0x3e3'); a('s_cbranch_scc0 WBL1')
        a(k.poll_issue(23)); a.label('WBR1')
        k.tail.append('WBL1:\n  buffer_wbl2 sc1\n  s_branch WBR1')
    WB1 = opt('wb1', -1); wbd = lambda p: {WB1 - 60 * p: [wbe]} if 60 * p <= WB1 < 60 * p + 60 else {}
    assert len(wl) - L0 >= 6
    for p in range(PF): a(xr(0, p, p % NB))
    emit(p3mf(0, 0), p3rd(0, 0, None), (wl[:L0], 2, opt('l0hi', 56)), {n: st[4 * ((n - 15) // 2):4 * ((n - 15) // 2) + 4] for n in range(15, 59, 2)}, wbd(0))
    assert len(st) <= 88
    a(f's_mul_i32 s3, s{S_W}, 12288'); a('s_add_u32 s32, s28, s3'); a('s_add_u32 s33, s32, 49152'); a('s_add_u32 s34, s31, s3'); a('s_add_u32 s35, s34, 49152')
    a('v_bfe_u32 v20, v0, 3, 2'); a('v_lshl_add_u32 v20, v20, 7, v9'); a('s_and_b32 s29, s27, 0xfffffe00')
    a.wait_id(hx[3]); a.barrier()
    tn(a, 'a0')
    for p in range(PF): a(xr(1, p, p % NB))
    PB = opt('pb', 14)
    emit(p3mf(1, 0), p3rd(1, 0, 2), epi_slots(0), (wl[L0:L0 + L1], 0, 54), wbd(1))
    tn(a, 'a1')
    emit(p3mf(2, 20), p3rd(2, 20, 3), epi_slots(1), {PB: [lambda: k.publish(hs[0], 3, 3)]}, (wl[L0 + L1:], 0, 54), {58: [k.poll_issue(3, 20, 29), 'v_add_u32 v21, s57, v4']})
    tn(a, 'a2')
    x0, x1, x2, x3 = (x4ld(q) for q in range(4))
    late = w2s[48:]
    rd = {}
    for f in list(range(25, 39)) + list(range(40, 45)): rd.setdefault(max(f - 25 + 3, 8 + 2 * (f - 25)) // 2 * 2, []).append(stg_rd(f))
    rd[6] = [lambda: a.wait_id(HS['s'])]
    rd.setdefault(48, []).extend(['v_add_u32 v23, 61440, v21', stg_rd(39)]); rd.setdefault(50, []).extend(['v_add_u32 v23, s58, v4', stg_rd(45)])
    rd.setdefault(52, []).append(stg_rd(46)); rd.setdefault(54, []).append(stg_rd(47))
    NL = opt('nl', 4); PC = opt('pc', 8)
    emit(p3mf(3, 40), p3rd(3, 40, None), epi_slots(2), {PC: [lambda: k.poll_check(3, 3, 20, 29)], PB: [lambda: k.publish(hs[1], 4, 3)]}, rd,
         (x0[:9], PC + 2, 40), (late[:NL], 42, 56), {58: [k.poll_issue(3)]})
    tn(a, 'p4')
    def ac4(q, t): return q4('v', 40 + 4 * t) if q % 2 == 0 else q4('v', 60 + 4 * t if t < 4 else 24)
    def p4mf(q, i0, i1): return [f'{MF} {ac4(q, t)}, {w2_reg(i*5+t)}, {x4reg(q, i)}, {"0" if i == 0 else ac4(q, t)}' for i in range(i0, i1) for t in range(5)]
    def red(q): return [f'ds_write_b128 v{21 if q < 3 else 23}, {ac4(q, t)} offset:{(q%3)*20480 + 1024*t}' for t in range(5)]
    mf = p4mf(0, 0, 9) + p4mf(1, 0, 9) + p4mf(0, 9, 12) + p4mf(1, 9, 12) + p4mf(2, 0, 12) + p4mf(3, 0, 12)
    def wb():
        n = opt('wb2', 1)
        if not n: return
        a(f's_lshl2_add_u32 s3, s2, s{S_W}'); a(f's_and_b32 s3, s3, {hex({1: 0x3e3, 2: 0x383, 3: 3}[n])}'); a('s_cbranch_scc0 WBL')
        a(k.poll_issue(20)); a.label('WBR')
        k.tail.append('WBL:\n  buffer_wbl2 sc1\n  s_branch WBR')
    VA, VB, VC, VX, VG, VO, VO4 = range(176, 183)
    OB = ['', ' sc1', ' nt', ' sc0 sc1', ' sc1 nt'][opt('ob', 0)]
    adr = [f's_lshl_b32 s3, s{S_W}, 10', f'v_add_u32 v{VA}, s3, v4', f'v_add_u32 v{VB}, 61440, v{VA}', f's_mul_i32 s49, s{S_W}, 20480', 's_add_u32 s3, s49, 4096', f'v_add_u32 v{VC}, s3, v4',
           f's_lshl_b32 s3, s{S_W}, 9', f's_add_u32 s3, s3, {L_XR}', f'v_lshl_add_u32 v{VX}, v0, 3, s3', f's_lshl_b32 s3, s{S_W}, 6', f'v_lshl_add_u32 v{VG}, v2, 4, s3', f'v_add_u32 v{VG}, {L_OWN + 640}, v{VG}',
           f'v_mul_u32_u24 v{VO}, 1280, v1', f'v_lshl_add_u32 v{VO}, v2, 3, v{VO}', f'v_add_u32 v{VO4}, s49, v{VO}', f's_lshl_b32 s3, s{S_W}, 5', f'v_add_u32 v{VO}, s3, v{VO}',
           f's_mul_i32 s49, s{S_RB}, 81920', 's_add_u32 s61, s61, s49', f'v_lshlrev_b32 v183, 4, v2', f'v_add_u32 v183, {L_OWN + 640 + 256}, v183']
    rdc = [f'ds_read_b128 v[168:171], v{VG}', 'ds_read_b128 v[172:175], v183'] + [f'ds_read_b64 v[{156+2*q}:{157+2*q}], v{VX} offset:{3072*q}' for q in range(4)]
    def unit(q, b):
        P = 124 + 16 * b; X = 164 if q < 4 else 184; G = 168 if q < 4 else 172
        rd = [f'ds_read_b128 {q4("v", P + 4*s_)}, v{VC if q == 4 else VB if q == 3 else VA} offset:{(q*20480 if q < 3 else 0) + 5120*s_}' for s_ in range(4)]
        l = []
        if q < 4: l += unpack(X, X + 1, 156 + 2 * q) + unpack(X + 2, X + 3, 157 + 2 * q)
        l += [f'v_add_f32 v{P+e}, v{P+e}, v{P+4+e}' for e in range(4)] + [f'v_add_f32 v{P+8+e}, v{P+8+e}, v{P+12+e}' for e in range(4)] + [f'v_add_f32 v{P+e}, v{P+e}, v{P+8+e}' for e in range(4)]
        l += [f'v_fma_f32 v{P+e}, v{P+e}, v{G+e}, v{X+e}' for e in range(4)] + [f'v_cvt_pk_bf16_f32 v{188+2*q+e}, v{P+2*e}, v{P+2*e+1}' for e in range(2)]
        if not (q < 3 and q >= DS): l.append(ost(q))
        return rd, l
    DS = opt('ds', 0)
    def ost(q):
        if q < 4: return f's_add_u32 s3, s61, {20480*q}\nbuffer_store_dwordx2 v[{188+2*q}:{189+2*q}], v{VO}, s[{S_O}:{S_O+3}], s3 offen{OB}'
        return f'buffer_store_dwordx2 v[196:197], v{VO4}, s[{S_O}:{S_O+3}], s61 offen offset:128{OB}'
    u4a = unpack(184, 185, 18) + unpack(186, 187, 19)
    def odd(l, n0): return {n0 + 2 * (i // 3): l[i // 3 * 3:i // 3 * 3 + 3] for i in range(0, len(l), 3)}
    def bar(): a.wait(lg=0); a.barrier()
    B1, B2_ = opt('rb1', 144), opt('rb2', 204)
    e3 = epi_slots(3); E3 = max(e3)
    o = lambda n, d: opt(n, d)
    ky = [o('c4', 6), PB, o('i5', 48), E3 + 2, E3 + PB, o('i6', 96), o('c6', 108), 45, 90, 120, 180, o('wbp', 130), 2, B1, B2_]
    assert len(set(ky)) == len(ky), ky
    assert len({PB, PC, 58}) == 3
    emit(mf, e3, {o('c4', 6): [lambda: k.poll_check(4, 3)], PB: [lambda: k.publish(hs[2], 5, 3)], o('i5', 48): [k.poll_issue(3)], E3 + 2: [lambda: k.poll_check(5, 3)],
                  E3 + PB: [lambda: k.publish(hs[3], 6, 3)], o('i6', 96): [k.poll_issue(3)], o('c6', 108): [lambda: k.poll_check(6, 3)],
                  45: [lambda: tn(a, 'e3')], 90: [lambda: tn(a, 'q0')], 120: [lambda: tn(a, 'q1')], 180: [lambda: tn(a, 'q2')],
                  o('wbp', 130): [wb], 2: ['v_add_u32 v23, 61440, v21', 'v_lshl_add_u32 v22, v0, 3, s58'], B1: [bar], B2_: [bar]},
         ([f'ds_write_b64 v22, v[{10+2*t}:{11+2*t}] offset:{512*t}' for t in range(4)], 4, 12), odd(adr, 121), (rdc + unit(0, 0)[0] + unit(1, 1)[0], B1 + 2, B1 + 14),
         odd(unit(0, 0)[1] + unit(1, 1)[1], B1 + 13), (unit(2, 0)[0], B2_ + 2, B2_ + 6), odd(unit(2, 0)[1] + u4a, B2_ + 9),
         (x1[:9], o('c4', 6) + 2, o('x1hi', 30)), (late[NL:] + x0[9:] + x1[9:], o('x1hi', 30), o('lhi', 72)), (x2, max(E3 + 4, o('lhi', 72)), o('x2hi', 104)), (x3, o('c6', 108) + 2, o('x3hi', 128)),
         (red(0), 108, 118), (red(1), 124, 140), (red(2), 184, 200))
    prev = red(3)
    for t in prev: a(t)
    for q in range(DS, 3): a(ost(q))
    tn(a, 'p4e')
    bar()
    r3, c3 = unit(3, 1); r4, c4 = unit(4, 0)
    for t in r3 + r4 + c3 + c4: a(t)
    gen1.epilogue(a, 'p0')
    for t in k.tail: a.raw(t)
    a.raw('CODE_END:')
    return LDS_SIZE
if __name__ == '__main__':
    t, d, lds = gen1.kernel_text(gen1.NAME + '_kernel', main_kernel)
    open(sys.argv[1], 'w').write(f'; @launch grid=(256,1,1) block=(256,1,1) lds={lds}\n.amdgcn_target "amdgcn-amd-amdhsa--gfx950"\n.text\n' + t + '.section .rodata,"a"\n.p2align 6\n' + d)
```
